```python
import torch

def _softmax(x, axis=-1):
    return torch.softmax(x, dim=axis)
def _gelu(x):
    return torch.nn.functional.gelu(x, approximate="tanh")
def _silu(x):
    return torch.nn.functional.silu(x)
def _sigmoid(x):
    return torch.sigmoid(x)
def _layernorm(x, axis=-1, eps=1e-5):
    m = x.mean(dim=axis, keepdim=True)
    v = x.var(dim=axis, keepdim=True, unbiased=False)
    return (x - m) / torch.sqrt(v + eps)
def _scatter_add(tgt, idx, src, axis=0):
    return tgt.clone().index_add_(axis, idx, src)
def _segment_sum(src, seg, n):
    out = torch.zeros((n,) + src.shape[1:], dtype=src.dtype)
    return out.index_add_(0, seg, src)
def _pad(x, pw):
    flat = tuple(v for pair in reversed(pw) for v in pair)
    return torch.nn.functional.pad(x, flat)

kernel_name = 'gated_mix__sliding_block__glu_gated_glu__prompt'

def setup_inputs():

    _w = (lambda a: (lambda t: t.to(torch.bfloat16) if t.is_floating_point() else t)(torch.as_tensor(a)))
    def _A_setup():
        B, S, D = 1, 2048, 448
        return {
            "x": _w((lambda *s: torch.randn(*s, dtype=torch.bfloat16) * 0.05)(B, S, D)),
            "wqkv": _w((lambda *s: torch.randn(*s, dtype=torch.bfloat16) * 1.6)(D, 3 * D)),
            "wo": _w((lambda *s: torch.randn(*s, dtype=torch.bfloat16) * 0.05)(D, D)),
        }
    _A_in = _A_setup()

    def _B_setup():
        B, S, D, F = 1, 2048, 448, 1792
        return {
            "x": _w((lambda *s: torch.randn(*s, dtype=torch.bfloat16) * 0.05)(B, S, D)),
            "w_gate": _w((lambda *s: torch.randn(*s, dtype=torch.bfloat16) * 3.2)(D, F)),
            "w_up": _w((lambda *s: torch.randn(*s, dtype=torch.bfloat16) * 0.2)(D, F)),
            "w_down": _w((lambda *s: torch.randn(*s, dtype=torch.bfloat16) * 0.2)(F, D)),
        }
    _B_in = _B_setup()

    return {
        "A_x": _A_in["x"],
        "A_wqkv": _A_in["wqkv"],
        "A_wo": _A_in["wo"],
        "B_x": _B_in["x"],
        "B_w_gate": _B_in["w_gate"],
        "B_w_up": _B_in["w_up"],
        "B_w_down": _B_in["w_down"],
        "gate_w": _w((lambda *s: torch.randn(*s, dtype=torch.bfloat16) * 0.05)(448) * 16.0),
    }

def reference(A_x, A_wqkv, A_wo, B_x, B_w_gate, B_w_up, B_w_down, gate_w):
    def _A_ref(x, wqkv, wo):
        B, S, D = x.shape
        H = 16; Dh = D // H; W = 256
        qkv = (lambda x, *d: x.permute(*d))((x @ wqkv).reshape(B, S, 3, H, Dh), 2, 0, 3, 1, 4)
        q, k, v = qkv[0], qkv[1], qkv[2]
        scores = torch.einsum("bhqd,bhkd->bhqk", q, k) * (Dh ** -0.5)
        idx = torch.arange(S)
        mask = (idx[:, None] - idx[None, :] >= 0) & (idx[:, None] - idx[None, :] < W)
        scores = torch.where(mask[None, None], scores, -1e9)
        p = _softmax(scores, axis=-1)
        o = torch.einsum("bhqk,bhkd->bhqd", p, v)
        return (lambda x, *d: x.permute(*d))(o, 0, 2, 1, 3).reshape(B, S, D) @ wo

    def _B_ref(x, w_gate, w_up, w_down):
        g = torch.einsum("bsd,df->bsf", x, w_gate)
        u = torch.einsum("bsd,df->bsf", x, w_up)
        h = _sigmoid(g) * u
        return torch.einsum("bsf,fd->bsd", h, w_down)

    x = A_x
    g = _sigmoid((x * gate_w).sum(-1, keepdims=True))
    a = _A_ref(x, A_wqkv, A_wo)
    b = _B_ref(x, B_w_gate, B_w_up, B_w_down)
    return g * a + (1 - g) * b
```

```python
import re

_RANGE = re.compile(r"^([vas])\[(\d+):(\d+)\]$")
_SINGLE = re.compile(r"^([vas])(\d+)$")


def regs_of(op):
    op = op.strip()
    if op.startswith("-"):
        op = op[1:]
    if op.startswith("abs(") or op.startswith("|"):
        op = op.strip("|").replace("abs(", "").rstrip(")")
    m = _RANGE.match(op)
    if m:
        return [f"{m.group(1)}{i}" for i in range(int(m.group(2)), int(m.group(3)) + 1)]
    m = _SINGLE.match(op)
    if m:
        return [op]
    if op in ("vcc", "exec", "m0", "scc"):
        return [op]
    if op in ("vcc_lo", "vcc_hi"):
        return ["vcc"]
    if op in ("exec_lo", "exec_hi"):
        return ["exec"]
    return []


def is_literal(op):
    op = op.strip()
    if regs_of(op) or op in ("off", "null"):
        return False
    try:
        if op.startswith("0x") or op.startswith("-0x"):
            v = int(op, 16)
        elif re.match(r"^-?\d+$", op):
            v = int(op)
        else:
            f = float(op)
            return f not in (0.5, -0.5, 1.0, -1.0, 2.0, -2.0, 4.0, -4.0, 0.0)
        return not (-16 <= v <= 64)
    except ValueError:
        return True


TRANS = ("v_exp_f32", "v_log_f32", "v_rcp_f32", "v_rsq_f32", "v_sqrt_f32", "v_sin_f32", "v_cos_f32")
DUAL = ("v_mov_b32", "v_add_f32", "v_sub_f32", "v_subrev_f32", "v_mul_f32", "v_max_f32", "v_min_f32", "v_and_b32",
        "v_or_b32", "v_xor_b32", "v_add_u32", "v_sub_u32", "v_subrev_u32", "v_lshlrev_b32", "v_lshrrev_b32",
        "v_mul_u32_u24", "v_exp_f32", "v_rcp_f32", "v_max_u32", "v_min_u32", "v_max_i32", "v_ashrrev_i32",
        "v_cvt_f32_u32", "v_cvt_u32_f32", "v_fmac_f32", "v_not_b32")


class Ins:
    __slots__ = ("text", "op", "kind", "rd", "wr", "size", "tag", "srcc", "wide_store", "dual", "comment")

    def __init__(self, text, tag=None):
        self.tag = tag
        self.srcc = []
        self.wide_store = []
        self.dual = False
        t = text.strip()
        self.text = t
        if t.endswith(":") or t.startswith("."):
            self.op = "label" if t.endswith(":") else "directive"
            self.kind = self.op
            self.rd, self.wr, self.size = [], [], 0
            return
        parts = t.split(None, 1)
        op = parts[0]
        base = re.sub(r"_e(32|64)$", "", op)
        self.op = base
        rest = parts[1] if len(parts) > 1 else ""
        ops = []
        depth = 0
        cur = ""
        for ch in rest:
            if ch in "[(":
                depth += 1
            if ch in "])":
                depth -= 1
            if ch == "," and depth == 0:
                ops.append(cur.strip())
                cur = ""
            else:
                cur += ch
        mods = ""
        if cur.strip():
            last = cur.strip().split(None, 1)
            ops.append(last[0])
            mods = last[1] if len(last) > 1 else ""
        R = lambda lst: [r for o in lst for r in regs_of(o)]
        rd, wr = [], []
        size = 4
        if base.startswith("v_mfma"):
            kind = "mfma"
            wr = R(ops[:1]); rd = R(ops[1:4]); self.srcc = R(ops[3:4]); size = 8
        elif base.startswith("ds_read"):
            kind = "ds"; wr = R(ops[:1]); rd = R(ops[1:]); size = 8
        elif base.startswith("ds_write"):
            kind = "ds"; rd = R(ops); size = 8
        elif base.startswith("buffer_load") or base.startswith("global_load"):
            size = 8
            if " lds" in (" " + mods) or "lds" in base:
                kind = "vmem"; rd = R(ops) + ["m0"]
            else:
                kind = "vmem"; wr = R(ops[:1]); rd = R(ops[1:])
        elif base.startswith("buffer_store") or base.startswith("global_store") or base.startswith("buffer_atomic") or base.startswith("global_atomic"):
            kind = "vmem"; rd = R(ops); size = 8
            if base.endswith("x4") or base.endswith("x3"):
                self.wide_store = R(ops[:1]) if base.startswith("buffer") else R(ops[1:2])
        elif base.startswith("s_load") or base.startswith("s_memtime") or base.startswith("s_memrealtime"):
            kind = "smem"; wr = R(ops[:1]); rd = R(ops[1:]); size = 8
        elif base in ("s_waitcnt", "s_nop", "s_barrier", "s_endpgm", "s_setprio", "s_sleep", "s_branch"):
            kind = "sopp"
        elif base.startswith("s_cbranch"):
            kind = "sopp"
            rd = ["scc"] if "scc" in base else (["vcc"] if "vcc" in base else ["exec"])
        elif base.startswith("s_cmp") or base.startswith("s_bitcmp"):
            kind = "salu"; wr = ["scc"]; rd = R(ops)
            size = 8 if any(is_literal(o) for o in ops) else 4
        elif base.startswith("s_"):
            kind = "salu"; wr = R(ops[:1]); rd = R(ops[1:])
            if base in ("s_cselect_b32", "s_cselect_b64", "s_addc_u32", "s_subb_u32"):
                rd = rd + ["scc"]
            if base not in ("s_mov_b32", "s_mov_b64", "s_movk_i32", "s_cselect_b32", "s_cselect_b64", "s_mul_i32",
                            "s_mul_hi_u32", "s_getpc_b64", "s_getreg_b32"):
                wr = wr + ["scc"]
            if "saveexec" in base:
                wr = wr + ["exec"]; rd = rd + ["exec"]
            if base in ("s_movk_i32", "s_getreg_b32", "s_addk_i32"):
                size = 4
            else:
                size = 8 if any(is_literal(o) for o in ops[1:]) else 4
        elif base.startswith("v_"):
            kind = "trans" if base in TRANS else "valu"
            wr = R(ops[:1]); rd = R(ops[1:])
            if base in ("v_fmac_f32", "v_dot2c_f32_bf16"):
                rd = rd + wr
            if base.startswith("v_permlane"):
                wr = R(ops[:2]); rd = R(ops[:2])
            if base == "v_cndmask_b32" and len(ops) == 3:
                rd = rd + ["vcc"]
            lit = any(is_literal(o) for o in ops[1:])
            if op.endswith("_e64"):
                size = 8
            elif op.endswith("_e32"):
                size = 8 if lit else 4
            elif base in DUAL:
                can32 = not mods and not any(o.startswith("-") and regs_of(o) for o in ops[1:])
                if can32 and len(ops) == 3 and not (regs_of(ops[2]) and regs_of(ops[2])[0][0] == "v"):
                    can32 = False
                if lit:
                    size = 8
                elif can32:
                    self.dual = True
                    size = 8
                else:
                    size = 8
            elif base.startswith("v_cmp"):
                size = 4 if (ops[0] == "vcc" and not lit and regs_of(ops[2]) and regs_of(ops[2])[0][0] == "v") else 8
            elif base == "v_cndmask_b32":
                size = 4 if (ops[-1] == "vcc" and not lit and regs_of(ops[2]) and regs_of(ops[2])[0][0] == "v") else 8
            elif base in ("v_readfirstlane_b32", "v_permlane32_swap_b32", "v_permlane16_swap_b32", "v_accvgpr_mov_b32", "v_nop"):
                size = 4
            else:
                size = 8
        else:
            raise ValueError("unknown instr " + t)
        self.kind, self.rd, self.wr, self.size = kind, rd, wr, size


class Builder:
    def __init__(self, align_opt=True):
        self.out = []
        self.lg = []
        self.vm = []
        self.off = 0
        self.align_opt = align_opt
        self.nops_added = 0

    def snapshot(self):
        return (list(self.lg), list(self.vm), list(self.out[-40:]))

    def restore(self, snap):
        self.lg, self.vm = list(snap[0]), list(snap[1])
        self.hist_override = list(snap[2])
        self.hist_base = len(self.out)

    hist_override = None
    hist_base = 0

    def _history(self):
        if self.hist_override is not None and len(self.out) - self.hist_base < 40:
            return self.hist_override + self.out[self.hist_base:]
        return self.out[-40:]

    def _emit(self, ins):
        if ins.dual:
            op, _, rest = ins.text.partition(" ")
            if self.align_opt and self.off % 8 == 0:
                ins.text = op + "_e64 " + rest; ins.size = 8
            else:
                ins.text = op + "_e32 " + rest; ins.size = 4
        self.out.append(ins)
        self.off += ins.size

    def label(self, name):
        self._emit(Ins(name + ":"))

    def raw(self, text):
        self._emit(Ins(text))

    def align8(self):
        if self.off % 8:
            self._emit(Ins("s_nop 0"))

    def _need_waits(self, ins):
        touched = set(ins.rd) | set(ins.wr)
        lgn = vmn = None
        for i, (d, _t) in enumerate(self.lg):
            if d & touched:
                lgn = len(self.lg) - 1 - i
        for i, (d, _t) in enumerate(self.vm):
            if d & touched:
                vmn = len(self.vm) - 1 - i
        return vmn, lgn

    def waitcnt(self, vm=None, lg=None):
        parts = []
        if vm is not None and vm < len(self.vm):
            vm_e = min(vm, 63)
            parts.append(f"vmcnt({vm_e})")
            self.vm = self.vm[len(self.vm) - vm_e:] if vm_e else []
        if lg is not None and lg < len(self.lg):
            lg_e = min(lg, 15)
            parts.append(f"lgkmcnt({lg_e})")
            self.lg = self.lg[len(self.lg) - lg_e:] if lg_e else []
        if parts:
            self._emit(Ins("s_waitcnt " + " ".join(parts)))

    def wait_tags(self, vm_tags=(), lg_all=False, force=False):
        vmn = None
        for i, (_d, t) in enumerate(self.vm):
            if t in vm_tags:
                vmn = len(self.vm) - 1 - i
        self.waitcnt(vm=vmn, lg=0 if lg_all else None)

    def wait_all(self):
        self._emit(Ins("s_waitcnt vmcnt(0) lgkmcnt(0)"))
        self.vm, self.lg = [], []

    def _hazard_states(self, ins):
        hist = [h for h in self._history() if h.kind not in ("label", "directive")]
        need = 0
        dist = 0
        rd, wr = set(ins.rd), set(ins.wr)
        isv = ins.kind in ("valu", "trans")
        for h in reversed(hist):
            hw = set(h.wr)
            req = 0
            hv = h.kind in ("valu", "trans")
            if h.kind == "mfma":
                if ins.kind == "mfma":
                    c = set(ins.srcc)
                    ab = rd - c
                    if hw & ab:
                        req = max(req, 12)
                    if hw & c and not (hw == c):
                        req = max(req, 10)
                    if hw & wr and not (hw & c):
                        req = max(req, 12)
                elif (hw & (rd | wr)) and ins.kind in ("valu", "trans", "vmem", "ds"):
                    req = max(req, 12)
                if isv and (set(h.srcc) & wr):
                    req = max(req, 7)
            if hv:
                hvg = {r for r in hw if r[0] in "va" and r != "vcc"}
                hsg = {r for r in hw if r[0] == "s" or r == "vcc"}
                if ins.kind == "mfma" and (hvg & rd):
                    req = max(req, 2)
                if ins.kind == "mfma" and "exec" in hw:
                    req = max(req, 4)
                if ins.op.startswith("v_permlane") and (hvg & rd):
                    req = max(req, 2)
                if ins.op in ("v_readfirstlane_b32", "v_readlane_b32") and (hvg & rd):
                    req = max(req, 1)
                if ins.kind == "vmem" and (hsg & rd):
                    req = max(req, 5)
                if isv and (hsg & rd):
                    req = max(req, 2)
                if ins.kind in ("salu", "sopp") and (hsg & rd):
                    req = max(req, 2)
                if h.kind == "trans" and ins.kind in ("valu", "mfma", "vmem", "ds") and (hvg & rd):
                    req = max(req, 2 if ins.kind == "mfma" else 1)
            if h.kind == "salu" and "m0" in hw and ins.kind == "vmem" and "m0" in rd:
                req = max(req, 1)
            if h.wide_store and (set(h.wide_store) & wr):
                req = max(req, 2)
            if req - dist > need:
                need = req - dist
            if h.op == "s_nop":
                dist += int(h.text.split()[1]) + 1
            else:
                dist += 1
            if dist >= 20:
                break
        return need

    def I(self, text, tag=None):
        for line in text.split("\n"):
            line = line.split(";")[0].strip()
            if not line:
                continue
            ins = Ins(line, tag)
            if ins.kind in ("label", "directive"):
                self._emit(ins)
                continue
            vmn, lgn = self._need_waits(ins)
            if vmn is not None or lgn is not None:
                self.waitcnt(vm=vmn, lg=lgn)
            n = self._hazard_states(ins)
            while n > 0:
                k = min(n, 16)
                self._emit(Ins(f"s_nop {k-1}"))
                self.nops_added += k
                n -= k
            self._emit(ins)
            if ins.kind == "ds":
                self.lg.append((set(ins.wr), tag))
                if len(self.lg) > 15:
                    pass
            elif ins.kind == "vmem":
                self.vm.append((set(ins.wr), tag))
                assert len(self.vm) <= 63, "too many VMEM ops outstanding"
            elif ins.op == "s_waitcnt":
                m = re.search(r"vmcnt\((\d+)\)", line)
                if m:
                    n = int(m.group(1)); self.vm = self.vm[len(self.vm) - n:] if n and n < len(self.vm) else ([] if n == 0 else self.vm)
                m = re.search(r"lgkmcnt\((\d+)\)", line)
                if m:
                    n = int(m.group(1)); self.lg = self.lg[len(self.lg) - n:] if n and n < len(self.lg) else ([] if n == 0 else self.lg)

    def text(self):
        lines = []
        for i in self.out:
            lines.append(i.text if i.kind in ("label", "directive") else "    " + i.text)
        return "\n".join(lines) + "\n"
```

```python
import sys, math, argparse
from asmb import Builder

KNAME = "gated_mix__sliding_block__glu_gated_glu__prompt_kernel"
K = 1024
QKV_OFF = 0
QKV_MT = 168 * 512
HO_OFF = 0x600000
HO_MT = 144 * 1024
Z_OFF = 0xF00000
FL_OFF = 0xF10000
E_OFF = 0xF20000
TS_OFF = 0xF30000
WS_SIZE = 0x1000000
SLOT = 40 * K
CHUNK = 10 * K
PB_BASE = [120 * K, 136 * K, 0, 16 * K, 48 * K, 64 * K, 80 * K]
KV_K = 48 * K
KV_V = 72 * K
NEG = 0xF149F2CA
LOG2E = 1.4426950408889634
SPIN_MAX = 1 << 18


def f32hex(x):
    import struct
    return "0x%08x" % struct.unpack("<I", struct.pack("<f", x))[0]


class G:
    def __init__(self, opt):
        self.o = opt
        self.b = Builder(align_opt=opt.align)
        self.nts = 0

    S_X, S_A, S_B, S_C, S_WS, S_DBG, S_WD, S_WO, S_OUT, S_GW = 8, 12, 16, 20, 24, 28, 32, 36, 40, 44
    sWV, sRB, sJ, sISV = 48, 49, 50, 51
    sX, sA, sB, sC = 52, 53, 54, 55
    sSAB, sSC = 56, 57
    sM0 = 58
    sM0B = 59
    sA2, sB2, sBN2 = 60, 61, 62
    sTAG = 63
    sQ0, sQ1 = 64, 65
    sH0, sH1 = 66, 67
    sT0, sT1, sT2, sT3 = 68, 69, 70, 71
    sNL2E, sNL2E1 = 72, 73
    sCS, sCS1 = 74, 75
    sMSK = 76
    sSPIN = 78
    sPAR = 80
    sKT = 82
    sFIN = 52
    sFW = 53
    sFH = 54
    sFWO = 55
    sFM0, sFM1 = 56, 57
    sOO = 58
    sFO = 60
    sTS = 79
    sEX = 96
    sTM = 100
    sMSK2 = 98
    vL16 = 1
    vXD = 2
    vWD = 6
    vXR = 12
    vWR = 24
    vT = 33
    vPOLL = 48
    vZ = 49
    vFL = 50
    ACC_A = 52
    ACC_B = 148
    vE = 212
    WF = 224

    def I(self, t, tag=None):
        self.b.I(t, tag)

    def srd(self, s, lo, hi, size):
        self.I(f"s_mov_b32 s{s}, {lo}\ns_mov_b32 s{s+1}, {hi}\ns_mov_b32 s{s+2}, {size}\ns_mov_b32 s{s+3}, 0x20000")

    def ts(self):
        if not self.o.ts:
            return
        n = self.nts
        self.nts += 1
        self.b.raw(f"s_memrealtime s[{self.sTM}:{self.sTM+1}]")
        self.b.raw("s_waitcnt lgkmcnt(0)")
        self.b.lg = []
        self.I(f"v_mov_b32 v{self.vT}, s{self.sTM}\nv_mov_b32 v{self.vT+1}, 0")
        self.I(f"s_mov_b64 s[{self.sEX}:{self.sEX+1}], exec\ns_mov_b64 exec, 1")
        self.I(f"buffer_store_dword v{self.vT}, v{self.vT+1}, s[{self.S_WS}:{self.S_WS+3}], s{self.sTS} offen offset:{4*n}")
        self.I(f"s_mov_b64 exec, s[{self.sEX}:{self.sEX+1}]")

    def lds(self, base, n, idx, const):
        return f"v{base + (const >> 16) * n + idx}", const & 0xFFFF

    def xf(self, M, n):
        r = (M * 28 + n) * 4
        return f"a[{r}:{r+3}]"

    def wf(self, bufset, t):
        r = self.WF + bufset * 12 + t * 4
        return r

    def acc(self, base, t, M):
        r = base + (t * 2 + M) * 16
        return r

    def prologue(self):
        I = self.I
        b = self.b
        I("s_cmp_ge_u32 s2, 0x100\ns_cbranch_scc1 L_exit")
        b.raw("s_load_dwordx16 s[64:79], s[0:1], 0")
        b.raw("s_load_dwordx4 s[80:83], s[0:1], 64")
        b.raw("s_load_dwordx2 s[84:85], s[0:1], 80")
        I("s_getpc_b64 s[4:5]")
        b.label("L_pc")
        I("v_lshlrev_b32 v33, 7, v0\nv_min_u32 v33, L_exit-L_pc, v33")
        I("global_load_dword v34, v33, s[4:5]", tag="pf")
        I("v_lshrrev_b32 v35, 6, v0\nv_and_b32 v0, 63, v0")
        I(f"v_readfirstlane_b32 s{self.sWV}, v35")
        I("s_and_b32 s3, s2, 7\ns_lshr_b32 s6, s2, 3")
        I(f"s_and_b32 s7, s3, 1\ns_lshl_b32 s7, s7, 3\ns_and_b32 s{self.sRB}, s6, 7\ns_add_u32 s{self.sRB}, s{self.sRB}, s7")
        I(f"s_lshr_b32 s7, s3, 1\ns_lshl_b32 s7, s7, 2\ns_lshr_b32 s{self.sJ}, s6, 3\ns_add_u32 s{self.sJ}, s{self.sJ}, s7")
        I(f"v_lshlrev_b32 v{self.vL16}, 4, v0")
        I("v_lshrrev_b32 v35, 3, v0\nv_and_b32 v36, 7, v0\nv_lshrrev_b32 v37, 4, v0")
        I("v_mul_u32_u24 v38, 0x380, v35")
        I("v_xor_b32 v39, v36, v37\nv_lshl_add_u32 v2, v39, 4, v38")
        I(f"v_xor_b32 v3, 64, v2\nv_add_u32 v3, {8*896-1024}, v3")
        I(f"v_add_u32 v4, {16*896-2048}, v2\nv_add_u32 v5, {16*896-2048}, v3")
        I("v_and_b32 v39, 2, v35\nv_lshlrev_b32 v39, 1, v39\nv_xor_b32 v39, v36, v39\nv_lshlrev_b32 v39, 4, v39")
        I(f"s_cmp_ge_u32 s{self.sJ}, 14\ns_cselect_b32 s{self.sISV}, 1, 0")
        I("s_movk_i32 s7, 0xe00\ns_movk_i32 s86, 0xa80\ns_cselect_b32 s7, s86, s7")
        I("v_mul_u32_u24 v40, 0xa80, v35\nv_add_u32 v10, v40, v39")
        I(f"v_add_u32 v11, {8*2688-1024}, v10")
        I("v_mul_u32_u24 v40, s7, v35\nv_add_u32 v6, v40, v39")
        I("s_lshl_b32 s86, s7, 3\ns_sub_u32 s86, s86, 0x400\nv_add_u32 v7, s86, v6")
        I("v_xor_b32 v8, 32, v6\nv_xor_b32 v9, 32, v7")
        I(f"s_lshl_b32 s{self.sSAB}, s7, 6\ns_mov_b32 s{self.sSC}, {64*2688}")
        I(f"s_lshl_b32 s86, s{self.sRB}, 2\ns_add_u32 s86, s86, s{self.sWV}\ns_mul_i32 s{self.sX}, s86, {32*896}")
        I(f"s_lshl_b32 s86, s{self.sWV}, 4\ns_mul_i32 s87, s86, s7\ns_mul_i32 s88, s86, 0xa80")
        I(f"s_lshl_b32 s89, s{self.sJ}, 8\ns_lshl_b32 s90, s{self.sJ}, 7")
        I(f"s_lshl_b32 s91, s{self.sJ}, 9\ns_sub_u32 s91, s91, {42*128}")
        I(f"s_add_u32 s92, s91, 0x80\ns_add_u32 s93, s91, 0x100\ns_add_u32 s94, s89, 0x80")
        I(f"s_cmp_lg_u32 s{self.sISV}, 0")
        I(f"s_cselect_b32 s{self.sA}, s91, s89\ns_cselect_b32 s{self.sB}, s92, s89\ns_cselect_b32 s{self.sC}, s93, s90")
        I(f"s_cselect_b32 s{self.sA2}, {17*128}, s94")
        I(f"s_add_u32 s{self.sA}, s{self.sA}, s87\ns_add_u32 s{self.sB}, s{self.sB}, s87\ns_add_u32 s{self.sC}, s{self.sC}, s88")
        I(f"s_add_u32 s{self.sA2}, s{self.sA2}, s87\ns_add_u32 s{self.sB2}, s94, s87")
        I(f"s_mul_i32 s{self.sM0}, s{self.sWV}, {CHUNK}\ns_lshl_b32 s{self.sM0B}, s{self.sWV}, 12")
        b.raw("s_waitcnt lgkmcnt(0)")
        self.srd(self.S_X, "s64", "s65", 2048 * 896)
        I(f"s_cmp_lg_u32 s{self.sISV}, 0")
        WQ, WG_ = 448 * 2688, 448 * 3584
        for s, lo in ((self.S_A, 72), (self.S_B, 74)):
            I(f"s_cselect_b32 s{s}, s66, s{lo}\ns_cselect_b32 s{s+1}, s67, s{lo+1}")
            I(f"s_mov_b32 s{s+2}, {WG_}\ns_cselect_b32 s{s+2}, {WQ}, s{s+2}\ns_mov_b32 s{s+3}, 0x20000")
        self.srd(self.S_C, "s66", "s67", WQ)
        for ins in self.dma_stageA(0):
            ins()
        self.srd(self.S_WS, "s84", "s85", WS_SIZE)
        self.srd(self.S_DBG, "s82", "s83", 256)
        I(f"v_mov_b32 v{self.vZ}, 0\ns_mov_b32 s86, {E_OFF}")
        I(f"buffer_load_dword v{self.vPOLL}, v{self.vZ}, s[{self.S_WS}:{self.S_WS+3}], s86 offen sc1", tag="E")
        for st in (1, 2, 3):
            for ins in self.dma_stageA(st):
                ins()
        self.srd(self.S_WD, "s76", "s77", 1792 * 896)
        self.srd(self.S_WO, "s68", "s69", 448 * 896)
        self.srd(self.S_OUT, "s80", "s81", 2048 * 896)
        self.srd(self.S_GW, "s78", "s79", 896)
        I(f"s_cmp_lg_u32 s{self.sISV}, 0\ns_cselect_b32 s{self.sBN2}, 0, s{self.S_B+2}")
        if self.o.ts:
            I(f"s_lshl_b32 s86, s2, 2\ns_add_u32 s86, s86, s{self.sWV}\ns_lshl_b32 s86, s86, 6\ns_add_u32 s{self.sTS}, s86, {TS_OFF}")
        I(f"s_lshr_b32 s86, s{self.sWV}, 1\ns_and_b32 s87, s{self.sWV}, 1")
        I("v_and_b32 v35, 31, v0\nv_lshrrev_b32 v36, 5, v0")
        I("v_bfe_u32 v37, v0, 1, 3\nv_xor_b32 v37, v37, v36")
        I(f"s_mul_i32 s88, s86, {2*CHUNK}\nv_lshlrev_b32 v38, 7, v35\nv_add_u32 v38, s88, v38")
        for ks in range(4):
            I(f"v_xor_b32 v39, {2*ks}, v37\nv_lshl_add_u32 v{self.vXR+ks}, v39, 4, v38")
        I("v_bfe_u32 v37, v0, 2, 2\nv_lshl_add_u32 v38, v36, 3, v37\nv_lshlrev_b32 v38, 7, v38")
        I("v_and_b32 v39, 1, v0\nv_lshlrev_b32 v39, 4, v39\nv_bfe_u32 v40, v0, 1, 1\nv_lshl_add_u32 v39, v40, 3, v39")
        I("v_add_u32 v38, v38, v39")
        I("v_bfe_u32 v39, v0, 4, 1\nv_and_b32 v40, 2, v37\nv_xor_b32 v40, v40, v39")
        I("s_lshl_b32 s88, s87, 1")
        I("v_xor_b32 v41, s88, v40")
        I(f"v_lshl_add_u32 v42, v41, 5, v38")
        I(f"v_add_u32 v{self.vWR}, 0x1000, v42")
        I(f"v_lshl_add_u32 v{self.vWR+1}, v39, 11, v42")
        I(f"v_xor_b32 v{self.vWR+2}, 32, v{self.vWR+1}")
        for st in (1, 2):
            for i in range(4):
                I(f"v_add_u32 v{self.vXR+4*st+i}, {65536*st}, v{self.vXR+i}")
            for i in range(3):
                I(f"v_add_u32 v{self.vWR+3*st+i}, {65536*st}, v{self.vWR+i}")
        I(f"s_lshl_b32 s88, s{self.sRB}, 2\ns_lshl_b32 s89, s86, 1\ns_add_u32 s88, s88, s89")
        I(f"s_mul_i32 s89, s88, {QKV_MT}\ns_lshl_b32 s90, s87, 11\ns_add_u32 s89, s89, s90")
        I(f"s_lshl_b32 s90, s{self.sJ}, 12\ns_lshl_b32 s91, s{self.sJ}, 14\ns_sub_u32 s91, s91, {40*4096}")
        I(f"s_cmp_lg_u32 s{self.sISV}, 0\ns_cselect_b32 s90, s91, s90\ns_add_u32 s{self.sQ0}, s89, s90")
        I(f"s_add_u32 s{self.sQ1}, s{self.sQ0}, {QKV_MT}")
        I(f"s_mul_i32 s89, s88, {HO_MT}\ns_lshl_b32 s90, s{self.sJ}, 13\ns_lshl_b32 s91, s87, 11\ns_add_u32 s89, s89, s90")
        I(f"s_add_u32 s89, s89, s91\ns_add_u32 s{self.sH0}, s89, {HO_OFF}\ns_add_u32 s{self.sH1}, s{self.sH0}, {HO_MT}")
        I(f"s_mov_b32 s{self.sNL2E}, {f32hex(-LOG2E)}\ns_mov_b32 s{self.sNL2E1}, s{self.sNL2E}")
        I(f"s_mov_b32 s{self.sCS}, {f32hex(LOG2E / math.sqrt(28.0))}\ns_mov_b32 s{self.sCS1}, s{self.sCS}")
        I(f"s_lshl_b32 s88, s{self.sRB}, 8\ns_lshl_b32 s89, s{self.sJ}, 2\ns_add_u32 s88, s88, s89\ns_add_u32 s88, s88, {FL_OFF}")
        I(f"v_mov_b32 v{self.vFL}, s88")

    def dma_stageA(self, st):
        I = self.I
        base = (st % 4) * SLOT
        tag = f"st{st}"
        L = []
        L.append(lambda: I(f"s_add_u32 m0, s{self.sM0}, {base}"))
        for bq in range(4):
            L.append(lambda bq=bq: I(f"buffer_load_dwordx4 v{self.vXD+bq}, s[{self.S_X}:{self.S_X+3}], s{self.sX} offen offset:{1024*bq} lds", tag))
        prev = lambda: I(f"s_add_u32 s{self.sX}, s{self.sX}, 0x80")
        for seg, (srd, so, stp) in enumerate(((self.S_A, self.sA, self.sSAB), (self.S_B, self.sB, self.sSAB), (self.S_C, self.sC, self.sSC))):
            L.append(lambda seg=seg: I(f"s_add_u32 m0, s{self.sM0}, {base + 4096 + 2048*seg}"))
            L.append(prev)
            for e in range(2):
                L.append(lambda seg=seg, e=e, srd=srd, so=so: I(f"buffer_load_dwordx4 v{self.vWD+2*seg+e}, s[{srd}:{srd+3}], s{so} offen offset:{1024*e} lds", tag))
            prev = lambda so=so, stp=stp: I(f"s_add_u32 s{so}, s{so}, s{stp}")
        L.append(prev)
        return L

    def dma_stageB(self, t):
        I = self.I
        base = PB_BASE[t]
        tag = f"st{7+t}"
        L = []
        prev = None
        if t == 0:
            prev = lambda: I(f"s_mov_b32 s{self.S_B+2}, s{self.sBN2}")
        for seg, (srd, so) in enumerate(((self.S_A, self.sA2), (self.S_B, self.sB2))):
            L.append(lambda seg=seg: I(f"s_add_u32 m0, s{self.sM0B}, {base + 2048*seg}"))
            if prev:
                L.append(prev)
            for e in range(2):
                L.append(lambda seg=seg, e=e, srd=srd, so=so: I(f"buffer_load_dwordx4 v{self.vWD+2*seg+e}, s[{srd}:{srd+3}], s{so} offen offset:{1024*e} lds", tag))
            prev = lambda so=so: I(f"s_add_u32 s{so}, s{so}, s{self.sSAB}")
        L.append(prev)
        return L

    def rd_w(self, bufset, slot_t, addr_t, const):
        out = []
        r = self.wf(bufset, slot_t)
        for e in range(2):
            v, imm = self.lds(self.vWR, 3, addr_t, const + 512 * e)
            out.append(lambda r=r, e=e, v=v, imm=imm: self.I(f"ds_read_b64_tr_b16 a[{r+2*e}:{r+2*e+1}], {v} offset:{imm}"))
        return out

    def rd_x(self, M, n):
        st, ks = divmod(n, 4)
        v, imm = self.lds(self.vXR, 4, ks, (st % 4) * SLOT + M * CHUNK)
        return [lambda: self.I(f"ds_read_b128 {self.xf(M, n)}, {v} offset:{imm}")]

    def readsA(self, n):
        st, ks = divmod(n, 4)
        c = (st % 4) * SLOT + ks * CHUNK + 4096
        bs = n % 2
        return [self.rd_w(bs, 0, 0, c), self.rd_x(0, n) + self.rd_x(1, n), self.rd_w(bs, 1, 1, c), self.rd_w(bs, 2, 2, c)]

    def readsB(self, n):
        t, ks = divmod(n, 4)
        c = PB_BASE[t] + ks * 4096
        bs = n % 2
        return [self.rd_w(bs, 1, 1, c), self.rd_w(bs, 2, 2, c)]

    def mfma(self, d, a, bb, first):
        c = "0" if first else f"v[{d}:{d+15}]"
        self.I(f"v_mfma_f32_32x32x16_bf16 v[{d}:{d+15}], {a}, {bb}, {c}")

    def passA(self):
        I, b = self.I, self.b
        b.wait_tags(("st0",))
        self.ts()
        I(f"s_or_b32 s86, s2, s{self.sWV}\ns_cmp_eq_u32 s86, 0\ns_cbranch_scc0 L_notag")
        snap_vm = list(b.vm)
        I(f"v_add_u32 v34, 2, v{self.vPOLL}\nv_or_b32 v34, 1, v34\ns_mov_b32 s86, {E_OFF}")
        I(f"s_mov_b64 exec, 1")
        I(f"buffer_store_dword v34, v{self.vZ}, s[{self.S_WS}:{self.S_WS+3}], s86 offen sc1")
        I(f"buffer_store_dword v34, v{self.vZ}, s[{self.S_DBG}:{self.S_DBG+3}], 0 offen sc1")
        I(f"s_mov_b64 exec, -1")
        b.vm = [x for x in snap_vm if x[1] != "E" and x[1] != "pf"]
        b.label("L_notag")
        I("s_barrier")
        for grp in self.readsA(0):
            for f in grp:
                f()
        pend = []
        for n in range(28):
            st, ks = divmod(n, 4)
            bs = n % 2
            nxt = self.readsA(n + 1) if n < 27 else self.readsB(0)
            gaps = [[] for _ in range(6)]
            if ks == 3:
                def bar(st=st):
                    tags = (f"st{st+1}",) if st < 6 else ("st7", "st8", "st9", "st10")
                    b.wait_tags(tags, lg_all=True)
                    I("s_barrier")
                gaps[0].append(bar)
                if st <= 2:
                    pend += self.dma_stageA(st + 4)
                elif st <= 5:
                    pend += self.dma_stageB(2 * (st - 3)) + self.dma_stageB(2 * (st - 3) + 1)
                else:
                    pend += self.dma_stageB(6)
            if n == 17:
                pend.append(lambda: I(f"buffer_load_dword v{self.vPOLL}, v{self.vZ}, s[{self.S_DBG}:{self.S_DBG+3}], 0 offen sc1", "tagrd"))
            for i, grp in enumerate(nxt):
                gaps[i] += grp
            for gi, cap in ((2, 1), (3, 1), (4, 3), (5, 3)):
                if ks == 3 and gi < 4:
                    continue
                for _ in range(cap):
                    if pend:
                        gaps[gi].append(pend.pop(0))
            i = 0
            for t in range(3):
                for M in range(2):
                    r = self.wf(bs, t)
                    self.mfma(self.acc(self.ACC_A, t, M), f"a[{r}:{r+3}]", self.xf(M, n), n == 0)
                    for f in gaps[i]:
                        f()
                    i += 1
        self.pend = pend

    def get_tag(self):
        I, b = self.I, self.b
        u = self.uid()
        I(f"v_readfirstlane_b32 s{self.sTAG}, v{self.vPOLL}")
        I(f"s_cmp_lg_u32 s{self.sTAG}, 0\ns_cbranch_scc1 L_gottag{u}")
        keep_vm, keep_lg = list(b.vm), list(b.lg)
        I(f"s_mov_b32 s{self.sSPIN}, 0")
        b.label(f"L_tagspin{u}")
        I(f"buffer_load_dword v{self.vPOLL}, v{self.vZ}, s[{self.S_DBG}:{self.S_DBG+3}], 0 offen sc1")
        I(f"s_add_u32 s{self.sSPIN}, s{self.sSPIN}, 1\ns_cmp_gt_u32 s{self.sSPIN}, {SPIN_MAX}\ns_cbranch_scc1 L_exit")
        I(f"v_readfirstlane_b32 s{self.sTAG}, v{self.vPOLL}")
        I(f"s_cmp_lg_u32 s{self.sTAG}, 0\ns_cbranch_scc0 L_tagspin{u}")
        b.vm, b.lg = keep_vm, keep_lg
        b.label(f"L_gottag{u}")

    def cvt_store(self, r, so, imm, tag, voff=None):
        L = []
        for i in range(4):
            L.append(lambda i=i: self.I(f"v_cvt_pk_bf16_f32 v{r+i}, v{r+2*i}, v{r+2*i+1}"))
        v = self.vL16 if voff is None else voff
        L.append(lambda: self.I(f"buffer_store_dwordx4 v[{r}:{r+3}], v{v}, s[{self.S_WS}:{self.S_WS+3}], s{so} offen offset:{imm} sc1", tag))
        return L

    def sigmoid_tile(self, r, so, imm, tag):
        I = self.I
        L = []
        if self.o.pk:
            for i in range(0, 8, 2):
                L.append(lambda i=i: I(f"v_pk_mul_f32 v[{r+i}:{r+i+1}], v[{r+i}:{r+i+1}], s[{self.sNL2E}:{self.sNL2E1}]"))
        else:
            for i in range(8):
                L.append(lambda i=i: I(f"v_mul_f32 v{r+i}, s{self.sNL2E}, v{r+i}"))
        for i in range(8):
            L.append(lambda i=i: I(f"v_exp_f32 v{r+i}, v{r+i}"))
        if self.o.pk:
            for i in range(0, 8, 2):
                L.append(lambda i=i: I(f"v_pk_add_f32 v[{r+i}:{r+i+1}], v[{r+i}:{r+i+1}], 1.0 op_sel_hi:[1,0]"))
        else:
            for i in range(8):
                L.append(lambda i=i: I(f"v_add_f32 v{r+i}, 1.0, v{r+i}"))
        for i in range(8):
            L.append(lambda i=i: I(f"v_rcp_f32 v{r+i}, v{r+i}"))
        if self.o.pk:
            for i in range(0, 8, 2):
                L.append(lambda i=i: I(f"v_pk_mul_f32 v[{r+i}:{r+i+1}], v[{r+i}:{r+i+1}], v[{r+8+i}:{r+9+i}]"))
        else:
            for i in range(8):
                L.append(lambda i=i: I(f"v_mul_f32 v{r+i}, v{r+i}, v{r+8+i}"))
        return L + self.cvt_store(r, so, imm, tag)

    def flag_store(self, phase):
        I = self.I
        lab = f"L_nofl{self.uid()}"
        I(f"s_cmp_eq_u32 s{self.sWV}, 0\ns_cbranch_scc0 {lab}")
        keep = list(self.b.vm)
        I(f"v_mov_b32 v{self.vT}, s{self.sTAG}\ns_mov_b64 exec, 1")
        I(f"s_mov_b32 s{self.sT0}, {4096*phase}")
        I(f"buffer_store_dword v{self.vT}, v{self.vFL}, s[{self.S_WS}:{self.S_WS+3}], s{self.sT0} offen sc1")
        I("s_mov_b64 exec, -1")
        self.b.vm = keep
        self.b.label(lab)

    _uid = 0

    def uid(self):
        self._uid += 1
        return self._uid

    def passB_GU(self):
        I, b = self.I, self.b
        pend = self.pend_copy()
        epi = []
        for M, so in ((0, self.sQ0), (1, self.sQ1)):
            r = self.acc(self.ACC_A, 0, M)
            epi += self.cvt_store(r, so, 0, "qk") + self.cvt_store(r + 8, so, 1024, "qk")
        for t in (1, 2):
            for M, so in ((0, self.sH0), (1, self.sH1)):
                epi += self.sigmoid_tile(self.acc(self.ACC_A, t, M), so, 1024 * (t - 1), "h")
        total = len(epi)
        first_gap = 3
        ngaps = 4 * self.o.epi_steps
        done = 0
        g = 0
        for n in range(28):
            bs = n % 2
            gaps = [[] for _ in range(4)]
            if n == 15:
                def bar():
                    b.wait_tags(("st11", "st12", "st13", "qk"), lg_all=False)
                    I("s_barrier")
                    self.flag_store(0)
                gaps[0].append(bar)
            if n < 27:
                nx = self.readsB(n + 1)
                gaps[0] += nx[0]
                gaps[1] += nx[1]
            if n == 1:
                gaps[3].append(self.get_tag)
            for gi in (2, 3):
                for _ in range(2):
                    if pend:
                        gaps[gi].append(pend.pop(0))
            i = 0
            for t in range(2):
                for M in range(2):
                    r = self.wf(bs, t + 1)
                    self.mfma(self.acc(self.ACC_B, t, M), f"a[{r}:{r+3}]", self.xf(M, n), n == 0)
                    for f in gaps[i]:
                        f()
                    g += 1
                    if g > first_gap:
                        want = min(total, math.ceil(total * (g - first_gap) / (ngaps - first_gap)))
                        while done < want:
                            epi[done]()
                            done += 1
                    i += 1
        assert done == total
        self.ts()
        I(f"s_add_u32 s{self.sH0}, s{self.sH0}, 0x1000\ns_add_u32 s{self.sH1}, s{self.sH1}, 0x1000")
        L = []
        for t in (0, 1):
            for M, so in ((0, self.sH0), (1, self.sH1)):
                L += self.sigmoid_tile(self.acc(self.ACC_B, t, M), so, 1024 * t, "h")
        return L

    def pend_copy(self):
        return list(self.pend)

    def passB_V(self):
        I, b = self.I, self.b
        for f in self.pend_copy():
            f()
        I(f"s_add_u32 m0, s{self.sM0B}, {PB_BASE[0] + 2048}")
        I(f"buffer_load_dwordx4 v{self.vL16}, s[{self.S_GW}:{self.S_GW+3}], 0 offen lds", "gw")
        I(f"s_sub_u32 s{self.sT1}, s{self.sQ0}, 0x2000\ns_sub_u32 s{self.sT2}, s{self.sQ1}, 0x2000")
        I(f"v_add_u32 v{self.vT+2}, 0x1000, v{self.vL16}")
        self.get_tag()
        epi = []
        for M, so in ((0, self.sQ0), (1, self.sQ1)):
            r = self.acc(self.ACC_A, 0, M)
            epi += self.cvt_store(r, so, 0, "qk") + self.cvt_store(r + 8, so, 1024, "qk")
        for t in (1, 2):
            for M, so in ((0, self.sT1), (1, self.sT2)):
                r = self.acc(self.ACC_A, t, M)
                epi += self.cvt_store(r, so, 1024 * (t - 1), "qk") + self.cvt_store(r + 8, so, 1024 * (t - 1), "qk", voff=self.vT + 2)
        I(f"s_and_b32 s{self.sT0}, s{self.sWV}, 1\ns_sub_u32 s{self.sT3}, s{self.sJ}, 14\ns_xor_b32 s{self.sT0}, s{self.sT0}, s{self.sT3}\ns_lshl_b32 s{self.sT0}, s{self.sT0}, 6")
        for st in range(3):
            I(f"v_xor_b32 v{self.vWR+3*st}, s{self.sT0}, v{self.vWR+3*st}\nv_subrev_u32 v{self.vWR+3*st}, 0x1000, v{self.vWR+3*st}")
        I(f"s_lshl_b32 s{self.sT0}, s{self.sRB}, 2\ns_add_u32 s{self.sT0}, s{self.sT0}, s{self.sWV}")
        I(f"s_lshl_b32 s86, s{self.sT0}, 7\ns_add_u32 s86, s86, {Z_OFF}")
        I(f"s_mul_i32 s{self.sT0}, s{self.sT0}, {QKV_MT}\ns_lshl_b32 s{self.sT3}, s{self.sT3}, 11\ns_add_u32 s{self.sT0}, s{self.sT0}, s{self.sT3}")
        I(f"s_add_u32 s87, s{self.sT0}, {8*17*512}")
        I(f"v_lshrrev_b32 v{self.vT+3}, 5, v0\nv_lshlrev_b32 v{self.vT+3}, 4, v{self.vT+3}")
        I(f"s_add_u32 s88, s{self.sM0B}, {PB_BASE[0] + 2048}\nv_add_u32 v{self.vT+3}, s88, v{self.vT+3}")
        I(f"v_and_b32 v{self.vT+4}, 31, v0\nv_lshlrev_b32 v{self.vT+4}, 2, v{self.vT+4}")
        D = self.ACC_B
        I(f"s_bitcmp1_b32 s{self.sWV}, 0\ns_cbranch_scc1 L_v_wc1")
        snap = b.snapshot()
        for wc in range(2):
            if wc == 1:
                b.label("L_v_wc1")
                b.restore(snap)
            e = list(epi)

            def rdv(n):
                t, ks = divmod(n, 4)
                return self.rd_w(n % 2, 0, 0, PB_BASE[t] + ks * 4096)
            for f in rdv(0):
                f()
            for n in range(28):
                if n == 15:
                    b.wait_tags(("st11", "st12", "st13"))
                    I("s_barrier")
                if n < 27:
                    for f in rdv(n + 1):
                        f()
                r = self.wf(n % 2, 0)
                self.mfma(D, f"a[{r}:{r+3}]", self.xf(wc, n), n == 0)
                for _ in range(3):
                    if e:
                        e.pop(0)()
            assert not e
            for f in self.cvt_store(D, 87, 0, "qk") + self.cvt_store(D + 8, 87, 1024, "qk"):
                f()
            b.wait_tags(("gw",))
            I(f"ds_read_b128 a[{self.WF}:{self.WF+3}], v{self.vT+3}")
            for n in range(28):
                if n < 27:
                    r = self.WF + 4 * ((n + 1) % 3)
                    I(f"ds_read_b128 a[{r}:{r+3}], v{self.vT+3} offset:{32*(n+1)}")
                r = self.WF + 4 * (n % 3)
                self.mfma(D + 16, f"a[{r}:{r+3}]", self.xf(wc, n), n == 0)
                if n == 20:
                    b.wait_tags(("qk",))
                    I("s_barrier")
                    self.flag_store(0)
            I(f"buffer_store_dword v{D+16}, v{self.vT+4}, s[{self.S_WS}:{self.S_WS+3}], s86 offen sc1", "h")
            if wc == 0:
                I("s_branch L_v_done")
        b.label("L_v_done")

    def poll_setup_att(self):
        I = self.I
        v = self.vT + 5
        I(f"v_lshrrev_b32 v{v}, 4, v0\nv_add_u32 v{v}, s{self.sRB}, v{v}\nv_subrev_u32 v{v}, 2, v{v}\nv_max_i32 v{v}, 0, v{v}")
        I(f"v_min_u32 v{v}, 15, v{v}\nv_lshlrev_b32 v{v}, 8, v{v}\nv_and_b32 v{v+1}, 15, v0\nv_lshl_add_u32 v{v}, v{v+1}, 2, v{v}")
        I(f"v_add_u32 v{v}, {FL_OFF}, v{v}")
        I(f"s_mul_i32 s86, s{self.sJ}, 28\ns_add_u32 s87, s86, 27\ns_lshr_b32 s86, s86, 6\ns_lshr_b32 s87, s87, 6")
        I("s_lshl_b32 s88, 1, s86\ns_lshl_b32 s89, 1, s87\ns_or_b32 s88, s88, s89")
        I("s_lshl_b32 s89, s88, 7")
        I(f"s_mul_i32 s{self.sMSK}, s89, 0x10001\ns_or_b32 s{self.sMSK+1}, s88, s89")
        I("s_cmp_le_u32 s86, 3\ns_cselect_b32 s90, 0x4000, 0\ns_cmp_ge_u32 s87, 3\ns_cselect_b32 s91, 0x8000, 0\ns_or_b32 s90, s90, s91")
        I(f"s_mul_i32 s{self.sMSK2}, s90, 0x10001\ns_mov_b32 s{self.sMSK2+1}, s90")
        return v

    def poll_issue(self, vaddr, vdst, soff="0"):
        self.I(f"buffer_load_dword v{vdst}, v{vaddr}, s[{self.S_WS}:{self.S_WS+3}], {soff} offen sc1", "poll")

    def poll_check(self, vaddr, vdst, smask, soff="0"):
        I, b = self.I, self.b
        u = self.uid()
        I(f"v_cmp_ne_u32 vcc, s{self.sTAG}, v{vdst}")
        I(f"s_and_b64 vcc, vcc, s[{smask}:{smask+1}]\ns_cbranch_scc0 L_pok{u}")
        keep_vm, keep_lg = list(b.vm), list(b.lg)
        I(f"s_mov_b32 s{self.sSPIN}, 0")
        b.label(f"L_psp{u}")
        I(f"buffer_load_dword v{vdst}, v{vaddr}, s[{self.S_WS}:{self.S_WS+3}], {soff} offen sc1")
        I(f"s_add_u32 s{self.sSPIN}, s{self.sSPIN}, 1\ns_cmp_gt_u32 s{self.sSPIN}, {SPIN_MAX}\ns_cbranch_scc1 L_exit")
        I(f"v_cmp_ne_u32 vcc, s{self.sTAG}, v{vdst}")
        I(f"s_and_b64 vcc, vcc, s[{smask}:{smask+1}]\ns_cbranch_scc1 L_psp{u}")
        b.vm, b.lg = keep_vm, keep_lg
        b.label(f"L_pok{u}")

    def S(self, i):
        return 52 + 16 * i

    vO = 196
    vQ = 212
    vP = 220
    vKA = 236
    vVA = 237
    vM = 239
    vMA, vMB = 241, 242
    vZZ = 243
    vFA = 246
    vFD = 247
    vFR = 249
    KF = 0

    def att_setup(self):
        I = self.I
        h = self.sJ
        I(f"s_and_b32 s86, s{h}, 1\ns_sub_u32 s{self.sPAR}, 0, s86\ns_mov_b32 s{self.sPAR+1}, s{self.sPAR}")
        I(f"s_mul_i32 s87, s{h}, 7\ns_lshr_b32 s87, s87, 1\ns_lshl_b32 s87, s87, 9")
        I(f"s_lshl_b32 s88, s{self.sRB}, 2\ns_mul_i32 s89, s{self.sWV}, 3\ns_add_u32 s89, s89, s88\ns_sub_u32 s89, s89, 8")
        for i in range(3):
            I(f"s_add_u32 s90, s89, {i}\ns_max_i32 s90, s90, 0\ns_mul_i32 s90, s90, {QKV_MT}\ns_add_u32 s90, s90, s87")
            I(f"s_add_u32 s{self.sKT+i}, s90, {56*512}")
        v = self.vE
        I(f"v_lshrrev_b32 v{v}, 5, v0\nv_add_u32 v{v+1}, s89, v{v}\nv_mov_b32 v{v+2}, 0xf149")
        I(f"v_cmp_gt_i32 vcc, 0, v{v+1}\nv_cndmask_b32 v{self.vP}, 0, v{v+2}, vcc\nv_mov_b32 v{self.vP+1}, 0")
        I(f"s_add_u32 s90, s89, 2\ns_cmp_lt_i32 s90, 0\ns_cselect_b32 s90, 0xf149, 0\nv_mov_b32 v{self.vP+2}, s90\nv_mov_b32 v{self.vP+3}, 0")
        I(f"v_mov_b32 v{self.vP+4}, 0x3f80\nv_mov_b32 v{self.vP+5}, 0")
        I(f"s_cmp_eq_u32 s86, 0\ns_cselect_b32 s90, {1536+8}, 0\ns_mul_i32 s91, s{self.sWV}, {3*2048}\ns_add_u32 s90, s90, s91")
        I(f"v_and_b32 v{v+1}, 31, v0\nv_lshlrev_b32 v{v+1}, 4, v{v+1}\nv_add_u32 v{self.vP+7}, s90, v{v+1}\nv_lshl_add_u32 v{self.vP+6}, v{v}, 11, v{self.vP+7}")
        I(f"v_and_b32 v{v+1}, 31, v0\nv_lshlrev_b32 v{v+2}, 2, v{v}\nv_xor_b32 v{v+1}, v{v+1}, v{v+2}\nv_lshlrev_b32 v{v+1}, 4, v{v+1}")
        I(f"v_lshl_add_u32 v{self.vP+8}, v{v}, 9, v{v+1}\nv_xor_b32 v{self.vP+9}, 0x80, v{self.vP+8}")
        I(f"s_lshl_b32 s90, s{self.sWV}, 11\ns_add_u32 s91, s90, {KV_K}\nv_add_u32 v{self.vKA}, s91, v{self.vL16}")
        I(f"v_bfe_u32 v{v+1}, v0, 4, 1\nv_bfe_u32 v{v+2}, v0, 1, 1\nv_lshl_add_u32 v{v+1}, v{v+1}, 1, v{v+2}")
        I(f"v_xor_b32 v{v+2}, v{v}, v{v+1}\nv_lshlrev_b32 v{v+2}, 2, v{v+2}\nv_bfe_u32 v{v+3}, v0, 2, 2\nv_add_u32 v{v+2}, v{v+2}, v{v+3}")
        I(f"v_lshlrev_b32 v{v+2}, 4, v{v+2}\nv_lshl_add_u32 v{v+2}, v{v+1}, 9, v{v+2}\nv_and_b32 v{v+3}, 1, v0\nv_lshl_add_u32 v{v+2}, v{v+3}, 3, v{v+2}")
        I(f"s_add_u32 s91, s90, {KV_V}\nv_add_u32 v{self.vVA}, s91, v{v+2}\nv_xor_b32 v{self.vVA+1}, 0x80, v{self.vVA}")
        I(f"v_subrev_u32 v{v+1}, 1, v{v}\nv_and_b32 v{v+1}, s{self.sPAR}, v{v+1}\nv_not_b32 v{self.vMA}, v{v+1}")
        I(f"v_sub_u32 v{v+1}, 0, v{v}\ns_not_b32 s91, s{self.sPAR}\nv_and_b32 v{v+1}, s91, v{v+1}\nv_not_b32 v{self.vMB}, v{v+1}")
        I(f"s_add_u32 s88, s88, s{self.sWV}\ns_mul_i32 s90, s88, {QKV_MT}\ns_add_u32 s{self.sT1}, s90, s87")
        I(f"s_mul_i32 s90, s88, {HO_MT}\ns_lshl_b32 s91, s{h}, 11\ns_add_u32 s90, s90, s91\ns_add_u32 s{self.sOO}, s90, {HO_OFF + 112*1024}")
        I(f"s_lshl_b32 s90, s88, 7\ns_add_u32 s{self.sT2}, s90, {Z_OFF}")

    def att_masks(self):
        L = []
        v = self.vM
        L.append(lambda: self.I(f"v_lshrrev_b32 v{v}, 5, v0\nv_lshlrev_b32 v{v}, 2, v{v}\nv_and_b32 v{v+1}, 31, v0\nv_sub_u32 v{v}, v{v+1}, v{v}\nv_mov_b32 v{v+1}, {NEG}"))
        for r in range(16):
            key = 8 * (r >> 2) + (r & 3)
            L.append(lambda r=r, key=key: self.I(f"v_cmp_gt_i32 vcc, {key}, v{v}"))
            L.append(lambda r=r: self.I(f"v_cndmask_b32 v{self.S(8)+r}, 0, v{v+1}, vcc"))
            L.append(lambda r=r: self.I(f"v_sub_f32 v{self.S(0)+r}, v{v+1}, v{self.S(8)+r}"))
        return L

    def att_loads_K(self):
        I = self.I
        ws = f"s[{self.S_WS}:{self.S_WS+3}]"
        I(f"s_mul_i32 s86, s{self.sWV}, {3*2048}")
        for i in range(3):
            I(f"s_add_u32 m0, s86, {KV_K + 2048*i}")
            for e in range(2):
                I(f"buffer_load_dwordx4 v{self.vL16}, {ws}, s{self.sKT+i} offen offset:{1024*e} sc1 lds", "K")
        for s in range(2):
            I(f"buffer_load_dwordx4 v[{self.vQ+4*s}:{self.vQ+4*s+3}], v{self.vL16}, {ws}, s{self.sT1} offen offset:{1024*s} sc1", "Q")

    def att_loads_V(self):
        I = self.I
        ws = f"s[{self.S_WS}:{self.S_WS+3}]"
        I(f"s_mul_i32 s86, s{self.sWV}, {3*2048}")
        for i in range(3):
            I(f"s_add_u32 m0, s86, {KV_V + 2048*i}\ns_add_u32 s87, s{self.sKT+i}, {56*512}")
            for e in range(2):
                I(f"buffer_load_dwordx4 v{self.vP+8+e}, {ws}, s87 offen offset:{1024*e} sc1 lds", "V")

    def attention(self, mid_hooks):
        I, b = self.I, self.b
        b.wait_tags(("K",))
        I(f"ds_write_b64 v{self.vP+6}, v[{self.vP}:{self.vP+1}] offset:{KV_K}")
        I(f"ds_write_b64 v{self.vP+7}, v[{self.vP+2}:{self.vP+3}] offset:{KV_K+4096}")
        q = self.vQ
        I(f"v_bfi_b32 v{q}, v{self.vMA}, v{q}, v{self.vP+4}\nv_and_b32 v{q+1}, v{self.vMA}, v{q+1}")
        I(f"v_bfi_b32 v{q+6}, v{self.vMB}, v{q+6}, v{self.vP+4}\nv_and_b32 v{q+7}, v{self.vMB}, v{q+7}")
        b.waitcnt(lg=0)
        I("s_barrier")
        self.ts()
        order = [8, 7, 6, 5, 4, 3, 2, 1, 0]

        def rdk(i, bs):
            for s in range(2):
                r = self.KF + bs * 8 + 4 * s
                I(f"ds_read_b128 a[{r}:{r+3}], v{self.vKA} offset:{2048*i + 1024*s}")
        rdk(order[0], 0)
        rdk(order[1], 1)
        m = self.vM
        mx = []
        first = [True]

        def maxops(i):
            L = []
            s0 = self.S(i)
            for k in range(0, 16, 2):
                if first[0]:
                    L.append(f"v_max_f32 v{m}, v{s0}, v{s0+1}")
                    first[0] = False
                else:
                    L.append(f"v_max3_f32 v{m}, v{m}, v{s0+k}, v{s0+k+1}")
            return L
        for n, i in enumerate(order):
            bs = n % 3
            d = self.S(i)
            r = self.KF + bs * 8
            c = f"v[{d}:{d+15}]" if i in (0, 8) else "0"
            I(f"v_mfma_f32_32x32x16_bf16 v[{d}:{d+15}], a[{r}:{r+3}], v[{q}:{q+3}], {c}")
            if n + 2 < 9:
                rdk(order[n + 2], (n + 2) % 3)
            for _ in range(4):
                if mx:
                    I(mx.pop(0))
            I(f"v_mfma_f32_32x32x16_bf16 v[{d}:{d+15}], a[{r+4}:{r+7}], v[{q+4}:{q+7}], v[{d}:{d+15}]")
            if n >= 1:
                mx += maxops(order[n - 1])
            for _ in range(4):
                if mx:
                    I(mx.pop(0))
        b.wait_tags(("V",))
        I(f"v_add_u32 v{self.vP+6}, {KV_V}, v{self.vP+6}\nv_add_u32 v{self.vP+7}, {KV_V + 4096}, v{self.vP+7}")
        I(f"ds_write_b64 v{self.vP+6}, v[{self.vP+4}:{self.vP+5}]")
        I(f"ds_write_b64 v{self.vP+7}, v[{self.vP+4}:{self.vP+5}]")
        mx += maxops(order[8])
        while mx:
            I(mx.pop(0))
        b.waitcnt(lg=0)
        I("s_barrier")

        def rdv(i, bs):
            L = []
            for s in range(2):
                for e in range(2):
                    r = self.KF + bs * 8 + 4 * s + 2 * e
                    L.append(f"ds_read_b64_tr_b16 a[{r}:{r+1}], v{self.vVA+e} offset:{2048*i + 256*s}")
            return L
        for t in rdv(order[0], 0):
            I(t)
        I(f"v_mov_b32 v{m+1}, v{m}")
        I(f"v_permlane32_swap_b32 v{m}, v{m+1}")
        I(f"v_max_f32 v{m}, v{m}, v{m+1}")
        I(f"v_mul_f32 v{m}, s{self.sCS}, v{m}")
        if self.o.pk:
            I(f"v_mov_b32 v{m+1}, v{m}")
        self.ts()
        O = self.vO
        prev = None
        for n, i in enumerate(order):
            d = self.S(i)
            p = self.vP + 8 * (n % 2)
            L = []
            if self.o.pk:
                for k in range(0, 16, 2):
                    L.append(f"v_pk_fma_f32 v[{d+k}:{d+k+1}], v[{d+k}:{d+k+1}], s[{self.sCS}:{self.sCS1}], v[{m}:{m+1}] neg_lo:[0,0,1] neg_hi:[0,0,1]")
            else:
                for k in range(16):
                    L.append(f"v_fma_f32 v{d+k}, v{d+k}, s{self.sCS}, -v{m}")
            ex = [f"v_exp_f32 v{d+k}, v{d+k}" for k in range(16)]
            cv = [f"v_cvt_pk_bf16_f32 v{p+k}, v{d+2*k}, v{d+2*k+1}" for k in range(8)]
            seq = L + ex + cv
            vr = rdv(order[n + 1], (n + 1) % 2) if n + 1 < 9 else []
            for k, t in enumerate(seq):
                I(t)
                if prev is not None and k == 1:
                    I(prev[0])
                if prev is not None and k == 8:
                    I(prev[1])
                if k >= 12 and vr:
                    I(vr.pop(0))
            r = self.KF + (n % 2) * 8
            prev = (f"v_mfma_f32_32x32x16_bf16 v[{O}:{O+15}], a[{r}:{r+3}], v[{p}:{p+3}], " + ("0" if n == 0 else f"v[{O}:{O+15}]"),
                    f"v_mfma_f32_32x32x16_bf16 v[{O}:{O+15}], a[{r+4}:{r+7}], v[{p+4}:{p+7}], v[{O}:{O+15}]")
            if n in mid_hooks:
                mid_hooks[n]()
        I(prev[0])
        I(prev[1])
        t = self.vQ
        I(f"v_mul_f32 v{t}, s{self.sNL2E}, v{self.vZZ}\nv_exp_f32 v{t}, v{t}\nv_add_f32 v{t}, 1.0, v{t}")
        I(f"v_cndmask_b32 v{t+1}, v{O+12}, v{O}, s[{self.sPAR}:{self.sPAR+1}]\nv_mov_b32 v{t+2}, v{t+1}")
        I(f"v_permlane32_swap_b32 v{t+1}, v{t+2}")
        I(f"v_cndmask_b32 v{t+1}, v{t+2}, v{t+1}, s[{self.sPAR}:{self.sPAR+1}]")
        I(f"v_mul_f32 v{t}, v{t}, v{t+1}\nv_rcp_f32 v{t}, v{t}")
        I(f"v_and_b32 v{t+1}, v{self.vMA}, v{t}\nv_and_b32 v{t+2}, v{self.vMB}, v{t}")
        for k in range(16):
            sc = t + 1 if k == 0 else (t + 2 if k == 12 else t)
            I(f"v_mul_f32 v{O+k}, v{O+k}, v{sc}")
        for f in self.cvt_store(O, self.sOO, 0, "o") + self.cvt_store(O + 8, self.sOO, 1024, "o"):
            f()

    RING = 14

    def ring_addr(self, e):
        return (0, 2048 * e) if e < 6 else (1, 2048 * (e - 6))

    def final_setup(self):
        I = self.I
        v = self.vT
        I("s_lshr_b32 s86, s2, 3\ns_and_b32 s87, s2, 7\ns_mul_i32 s88, s86, 37\ns_lshr_b32 s88, s88, 8")
        I(f"s_mul_i32 s89, s88, 7\ns_sub_u32 s89, s86, s89\ns_cmp_lt_u32 s86, 28\ns_cselect_b32 s{self.sFIN}, 1, 0")
        I("s_min_u32 s88, s88, 3\ns_lshl_b32 s87, s87, 2\ns_add_u32 s87, s87, s88")
        I(f"s_lshr_b32 s90, s{self.sWV}, 1\ns_and_b32 s91, s{self.sWV}, 1")
        I(f"s_mul_i32 s92, s{self.sWV}, {448*896}\ns_lshl_b32 s89, s89, 7\ns_add_u32 s{self.sFW}, s92, s89")
        I(f"s_mul_i32 s92, s{self.sWV}, {112*896}\ns_add_u32 s{self.sFWO}, s92, s89")
        I(f"s_mul_i32 s{self.sFM0}, s{self.sWV}, {12*K}\ns_lshl_b32 s{self.sFM1}, s{self.sWV}, 14\ns_add_u32 s{self.sFM1}, s{self.sFM1}, {96*K}")
        I(f"v_lshrrev_b32 v{v}, 3, v0\nv_and_b32 v{v+1}, 2, v{v}\nv_lshlrev_b32 v{v+1}, 1, v{v+1}\nv_and_b32 v{v+2}, 7, v0\nv_xor_b32 v{v+1}, v{v+1}, v{v+2}")
        I(f"v_mul_u32_u24 v{v}, 0x380, v{v}\nv_lshl_add_u32 v{self.vFD}, v{v+1}, 4, v{v}\nv_add_u32 v{self.vFD+1}, {8*896-1024}, v{self.vFD}")
        I(f"v_bfe_u32 v{v}, v0, 2, 2\nv_lshrrev_b32 v{v+1}, 5, v0")
        I(f"v_and_b32 v{v+2}, 1, v0\nv_lshlrev_b32 v{v+2}, 4, v{v+2}\nv_bfe_u32 v{v+3}, v0, 1, 1\nv_lshl_add_u32 v{v+2}, v{v+3}, 3, v{v+2}")
        I(f"v_bfe_u32 v{v+3}, v0, 4, 1\nv_and_b32 v{v+4}, 2, v{v}\nv_xor_b32 v{v+3}, v{v+3}, v{v+4}\ns_lshl_b32 s92, s90, 1\nv_xor_b32 v{v+3}, s92, v{v+3}")
        I(f"v_lshl_add_u32 v{v+2}, v{v+3}, 5, v{v+2}\nv_lshl_add_u32 v{v+2}, v{v}, 7, v{v+2}")
        R = self.vFR
        I(f"v_lshl_add_u32 v{v+3}, v{v+1}, 10, v{v+2}\nv_add_u32 v{R}, s{self.sFM0}, v{v+3}\nv_xor_b32 v{R+1}, 64, v{R}")
        I(f"v_add_u32 v{R+2}, s{self.sFM1}, v{v+3}\nv_xor_b32 v{R+3}, 64, v{R+2}")
        I(f"v_lshlrev_b32 v{R+4}, 9, v{v+1}")
        I(f"s_lshl_b32 s92, s87, 1\ns_add_u32 s92, s92, s91\ns_mul_i32 s92, s92, {HO_MT}\ns_mul_i32 s88, s{self.sWV}, {28*1024}")
        I(f"s_add_u32 s92, s92, s88\ns_add_u32 s{self.sFH}, s92, {HO_OFF - HO_MT}")
        I(f"s_cmp_eq_u32 s91, 0\ns_cselect_b32 s92, {2*HO_MT}, 0")
        I(f"v_add_u32 v{R+5}, {HO_MT}, v{self.vL16}\nv_add_u32 v{R+6}, s92, v{self.vL16}")
        I(f"s_lshl_b32 s92, s87, 1\ns_add_u32 s92, s92, s91\ns_mul_i32 s92, s92, {32*896}\ns_add_u32 s92, s92, s89\ns_lshl_b32 s88, s90, 6\ns_add_u32 s{self.sFO}, s92, s88")
        I(f"s_lshl_b32 s92, s87, 1\ns_add_u32 s92, s92, s91\ns_lshl_b32 s92, s92, 7\ns_add_u32 s{self.sT3}, s92, {Z_OFF}")
        I(f"s_lshr_b32 s87, s87, 1\ns_lshl_b32 s87, s87, 8\ns_add_u32 s87, s87, {FL_OFF + 4096}")
        I(f"s_lshl_b32 s88, s{self.sRB}, 8\ns_add_u32 s88, s88, {FL_OFF + 4096 + 56}")
        I(f"v_lshlrev_b32 v{v}, 2, v0\nv_add_u32 v{v}, s87, v{v}\nv_mov_b32 v{v+1}, s88\nv_cmp_gt_u32 vcc, 16, v0\nv_cndmask_b32 v{self.vFA}, v{v+1}, v{v}, vcc")

    def fin_dma(self, step):
        I = self.I
        hi, c = self.ring_addr(step % self.RING)
        sm = self.sFM1 if hi else self.sFM0
        L = [lambda: I(f"s_add_u32 m0, s{sm}, {c}")]
        if step < 28:
            srd, so = self.S_WD, self.sFW
        else:
            srd, so = self.S_WO, self.sFWO
        for e in range(2):
            L.append(lambda e=e: I(f"buffer_load_dwordx4 v{self.vFD+e}, s[{srd}:{srd+3}], s{so} offen offset:{1024*e} lds", f"w{step}"))
        if step < 27:
            L.append(lambda: I(f"s_add_u32 s{so}, s{so}, {16*896}"))
        elif 28 <= step < 35:
            rows = [0, 16, 24, 40, 56, 72, 80, 96]
            d = rows[step - 27] - rows[step - 28]
            L.append(lambda: I(f"s_add_u32 s{so}, s{so}, {d*896}"))
        return L

    FH = 0
    NH = 16
    FW = 224
    FACC = 52

    def fin_hload(self, step):
        I = self.I
        L = []
        R = self.vFR
        st = step if step < 28 else step
        imm = 1024 * ((step if step < 28 else step - 28) % 4)
        for a in range(2):
            r = self.FH + (step % self.NH) * 8 + 4 * a
            L.append(lambda r=r, a=a: I(f"buffer_load_dwordx4 a[{r}:{r+3}], v{R+5+a}, s[{self.S_WS}:{self.S_WS+3}], s{self.sFH} offen offset:{imm} sc1", f"h{step}"))
        if step < 27 and step % 4 == 3 or step == 31:
            L.append(lambda: I(f"s_add_u32 s{self.sFH}, s{self.sFH}, 0x1000"))
        if step == 27:
            L.append(lambda: I(f"s_mul_i32 s86, s{self.sWV}, {20*1024}\ns_sub_u32 s86, {88*1024}, s86\ns_add_u32 s{self.sFH}, s{self.sFH}, s86"))
        return L

    def fin_rdw(self, step):
        hi, c = self.ring_addr(step % self.RING)
        L = []
        for t in range(2):
            for e in range(2):
                r = self.FW + (step % 2) * 8 + 4 * t + 2 * e
                imm = c + (512 if step < 28 else 1024) * e
                L.append(lambda r=r, t=t, imm=imm: self.I(f"ds_read_b64_tr_b16 a[{r}:{r+1}], v{self.vFR + 2*hi + t} offset:{imm}"))
        return L

    def final(self, h_issued):
        I, b = self.I, self.b
        R = self.vFR
        z = self.vZZ + 1
        for a in range(2):
            I(f"v_mul_f32 v{z+a}, s{self.sNL2E}, v{z+a}\nv_exp_f32 v{z+a}, -v{z+a}\nv_add_f32 v{z+a}, 1.0, v{z+a}\nv_rcp_f32 v{z+a}, v{z+a}")
        nh = h_issued
        b.wait_tags(("w0",))
        for f in self.fin_rdw(0):
            f()
        A = self.FACC
        for n in range(36):
            gaps = [[] for _ in range(4)]
            if n + 1 < 36:
                rd = self.fin_rdw(n + 1)
                pre = []
                if n + 1 == 28:
                    pre = [lambda: I("\n".join(f"v_sub_u32 v{R+i}, v{R+i}, v{R+4}" for i in range(4)))]
                gaps[0] += pre + [lambda n=n: b.wait_tags((f"w{n+1}",))] + rd[:2]
                gaps[1] += rd[2:]
            if n + self.RING < 36:
                gaps[3] += self.fin_dma(n + self.RING)
            if n == self.o.opoll_issue:
                gaps[2].append(lambda: self.poll_issue(self.vFA, self.vPOLL, soff=f"s{self.sT0}"))
            lim = 28 if n < self.o.opoll_check else 36
            if n == self.o.opoll_check:
                gaps[1].append(lambda: self.poll_check(self.vFA, self.vPOLL, self.sMSK, soff=f"s{self.sT0}"))
            cnt = 0
            while nh < lim and nh - self.NH < n and cnt < 2:
                gaps[2 + cnt % 2] += self.fin_hload(nh)
                nh += 1
                cnt += 1
            if n == 28:
                for s in range(4):
                    for k in range(16):
                        I(f"v_mul_f32 v{A+16*s+k}, v{A+16*s+k}, v{z + (s & 1)}")
            i = 0
            for t in range(2):
                for a in range(2):
                    rw = self.FW + (n % 2) * 8 + 4 * t
                    rh = self.FH + (n % self.NH) * 8 + 4 * a
                    self.mfma(A + 16 * (2 * t + a), f"a[{rw}:{rw+3}]", f"a[{rh}:{rh+3}]", n == 0)
                    for f in gaps[i]:
                        f()
                    i += 1
        self.ts()
        v = self.vT
        I(f"v_add_u32 v{v}, s{self.sFM0}, v{self.vL16}")
        for sg in range(1, 4):
            I(f"s_xor_b32 s86, s{self.sWV}, {sg}\ns_mul_i32 s86, s86, {12*K}\nv_add_u32 v{v+sg}, s86, v{self.vL16}")
        I(f"v_and_b32 v{v+4}, 31, v0\nv_mul_u32_u24 v{v+4}, 0x380, v{v+4}\nv_lshrrev_b32 v{v+5}, 5, v0\nv_lshl_add_u32 v{v+4}, v{v+5}, 4, v{v+4}")
        for sg in range(1, 4):
            for q in range(4):
                r = A + 16 * sg + 4 * q
                I(f"ds_write_b128 v{v}, v[{r}:{r+3}] offset:{(sg-1)*4096 + q*1024}")
        b.waitcnt(lg=0)
        I("s_barrier")
        T = A + 64
        for sg in range(1, 4):
            for q in range(4):
                r = T + 16 * (sg - 1) + 4 * q
                I(f"ds_read_b128 v[{r}:{r+3}], v{v+sg} offset:{(sg-1)*4096 + q*1024}")
        for sg in range(1, 4):
            for k in range(16):
                I(f"v_add_f32 v{A+k}, v{A+k}, v{T+16*(sg-1)+k}")
        for h in range(2):
            r = A + 8 * h
            for i in range(4):
                I(f"v_cvt_pk_bf16_f32 v{r+i}, v{r+2*i}, v{r+2*i+1}")
            I(f"buffer_store_dwordx4 v[{r}:{r+3}], v{v+4}, s[{self.S_OUT}:{self.S_OUT+3}], s{self.sFO} offen offset:{32*h}")

    def build(self):
        I, b, o = self.I, self.b, self.o
        b.label(KNAME)
        self.prologue()
        self.ts()
        self.passA()
        self.ts()
        I(f"s_cmp_lg_u32 s{self.sISV}, 0\ns_cbranch_scc1 L_vpath")
        snap = b.snapshot()
        nts0 = self.nts
        epiB = self.passB_GU()
        for f in epiB:
            f()
        I("s_branch L_join")
        b.label("L_vpath")
        b.restore(snap)
        self.nts = nts0
        self.passB_V()
        self.ts()
        b.label("L_join")
        b.vm = [(set(), "h")]
        b.lg = []
        b.raw("s_waitcnt lgkmcnt(0)")
        self.ts()
        if o.stop == "p1":
            b.wait_all()
            I("s_branch L_exit")
        else:
            va = self.poll_setup_att()
            self.poll_issue(va, self.vPOLL)
            self.att_setup()
            self.final_setup()
            I("s_barrier")
            self.poll_check(va, self.vPOLL, self.sMSK)
            self.att_loads_K()
            self.poll_check(va, self.vPOLL, self.sMSK2)
            self.att_loads_V()
            for f in self.att_masks():
                f()
            hooks = {}

            def pub_h_and_prefetch():
                pass
            self._after_k = True
            I(f"s_mov_b32 s{self.sMSK}, 0x1ffff\ns_mov_b32 s{self.sMSK+1}, 0")

            def hook_poll_issue():
                self.poll_issue(self.vFA, self.vPOLL)

            def hook_poll_check():
                self.poll_check(self.vFA, self.vPOLL, self.sMSK)
                v = self.vT
                I(f"v_and_b32 v{v}, 31, v0\nv_lshlrev_b32 v{v}, 2, v{v}")
                ws = f"s[{self.S_WS}:{self.S_WS+3}]"
                I(f"buffer_load_dword v{self.vZZ}, v{v}, {ws}, s{self.sT2} offen sc1", "z")
                I(f"buffer_load_dword v{self.vZZ+1}, v{v}, {ws}, s{self.sT3} offen sc1", "z")
                I(f"s_xor_b32 s{self.sT3}, s{self.sT3}, 0x80")
                I(f"buffer_load_dword v{self.vZZ+2}, v{v}, {ws}, s{self.sT3} offen sc1", "z")
            hooks[o.hpoll_issue] = hook_poll_issue
            hooks[o.hpoll_check] = hook_poll_check
            orig_ts = self.ts
            state = {"n": 0}

            def ts_wrap():
                if state["n"] == 0:
                    self.flag_store(1)
                    for s in range(self.RING):
                        for f in self.fin_dma(s):
                            f()
                state["n"] += 1
                orig_ts()
            self.ts = ts_wrap
            self.attention(hooks)
            self.ts = orig_ts
            self.ts()
            I(f"s_cmp_lg_u32 s{self.sFIN}, 0\ns_cbranch_scc0 L_nofinal")
            snap2 = b.snapshot()
            nts1 = self.nts
            nh = 0
            while nh < self.NH:
                for f in self.fin_hload(nh):
                    f()
                nh += 1
            b.wait_tags(("o",))
            I("s_barrier")
            self.flag_store(2)
            I(f"s_mov_b32 s{self.sMSK}, 0xffff\ns_movk_i32 s{self.sT0}, 0x1000")
            self.ts()
            self.final(nh)
            if o.ts:
                b.wait_all()
                self.ts()
            I("s_branch L_exit")
            b.label("L_nofinal")
            b.restore(snap2)
            b.wait_tags(("o",))
            I("s_barrier")
            self.flag_store(2)
        b.label("L_exit")
        b.raw("s_endpgm")

    def text(self):
        hdr = open("gated_mix__sliding_block__glu_gated_glu__prompt.s.ref").read().split("; Override launch")[0]
        s = hdr
        s += "; Generated by my own generator script (hand-designed schedule; no compiler output).\n"
        s += "; @launch grid=(256,1,1) block=(256,1,1) lds=163840\n"
        s += '.amdgcn_target "amdgcn-amd-amdhsa--gfx950"\n.text\n'
        s += f".globl {KNAME}\n.p2align 8\n.type {KNAME},@function\n"
        s += self.b.text()
        s += ".fill 64, 4, 0xbf800000\n" if False else ""
        s += f""".section .rodata,"a"
.p2align 6
.amdhsa_kernel {KNAME}
  .amdhsa_next_free_vgpr 512
  .amdhsa_next_free_sgpr 102
  .amdhsa_accum_offset 256
  .amdhsa_group_segment_fixed_size 0
  .amdhsa_kernarg_size 88
  .amdhsa_user_sgpr_count 2
  .amdhsa_user_sgpr_kernarg_segment_ptr 1
  .amdhsa_system_sgpr_workgroup_id_x 1
.end_amdhsa_kernel
"""
        return s


def main():
    ap = argparse.ArgumentParser()
    ap.add_argument("-o", default="k.s")
    ap.add_argument("--ts", action="store_true")
    ap.add_argument("--stop", default="")
    ap.add_argument("--pk", type=int, default=0)
    ap.add_argument("--align", type=int, default=1)
    ap.add_argument("--epi_steps", type=int, default=26)
    ap.add_argument("--hpoll_issue", type=int, default=4)
    ap.add_argument("--hpoll_check", type=int, default=6)
    ap.add_argument("--opoll_issue", type=int, default=8)
    ap.add_argument("--opoll_check", type=int, default=12)
    o = ap.parse_args()
    g = G(o)
    g.build()
    open(o.o, "w").write(g.text())
    print(f"code bytes {g.b.off}, hazard nops {g.b.nops_added}, stamps {g.nts}", file=sys.stderr)


if __name__ == "__main__":
    main()
```

```python
import sys, math, argparse
from asmb import Builder

KNAME = "gated_mix__sliding_block__glu_gated_glu__prompt_kernel"
K = 1024
QKV_OFF = 0
QKV_MT = 168 * 512
HO_OFF = 0x600000
HO_MT = 144 * 1024
Z_OFF = 0xF00000
FL_OFF = 0xF10000
E_OFF = 0xF20000
TS_OFF = 0xF30000
WS_SIZE = 0x1000000
SLOT = 40 * K
CHUNK = 10 * K
PB_BASE = [120 * K, 136 * K, 0, 16 * K, 48 * K, 64 * K, 80 * K]
KV_K = 48 * K
KV_V = 72 * K
NEG = 0xF149F2CA
LOG2E = 1.4426950408889634
SPIN_MAX = 1 << 18


def f32hex(x):
    import struct
    return "0x%08x" % struct.unpack("<I", struct.pack("<f", x))[0]


class G:
    def __init__(self, opt):
        self.o = opt
        self.b = Builder(align_opt=opt.align)
        self.nts = 0

    S_X, S_A, S_B, S_C, S_WS, S_WD, S_WO, S_OUT = 8, 12, 16, 20, 24, 28, 32, 36
    pDBG, pGW = 40, 42
    sWV, sRB, sJ, sISV = 44, 45, 46, 47
    sX, sA, sB, sC = 48, 49, 50, 51
    sSAB, sM0, sM0B, sA2, sB2 = 52, 53, 54, 55, 56
    sTAG = 57
    sQ0, sQ1, sH0, sH1 = 58, 59, 60, 61
    sNL2E, sCS = 62, 63
    sMSK, sMSK2, sPAR = 64, 66, 68
    sKT = 70
    sQO, sZO, sOO = 73, 74, 75
    sFIN, sFW, sFH, sFWO, sFM0, sFM1, sFO, sZF = 76, 77, 78, 79, 80, 81, 82, 83
    sSPIN, sT0 = 84, 85
    sT1, sT2, sT3 = 3, 4, 5
    sTS, sEX, sTM = 95, 96, 100
    vL16 = 1
    vXD = 2
    vWD = 6
    vXR = 12
    vWR = 24
    vT = 33
    vPFW, vPFC = 46, 47
    vPOLL = 48
    vZ = 49
    vFL = 50
    vAP = 51
    ACC_A = 52
    ACC_B = 148
    WF = 224
    KF = 4
    vO = 196
    vQ = 212
    vP = 220
    vKA = 236
    vVA = 237
    vM = 240
    vMA, vMB = 242, 239
    vZZ = 243
    vFA = 246
    vFD = 247
    vFR = 249
    FH = 84
    NH = 16
    FACC = [52, 68, 212, 228]
    SREG = {8: 52, 0: 68, 7: 84, 6: 100, 5: 116, 4: 132, 3: 148, 2: 164, 1: 180}

    def I(self, t, tag=None):
        self.b.I(t, tag)

    def srd(self, s, lo, hi, size):
        self.I(f"s_mov_b32 s{s}, {lo}\ns_mov_b32 s{s+1}, {hi}\ns_mov_b32 s{s+2}, {size}\ns_mov_b32 s{s+3}, 0x20000")

    def ts(self, sreg=None):
        if not self.o.ts:
            return
        n = self.nts
        self.nts += 1
        if sreg is None:
            self.b.raw(f"{'s_memtime' if self.o.cyc else 's_memrealtime'} s[{self.sTM}:{self.sTM+1}]")
            self.b.raw("s_waitcnt lgkmcnt(0)")
            self.b.lg = []
            sreg = self.sTM
        self.I(f"v_mov_b32 v{self.vT}, s{sreg}\nv_mov_b32 v{self.vT+1}, 0")
        self.I(f"s_mov_b64 s[{self.sEX}:{self.sEX+1}], exec\ns_mov_b64 exec, 1")
        self.I(f"buffer_store_dword v{self.vT}, v{self.vT+1}, s[{self.S_WS}:{self.S_WS+3}], s{self.sTS} offen offset:{4*n}")
        self.I(f"s_mov_b64 exec, s[{self.sEX}:{self.sEX+1}]")

    soft = 0

    def sts(self):
        if not self.o.sts:
            return
        self.b.raw(f"{'s_memtime' if self.o.cyc else 's_memrealtime'} s[{self.sTM}:{self.sTM+1}]")
        self.b.raw("s_waitcnt lgkmcnt(0)")
        self.I(f"v_mov_b32 v{196+self.soft}, s{self.sTM}")
        self.soft += 1

    def sts_flush(self):
        for k in range(self.soft):
            self.I(f"v_readfirstlane_b32 s{self.sTM}, v{196+k}")
            self.ts(self.sTM)

    def lds(self, base, n, idx, const):
        return f"v{base + (const >> 16) * n + idx}", const & 0xFFFF

    def xf(self, M, n):
        r = (M * 28 + n) * 4
        return f"a[{r}:{r+3}]"

    def wf(self, bufset, t):
        r = self.WF + bufset * 12 + t * 4
        return r

    def acc(self, base, t, M):
        r = base + (t * 2 + M) * 16
        return r

    def prologue(self):
        I = self.I
        b = self.b
        if self.o.ts:
            b.raw(f"{'s_memtime' if self.o.cyc else 's_memrealtime'} s[98:99]")
        I("s_cmp_ge_u32 s2, 0x100\ns_cbranch_scc1 L_exit")
        b.raw("s_load_dwordx16 s[64:79], s[0:1], 0")
        b.raw("s_load_dwordx4 s[80:83], s[0:1], 64")
        b.raw(f"s_load_dwordx2 s[{self.S_WS}:{self.S_WS+1}], s[0:1], 80")
        I("s_getpc_b64 s[4:5]")
        b.label("L_pc")
        I("s_and_b32 s3, s2, 0xf8\nv_and_b32 v33, 7, v0\nv_add_lshl_u32 v33, v33, s3, 7\nv_min_u32 v33, L_exit-L_pc, v33")
        I("global_load_dword v45, v33, s[4:5]", tag="pf")
        b.vm[-1] = (set(), "pf")
        I("v_lshrrev_b32 v35, 6, v0\nv_and_b32 v0, 63, v0")
        I(f"v_readfirstlane_b32 s{self.sWV}, v35")
        I("s_and_b32 s3, s2, 7\ns_lshr_b32 s6, s2, 3")
        I(f"s_and_b32 s7, s3, 1\ns_lshl_b32 s7, s7, 3\ns_and_b32 s4, s6, 7\ns_add_u32 s{self.sRB}, s4, s7")
        I(f"s_lshr_b32 s7, s3, 1\ns_lshl_b32 s7, s7, 2\ns_lshr_b32 s5, s6, 3\ns_add_u32 s{self.sJ}, s5, s7")
        I(f"v_lshlrev_b32 v{self.vL16}, 4, v0")
        I("v_lshrrev_b32 v35, 3, v0\nv_and_b32 v36, 7, v0\nv_lshrrev_b32 v37, 4, v0")
        I("v_mul_u32_u24 v38, 0x380, v35")
        I("v_xor_b32 v39, v36, v37\nv_lshl_add_u32 v2, v39, 4, v38")
        I(f"v_xor_b32 v3, 64, v2\nv_add_u32 v3, {8*896-1024}, v3")
        I(f"v_add_u32 v4, {16*896-2048}, v2\nv_add_u32 v5, {16*896-2048}, v3")
        I("v_and_b32 v39, 2, v35\nv_lshlrev_b32 v39, 1, v39\nv_xor_b32 v39, v36, v39\nv_lshlrev_b32 v39, 4, v39")
        I(f"s_cmp_ge_u32 s{self.sJ}, 14\ns_cselect_b32 s{self.sISV}, 1, 0")
        I("s_movk_i32 s7, 0xe00\ns_movk_i32 s86, 0xa80\ns_cselect_b32 s7, s86, s7")
        I("v_mul_u32_u24 v40, 0xa80, v35\nv_add_u32 v10, v40, v39")
        I(f"v_add_u32 v11, {8*2688-1024}, v10")
        I("v_mul_u32_u24 v40, s7, v35\nv_add_u32 v6, v40, v39")
        I("s_lshl_b32 s86, s7, 3\ns_sub_u32 s86, s86, 0x400\nv_add_u32 v7, s86, v6")
        I("v_xor_b32 v8, 32, v6\nv_xor_b32 v9, 32, v7")
        I(f"s_lshl_b32 s{self.sSAB}, s7, 6")
        I("v_mul_u32_u24 v41, 0x380, v36\nv_lshl_add_u32 v41, v35, 7, v41")
        I(f"s_lshl_b32 s86, s4, 3\ns_lshl_b32 s87, s{self.sWV}, 1\ns_add_u32 s86, s86, s87")
        I("v_lshrrev_b32 v42, 1, v0\nv_lshlrev_b32 v42, 6, v42\nv_and_b32 v43, 1, v0\nv_add3_u32 v42, v42, v43, s86")
        I(f"v_mul_lo_u32 v{self.vPFW}, v42, s7\nv_mul_u32_u24 v{self.vPFC}, 0xa80, v42")
        I(f"s_lshl_b32 s86, s{self.sRB}, 2\ns_add_u32 s87, s86, s{self.sWV}\ns_mul_i32 s{self.sX}, s87, {32*896}")
        I(f"s_add_u32 s86, s86, s5\ns_lshl_b32 s86, s86, 2\ns_add_u32 s86, s86, s{self.sWV}\ns_mul_i32 s6, s86, {8*896}")
        I(f"s_lshl_b32 s86, s{self.sWV}, 4\ns_mul_i32 s87, s86, s7\ns_mul_i32 s88, s86, 0xa80")
        I(f"s_lshl_b32 s89, s{self.sJ}, 8\ns_lshl_b32 s90, s{self.sJ}, 7")
        I(f"s_lshl_b32 s91, s{self.sJ}, 9\ns_sub_u32 s91, s91, {42*128}")
        I(f"s_add_u32 s92, s91, 0x80\ns_add_u32 s93, s91, 0x100\ns_add_u32 s94, s89, 0x80")
        I(f"s_cmp_lg_u32 s{self.sISV}, 0")
        I(f"s_cselect_b32 s91, s91, s89\ns_cselect_b32 s92, s92, s89\ns_cselect_b32 s93, s93, s90")
        I(f"s_cselect_b32 s90, {17*128}, s94")
        I(f"s_add_u32 s{self.sA}, s91, s87\ns_add_u32 s{self.sB}, s92, s87\ns_add_u32 s{self.sC}, s93, s88")
        I(f"s_add_u32 s{self.sA2}, s90, s87\ns_add_u32 s{self.sB2}, s94, s87")
        I(f"s_mul_i32 s{self.sM0}, s{self.sWV}, {CHUNK}\ns_lshl_b32 s{self.sM0B}, s{self.sWV}, 12")
        WQ, WG_ = 448 * 2688, 448 * 3584
        I(f"s_mov_b32 s{self.S_X+2}, {2048*896}\ns_mov_b32 s{self.S_X+3}, 0x20000")
        I(f"s_cmp_lg_u32 s{self.sISV}, 0")
        for s_ in (self.S_A, self.S_B):
            I(f"s_mov_b32 s{s_+2}, {WG_}\ns_cselect_b32 s{s_+2}, {WQ}, s{s_+2}\ns_mov_b32 s{s_+3}, 0x20000")
        I(f"s_mov_b32 s{self.S_C+2}, {WQ}\ns_mov_b32 s{self.S_C+3}, 0x20000")
        b.raw("s_waitcnt lgkmcnt(0)")
        if self.o.ts:
            b.raw(f"{'s_memtime' if self.o.cyc else 's_memrealtime'} s[96:97]")
            b.raw("s_waitcnt lgkmcnt(0)")
            I("s_mov_b32 s1, s96")
        I(f"s_mov_b32 s{self.S_X}, s64\ns_mov_b32 s{self.S_X+1}, s65")
        for s_, lo in ((self.S_A, 72), (self.S_B, 74)):
            I(f"s_cselect_b32 s{s_}, s66, s{lo}\ns_cselect_b32 s{s_+1}, s67, s{lo+1}")
        I(f"s_mov_b32 s{self.S_C}, s66\ns_mov_b32 s{self.S_C+1}, s67")
        srd = lambda s_: f"s[{s_}:{s_+3}]"
        if self.o.coop:
            self.pf(41, self.S_X, "s6")
            self.pf(self.vPFW, self.S_A, "s91")
            self.pf(self.vPFW, self.S_B, "s92")
            self.pf(self.vPFC, self.S_C, "s93")
        self.sts()
        for ins in self.dma_stageA(0):
            ins()
        self.sts()
        I(f"s_mov_b32 s{self.S_WS+2}, {WS_SIZE}\ns_mov_b32 s{self.S_WS+3}, 0x20000")
        I(f"v_mov_b32 v{self.vZ}, 0\ns_mov_b32 s86, {E_OFF}")
        I(f"buffer_load_dword v{self.vPOLL}, v{self.vZ}, s[{self.S_WS}:{self.S_WS+3}], s86 offen sc1", tag="E")
        I(f"s_mov_b32 s6, s90\ns_mov_b32 s7, s94")
        self.srd(self.S_WD, "s76", "s77", 1792 * 896)
        self.srd(self.S_WO, "s68", "s69", 448 * 896)
        self.srd(self.S_OUT, "s80", "s81", 2048 * 896)
        I(f"s_mov_b64 s[{self.pDBG}:{self.pDBG+1}], s[82:83]\ns_mov_b64 s[{self.pGW}:{self.pGW+1}], s[78:79]")
        if self.o.ts:
            I(f"s_lshl_b32 s86, s2, 2\ns_add_u32 s86, s86, s{self.sWV}\ns_lshl_b32 s86, s86, 7\ns_add_u32 s{self.sTS}, s86, {TS_OFF}")
        I(f"s_lshr_b32 s86, s{self.sWV}, 1\ns_and_b32 s87, s{self.sWV}, 1")
        I("v_and_b32 v35, 31, v0\nv_lshrrev_b32 v36, 5, v0")
        I("v_bfe_u32 v37, v0, 1, 3\nv_xor_b32 v37, v37, v36")
        I(f"s_mul_i32 s88, s86, {2*CHUNK}\nv_lshlrev_b32 v38, 7, v35\nv_add_u32 v38, s88, v38")
        for ks in range(4):
            I(f"v_xor_b32 v39, {2*ks}, v37\nv_lshl_add_u32 v{self.vXR+ks}, v39, 4, v38")
        I("v_bfe_u32 v37, v0, 2, 2\nv_lshl_add_u32 v38, v36, 3, v37\nv_lshlrev_b32 v38, 7, v38")
        I("v_and_b32 v39, 1, v0\nv_lshlrev_b32 v39, 4, v39\nv_bfe_u32 v40, v0, 1, 1\nv_lshl_add_u32 v39, v40, 3, v39")
        I("v_add_u32 v38, v38, v39")
        I("v_bfe_u32 v39, v0, 4, 1\nv_and_b32 v40, 2, v37\nv_xor_b32 v40, v40, v39")
        I("s_lshl_b32 s88, s87, 1")
        I("v_xor_b32 v41, s88, v40")
        I(f"v_lshl_add_u32 v42, v41, 5, v38")
        I(f"v_add_u32 v{self.vWR}, 0x1000, v42")
        I(f"v_lshl_add_u32 v{self.vWR+1}, v39, 11, v42")
        I(f"v_xor_b32 v{self.vWR+2}, 32, v{self.vWR+1}")
        for st in (1, 2):
            for i in range(4):
                I(f"v_add_u32 v{self.vXR+4*st+i}, {65536*st}, v{self.vXR+i}")
            for i in range(3):
                I(f"v_add_u32 v{self.vWR+3*st+i}, {65536*st}, v{self.vWR+i}")
        I(f"s_lshl_b32 s88, s{self.sRB}, 2\ns_lshl_b32 s89, s86, 1\ns_add_u32 s88, s88, s89")
        I(f"s_mul_i32 s89, s88, {QKV_MT}\ns_lshl_b32 s90, s87, 11\ns_add_u32 s89, s89, s90")
        I(f"s_lshl_b32 s90, s{self.sJ}, 12\ns_lshl_b32 s91, s{self.sJ}, 14\ns_sub_u32 s91, s91, {40*4096}")
        I(f"s_cmp_lg_u32 s{self.sISV}, 0\ns_cselect_b32 s90, s91, s90\ns_add_u32 s{self.sQ0}, s89, s90")
        I(f"s_add_u32 s{self.sQ1}, s{self.sQ0}, {QKV_MT}")
        I(f"s_mul_i32 s89, s88, {HO_MT}\ns_lshl_b32 s90, s{self.sJ}, 13\ns_lshl_b32 s91, s87, 11\ns_add_u32 s89, s89, s90")
        I(f"s_add_u32 s89, s89, s91\ns_add_u32 s{self.sH0}, s89, {HO_OFF}\ns_add_u32 s{self.sH1}, s{self.sH0}, {HO_MT}")
        I(f"s_mov_b32 s{self.sNL2E}, {f32hex(-LOG2E)}\ns_mov_b32 s{self.sCS}, {f32hex(LOG2E / math.sqrt(28.0))}")
        I(f"s_lshl_b32 s88, s{self.sRB}, 8\ns_lshl_b32 s89, s{self.sJ}, 2\ns_add_u32 s88, s88, s89\ns_add_u32 s88, s88, {FL_OFF}")
        I(f"v_mov_b32 v{self.vFL}, s88")
        self.sts()
        self.poll_setup_att()
        self.att_setup()
        self.final_setup()
        self.sts()
        for st in range(1, self.o.lead):
            for ins in self.dma_stageA(st):
                ins()

    def dma_stageA(self, st):
        I = self.I
        base = (st % 4) * SLOT
        tag = f"st{st}"
        L = []
        L.append(lambda: I(f"s_add_u32 m0, s{self.sM0}, {base}"))
        for bq in range(4):
            L.append(lambda bq=bq: I(f"buffer_load_dwordx4 v{self.vXD+bq}, s[{self.S_X}:{self.S_X+3}], s{self.sX} offen offset:{1024*bq} lds", tag))
        prev = lambda: I(f"s_add_u32 s{self.sX}, s{self.sX}, 0x80")
        for seg, (srd, so, stp) in enumerate(((self.S_A, self.sA, self.sSAB), (self.S_B, self.sB, self.sSAB), (self.S_C, self.sC, None))):
            L.append(lambda seg=seg: I(f"s_add_u32 m0, s{self.sM0}, {base + 4096 + 2048*seg}"))
            L.append(prev)
            for e in range(2):
                L.append(lambda seg=seg, e=e, srd=srd, so=so: I(f"buffer_load_dwordx4 v{self.vWD+2*seg+e}, s[{srd}:{srd+3}], s{so} offen offset:{1024*e} lds", tag))
            prev = lambda so=so, stp=stp: I(f"s_add_u32 s{so}, s{so}, " + (f"s{stp}" if stp else str(64*2688)))
        L.append(prev)
        return L

    def dma_stageB(self, t):
        I = self.I
        base = PB_BASE[t]
        tag = f"st{7+t}"
        L = []
        prev = None
        if t == 0:
            prev = lambda: I(f"s_cmp_lg_u32 s{self.sISV}, 0\ns_cselect_b32 s{self.S_B+2}, 0, s{self.S_B+2}")
        for seg, (srd, so) in enumerate(((self.S_A, self.sA2), (self.S_B, self.sB2))):
            L.append(lambda seg=seg: I(f"s_add_u32 m0, s{self.sM0B}, {base + 2048*seg}"))
            if prev:
                L.append(prev)
            for e in range(2):
                L.append(lambda seg=seg, e=e, srd=srd, so=so: I(f"buffer_load_dwordx4 v{self.vWD+2*seg+e}, s[{srd}:{srd+3}], s{so} offen offset:{1024*e} lds", tag))
            prev = lambda so=so: I(f"s_add_u32 s{so}, s{so}, s{self.sSAB}")
        L.append(prev)
        return L

    def rd_w(self, bufset, slot_t, addr_t, const):
        out = []
        r = self.wf(bufset, slot_t)
        for e in range(2):
            v, imm = self.lds(self.vWR, 3, addr_t, const + 512 * e)
            out.append(lambda r=r, e=e, v=v, imm=imm: self.I(f"ds_read_b64_tr_b16 a[{r+2*e}:{r+2*e+1}], {v} offset:{imm}"))
        return out

    def rd_x(self, M, n):
        st, ks = divmod(n, 4)
        v, imm = self.lds(self.vXR, 4, ks, (st % 4) * SLOT + M * CHUNK)
        return [lambda: self.I(f"ds_read_b128 {self.xf(M, n)}, {v} offset:{imm}")]

    def readsA(self, n):
        st, ks = divmod(n, 4)
        c = (st % 4) * SLOT + ks * CHUNK + 4096
        bs = n % 2
        return [self.rd_w(bs, 0, 0, c), self.rd_x(0, n) + self.rd_x(1, n), self.rd_w(bs, 1, 1, c), self.rd_w(bs, 2, 2, c)]

    def readsB(self, n):
        t, ks = divmod(n, 4)
        c = PB_BASE[t] + ks * 4096
        bs = n % 2
        return [self.rd_w(bs, 1, 1, c), self.rd_w(bs, 2, 2, c)]

    def mfma(self, d, a, bb, first):
        c = "0" if first else f"v[{d}:{d+15}]"
        self.I(f"v_mfma_f32_32x32x16_bf16 v[{d}:{d+15}], {a}, {bb}, {c}")

    def dbg_load(self, tag=None):
        self.I(f"global_load_dword v{self.vPOLL}, v{self.vZ}, s[{self.pDBG}:{self.pDBG+1}] sc1", tag)

    def pf(self, v, srd, so):
        self.I(f"buffer_load_dword v{self.vT+12}, v{v}, s[{srd}:{srd+3}], {so} offen", "pf")
        self.b.vm[-1] = (set(), "pf")

    def passA(self):
        I, b, o = self.I, self.b, self.o
        b.wait_tags(("st0",))
        self.ts()
        I(f"s_or_b32 s86, s2, s{self.sWV}\ns_cmp_eq_u32 s86, 0\ns_cbranch_scc0 L_notag")
        snap_vm = list(b.vm)
        I(f"v_add_u32 v34, 2, v{self.vPOLL}\nv_or_b32 v34, 1, v34\ns_mov_b32 s86, {E_OFF}")
        I(f"s_mov_b64 exec, 1")
        I(f"buffer_store_dword v34, v{self.vZ}, s[{self.S_WS}:{self.S_WS+3}], s86 offen sc1")
        I(f"global_store_dword v{self.vZ}, v34, s[{self.pDBG}:{self.pDBG+1}] sc1")
        I(f"s_mov_b64 exec, -1")
        b.vm = [(set(), t) if t == "E" else (d, t) for d, t in snap_vm]
        b.label("L_notag")
        I("s_barrier")
        for grp in self.readsA(0):
            for f in grp:
                f()
        def stream(v):
            if v <= 6:
                return self.dma_stageA(v)
            if v == 7:
                return self.dma_stageB(0) + self.dma_stageB(1)
            if v == 8:
                return self.dma_stageB(2) + self.dma_stageB(3)
            return []
        pend = []
        for n in range(28):
            st, ks = divmod(n, 4)
            bs = n % 2
            nxt = self.readsA(n + 1) if n < 27 else self.readsB(0)
            gaps = [[] for _ in range(6)]
            if ks == 0:
                pend += stream(st + o.lead)
            if ks == 3:
                def bar(st=st):
                    tags = (f"st{st+1}",) if st < 6 else ("st7", "st8")
                    b.wait_tags(tags, lg_all=True)
                    I("s_barrier")
                gaps[0].append(bar)
            extra = []
            if o.coop and n == 2:
                extra.append(lambda: self.pf(self.vPFW, self.S_A, "s6"))
            if o.coop and n == 6:
                extra.append(lambda: self.pf(self.vPFW, self.S_B, "s7"))
            if n == 13:
                extra.append(lambda: self.dbg_load("tagrd"))
            if o.coopf and n in (o.pfw, o.pfw + 2, o.pfw + 4):
                k = (n - o.pfw) // 2
                extra.append(lambda k=k: self.pf_final(k))
            for i, grp in enumerate(nxt):
                gaps[i] += grp
            left = 4 - ks
            quota = -(-len(pend) // left)
            for gi, cap in ((2, 1), (3, 1), (4, 2), (5, 3)):
                for _ in range(cap):
                    if pend and quota > 0:
                        gaps[gi].append(pend.pop(0))
                        quota -= 1
            gaps[5] += extra
            i = 0
            for t in range(3):
                for M in range(2):
                    r = self.wf(bs, t)
                    self.mfma(self.acc(self.ACC_A, t, M), f"a[{r}:{r+3}]", self.xf(M, n), n == 0)
                    for f in gaps[i]:
                        f()
                    i += 1
        assert not pend
        rest = []
        for v in range(7 + o.lead, 9):
            rest += stream(v)
        self.pend = rest + self.dma_stageB(4) + self.dma_stageB(5) + self.dma_stageB(6)

    def pf_final(self, k):
        I = self.I
        v = self.vT + 11
        if k == 0:
            I(f"s_lshr_b32 s86, s2, 3\ns_lshl_b32 s86, s86, 2\ns_add_u32 s86, s86, s{self.sWV}")
            I(f"s_mul_i32 s6, s86, {98*128}\ns_mul_i32 s7, s86, {25*128}\nv_lshlrev_b32 v{v}, 7, v0")
            self.pf(v, self.S_WD, "s6")
        elif k == 1:
            I(f"v_min_u32 v{v}, {33*128}, v{v}\ns_add_u32 s6, s6, {64*128}")
            self.pf(v, self.S_WD, "s6")
        else:
            I(f"v_min_u32 v{v}, {24*128}, v{v}")
            self.pf(v, self.S_WO, "s7")
            I(f"s_cmp_lg_u32 s{self.sFIN}, 0\ns_cselect_b32 s{self.S_WD+2}, s{self.S_WD+2}, 0\ns_cselect_b32 s{self.S_WO+2}, s{self.S_WO+2}, 0")

    def get_tag(self):
        I, b = self.I, self.b
        u = self.uid()
        I(f"v_readfirstlane_b32 s{self.sTAG}, v{self.vPOLL}")
        I(f"s_cmp_lg_u32 s{self.sTAG}, 0\ns_cbranch_scc1 L_gottag{u}")
        keep_vm, keep_lg = list(b.vm), list(b.lg)
        I(f"s_mov_b32 s{self.sSPIN}, 0")
        b.label(f"L_tagspin{u}")
        self.dbg_load()
        I(f"s_add_u32 s{self.sSPIN}, s{self.sSPIN}, 1\ns_cmp_gt_u32 s{self.sSPIN}, {SPIN_MAX}\ns_cbranch_scc1 L_exit")
        I(f"v_readfirstlane_b32 s{self.sTAG}, v{self.vPOLL}")
        I(f"s_cmp_lg_u32 s{self.sTAG}, 0\ns_cbranch_scc0 L_tagspin{u}")
        b.vm, b.lg = keep_vm, keep_lg
        b.label(f"L_gottag{u}")

    def cvt_store(self, r, so, imm, tag, voff=None):
        L = []
        for i in range(4):
            L.append(lambda i=i: self.I(f"v_cvt_pk_bf16_f32 v{r+i}, v{r+2*i}, v{r+2*i+1}"))
        v = self.vL16 if voff is None else voff
        L.append(lambda: self.I(f"buffer_store_dwordx4 v[{r}:{r+3}], v{v}, s[{self.S_WS}:{self.S_WS+3}], s{so} offen offset:{imm} sc1", tag))
        return L

    def sigmoid_tile(self, r, so, imm, tag, pk):
        I = self.I
        L = []
        if pk:
            for i in range(0, 8, 2):
                L.append(lambda i=i: I(f"v_pk_mul_f32 v[{r+i}:{r+i+1}], v[{r+i}:{r+i+1}], s[{self.sNL2E}:{self.sNL2E+1}] op_sel_hi:[1,0]"))
        else:
            for i in range(8):
                L.append(lambda i=i: I(f"v_mul_f32 v{r+i}, s{self.sNL2E}, v{r+i}"))
        for i in range(8):
            L.append(lambda i=i: I(f"v_exp_f32 v{r+i}, v{r+i}"))
        if pk:
            for i in range(0, 8, 2):
                L.append(lambda i=i: I(f"v_pk_add_f32 v[{r+i}:{r+i+1}], v[{r+i}:{r+i+1}], 1.0 op_sel_hi:[1,0]"))
        else:
            for i in range(8):
                L.append(lambda i=i: I(f"v_add_f32 v{r+i}, 1.0, v{r+i}"))
        for i in range(8):
            L.append(lambda i=i: I(f"v_rcp_f32 v{r+i}, v{r+i}"))
        if pk:
            for i in range(0, 8, 2):
                L.append(lambda i=i: I(f"v_pk_mul_f32 v[{r+i}:{r+i+1}], v[{r+i}:{r+i+1}], v[{r+8+i}:{r+9+i}]"))
        else:
            for i in range(8):
                L.append(lambda i=i: I(f"v_mul_f32 v{r+i}, v{r+i}, v{r+8+i}"))
        return L + self.cvt_store(r, so, imm, tag)

    def flag_store(self, phase):
        I = self.I
        lab = f"L_nofl{self.uid()}"
        I(f"s_cmp_eq_u32 s{self.sWV}, 0\ns_cbranch_scc0 {lab}")
        keep = list(self.b.vm)
        I(f"v_mov_b32 v{self.vT}, s{self.sTAG}\ns_mov_b64 exec, 1")
        I(f"s_movk_i32 s86, {4096*phase}")
        I(f"buffer_store_dword v{self.vT}, v{self.vFL}, s[{self.S_WS}:{self.S_WS+3}], s86 offen sc1")
        I("s_mov_b64 exec, -1")
        self.b.vm = keep
        self.b.label(lab)

    _uid = 0

    def uid(self):
        self._uid += 1
        return self._uid

    @staticmethod
    def weave(main, side, start=0.0, end=1.0):
        out = []
        n = len(main)
        a, e = int(start * n), max(int(end * n), int(start * n) + 1)
        k = 0
        for i, f in enumerate(main):
            out.append(f)
            if i >= a:
                want = min(len(side), math.ceil(len(side) * (i - a + 1) / (e - a)))
                while k < want:
                    out.append(side[k]); k += 1
        out += side[k:]
        return out

    def passB_GU(self):
        I, b, o = self.I, self.b, self.o
        pend = list(self.pend)
        epi = []
        for M, so in ((0, self.sQ0), (1, self.sQ1)):
            r = self.acc(self.ACC_A, 0, M)
            epi += self.cvt_store(r, so, 0, "qk") + self.cvt_store(r + 8, so, 1024, "qk")
        for t in (1, 2):
            for M, so in ((0, self.sH0), (1, self.sH1)):
                epi += self.sigmoid_tile(self.acc(self.ACC_A, t, M), so, 1024 * (t - 1), "h", o.pkB)
        epi += self.att_masks()
        total = len(epi)
        first_gap = 3
        ngaps = 4 * 28
        done = 0
        g = 0
        for n in range(28):
            bs = n % 2
            gaps = [[] for _ in range(4)]
            if n == 7:
                gaps[0].append(lambda: (b.wait_tags(("st9", "st10")), I("s_barrier")))
            if n == 15:
                def bar():
                    b.wait_tags(("st11", "st12", "st13", "qk"), lg_all=True)
                    I("s_barrier")
                    self.flag_store(0)
                gaps[0].append(bar)
            if n < 27:
                nx = self.readsB(n + 1)
                gaps[0] += nx[0]
                gaps[1] += nx[1]
            if n == 1:
                gaps[3].append(self.get_tag)
            if 16 <= n < 16 + o.nb1:
                pend += self.fin_dma(n - 16)
            for gi in (2, 3):
                for _ in range(2):
                    if pend:
                        gaps[gi].append(pend.pop(0))
            if n == o.kpoll:
                gaps[3].append(lambda: self.poll_issue(self.vAP, self.vPOLL))
            i = 0
            for t in range(2):
                for M in range(2):
                    r = self.wf(bs, t + 1)
                    self.mfma(self.acc(self.ACC_B, t, M), f"a[{r}:{r+3}]", self.xf(M, n), n == 0)
                    for f in gaps[i]:
                        f()
                    g += 1
                    if g > first_gap:
                        want = min(total, math.ceil(total * (g - first_gap) / (ngaps - first_gap)))
                        while done < want:
                            epi[done]()
                            done += 1
                    i += 1
        assert done == total and not pend
        self.ts()
        I(f"s_add_u32 s{self.sH0}, s{self.sH0}, 0x1000\ns_add_u32 s{self.sH1}, s{self.sH1}, 0x1000")
        L = []
        for t in (0, 1):
            for M, so in ((0, self.sH0), (1, self.sH1)):
                L += self.sigmoid_tile(self.acc(self.ACC_B, t, M), so, 1024 * t, "h", o.pk)
        self.postB(L)

    def postB(self, epi):
        I, b, o = self.I, self.b, self.o
        I("s_barrier")
        self.poll_check(self.vAP, self.vPOLL, self.sMSK)
        self.att_loads_K()
        self.poll_check(self.vAP, self.vPOLL, self.sMSK2)
        self.att_loads_V()
        self.ts()
        side = []
        for s in range(o.nb1, self.RING):
            side += self.fin_dma(s)
        last = epi[-1]
        for f in self.weave(epi[:-1], side, 0.05, 0.9):
            f()
        last()

    def passB_V(self):
        I, b, o = self.I, self.b, self.o
        for f in list(self.pend):
            f()
        self.srd(self.S_C, f"s{self.pGW}", f"s{self.pGW+1}", 896)
        I(f"s_add_u32 m0, s{self.sM0B}, {PB_BASE[0] + 2048}")
        I(f"buffer_load_dwordx4 v{self.vL16}, s[{self.S_C}:{self.S_C+3}], 0 offen lds", "gw")
        I(f"s_sub_u32 s{self.sT1}, s{self.sQ0}, 0x2000\ns_sub_u32 s{self.sT2}, s{self.sQ1}, 0x2000")
        I(f"v_add_u32 v{self.vT+2}, 0x1000, v{self.vL16}")
        self.get_tag()
        epi = []
        for M, so in ((0, self.sQ0), (1, self.sQ1)):
            r = self.acc(self.ACC_A, 0, M)
            epi += self.cvt_store(r, so, 0, "qk") + self.cvt_store(r + 8, so, 1024, "qk")
        for t in (1, 2):
            for M, so in ((0, self.sT1), (1, self.sT2)):
                r = self.acc(self.ACC_A, t, M)
                epi += self.cvt_store(r, so, 1024 * (t - 1), "qk") + self.cvt_store(r + 8, so, 1024 * (t - 1), "qk", voff=self.vT + 2)
        I(f"s_and_b32 s88, s{self.sWV}, 1\ns_sub_u32 s89, s{self.sJ}, 14\ns_xor_b32 s88, s88, s89\ns_lshl_b32 s88, s88, 6")
        for st in range(3):
            I(f"v_xor_b32 v{self.vWR+3*st}, s88, v{self.vWR+3*st}\nv_subrev_u32 v{self.vWR+3*st}, 0x1000, v{self.vWR+3*st}")
        I(f"s_lshl_b32 s88, s{self.sRB}, 2\ns_add_u32 s88, s88, s{self.sWV}")
        I(f"s_mul_i32 s88, s88, {QKV_MT}\ns_lshl_b32 s89, s89, 11\ns_add_u32 s88, s88, s89")
        I(f"s_add_u32 s{self.sT3}, s88, {8*17*512}")
        I(f"v_lshrrev_b32 v{self.vT+3}, 5, v0\nv_lshlrev_b32 v{self.vT+3}, 4, v{self.vT+3}")
        I(f"s_add_u32 s88, s{self.sM0B}, {PB_BASE[0] + 2048}\nv_add_u32 v{self.vT+3}, s88, v{self.vT+3}")
        I(f"v_and_b32 v{self.vT+4}, 31, v0\nv_lshlrev_b32 v{self.vT+4}, 2, v{self.vT+4}")
        D = self.ACC_B
        I(f"s_bitcmp1_b32 s{self.sWV}, 0\ns_cbranch_scc1 L_v_wc1")
        snap = b.snapshot()
        for wc in range(2):
            if wc == 1:
                b.label("L_v_wc1")
                b.restore(snap)
            e = list(epi)

            def rdv(n):
                t, ks = divmod(n, 4)
                return self.rd_w(n % 2, 0, 0, PB_BASE[t] + ks * 4096)
            for f in rdv(0):
                f()
            for n in range(28):
                if n == 7:
                    b.wait_tags(("st9", "st10"))
                    I("s_barrier")
                if n == 15:
                    b.wait_tags(("st11", "st12", "st13"))
                    I("s_barrier")
                if n < 27:
                    for f in rdv(n + 1):
                        f()
                r = self.wf(n % 2, 0)
                self.mfma(D, f"a[{r}:{r+3}]", self.xf(wc, n), n == 0)
                for _ in range(3):
                    if e:
                        e.pop(0)()
            assert not e
            for f in self.cvt_store(D, self.sT3, 0, "qk") + self.cvt_store(D + 8, self.sT3, 1024, "qk"):
                f()
            b.wait_tags(("gw",))
            I(f"ds_read_b128 a[{self.WF}:{self.WF+3}], v{self.vT+3}")
            mk = self.att_masks()
            for n in range(28):
                if n < 27:
                    r = self.WF + 4 * ((n + 1) % 3)
                    I(f"ds_read_b128 a[{r}:{r+3}], v{self.vT+3} offset:{32*(n+1)}")
                r = self.WF + 4 * (n % 3)
                self.mfma(D + 16, f"a[{r}:{r+3}]", self.xf(wc, n), n == 0)
                for _ in range(2):
                    if mk:
                        mk.pop(0)()
            if wc == 0:
                I("s_branch L_v_done")
        b.label("L_v_done")
        b.wait_tags(("qk",), lg_all=True)
        I("s_barrier")
        self.flag_store(0)
        for s in range(o.nb1):
            for f in self.fin_dma(s):
                f()
        self.poll_issue(self.vAP, self.vPOLL)
        self.ts()
        self.postB([lambda: I("s_nop 0"),
                    lambda: I(f"buffer_store_dword v{D+16}, v{self.vT+4}, s[{self.S_WS}:{self.S_WS+3}], s{self.sZO} offen sc1", "h")])

    def poll_setup_att(self):
        I = self.I
        v, t = self.vAP, self.vT
        I(f"v_lshrrev_b32 v{v}, 4, v0\nv_add_u32 v{v}, s{self.sRB}, v{v}\nv_subrev_u32 v{v}, 2, v{v}\nv_max_i32 v{v}, 0, v{v}")
        I(f"v_min_u32 v{v}, 15, v{v}\nv_lshlrev_b32 v{v}, 8, v{v}\nv_and_b32 v{t}, 15, v0\nv_lshl_add_u32 v{v}, v{t}, 2, v{v}")
        I(f"v_add_u32 v{v}, {FL_OFF}, v{v}")
        I(f"s_mul_i32 s86, s{self.sJ}, 28\ns_add_u32 s87, s86, 27\ns_lshr_b32 s86, s86, 6\ns_lshr_b32 s87, s87, 6")
        I("s_lshl_b32 s88, 1, s86\ns_lshl_b32 s89, 1, s87\ns_or_b32 s88, s88, s89")
        I("s_lshl_b32 s89, s88, 7")
        I(f"s_mul_i32 s{self.sMSK}, s89, 0x10001\ns_or_b32 s{self.sMSK+1}, s88, s89")
        I("s_cmp_le_u32 s86, 3\ns_cselect_b32 s90, 0x4000, 0\ns_cmp_ge_u32 s87, 3\ns_cselect_b32 s91, 0x8000, 0\ns_or_b32 s90, s90, s91")
        I(f"s_mul_i32 s{self.sMSK2}, s90, 0x10001\ns_mov_b32 s{self.sMSK2+1}, s90")

    def poll_issue(self, vaddr, vdst, soff="0"):
        self.I(f"buffer_load_dword v{vdst}, v{vaddr}, s[{self.S_WS}:{self.S_WS+3}], {soff} offen sc1", "poll")

    def poll_check(self, vaddr, vdst, smask, soff="0"):
        I, b = self.I, self.b
        u = self.uid()
        I(f"v_cmp_ne_u32 vcc, s{self.sTAG}, v{vdst}")
        I(f"s_and_b64 vcc, vcc, s[{smask}:{smask+1}]\ns_cbranch_scc0 L_pok{u}")
        keep_vm, keep_lg = list(b.vm), list(b.lg)
        I(f"s_mov_b32 s{self.sSPIN}, 0")
        b.label(f"L_psp{u}")
        I(f"buffer_load_dword v{vdst}, v{vaddr}, s[{self.S_WS}:{self.S_WS+3}], {soff} offen sc1")
        I(f"s_add_u32 s{self.sSPIN}, s{self.sSPIN}, 1\ns_cmp_gt_u32 s{self.sSPIN}, {SPIN_MAX}\ns_cbranch_scc1 L_exit")
        I(f"v_cmp_ne_u32 vcc, s{self.sTAG}, v{vdst}")
        I(f"s_and_b64 vcc, vcc, s[{smask}:{smask+1}]\ns_cbranch_scc1 L_psp{u}")
        b.vm, b.lg = keep_vm, keep_lg
        b.label(f"L_pok{u}")

    def S(self, i):
        return self.SREG[i]

    def att_setup(self):
        I = self.I
        h = self.sJ
        I(f"s_and_b32 s86, s{h}, 1\ns_sub_u32 s{self.sPAR}, 0, s86\ns_mov_b32 s{self.sPAR+1}, s{self.sPAR}")
        I(f"s_mul_i32 s87, s{h}, 7\ns_lshr_b32 s87, s87, 1\ns_lshl_b32 s87, s87, 9")
        I(f"s_lshl_b32 s88, s{self.sRB}, 2\ns_mul_i32 s89, s{self.sWV}, 3\ns_add_u32 s89, s89, s88\ns_sub_u32 s89, s89, 8")
        for i in range(3):
            I(f"s_add_u32 s90, s89, {i}\ns_max_i32 s90, s90, 0\ns_mul_i32 s90, s90, {QKV_MT}\ns_add_u32 s90, s90, s87")
            I(f"s_add_u32 s{self.sKT+i}, s90, {56*512}")
        v = self.vT
        I(f"v_lshrrev_b32 v{v}, 5, v0\nv_add_u32 v{v+1}, s89, v{v}\nv_mov_b32 v{v+2}, 0xf149")
        I(f"v_cmp_gt_i32 vcc, 0, v{v+1}\nv_cndmask_b32 v{self.vP}, 0, v{v+2}, vcc\nv_mov_b32 v{self.vP+1}, 0")
        I(f"s_add_u32 s90, s89, 2\ns_cmp_lt_i32 s90, 0\ns_cselect_b32 s90, 0xf149, 0\nv_mov_b32 v{self.vP+2}, s90\nv_mov_b32 v{self.vP+3}, 0")
        I(f"v_mov_b32 v{self.vP+4}, 0x3f80\nv_mov_b32 v{self.vP+5}, 0")
        I(f"s_cmp_eq_u32 s86, 0\ns_cselect_b32 s90, {1536+8}, 0\ns_mul_i32 s91, s{self.sWV}, {3*2048}\ns_add_u32 s90, s90, s91\ns_add_u32 s90, s90, {KV_K}")
        I(f"v_and_b32 v{v+1}, 31, v0\nv_lshlrev_b32 v{v+1}, 4, v{v+1}\nv_add_u32 v{self.vP+7}, s90, v{v+1}\nv_lshl_add_u32 v{self.vP+6}, v{v}, 11, v{self.vP+7}")
        I(f"v_and_b32 v{v+1}, 31, v0\nv_lshlrev_b32 v{v+2}, 2, v{v}\nv_xor_b32 v{v+1}, v{v+1}, v{v+2}\nv_lshlrev_b32 v{v+1}, 4, v{v+1}")
        I(f"v_lshl_add_u32 v{self.vP+8}, v{v}, 9, v{v+1}\nv_xor_b32 v{self.vP+9}, 0x80, v{self.vP+8}")
        I(f"s_lshl_b32 s90, s{self.sWV}, 11\ns_add_u32 s91, s90, {KV_K}\nv_add_u32 v{self.vKA}, s91, v{self.vL16}")
        I(f"v_bfe_u32 v{v+1}, v0, 4, 1\nv_bfe_u32 v{v+2}, v0, 1, 1\nv_lshl_add_u32 v{v+1}, v{v+1}, 1, v{v+2}")
        I(f"v_xor_b32 v{v+2}, v{v}, v{v+1}\nv_lshlrev_b32 v{v+2}, 2, v{v+2}\nv_bfe_u32 v{v+3}, v0, 2, 2\nv_add_u32 v{v+2}, v{v+2}, v{v+3}")
        I(f"v_lshlrev_b32 v{v+2}, 4, v{v+2}\nv_lshl_add_u32 v{v+2}, v{v+1}, 9, v{v+2}\nv_and_b32 v{v+3}, 1, v0\nv_lshl_add_u32 v{v+2}, v{v+3}, 3, v{v+2}")
        I(f"s_add_u32 s91, s90, {KV_V}\nv_add_u32 v{self.vVA}, s91, v{v+2}\nv_xor_b32 v{self.vVA+1}, 0x80, v{self.vVA}")
        I(f"v_subrev_u32 v{v+1}, 1, v{v}\nv_and_b32 v{v+1}, s{self.sPAR}, v{v+1}\nv_not_b32 v{self.vMA}, v{v+1}")
        I(f"v_sub_u32 v{v+1}, 0, v{v}\ns_not_b32 s91, s{self.sPAR}\nv_and_b32 v{v+1}, s91, v{v+1}\nv_not_b32 v{self.vMB}, v{v+1}")
        I(f"s_add_u32 s88, s88, s{self.sWV}\ns_mul_i32 s90, s88, {QKV_MT}\ns_add_u32 s{self.sQO}, s90, s87")
        I(f"s_mul_i32 s90, s88, {HO_MT}\ns_lshl_b32 s91, s{h}, 11\ns_add_u32 s90, s90, s91\ns_add_u32 s{self.sOO}, s90, {HO_OFF + 112*1024}")
        I(f"s_lshl_b32 s90, s88, 7\ns_add_u32 s{self.sZO}, s90, {Z_OFF}")
        m = self.vM
        I(f"v_lshlrev_b32 v{m}, 2, v{v}\nv_and_b32 v{m+1}, 31, v0\nv_sub_u32 v{m}, v{m+1}, v{m}\nv_mov_b32 v{m+1}, {NEG}")

    def att_masks(self):
        L = []
        v = self.vM
        pair = lambda r: f"s[{88+2*(r&1)}:{89+2*(r&1)}]"
        def cmp_(r):
            key = 8 * (r >> 2) + (r & 3)
            return lambda: self.I(f"v_cmp_gt_i32 {pair(r)}, {key}, v{v}")
        L.append(cmp_(0))
        for r in range(16):
            if r < 15:
                L.append(cmp_(r + 1))
            if r > 0:
                L.append(lambda r=r: self.I(f"v_sub_f32 v{self.S(0)+r-1}, v{v+1}, v{self.S(8)+r-1}"))
            L.append(lambda r=r: self.I(f"v_cndmask_b32 v{self.S(8)+r}, 0, v{v+1}, {pair(r)}"))
        L.append(lambda: self.I(f"v_sub_f32 v{self.S(0)+15}, v{v+1}, v{self.S(8)+15}"))
        return L

    def att_loads_K(self):
        I = self.I
        ws = f"s[{self.S_WS}:{self.S_WS+3}]"
        I(f"s_mul_i32 s86, s{self.sWV}, {3*2048}")
        for i in range(3):
            I(f"s_add_u32 m0, s86, {KV_K + 2048*i}")
            if i < 2:
                I(f"buffer_load_dwordx4 v[{self.vQ+4*i}:{self.vQ+4*i+3}], v{self.vL16}, {ws}, s{self.sQO} offen offset:{1024*i} sc1", "K")
            for e in range(2):
                I(f"buffer_load_dwordx4 v{self.vL16}, {ws}, s{self.sKT+i} offen offset:{1024*e} sc1 lds", "K")

    def att_loads_V(self):
        I = self.I
        ws = f"s[{self.S_WS}:{self.S_WS+3}]"
        I(f"s_mul_i32 s86, s{self.sWV}, {3*2048}")
        for i in range(3):
            I(f"s_add_u32 m0, s86, {KV_V + 2048*i}\ns_add_u32 s87, s{self.sKT+i}, {56*512}")
            for e in range(2):
                I(f"buffer_load_dwordx4 v{self.vP+8+e}, {ws}, s87 offen offset:{1024*e} sc1 lds", "V")

    def attention(self):
        I, b, o = self.I, self.b, self.o
        KF = self.KF
        for s in range(o.nb1):
            for f in self.fin_rdw(s):
                f()
        b.wait_tags(("K",))
        I(f"ds_write_b64 v{self.vP+6}, v[{self.vP}:{self.vP+1}]")
        I(f"ds_write_b64 v{self.vP+7}, v[{self.vP+2}:{self.vP+3}] offset:4096")
        q = self.vQ
        I(f"v_bfi_b32 v{q}, v{self.vMA}, v{q}, v{self.vP+4}\nv_and_b32 v{q+1}, v{self.vMA}, v{q+1}")
        I(f"v_bfi_b32 v{q+6}, v{self.vMB}, v{q+6}, v{self.vP+4}\nv_and_b32 v{q+7}, v{self.vMB}, v{q+7}")
        b.waitcnt(lg=0)
        I("s_barrier")
        self.ts()
        order = [8, 7, 6, 5, 4, 3, 2, 1, 0]

        def rdk(i, bs):
            for s in range(2):
                r = KF + bs * 8 + 4 * s
                I(f"ds_read_b128 v[{r}:{r+3}], v{self.vKA} offset:{2048*i + 1024*s}")
        rdk(order[0], 0)
        rdk(order[1], 1)
        m = self.vM
        mx = []
        first = [True]

        def maxops(i):
            L = []
            s0 = self.S(i)
            for k in range(0, 16, 2):
                if first[0]:
                    L.append(f"v_max_f32 v{m}, v{s0}, v{s0+1}")
                    first[0] = False
                else:
                    L.append(f"v_max3_f32 v{m}, v{m}, v{s0+k}, v{s0+k+1}")
            return L
        bg = []
        for s in range(self.RING, self.RING + o.nb1):
            bg += self.fin_dma(s)
        for n, i in enumerate(order):
            bs = n % 3
            d = self.S(i)
            r = KF + bs * 8
            c = f"v[{d}:{d+15}]" if i in (0, 8) else "0"
            I(f"v_mfma_f32_32x32x16_bf16 v[{d}:{d+15}], v[{r}:{r+3}], v[{q}:{q+3}], {c}")
            if n + 2 < 9:
                rdk(order[n + 2], (n + 2) % 3)
            for _ in range(3):
                if mx:
                    I(mx.pop(0))
            I(f"v_mfma_f32_32x32x16_bf16 v[{d}:{d+15}], v[{r+4}:{r+7}], v[{q+4}:{q+7}], v[{d}:{d+15}]")
            if n >= 1:
                mx += maxops(order[n - 1])
            for _ in range(5 if n >= 1 else 0):
                if mx:
                    I(mx.pop(0))
            if n < 2:
                for _ in range(4):
                    bg.pop(0)()
        b.wait_tags(("V", "h"))
        I(f"ds_write_b64 v{self.vP+6}, v[{self.vP+4}:{self.vP+5}] offset:{KV_V - KV_K}")
        I(f"ds_write_b64 v{self.vP+7}, v[{self.vP+4}:{self.vP+5}] offset:{KV_V - KV_K + 4096}")
        mx += maxops(order[8])
        while mx:
            I(mx.pop(0))
        b.waitcnt(lg=0)
        I("s_barrier")

        def rdv(i, bs):
            L = []
            for s in range(2):
                for e in range(2):
                    r = KF + bs * 8 + 4 * s + 2 * e
                    L.append(f"ds_read_b64_tr_b16 v[{r}:{r+1}], v{self.vVA+e} offset:{2048*i + 256*s}")
            return L
        for t in rdv(order[0], 0):
            I(t)
        self.flag_store(1)
        I(f"v_mov_b32 v{m+1}, v{m}")
        I(f"v_permlane32_swap_b32 v{m}, v{m+1}")
        I(f"v_max_f32 v{m}, v{m}, v{m+1}")
        I(f"v_mul_f32 v{m}, s{self.sCS}, v{m}")
        I(f"s_mov_b32 s{self.sMSK}, 0x1ffff\ns_mov_b32 s{self.sMSK+1}, 0")
        self.ts()
        R = self.RING
        sched = {n: [] for n in range(9)}
        rd = lambda a, e: [f for s in range(a, e) for f in self.fin_rdw(s)]
        dm = lambda a, e: [f for s in range(a, e) for f in self.fin_dma(s)]
        sched[0] = rd(o.nb1, R)[:16] + bg[:12]
        sched[1] = rd(o.nb1, R)[16:] + bg[12:]
        sched[2] = dm(R + o.nb1, 28)[:16]
        sched[3] = dm(R + o.nb1, 28)[16:] + rd(R, R + 2)
        sched[4] = rd(R + 2, R + 7) + [lambda: self.poll_issue(self.vFA, self.vPOLL)]
        sched[5] = dm(28, 35)
        sched[6] = rd(R + 7, R + 10) + dm(35, 36) + [self.hook_poll_check]
        hl = [f for s in range(o.nh0) for f in self.fin_hload(s)]
        sched[7] = rd(R + 10, 28) + hl[:len(hl) // 2]
        sched[8] = hl[len(hl) // 2:]
        O = self.vO
        prev = None
        for n, i in enumerate(order):
            d = self.S(i)
            p = self.vP + 8 * (n % 2)
            L = []
            if o.pk:
                for k in range(0, 16, 2):
                    L.append(f"v_pk_fma_f32 v[{d+k}:{d+k+1}], v[{d+k}:{d+k+1}], s[{self.sNL2E}:{self.sCS}], v[{m}:{m+1}] op_sel:[0,1,0] op_sel_hi:[1,1,0] neg_lo:[0,0,1] neg_hi:[0,0,1]")
            else:
                for k in range(16):
                    L.append(f"v_fma_f32 v{d+k}, v{d+k}, s{self.sCS}, -v{m}")
            ex = [f"v_exp_f32 v{d+k}, v{d+k}" for k in range(16)]
            cv = [f"v_cvt_pk_bf16_f32 v{p+k}, v{d+2*k}, v{d+2*k+1}" for k in range(8)]
            seq = L + ex + cv
            vr = rdv(order[n + 1], (n + 1) % 2) if n + 1 < 9 else []
            main = []
            for k, t in enumerate(seq):
                main.append(lambda t=t: I(t))
                if prev is not None and k == 1:
                    main.append(lambda t=prev[0]: I(t))
                if prev is not None and k == 7:
                    main.append(lambda t=prev[1]: I(t))
                if k >= 10 and vr:
                    main.append(lambda t=vr.pop(0): I(t))
            for f in self.weave(main, sched[n], 0.0, 1.0):
                f()
            r = KF + (n % 2) * 8
            prev = (f"v_mfma_f32_32x32x16_bf16 v[{O}:{O+15}], v[{r}:{r+3}], v[{p}:{p+3}], " + ("0" if n == 0 else f"v[{O}:{O+15}]"),
                    f"v_mfma_f32_32x32x16_bf16 v[{O}:{O+15}], v[{r+4}:{r+7}], v[{p+4}:{p+7}], v[{O}:{O+15}]")
        I(prev[0])
        I(prev[1])
        t = self.vQ
        I(f"v_mul_f32 v{t}, s{self.sNL2E}, v{self.vZZ}\nv_exp_f32 v{t}, v{t}")
        z = self.vZZ + 1
        for a in range(2):
            I(f"v_mul_f32 v{z+a}, s{self.sNL2E}, v{z+a}\nv_exp_f32 v{z+a}, -v{z+a}")
        I(f"v_add_f32 v{t}, 1.0, v{t}")
        for a in range(2):
            I(f"v_add_f32 v{z+a}, 1.0, v{z+a}\nv_rcp_f32 v{z+a}, v{z+a}")
        I(f"v_cndmask_b32 v{t+1}, v{O+12}, v{O}, s[{self.sPAR}:{self.sPAR+1}]\nv_mov_b32 v{t+2}, v{t+1}")
        I(f"v_permlane32_swap_b32 v{t+1}, v{t+2}")
        I(f"v_cndmask_b32 v{t+1}, v{t+2}, v{t+1}, s[{self.sPAR}:{self.sPAR+1}]")
        I(f"v_mul_f32 v{t}, v{t}, v{t+1}\nv_rcp_f32 v{t}, v{t}")
        I(f"v_and_b32 v{t+1}, v{self.vMA}, v{t}\nv_and_b32 v{t+2}, v{self.vMB}, v{t}")
        for k in range(16):
            sc = t + 1 if k == 0 else (t + 2 if k == 12 else t)
            I(f"v_mul_f32 v{O+k}, v{O+k}, v{sc}")
        for f in self.cvt_store(O, self.sOO, 0, "o") + self.cvt_store(O + 8, self.sOO, 1024, "o"):
            f()

    def hook_poll_check(self):
        I = self.I
        self.poll_check(self.vFA, self.vPOLL, self.sMSK)
        v = self.vT
        I(f"v_and_b32 v{v}, 31, v0\nv_lshlrev_b32 v{v}, 2, v{v}")
        ws = f"s[{self.S_WS}:{self.S_WS+3}]"
        I(f"buffer_load_dword v{self.vZZ}, v{v}, {ws}, s{self.sZO} offen sc1", "z")
        I(f"buffer_load_dword v{self.vZZ+1}, v{v}, {ws}, s{self.sZF} offen sc1", "z")
        I(f"s_xor_b32 s{self.sZF}, s{self.sZF}, 0x80")
        I(f"buffer_load_dword v{self.vZZ+2}, v{v}, {ws}, s{self.sZF} offen sc1", "z")

    RING = 14

    def ring_addr(self, e):
        return (0, 2048 * e) if e < 6 else (1, 2048 * (e - 6))

    def final_setup(self):
        I = self.I
        v = self.vT
        I("s_lshr_b32 s86, s2, 3\ns_and_b32 s87, s2, 7\ns_mul_i32 s88, s86, 37\ns_lshr_b32 s88, s88, 8")
        I(f"s_mul_i32 s89, s88, 7\ns_sub_u32 s89, s86, s89\ns_cmp_lt_u32 s86, 28\ns_cselect_b32 s{self.sFIN}, 1, 0")
        I("s_min_u32 s88, s88, 3\ns_lshl_b32 s87, s87, 2\ns_add_u32 s87, s87, s88")
        I(f"s_lshr_b32 s90, s{self.sWV}, 1\ns_and_b32 s91, s{self.sWV}, 1")
        I(f"s_mul_i32 s92, s{self.sWV}, {448*896}\ns_lshl_b32 s89, s89, 7\ns_add_u32 s{self.sFW}, s92, s89")
        I(f"s_mul_i32 s92, s{self.sWV}, {112*896}\ns_add_u32 s{self.sFWO}, s92, s89")
        I(f"s_mul_i32 s{self.sFM0}, s{self.sWV}, {12*K}\ns_lshl_b32 s{self.sFM1}, s{self.sWV}, 14\ns_add_u32 s{self.sFM1}, s{self.sFM1}, {96*K}")
        I(f"v_lshrrev_b32 v{v}, 3, v0\nv_and_b32 v{v+1}, 2, v{v}\nv_lshlrev_b32 v{v+1}, 1, v{v+1}\nv_and_b32 v{v+2}, 7, v0\nv_xor_b32 v{v+1}, v{v+1}, v{v+2}")
        I(f"v_mul_u32_u24 v{v}, 0x380, v{v}\nv_lshl_add_u32 v{self.vFD}, v{v+1}, 4, v{v}\nv_add_u32 v{self.vFD+1}, {8*896-1024}, v{self.vFD}")
        I(f"v_bfe_u32 v{v}, v0, 2, 2\nv_lshrrev_b32 v{v+1}, 5, v0")
        I(f"v_and_b32 v{v+2}, 1, v0\nv_lshlrev_b32 v{v+2}, 4, v{v+2}\nv_bfe_u32 v{v+3}, v0, 1, 1\nv_lshl_add_u32 v{v+2}, v{v+3}, 3, v{v+2}")
        I(f"v_bfe_u32 v{v+3}, v0, 4, 1\nv_and_b32 v{v+4}, 2, v{v}\nv_xor_b32 v{v+3}, v{v+3}, v{v+4}\ns_lshl_b32 s92, s90, 1\nv_xor_b32 v{v+3}, s92, v{v+3}")
        I(f"v_lshl_add_u32 v{v+2}, v{v+3}, 5, v{v+2}\nv_lshl_add_u32 v{v+2}, v{v}, 7, v{v+2}")
        R = self.vFR
        I(f"v_lshl_add_u32 v{v+3}, v{v+1}, 10, v{v+2}\nv_add_u32 v{R}, s{self.sFM0}, v{v+3}\nv_xor_b32 v{R+1}, 64, v{R}")
        I(f"v_add_u32 v{R+2}, s{self.sFM1}, v{v+3}\nv_xor_b32 v{R+3}, 64, v{R+2}")
        I(f"v_lshlrev_b32 v{R+4}, 9, v{v+1}")
        I(f"s_lshl_b32 s93, s87, 1\ns_add_u32 s93, s93, s91\ns_mul_i32 s92, s93, {HO_MT}\ns_mul_i32 s88, s{self.sWV}, {28*1024}")
        I(f"s_add_u32 s92, s92, s88\ns_add_u32 s{self.sFH}, s92, {HO_OFF - HO_MT}")
        I(f"s_cmp_eq_u32 s91, 0\ns_cselect_b32 s92, {2*HO_MT}, 0")
        I(f"v_add_u32 v{R+5}, {HO_MT}, v{self.vL16}\nv_add_u32 v{R+6}, s92, v{self.vL16}")
        I(f"s_mul_i32 s92, s93, {32*896}\ns_add_u32 s92, s92, s89\ns_lshl_b32 s88, s90, 6\ns_add_u32 s{self.sFO}, s92, s88")
        I(f"s_lshl_b32 s92, s93, 7\ns_add_u32 s{self.sZF}, s92, {Z_OFF}")
        I(f"s_lshr_b32 s87, s87, 1\ns_lshl_b32 s87, s87, 8\ns_add_u32 s87, s87, {FL_OFF + 4096}")
        I(f"s_lshl_b32 s88, s{self.sRB}, 8\ns_add_u32 s88, s88, {FL_OFF + 4096 + 56}")
        I(f"v_lshlrev_b32 v{v}, 2, v0\nv_add_u32 v{v}, s87, v{v}\nv_mov_b32 v{v+1}, s88\nv_cmp_gt_u32 vcc, 16, v0\nv_cndmask_b32 v{self.vFA}, v{v+1}, v{v}, vcc")

    def fin_dma(self, step):
        I, b = self.I, self.b
        hi, c = self.ring_addr(step % self.RING)
        sm = self.sFM1 if hi else self.sFM0

        def first():
            if step >= self.RING:
                need = None
                for i, (_d, t) in enumerate(b.lg):
                    if t == f"rw{step - self.RING}":
                        need = len(b.lg) - 1 - i
                assert f"rw{step - self.RING}" in self.rw_done, step
                b.waitcnt(lg=need)
            I(f"s_add_u32 m0, s{sm}, {c}")
        L = [first]
        if step < 28:
            srd, so = self.S_WD, self.sFW
        else:
            srd, so = self.S_WO, self.sFWO
        if 0 < step < 28:
            L.append(lambda: I(f"s_add_u32 s{so}, s{so}, {16*896}"))
        elif step > 28:
            rows = [0, 16, 24, 40, 56, 72, 80, 96]
            d = rows[step - 28] - rows[step - 29]
            L.append(lambda: I(f"s_add_u32 s{so}, s{so}, {d*896}"))
        for e in range(2):
            L.append(lambda e=e: I(f"buffer_load_dwordx4 v{self.vFD+e}, s[{srd}:{srd+3}], s{so} offen offset:{1024*e} lds", f"w{step}"))
        return L

    rw_done = set()

    def fw(self, step, t):
        return (step * 8 if step < 28 else 224 + (step % 2) * 8) + 4 * t

    def fin_rdw(self, step):
        hi, c = self.ring_addr(step % self.RING)
        L = []
        for t in range(2):
            for e in range(2):
                r = self.fw(step, t) + 2 * e
                imm = c + (512 if step < 28 else 1024) * e

                def f(r=r, t=t, e=e, imm=imm):
                    if t == 0 and e == 0:
                        self.b.wait_tags((f"w{step}",))
                    self.I(f"ds_read_b64_tr_b16 a[{r}:{r+1}], v{self.vFR + 2*hi + t} offset:{imm}", f"rw{step}")
                    if t == 1 and e == 1:
                        self.rw_done.add(f"rw{step}")
                L.append(f)
        return L

    def fin_hload(self, step):
        I = self.I
        L = []
        R = self.vFR
        imm = 1024 * ((step if step < 28 else step - 28) % 4)
        if step == 28:
            L.append(lambda: I(f"s_mul_i32 s86, s{self.sWV}, {20*1024}\ns_sub_u32 s86, {88*1024}, s86\ns_add_u32 s{self.sFH}, s{self.sFH}, s86"))
        elif step % 4 == 0 and step > 0:
            L.append(lambda: I(f"s_add_u32 s{self.sFH}, s{self.sFH}, 0x1000"))
        for a in range(2):
            r = self.FH + (step % self.NH) * 8 + 4 * a
            L.append(lambda r=r, a=a: I(f"buffer_load_dwordx4 v[{r}:{r+3}], v{R+5+a}, s[{self.S_WS}:{self.S_WS+3}], s{self.sFH} offen offset:{imm} sc1", f"h{step}"))
        return L

    def final(self):
        I, b, o = self.I, self.b, self.o
        R = self.vFR
        z = self.vZZ + 1
        nh = o.nh0
        A = self.FACC
        I("\n".join(f"v_sub_u32 v{R+i}, v{R+i}, v{R+4}" for i in range(4)))
        I(f"s_mov_b32 s{self.sMSK}, 0xffff\ns_movk_i32 s{self.sT0}, 0x1000")
        for n in range(36):
            gaps = [[] for _ in range(4)]
            if 28 <= n + 1 < 36:
                rd = self.fin_rdw(n + 1)
                gaps[0] += rd[:2]
                gaps[1] += rd[2:]
            if n == o.opub:
                gaps[0].append(lambda: (b.wait_tags(("o",)), I("s_barrier"), self.flag_store(2)))
            if n == o.opoll_issue:
                gaps[1].append(lambda: self.poll_issue(self.vFA, self.vPOLL, soff=f"s{self.sT0}"))
            lim = 28 if n < o.opoll_check else 36
            if n == o.opoll_check:
                gaps[0].append(lambda: self.poll_check(self.vFA, self.vPOLL, self.sMSK, soff=f"s{self.sT0}"))
            cnt = 0
            while nh < lim and nh - self.NH < n and cnt < o.hrate:
                hl = self.fin_hload(nh)
                gaps[(2 * cnt + 1) % 4] += hl[:-1]
                gaps[(2 * cnt + 2) % 4 if cnt == 0 else 3] += hl[-1:]
                nh += 1
                cnt += 1
            if n == 28:
                for s in range(4):
                    for k in range(0, 16, 2):
                        I(f"v_pk_mul_f32 v[{A[s]+k}:{A[s]+k+1}], v[{A[s]+k}:{A[s]+k+1}], v[{z}:{z+1}] op_sel:[0,{s&1}] op_sel_hi:[1,{s&1}]")
            i = 0
            tiles = [(0, 0), (0, 1), (1, 0), (1, 1)] if n < 35 else [(0, 1), (1, 0), (1, 1), (0, 0)]
            for t, a in tiles:
                rw = self.fw(n, t)
                rh = self.FH + (n % self.NH) * 8 + 4 * a
                self.mfma(A[2 * t + a], f"a[{rw}:{rw+3}]", f"v[{rh}:{rh+3}]", n == 0)
                for f in gaps[i]:
                    f()
                i += 1
        self.ts()
        v = self.vT
        I(f"v_add_u32 v{v}, s{self.sFM0}, v{self.vL16}")
        for sg in range(1, 4):
            I(f"s_xor_b32 s86, s{self.sWV}, {sg}\ns_mul_i32 s86, s86, {12*K}\nv_add_u32 v{v+sg}, s86, v{self.vL16}")
        for sg in range(1, 4):
            for q in range(4):
                r = A[sg] + 4 * q
                I(f"ds_write_b128 v{v}, v[{r}:{r+3}] offset:{(sg-1)*4096 + q*1024}")
        I(f"v_and_b32 v{v+4}, 31, v0\nv_mul_u32_u24 v{v+4}, 0x380, v{v+4}\nv_lshrrev_b32 v{v+5}, 5, v0\nv_lshl_add_u32 v{v+4}, v{v+5}, 4, v{v+4}")
        b.waitcnt(lg=0)
        I("s_barrier")
        T = self.FH
        for q in range(4):
            for sg in range(1, 4):
                r = T + 16 * (sg - 1) + 4 * q
                I(f"ds_read_b128 v[{r}:{r+3}], v{v+sg} offset:{(sg-1)*4096 + q*1024}")
        a0 = A[0]
        for h in range(2):
            for k in range(8 * h, 8 * h + 8, 2):
                for sg in range(1, 4):
                    r = T + 16 * (sg - 1) + k
                    I(f"v_pk_add_f32 v[{a0+k}:{a0+k+1}], v[{a0+k}:{a0+k+1}], v[{r}:{r+1}]")
            r = a0 + 8 * h
            for i in range(4):
                I(f"v_cvt_pk_bf16_f32 v{r+i}, v{r+2*i}, v{r+2*i+1}")
            I(f"buffer_store_dwordx4 v[{r}:{r+3}], v{v+4}, s[{self.S_OUT}:{self.S_OUT+3}], s{self.sFO} offen offset:{32*h}")

    def build(self):
        I, b, o = self.I, self.b, self.o
        b.label(KNAME)
        self.prologue()
        self.ts(98)
        self.ts(1)
        self.sts_flush()
        self.ts()
        self.passA()
        self.ts()
        I(f"s_cmp_lg_u32 s{self.sISV}, 0\ns_cbranch_scc1 L_vpath")
        snap = b.snapshot()
        nts0 = self.nts
        self.passB_GU()
        gu_vm = list(b.vm)
        I("s_branch L_join")
        b.label("L_vpath")
        b.restore(snap)
        self.nts = nts0
        self.passB_V()
        b.label("L_join")
        vt = [t for _d, t in b.vm]
        gt = [t for _d, t in gu_vm]
        k = 0
        for t in gt:
            if k < len(vt) and t == vt[k] and not (t == "h" and k == len(vt) - 1):
                k += 1
        assert gt[-1] == "h" and vt[-1] == "h" and k == len(vt) - 1, (vt, gt)
        assert not b.lg
        self.ts()
        self.attention()
        self.ts()
        I(f"s_cmp_lg_u32 s{self.sFIN}, 0\ns_cbranch_scc0 L_nofinal")
        snap2 = b.snapshot()
        self.final()
        if o.ts:
            b.wait_all()
            self.ts()
        I("s_endpgm")
        b.label("L_nofinal")
        b.restore(snap2)
        b.wait_tags(("o",))
        I("s_barrier")
        self.flag_store(2)
        b.label("L_exit")
        b.raw("s_endpgm")

    def text(self):
        hdr = open("gated_mix__sliding_block__glu_gated_glu__prompt.s.ref").read().split("; Override launch")[0]
        s = hdr
        s += "; Generated by my own generator script (hand-designed schedule; no compiler output).\n"
        s += "; @launch grid=(256,1,1) block=(256,1,1) lds=163840\n"
        s += '.amdgcn_target "amdgcn-amd-amdhsa--gfx950"\n.text\n'
        s += f".globl {KNAME}\n.p2align 8\n.type {KNAME},@function\n"
        s += self.b.text()
        s += f""".section .rodata,"a"
.p2align 6
.amdhsa_kernel {KNAME}
  .amdhsa_next_free_vgpr 512
  .amdhsa_next_free_sgpr 102
  .amdhsa_accum_offset 256
  .amdhsa_group_segment_fixed_size 0
  .amdhsa_kernarg_size 88
  .amdhsa_user_sgpr_count 2
  .amdhsa_user_sgpr_kernarg_segment_ptr 1
  .amdhsa_system_sgpr_workgroup_id_x 1
.end_amdhsa_kernel
"""
        return s


def main():
    ap = argparse.ArgumentParser()
    ap.add_argument("-o", default="k.s")
    ap.add_argument("--ts", action="store_true")
    ap.add_argument("--cyc", action="store_true")
    ap.add_argument("--sts", action="store_true")
    ap.add_argument("--pk", type=int, default=1)
    ap.add_argument("--pkB", type=int, default=0)
    ap.add_argument("--align", type=int, default=1)
    ap.add_argument("--coop", type=int, default=1)
    ap.add_argument("--lead", type=int, default=2)
    ap.add_argument("--coopf", type=int, default=1)
    ap.add_argument("--pfw", type=int, default=20)
    ap.add_argument("--nb1", type=int, default=7)
    ap.add_argument("--kpoll", type=int, default=25)
    ap.add_argument("--nh0", type=int, default=8)
    ap.add_argument("--hrate", type=int, default=2)
    ap.add_argument("--opub", type=int, default=6)
    ap.add_argument("--opoll_issue", type=int, default=14)
    ap.add_argument("--opoll_check", type=int, default=18)
    o = ap.parse_args()
    g = G(o)
    g.build()
    open(o.o, "w").write(g.text())
    print(f"code bytes {g.b.off}, hazard nops {g.b.nops_added}, stamps {g.nts}", file=sys.stderr)


if __name__ == "__main__":
    main()
```

```python
import sys, math, argparse
from asmb import Builder

KNAME = "gated_mix__sliding_block__glu_gated_glu__prompt_kernel"
K = 1024
QKV_OFF = 0
QKV_MT = 168 * 512
HO_OFF = 0x600000
HO_MT = 144 * 1024
Z_OFF = 0xF00000
FL_OFF = 0xF10000
E_OFF = 0xF20000
TS_OFF = 0xF30000
WS_SIZE = 0x1000000
SLOT = 40 * K
CHUNK = 10 * K
PB_BASE = [120 * K, 136 * K, 0, 16 * K, 48 * K, 64 * K, 80 * K]
KV_K = 48 * K
KV_V = 72 * K
NEG = 0xF149F2CA
LOG2E = 1.4426950408889634
SPIN_MAX = 1 << 18


def f32hex(x):
    import struct
    return "0x%08x" % struct.unpack("<I", struct.pack("<f", x))[0]


class G:
    def __init__(self, opt):
        self.o = opt
        self.b = Builder(align_opt=opt.align)
        self.nts = 0

    S_X, S_A, S_B, S_C, S_WS, S_WD, S_WO, S_OUT = 8, 12, 16, 20, 24, 28, 32, 36
    pDBG, pGW = 40, 42
    sWV, sRB, sJ, sISV = 44, 45, 46, 47
    sX, sA, sB, sC = 48, 49, 50, 51
    sSAB, sM0, sM0B, sA2, sB2 = 52, 53, 54, 55, 56
    sTAG = 57
    sQ0, sQ1, sH0, sH1 = 58, 59, 60, 61
    sNL2E, sCS = 62, 63
    sMSK, sMSK2, sPAR = 64, 66, 68
    sKT = 70
    sQO, sZO, sOO = 73, 74, 75
    sFIN, sFW, sFH, sFWO, sFM0, sFM1, sFO, sZF = 76, 77, 78, 79, 80, 81, 82, 83
    sSPIN, sT0 = 84, 85
    sT1, sT2, sT3 = 3, 4, 5
    sTS, sEX, sTM = 95, 96, 100
    vL16 = 1
    vXD = 2
    vWD = 6
    vXR = 12
    vWR = 24
    vT = 33
    vPFW, vPFC = 46, 47
    vPOLL = 48
    vZ = 49
    vFL = 50
    vAP = 51
    ACC_A = 52
    ACC_B = 148
    WF = 224
    KF = 4
    vO = 196
    vQ = 212
    vP = 220
    vKA = 236
    vVA = 237
    vM = 240
    vMA, vMB = 242, 239
    vZZ = 243
    vFA = 246
    vFD = 247
    vFR = 249
    FH = 84
    NH = 16
    FACC = [52, 68, 212, 228]
    SREG = {8: 52, 0: 68, 7: 84, 6: 100, 5: 116, 4: 132, 3: 148, 2: 164, 1: 180}

    def I(self, t, tag=None):
        self.b.I(t, tag)

    def srd(self, s, lo, hi, size):
        self.I(f"s_mov_b32 s{s}, {lo}\ns_mov_b32 s{s+1}, {hi}\ns_mov_b32 s{s+2}, {size}\ns_mov_b32 s{s+3}, 0x20000")

    def ts(self, sreg=None, last=False):
        if not self.o.ts:
            return
        n = self.nts
        self.nts += 1
        if sreg is None:
            self.b.raw(f"{'s_memtime' if self.o.cyc else 's_memrealtime'} s[{self.sTM}:{self.sTM+1}]")
            self.b.raw("s_waitcnt lgkmcnt(0)")
            self.b.lg = []
            sreg = self.sTM
        self.I(f"v_mov_b32 v{self.vT}, s{sreg}\nv_mov_b32 v{self.vT+1}, 0")
        self.I(f"s_mov_b64 s[{self.sEX}:{self.sEX+1}], exec\ns_mov_b64 exec, 1")
        if self.o.dbgts:
            u = self.uid()
            keep = list(self.b.vm)
            self.I(f"s_lshl_b32 s86, s2, 2\ns_add_u32 s86, s86, s{self.sWV}\ns_cmp_eq_u32 s86, {self.o.dbgts}\ns_cbranch_scc0 L_dts{u}")
            self.I(f"global_store_dword v{self.vT+1}, v{self.vT}, s[{self.pDBG}:{self.pDBG+1}] offset:{4*(n+1)} sc1")
            self.b.label(f"L_dts{u}")
            if n == 0 or last:
                self.I(f"s_cmp_eq_u32 s{self.sWV}, 0\ns_cbranch_scc0 L_dtt{u}")
                if n == 0:
                    self.I(f"v_not_b32 v{self.vT}, v{self.vT}")
                self.I(f"global_atomic_umax v{self.vT+1}, v{self.vT}, s[{self.pDBG}:{self.pDBG+1}] offset:{56 if n == 0 else 60} sc1")
                self.b.label(f"L_dtt{u}")
            self.b.vm = keep
        else:
            self.I(f"buffer_store_dword v{self.vT}, v{self.vT+1}, s[{self.S_WS}:{self.S_WS+3}], s{self.sTS} offen offset:{4*n}")
        self.I(f"s_mov_b64 exec, s[{self.sEX}:{self.sEX+1}]")

    soft = 0

    def sts(self):
        if not self.o.sts:
            return
        self.b.raw(f"{'s_memtime' if self.o.cyc else 's_memrealtime'} s[{self.sTM}:{self.sTM+1}]")
        self.b.raw("s_waitcnt lgkmcnt(0)")
        self.I(f"v_mov_b32 v{196+self.soft}, s{self.sTM}")
        self.soft += 1

    def sts_flush(self):
        for k in range(self.soft):
            self.I(f"v_readfirstlane_b32 s{self.sTM}, v{196+k}")
            self.ts(self.sTM)

    def lds(self, base, n, idx, const):
        return f"v{base + (const >> 16) * n + idx}", const & 0xFFFF

    def xf(self, M, n):
        r = (M * 28 + n) * 4
        return f"a[{r}:{r+3}]"

    def wf(self, bufset, t):
        r = self.WF + bufset * 12 + t * 4
        return r

    def acc(self, base, t, M):
        r = base + (t * 2 + M) * 16
        return r

    def prologue(self):
        I = self.I
        b = self.b
        if self.o.ts:
            b.raw(f"{'s_memtime' if self.o.cyc else 's_memrealtime'} s[98:99]")
        I("s_cmp_ge_u32 s2, 0x100\ns_cbranch_scc1 L_exit")
        b.raw("s_load_dwordx16 s[64:79], s[0:1], 0")
        b.raw("s_load_dwordx4 s[80:83], s[0:1], 64")
        b.raw(f"s_load_dwordx2 s[{self.S_WS}:{self.S_WS+1}], s[0:1], 80")
        I("s_getpc_b64 s[4:5]")
        b.label("L_pc")
        I("s_and_b32 s3, s2, 0xf8\nv_and_b32 v33, 7, v0\nv_add_lshl_u32 v33, v33, s3, 7\nv_min_u32 v33, L_exit-L_pc, v33")
        I("global_load_dword v45, v33, s[4:5]", tag="pf")
        b.vm[-1] = (set(), "pf")
        I("v_lshrrev_b32 v35, 6, v0\nv_and_b32 v0, 63, v0")
        I(f"v_readfirstlane_b32 s{self.sWV}, v35")
        I("s_and_b32 s3, s2, 7\ns_lshr_b32 s6, s2, 3")
        I(f"s_and_b32 s7, s3, 1\ns_lshl_b32 s7, s7, 3\ns_and_b32 s4, s6, 7\ns_add_u32 s{self.sRB}, s4, s7")
        I(f"s_lshr_b32 s7, s3, 1\ns_lshl_b32 s7, s7, 2\ns_lshr_b32 s5, s6, 3\ns_add_u32 s{self.sJ}, s5, s7")
        I(f"v_lshlrev_b32 v{self.vL16}, 4, v0")
        I("v_lshrrev_b32 v35, 3, v0\nv_and_b32 v36, 7, v0\nv_lshrrev_b32 v37, 4, v0")
        I("v_mul_u32_u24 v38, 0x380, v35")
        I("v_xor_b32 v39, v36, v37\nv_lshl_add_u32 v2, v39, 4, v38")
        I(f"v_xor_b32 v3, 64, v2\nv_add_u32 v3, {8*896-1024}, v3")
        I(f"v_add_u32 v4, {16*896-2048}, v2\nv_add_u32 v5, {16*896-2048}, v3")
        I("v_and_b32 v39, 2, v35\nv_lshlrev_b32 v39, 1, v39\nv_xor_b32 v39, v36, v39\nv_lshlrev_b32 v39, 4, v39")
        I(f"s_cmp_ge_u32 s{self.sJ}, 14\ns_cselect_b32 s{self.sISV}, 1, 0")
        I("s_movk_i32 s7, 0xe00\ns_movk_i32 s86, 0xa80\ns_cselect_b32 s7, s86, s7")
        I("v_mul_u32_u24 v40, 0xa80, v35\nv_add_u32 v10, v40, v39")
        I(f"v_add_u32 v11, {8*2688-1024}, v10")
        I("v_mul_u32_u24 v40, s7, v35\nv_add_u32 v6, v40, v39")
        I("s_lshl_b32 s86, s7, 3\ns_sub_u32 s86, s86, 0x400\nv_add_u32 v7, s86, v6")
        I("v_xor_b32 v8, 32, v6\nv_xor_b32 v9, 32, v7")
        I(f"s_lshl_b32 s{self.sSAB}, s7, 6")
        I("v_mul_u32_u24 v41, 0x380, v36\nv_lshl_add_u32 v41, v35, 7, v41")
        I(f"s_lshl_b32 s86, s4, 3\ns_lshl_b32 s87, s{self.sWV}, 1\ns_add_u32 s86, s86, s87")
        I("v_lshrrev_b32 v42, 1, v0\nv_lshlrev_b32 v42, 6, v42\nv_and_b32 v43, 1, v0\nv_add3_u32 v42, v42, v43, s86")
        I(f"v_mul_lo_u32 v{self.vPFW}, v42, s7\nv_mul_u32_u24 v{self.vPFC}, 0xa80, v42")
        I(f"s_lshl_b32 s86, s{self.sRB}, 2\ns_add_u32 s87, s86, s{self.sWV}\ns_mul_i32 s{self.sX}, s87, {32*896}")
        I(f"s_add_u32 s86, s86, s5\ns_lshl_b32 s86, s86, 2\ns_add_u32 s86, s86, s{self.sWV}\ns_mul_i32 s6, s86, {8*896}")
        I(f"s_lshl_b32 s86, s{self.sWV}, 4\ns_mul_i32 s87, s86, s7\ns_mul_i32 s88, s86, 0xa80")
        I(f"s_lshl_b32 s89, s{self.sJ}, 8\ns_lshl_b32 s90, s{self.sJ}, 7")
        I(f"s_lshl_b32 s91, s{self.sJ}, 9\ns_sub_u32 s91, s91, {42*128}")
        I(f"s_add_u32 s92, s91, 0x80\ns_add_u32 s93, s91, 0x100\ns_add_u32 s94, s89, 0x80")
        I(f"s_cmp_lg_u32 s{self.sISV}, 0")
        I(f"s_cselect_b32 s91, s91, s89\ns_cselect_b32 s92, s92, s89\ns_cselect_b32 s93, s93, s90")
        I(f"s_cselect_b32 s90, {17*128}, s94")
        I(f"s_add_u32 s{self.sA}, s91, s87\ns_add_u32 s{self.sB}, s92, s87\ns_add_u32 s{self.sC}, s93, s88")
        I(f"s_add_u32 s{self.sA2}, s90, s87\ns_add_u32 s{self.sB2}, s94, s87")
        I(f"s_mul_i32 s{self.sM0}, s{self.sWV}, {CHUNK}\ns_lshl_b32 s{self.sM0B}, s{self.sWV}, 12")
        WQ, WG_ = 448 * 2688, 448 * 3584
        I(f"s_mov_b32 s{self.S_X+2}, {2048*896}\ns_mov_b32 s{self.S_X+3}, 0x20000")
        I(f"s_cmp_lg_u32 s{self.sISV}, 0")
        for s_ in (self.S_A, self.S_B):
            I(f"s_mov_b32 s{s_+2}, {WG_}\ns_cselect_b32 s{s_+2}, {WQ}, s{s_+2}\ns_mov_b32 s{s_+3}, 0x20000")
        I(f"s_mov_b32 s{self.S_C+2}, {WQ}\ns_mov_b32 s{self.S_C+3}, 0x20000")
        b.raw("s_waitcnt lgkmcnt(0)")
        if self.o.ts:
            b.raw(f"{'s_memtime' if self.o.cyc else 's_memrealtime'} s[96:97]")
            b.raw("s_waitcnt lgkmcnt(0)")
            I("s_mov_b32 s1, s96")
        I(f"s_mov_b32 s{self.S_X}, s64\ns_mov_b32 s{self.S_X+1}, s65")
        for s_, lo in ((self.S_A, 72), (self.S_B, 74)):
            I(f"s_cselect_b32 s{s_}, s66, s{lo}\ns_cselect_b32 s{s_+1}, s67, s{lo+1}")
        I(f"s_mov_b32 s{self.S_C}, s66\ns_mov_b32 s{self.S_C+1}, s67")
        srd = lambda s_: f"s[{s_}:{s_+3}]"
        if self.o.coop:
            self.pf(41, self.S_X, "s6")
            self.pf(self.vPFW, self.S_A, "s91")
            self.pf(self.vPFW, self.S_B, "s92")
            self.pf(self.vPFC, self.S_C, "s93")
        self.sts()
        for ins in self.dma_stageA(0):
            ins()
        self.sts()
        I(f"s_mov_b32 s{self.S_WS+2}, {WS_SIZE}\ns_mov_b32 s{self.S_WS+3}, 0x20000")
        I(f"v_mov_b32 v{self.vZ}, 0\ns_mov_b32 s86, {E_OFF}")
        I(f"buffer_load_dword v{self.vPOLL}, v{self.vZ}, s[{self.S_WS}:{self.S_WS+3}], s86 offen sc1", tag="E")
        I(f"s_mov_b32 s6, s90\ns_mov_b32 s7, s94")
        self.srd(self.S_WD, "s76", "s77", 1792 * 896)
        self.srd(self.S_WO, "s68", "s69", 448 * 896)
        self.srd(self.S_OUT, "s80", "s81", 2048 * 896)
        I(f"s_mov_b64 s[{self.pDBG}:{self.pDBG+1}], s[82:83]\ns_mov_b64 s[{self.pGW}:{self.pGW+1}], s[78:79]")
        if self.o.ts:
            I(f"s_lshl_b32 s86, s2, 2\ns_add_u32 s86, s86, s{self.sWV}\ns_lshl_b32 s86, s86, 7\ns_add_u32 s{self.sTS}, s86, {TS_OFF}")
        I(f"s_lshr_b32 s86, s{self.sWV}, 1\ns_and_b32 s87, s{self.sWV}, 1")
        I("v_and_b32 v35, 31, v0\nv_lshrrev_b32 v36, 5, v0")
        I("v_bfe_u32 v37, v0, 1, 3\nv_xor_b32 v37, v37, v36")
        I(f"s_mul_i32 s88, s86, {2*CHUNK}\nv_lshlrev_b32 v38, 7, v35\nv_add_u32 v38, s88, v38")
        for ks in range(4):
            I(f"v_xor_b32 v39, {2*ks}, v37\nv_lshl_add_u32 v{self.vXR+ks}, v39, 4, v38")
        I("v_bfe_u32 v37, v0, 2, 2\nv_lshl_add_u32 v38, v36, 3, v37\nv_lshlrev_b32 v38, 7, v38")
        I("v_and_b32 v39, 1, v0\nv_lshlrev_b32 v39, 4, v39\nv_bfe_u32 v40, v0, 1, 1\nv_lshl_add_u32 v39, v40, 3, v39")
        I("v_add_u32 v38, v38, v39")
        I("v_bfe_u32 v39, v0, 4, 1\nv_and_b32 v40, 2, v37\nv_xor_b32 v40, v40, v39")
        I("s_lshl_b32 s88, s87, 1")
        I("v_xor_b32 v41, s88, v40")
        I(f"v_lshl_add_u32 v42, v41, 5, v38")
        I(f"v_add_u32 v{self.vWR}, 0x1000, v42")
        I(f"v_lshl_add_u32 v{self.vWR+1}, v39, 11, v42")
        I(f"v_xor_b32 v{self.vWR+2}, 32, v{self.vWR+1}")
        for st in (1, 2):
            for i in range(4):
                I(f"v_add_u32 v{self.vXR+4*st+i}, {65536*st}, v{self.vXR+i}")
            for i in range(3):
                I(f"v_add_u32 v{self.vWR+3*st+i}, {65536*st}, v{self.vWR+i}")
        I(f"s_lshl_b32 s88, s{self.sRB}, 2\ns_lshl_b32 s89, s86, 1\ns_add_u32 s88, s88, s89")
        I(f"s_mul_i32 s89, s88, {QKV_MT}\ns_lshl_b32 s90, s87, 11\ns_add_u32 s89, s89, s90")
        I(f"s_lshl_b32 s90, s{self.sJ}, 12\ns_lshl_b32 s91, s{self.sJ}, 14\ns_sub_u32 s91, s91, {40*4096}")
        I(f"s_cmp_lg_u32 s{self.sISV}, 0\ns_cselect_b32 s90, s91, s90\ns_add_u32 s{self.sQ0}, s89, s90")
        I(f"s_add_u32 s{self.sQ1}, s{self.sQ0}, {QKV_MT}")
        I(f"s_mul_i32 s89, s88, {HO_MT}\ns_lshl_b32 s90, s{self.sJ}, 13\ns_lshl_b32 s91, s87, 11\ns_add_u32 s89, s89, s90")
        I(f"s_add_u32 s89, s89, s91\ns_add_u32 s{self.sH0}, s89, {HO_OFF}\ns_add_u32 s{self.sH1}, s{self.sH0}, {HO_MT}")
        I(f"s_mov_b32 s{self.sNL2E}, {f32hex(-LOG2E)}\ns_mov_b32 s{self.sCS}, {f32hex(LOG2E / math.sqrt(28.0))}")
        I(f"s_lshl_b32 s88, s{self.sRB}, 8\ns_lshl_b32 s89, s{self.sJ}, 2\ns_add_u32 s88, s88, s89\ns_add_u32 s88, s88, {FL_OFF}")
        I(f"v_mov_b32 v{self.vFL}, s88")
        self.sts()
        self.poll_setup_att()
        self.att_setup()
        self.final_setup()
        self.sts()
        for st in range(1, self.o.lead):
            for ins in self.dma_stageA(st):
                ins()

    def dma_stageA(self, st):
        I = self.I
        base = (st % 4) * SLOT
        tag = f"st{st}"
        L = []
        L.append(lambda: I(f"s_add_u32 m0, s{self.sM0}, {base}"))
        for bq in range(4):
            L.append(lambda bq=bq: I(f"buffer_load_dwordx4 v{self.vXD+bq}, s[{self.S_X}:{self.S_X+3}], s{self.sX} offen offset:{1024*bq} lds", tag))
        prev = lambda: I(f"s_add_u32 s{self.sX}, s{self.sX}, 0x80")
        for seg, (srd, so, stp) in enumerate(((self.S_A, self.sA, self.sSAB), (self.S_B, self.sB, self.sSAB), (self.S_C, self.sC, None))):
            L.append(lambda seg=seg: I(f"s_add_u32 m0, s{self.sM0}, {base + 4096 + 2048*seg}"))
            L.append(prev)
            for e in range(2):
                L.append(lambda seg=seg, e=e, srd=srd, so=so: I(f"buffer_load_dwordx4 v{self.vWD+2*seg+e}, s[{srd}:{srd+3}], s{so} offen offset:{1024*e} lds", tag))
            prev = lambda so=so, stp=stp: I(f"s_add_u32 s{so}, s{so}, " + (f"s{stp}" if stp else str(64*2688)))
        L.append(prev)
        return L

    def dma_stageB(self, t):
        I = self.I
        base = PB_BASE[t]
        tag = f"st{7+t}"
        L = []
        prev = None
        if t == 0:
            prev = lambda: I(f"s_cmp_lg_u32 s{self.sISV}, 0\ns_cselect_b32 s{self.S_B+2}, 0, s{self.S_B+2}")
        for seg, (srd, so) in enumerate(((self.S_A, self.sA2), (self.S_B, self.sB2))):
            L.append(lambda seg=seg: I(f"s_add_u32 m0, s{self.sM0B}, {base + 2048*seg}"))
            if prev:
                L.append(prev)
            for e in range(2):
                L.append(lambda seg=seg, e=e, srd=srd, so=so: I(f"buffer_load_dwordx4 v{self.vWD+2*seg+e}, s[{srd}:{srd+3}], s{so} offen offset:{1024*e} lds", tag))
            prev = lambda so=so: I(f"s_add_u32 s{so}, s{so}, s{self.sSAB}")
        L.append(prev)
        return L

    def rd_w(self, bufset, slot_t, addr_t, const):
        out = []
        r = self.wf(bufset, slot_t)
        for e in range(2):
            v, imm = self.lds(self.vWR, 3, addr_t, const + 512 * e)
            out.append(lambda r=r, e=e, v=v, imm=imm: self.I(f"ds_read_b64_tr_b16 a[{r+2*e}:{r+2*e+1}], {v} offset:{imm}"))
        return out

    def rd_x(self, M, n):
        st, ks = divmod(n, 4)
        v, imm = self.lds(self.vXR, 4, ks, (st % 4) * SLOT + M * CHUNK)
        return [lambda: self.I(f"ds_read_b128 {self.xf(M, n)}, {v} offset:{imm}")]

    def readsA(self, n):
        st, ks = divmod(n, 4)
        c = (st % 4) * SLOT + ks * CHUNK + 4096
        bs = n % 2
        return [self.rd_w(bs, 0, 0, c), self.rd_x(0, n) + self.rd_x(1, n), self.rd_w(bs, 1, 1, c), self.rd_w(bs, 2, 2, c)]

    def readsB(self, n):
        t, ks = divmod(n, 4)
        c = PB_BASE[t] + ks * 4096
        bs = n % 2
        return [self.rd_w(bs, 1, 1, c), self.rd_w(bs, 2, 2, c)]

    def mfma(self, d, a, bb, first):
        c = "0" if first else f"v[{d}:{d+15}]"
        self.I(f"v_mfma_f32_32x32x16_bf16 v[{d}:{d+15}], {a}, {bb}, {c}")

    def dbg_load(self, tag=None):
        self.I(f"global_load_dword v{self.vPOLL}, v{self.vZ}, s[{self.pDBG}:{self.pDBG+1}] sc1", tag)

    def pf(self, v, srd, so):
        self.I(f"buffer_load_dword v{self.vT+12}, v{v}, s[{srd}:{srd+3}], {so} offen", "pf")
        self.b.vm[-1] = (set(), "pf")

    def passA(self):
        I, b, o = self.I, self.b, self.o
        b.wait_tags(("st0",))
        self.ts()
        I(f"s_or_b32 s86, s2, s{self.sWV}\ns_cmp_eq_u32 s86, 0\ns_cbranch_scc0 L_notag")
        snap_vm = list(b.vm)
        I(f"v_add_u32 v34, 2, v{self.vPOLL}\nv_or_b32 v34, 1, v34\ns_mov_b32 s86, {E_OFF}")
        I(f"s_mov_b64 exec, 1")
        I(f"buffer_store_dword v34, v{self.vZ}, s[{self.S_WS}:{self.S_WS+3}], s86 offen sc1")
        I(f"global_store_dword v{self.vZ}, v34, s[{self.pDBG}:{self.pDBG+1}] sc1")
        I(f"s_mov_b64 exec, -1")
        b.vm = [(set(), t) if t == "E" else (d, t) for d, t in snap_vm]
        b.label("L_notag")
        I("s_barrier")
        for grp in self.readsA(0):
            for f in grp:
                f()
        def stream(v):
            if v <= 6:
                return self.dma_stageA(v)
            if v == 7:
                return self.dma_stageB(0) + self.dma_stageB(1)
            if v == 8:
                return self.dma_stageB(2) + self.dma_stageB(3)
            return []
        pend = []
        for n in range(28):
            st, ks = divmod(n, 4)
            bs = n % 2
            nxt = self.readsA(n + 1) if n < 27 else self.readsB(0)
            gaps = [[] for _ in range(6)]
            if ks == 0:
                pend += stream(st + o.lead)
            if ks == 3:
                def bar(st=st):
                    tags = (f"st{st+1}",) if st < 6 else ("st7", "st8")
                    b.wait_tags(tags, lg_all=True)
                    I("s_barrier")
                gaps[0].append(bar)
            extra = []
            if o.coop and n == 2:
                extra.append(lambda: self.pf(self.vPFW, self.S_A, "s6"))
            if o.coop and n == 6:
                extra.append(lambda: self.pf(self.vPFW, self.S_B, "s7"))
            if n == 13:
                extra.append(lambda: self.dbg_load("tagrd"))
            if o.coopf and n in (o.pfw, o.pfw + 2, o.pfw + 4):
                k = (n - o.pfw) // 2
                extra.append(lambda k=k: self.pf_final(k))
            for i, grp in enumerate(nxt):
                gaps[i] += grp
            left = 4 - ks
            quota = -(-len(pend) // left)
            for gi, cap in ((2, 1), (3, 1), (4, 2), (5, 3)):
                for _ in range(cap):
                    if pend and quota > 0:
                        gaps[gi].append(pend.pop(0))
                        quota -= 1
            gaps[5] += extra
            i = 0
            for t in range(3):
                for M in range(2):
                    r = self.wf(bs, t)
                    self.mfma(self.acc(self.ACC_A, t, M), f"a[{r}:{r+3}]", self.xf(M, n), n == 0)
                    for f in gaps[i]:
                        f()
                    i += 1
        assert not pend
        rest = []
        for v in range(7 + o.lead, 9):
            rest += stream(v)
        self.pend = rest + self.dma_stageB(4) + self.dma_stageB(5) + self.dma_stageB(6)

    def pf_final(self, k):
        I = self.I
        v = self.vT + 11
        if k == 0:
            I(f"s_lshr_b32 s86, s2, 3\ns_lshl_b32 s86, s86, 2\ns_add_u32 s86, s86, s{self.sWV}")
            I(f"s_mul_i32 s6, s86, {98*128}\ns_mul_i32 s7, s86, {25*128}\nv_lshlrev_b32 v{v}, 7, v0")
            self.pf(v, self.S_WD, "s6")
        elif k == 1:
            I(f"v_min_u32 v{v}, {33*128}, v{v}\ns_add_u32 s6, s6, {64*128}")
            self.pf(v, self.S_WD, "s6")
        else:
            I(f"v_min_u32 v{v}, {24*128}, v{v}")
            self.pf(v, self.S_WO, "s7")
            I(f"s_cmp_lg_u32 s{self.sFIN}, 0\ns_cselect_b32 s{self.S_WD+2}, s{self.S_WD+2}, 0\ns_cselect_b32 s{self.S_WO+2}, s{self.S_WO+2}, 0")

    def get_tag(self):
        I, b = self.I, self.b
        u = self.uid()
        I(f"v_readfirstlane_b32 s{self.sTAG}, v{self.vPOLL}")
        I(f"s_cmp_lg_u32 s{self.sTAG}, 0\ns_cbranch_scc1 L_gottag{u}")
        keep_vm, keep_lg = list(b.vm), list(b.lg)
        I(f"s_mov_b32 s{self.sSPIN}, 0")
        b.label(f"L_tagspin{u}")
        self.dbg_load()
        I(f"s_add_u32 s{self.sSPIN}, s{self.sSPIN}, 1\ns_cmp_gt_u32 s{self.sSPIN}, {SPIN_MAX}\ns_cbranch_scc1 L_exit")
        I(f"v_readfirstlane_b32 s{self.sTAG}, v{self.vPOLL}")
        I(f"s_cmp_lg_u32 s{self.sTAG}, 0\ns_cbranch_scc0 L_tagspin{u}")
        b.vm, b.lg = keep_vm, keep_lg
        b.label(f"L_gottag{u}")

    def cvt_store(self, r, so, imm, tag, voff=None):
        L = []
        for i in range(4):
            L.append(lambda i=i: self.I(f"v_cvt_pk_bf16_f32 v{r+i}, v{r+2*i}, v{r+2*i+1}"))
        v = self.vL16 if voff is None else voff
        L.append(lambda: self.I(f"buffer_store_dwordx4 v[{r}:{r+3}], v{v}, s[{self.S_WS}:{self.S_WS+3}], s{so} offen offset:{imm} sc1", tag))
        return L

    def sigmoid_tile(self, r, so, imm, tag, pk):
        I = self.I
        L = []
        if pk:
            for i in range(0, 8, 2):
                L.append(lambda i=i: I(f"v_pk_mul_f32 v[{r+i}:{r+i+1}], v[{r+i}:{r+i+1}], s[{self.sNL2E}:{self.sNL2E+1}] op_sel_hi:[1,0]"))
        else:
            for i in range(8):
                L.append(lambda i=i: I(f"v_mul_f32 v{r+i}, s{self.sNL2E}, v{r+i}"))
        for i in range(8):
            L.append(lambda i=i: I(f"v_exp_f32 v{r+i}, v{r+i}"))
        if pk:
            for i in range(0, 8, 2):
                L.append(lambda i=i: I(f"v_pk_add_f32 v[{r+i}:{r+i+1}], v[{r+i}:{r+i+1}], 1.0 op_sel_hi:[1,0]"))
        else:
            for i in range(8):
                L.append(lambda i=i: I(f"v_add_f32 v{r+i}, 1.0, v{r+i}"))
        for i in range(8):
            L.append(lambda i=i: I(f"v_rcp_f32 v{r+i}, v{r+i}"))
        if pk:
            for i in range(0, 8, 2):
                L.append(lambda i=i: I(f"v_pk_mul_f32 v[{r+i}:{r+i+1}], v[{r+i}:{r+i+1}], v[{r+8+i}:{r+9+i}]"))
        else:
            for i in range(8):
                L.append(lambda i=i: I(f"v_mul_f32 v{r+i}, v{r+i}, v{r+8+i}"))
        return L + self.cvt_store(r, so, imm, tag)

    def flag_store(self, phase):
        I = self.I
        lab = f"L_nofl{self.uid()}"
        I(f"s_cmp_eq_u32 s{self.sWV}, 0\ns_cbranch_scc0 {lab}")
        keep = list(self.b.vm)
        I(f"v_mov_b32 v{self.vT}, s{self.sTAG}\ns_mov_b64 exec, 1")
        I(f"s_movk_i32 s86, {4096*phase}")
        I(f"buffer_store_dword v{self.vT}, v{self.vFL}, s[{self.S_WS}:{self.S_WS+3}], s86 offen sc1")
        I("s_mov_b64 exec, -1")
        self.b.vm = keep
        self.b.label(lab)

    _uid = 0

    def uid(self):
        self._uid += 1
        return self._uid

    @staticmethod
    def weave(main, side, start=0.0, end=1.0):
        out = []
        n = len(main)
        a, e = int(start * n), max(int(end * n), int(start * n) + 1)
        k = 0
        for i, f in enumerate(main):
            out.append(f)
            if i >= a:
                want = min(len(side), math.ceil(len(side) * (i - a + 1) / (e - a)))
                while k < want:
                    out.append(side[k]); k += 1
        out += side[k:]
        return out

    def passB_GU(self):
        I, b, o = self.I, self.b, self.o
        pend = list(self.pend)
        epi = []
        for M, so in ((0, self.sQ0), (1, self.sQ1)):
            r = self.acc(self.ACC_A, 0, M)
            epi += self.cvt_store(r, so, 0, "qk") + self.cvt_store(r + 8, so, 1024, "qk")
        for t in (1, 2):
            for M, so in ((0, self.sH0), (1, self.sH1)):
                epi += self.sigmoid_tile(self.acc(self.ACC_A, t, M), so, 1024 * (t - 1), "h", o.pkB)
        epi += self.att_masks()
        total = len(epi)
        first_gap = 3
        ngaps = 4 * 28
        done = 0
        g = 0
        for n in range(28):
            bs = n % 2
            gaps = [[] for _ in range(4)]
            if n == 7:
                gaps[0].append(lambda: (b.wait_tags(("st9", "st10")), I("s_barrier")))
            if n == 15:
                def bar():
                    b.wait_tags(("st11", "st12", "st13", "qk"), lg_all=True)
                    I("s_barrier")
                    self.flag_store(0)
                gaps[0].append(bar)
            if n < 27:
                nx = self.readsB(n + 1)
                gaps[0] += nx[0]
                gaps[1] += nx[1]
            if n == 1:
                gaps[3].append(self.get_tag)
            if 16 <= n < 16 + o.nb1:
                pend += self.fin_dma(n - 16)
            for gi in (2, 3):
                for _ in range(2):
                    if pend:
                        gaps[gi].append(pend.pop(0))
            if n == o.kpoll:
                gaps[3].append(lambda: self.poll_issue(self.vAP, self.vPOLL))
            i = 0
            for t in range(2):
                for M in range(2):
                    r = self.wf(bs, t + 1)
                    self.mfma(self.acc(self.ACC_B, t, M), f"a[{r}:{r+3}]", self.xf(M, n), n == 0)
                    for f in gaps[i]:
                        f()
                    g += 1
                    if g > first_gap:
                        want = min(total, math.ceil(total * (g - first_gap) / (ngaps - first_gap)))
                        while done < want:
                            epi[done]()
                            done += 1
                    i += 1
        assert done == total and not pend
        self.ts()
        I(f"s_add_u32 s{self.sH0}, s{self.sH0}, 0x1000\ns_add_u32 s{self.sH1}, s{self.sH1}, 0x1000")
        L = []
        for t in (0, 1):
            for M, so in ((0, self.sH0), (1, self.sH1)):
                L += self.sigmoid_tile(self.acc(self.ACC_B, t, M), so, 1024 * t, "h", o.pk)
        self.postB(L)

    def postB(self, epi):
        I, b, o = self.I, self.b, self.o
        I("s_barrier")
        self.poll_check(self.vAP, self.vPOLL, self.sMSK)
        self.att_loads_K()
        self.poll_check(self.vAP, self.vPOLL, self.sMSK2)
        self.att_loads_V()
        self.ts()
        side = []
        for s in range(o.nb1, self.RING):
            side += self.fin_dma(s)
        last = epi[-1]
        for f in self.weave(epi[:-1], side, 0.05, 0.9):
            f()
        last()

    def passB_V(self):
        I, b, o = self.I, self.b, self.o
        for f in list(self.pend):
            f()
        self.srd(self.S_C, f"s{self.pGW}", f"s{self.pGW+1}", 896)
        I(f"s_add_u32 m0, s{self.sM0B}, {PB_BASE[0] + 2048}")
        I(f"buffer_load_dwordx4 v{self.vL16}, s[{self.S_C}:{self.S_C+3}], 0 offen lds", "gw")
        I(f"s_sub_u32 s{self.sT1}, s{self.sQ0}, 0x2000\ns_sub_u32 s{self.sT2}, s{self.sQ1}, 0x2000")
        I(f"v_add_u32 v{self.vT+2}, 0x1000, v{self.vL16}")
        self.get_tag()
        epi = []
        for M, so in ((0, self.sQ0), (1, self.sQ1)):
            r = self.acc(self.ACC_A, 0, M)
            epi += self.cvt_store(r, so, 0, "qk") + self.cvt_store(r + 8, so, 1024, "qk")
        for t in (1, 2):
            for M, so in ((0, self.sT1), (1, self.sT2)):
                r = self.acc(self.ACC_A, t, M)
                epi += self.cvt_store(r, so, 1024 * (t - 1), "qk") + self.cvt_store(r + 8, so, 1024 * (t - 1), "qk", voff=self.vT + 2)
        I(f"s_and_b32 s88, s{self.sWV}, 1\ns_sub_u32 s89, s{self.sJ}, 14\ns_xor_b32 s88, s88, s89\ns_lshl_b32 s88, s88, 6")
        for st in range(3):
            I(f"v_xor_b32 v{self.vWR+3*st}, s88, v{self.vWR+3*st}\nv_subrev_u32 v{self.vWR+3*st}, 0x1000, v{self.vWR+3*st}")
        I(f"s_lshl_b32 s88, s{self.sRB}, 2\ns_add_u32 s88, s88, s{self.sWV}")
        I(f"s_mul_i32 s88, s88, {QKV_MT}\ns_lshl_b32 s89, s89, 11\ns_add_u32 s88, s88, s89")
        I(f"s_add_u32 s{self.sT3}, s88, {8*17*512}")
        I(f"v_lshrrev_b32 v{self.vT+3}, 5, v0\nv_lshlrev_b32 v{self.vT+3}, 4, v{self.vT+3}")
        I(f"s_add_u32 s88, s{self.sM0B}, {PB_BASE[0] + 2048}\nv_add_u32 v{self.vT+3}, s88, v{self.vT+3}")
        I(f"v_and_b32 v{self.vT+4}, 31, v0\nv_lshlrev_b32 v{self.vT+4}, 2, v{self.vT+4}")
        D = self.ACC_B
        I(f"s_bitcmp1_b32 s{self.sWV}, 0\ns_cbranch_scc1 L_v_wc1")
        snap = b.snapshot()
        for wc in range(2):
            if wc == 1:
                b.label("L_v_wc1")
                b.restore(snap)
            e = list(epi)

            def rdv(n):
                t, ks = divmod(n, 4)
                return self.rd_w(n % 2, 0, 0, PB_BASE[t] + ks * 4096)
            for f in rdv(0):
                f()
            for n in range(28):
                if n == 7:
                    b.wait_tags(("st9", "st10"))
                    I("s_barrier")
                if n == 15:
                    b.wait_tags(("st11", "st12", "st13"))
                    I("s_barrier")
                if n < 27:
                    for f in rdv(n + 1):
                        f()
                r = self.wf(n % 2, 0)
                self.mfma(D, f"a[{r}:{r+3}]", self.xf(wc, n), n == 0)
                for _ in range(3):
                    if e:
                        e.pop(0)()
            assert not e
            for f in self.cvt_store(D, self.sT3, 0, "qk") + self.cvt_store(D + 8, self.sT3, 1024, "qk"):
                f()
            b.wait_tags(("gw",))
            I(f"ds_read_b128 a[{self.WF}:{self.WF+3}], v{self.vT+3}")
            mk = self.att_masks()
            for n in range(28):
                if n < 27:
                    r = self.WF + 4 * ((n + 1) % 3)
                    I(f"ds_read_b128 a[{r}:{r+3}], v{self.vT+3} offset:{32*(n+1)}")
                r = self.WF + 4 * (n % 3)
                self.mfma(D + 16, f"a[{r}:{r+3}]", self.xf(wc, n), n == 0)
                for _ in range(2):
                    if mk:
                        mk.pop(0)()
            if wc == 0:
                I("s_branch L_v_done")
        b.label("L_v_done")
        b.wait_tags(("qk",), lg_all=True)
        I("s_barrier")
        self.flag_store(0)
        for s in range(o.nb1):
            for f in self.fin_dma(s):
                f()
        self.poll_issue(self.vAP, self.vPOLL)
        self.ts()
        self.postB([lambda: I("s_nop 0"),
                    lambda: I(f"buffer_store_dword v{D+16}, v{self.vT+4}, s[{self.S_WS}:{self.S_WS+3}], s{self.sZO} offen sc1", "h")])

    def poll_setup_att(self):
        I = self.I
        v, t = self.vAP, self.vT
        I(f"v_lshrrev_b32 v{v}, 4, v0\nv_add_u32 v{v}, s{self.sRB}, v{v}\nv_subrev_u32 v{v}, 2, v{v}\nv_max_i32 v{v}, 0, v{v}")
        I(f"v_min_u32 v{v}, 15, v{v}\nv_lshlrev_b32 v{v}, 8, v{v}\nv_and_b32 v{t}, 15, v0\nv_lshl_add_u32 v{v}, v{t}, 2, v{v}")
        I(f"v_add_u32 v{v}, {FL_OFF}, v{v}")
        I(f"s_mul_i32 s86, s{self.sJ}, 28\ns_add_u32 s87, s86, 27\ns_lshr_b32 s86, s86, 6\ns_lshr_b32 s87, s87, 6")
        I("s_lshl_b32 s88, 1, s86\ns_lshl_b32 s89, 1, s87\ns_or_b32 s88, s88, s89")
        I("s_lshl_b32 s89, s88, 7")
        I(f"s_mul_i32 s{self.sMSK}, s89, 0x10001\ns_or_b32 s{self.sMSK+1}, s88, s89")
        I("s_cmp_le_u32 s86, 3\ns_cselect_b32 s90, 0x4000, 0\ns_cmp_ge_u32 s87, 3\ns_cselect_b32 s91, 0x8000, 0\ns_or_b32 s90, s90, s91")
        I(f"s_mul_i32 s{self.sMSK2}, s90, 0x10001\ns_mov_b32 s{self.sMSK2+1}, s90")

    def poll_issue(self, vaddr, vdst, soff="0"):
        self.I(f"buffer_load_dword v{vdst}, v{vaddr}, s[{self.S_WS}:{self.S_WS+3}], {soff} offen sc1", "poll")

    def poll_check(self, vaddr, vdst, smask, soff="0"):
        I, b = self.I, self.b
        u = self.uid()
        I(f"v_cmp_ne_u32 vcc, s{self.sTAG}, v{vdst}")
        I(f"s_and_b64 vcc, vcc, s[{smask}:{smask+1}]\ns_cbranch_scc0 L_pok{u}")
        keep_vm, keep_lg = list(b.vm), list(b.lg)
        I(f"s_mov_b32 s{self.sSPIN}, 0")
        b.label(f"L_psp{u}")
        I(f"buffer_load_dword v{vdst}, v{vaddr}, s[{self.S_WS}:{self.S_WS+3}], {soff} offen sc1")
        I(f"s_add_u32 s{self.sSPIN}, s{self.sSPIN}, 1\ns_cmp_gt_u32 s{self.sSPIN}, {SPIN_MAX}\ns_cbranch_scc1 L_exit")
        I(f"v_cmp_ne_u32 vcc, s{self.sTAG}, v{vdst}")
        I(f"s_and_b64 vcc, vcc, s[{smask}:{smask+1}]\ns_cbranch_scc1 L_psp{u}")
        b.vm, b.lg = keep_vm, keep_lg
        b.label(f"L_pok{u}")

    def S(self, i):
        return self.SREG[i]

    def att_setup(self):
        I = self.I
        h = self.sJ
        I(f"s_and_b32 s86, s{h}, 1\ns_sub_u32 s{self.sPAR}, 0, s86\ns_mov_b32 s{self.sPAR+1}, s{self.sPAR}")
        I(f"s_mul_i32 s87, s{h}, 7\ns_lshr_b32 s87, s87, 1\ns_lshl_b32 s87, s87, 9")
        I(f"s_lshl_b32 s88, s{self.sRB}, 2\ns_mul_i32 s89, s{self.sWV}, 3\ns_add_u32 s89, s89, s88\ns_sub_u32 s89, s89, 8")
        for i in range(3):
            I(f"s_add_u32 s90, s89, {i}\ns_max_i32 s90, s90, 0\ns_mul_i32 s90, s90, {QKV_MT}\ns_add_u32 s90, s90, s87")
            I(f"s_add_u32 s{self.sKT+i}, s90, {56*512}")
        v = self.vT
        I(f"v_lshrrev_b32 v{v}, 5, v0\nv_add_u32 v{v+1}, s89, v{v}\nv_mov_b32 v{v+2}, 0xf149")
        I(f"v_cmp_gt_i32 vcc, 0, v{v+1}\nv_cndmask_b32 v{self.vP}, 0, v{v+2}, vcc\nv_mov_b32 v{self.vP+1}, 0")
        I(f"s_add_u32 s90, s89, 2\ns_cmp_lt_i32 s90, 0\ns_cselect_b32 s90, 0xf149, 0\nv_mov_b32 v{self.vP+2}, s90\nv_mov_b32 v{self.vP+3}, 0")
        I(f"v_mov_b32 v{self.vP+4}, 0x3f80\nv_mov_b32 v{self.vP+5}, 0")
        I(f"s_cmp_eq_u32 s86, 0\ns_cselect_b32 s90, {1536+8}, 0\ns_mul_i32 s91, s{self.sWV}, {3*2048}\ns_add_u32 s90, s90, s91\ns_add_u32 s90, s90, {KV_K}")
        I(f"v_and_b32 v{v+1}, 31, v0\nv_lshlrev_b32 v{v+1}, 4, v{v+1}\nv_add_u32 v{self.vP+7}, s90, v{v+1}\nv_lshl_add_u32 v{self.vP+6}, v{v}, 11, v{self.vP+7}")
        I(f"v_and_b32 v{v+1}, 31, v0\nv_lshlrev_b32 v{v+2}, 2, v{v}\nv_xor_b32 v{v+1}, v{v+1}, v{v+2}\nv_lshlrev_b32 v{v+1}, 4, v{v+1}")
        I(f"v_lshl_add_u32 v{self.vP+8}, v{v}, 9, v{v+1}\nv_xor_b32 v{self.vP+9}, 0x80, v{self.vP+8}")
        I(f"s_lshl_b32 s90, s{self.sWV}, 11\ns_add_u32 s91, s90, {KV_K}\nv_add_u32 v{self.vKA}, s91, v{self.vL16}")
        I(f"v_bfe_u32 v{v+1}, v0, 4, 1\nv_bfe_u32 v{v+2}, v0, 1, 1\nv_lshl_add_u32 v{v+1}, v{v+1}, 1, v{v+2}")
        I(f"v_xor_b32 v{v+2}, v{v}, v{v+1}\nv_lshlrev_b32 v{v+2}, 2, v{v+2}\nv_bfe_u32 v{v+3}, v0, 2, 2\nv_add_u32 v{v+2}, v{v+2}, v{v+3}")
        I(f"v_lshlrev_b32 v{v+2}, 4, v{v+2}\nv_lshl_add_u32 v{v+2}, v{v+1}, 9, v{v+2}\nv_and_b32 v{v+3}, 1, v0\nv_lshl_add_u32 v{v+2}, v{v+3}, 3, v{v+2}")
        I(f"s_add_u32 s91, s90, {KV_V}\nv_add_u32 v{self.vVA}, s91, v{v+2}\nv_xor_b32 v{self.vVA+1}, 0x80, v{self.vVA}")
        I(f"v_subrev_u32 v{v+1}, 1, v{v}\nv_and_b32 v{v+1}, s{self.sPAR}, v{v+1}\nv_not_b32 v{self.vMA}, v{v+1}")
        I(f"v_sub_u32 v{v+1}, 0, v{v}\ns_not_b32 s91, s{self.sPAR}\nv_and_b32 v{v+1}, s91, v{v+1}\nv_not_b32 v{self.vMB}, v{v+1}")
        I(f"s_add_u32 s88, s88, s{self.sWV}\ns_mul_i32 s90, s88, {QKV_MT}\ns_add_u32 s{self.sQO}, s90, s87")
        I(f"s_mul_i32 s90, s88, {HO_MT}\ns_lshl_b32 s91, s{h}, 11\ns_add_u32 s90, s90, s91\ns_add_u32 s{self.sOO}, s90, {HO_OFF + 112*1024}")
        I(f"s_lshl_b32 s90, s88, 7\ns_add_u32 s{self.sZO}, s90, {Z_OFF}")
        m = self.vM
        I(f"v_lshlrev_b32 v{m}, 2, v{v}\nv_and_b32 v{m+1}, 31, v0\nv_sub_u32 v{m}, v{m+1}, v{m}\nv_mov_b32 v{m+1}, {NEG}")

    def att_masks(self):
        L = []
        v = self.vM
        pair = lambda r: f"s[{88+2*(r&1)}:{89+2*(r&1)}]"
        def cmp_(r):
            key = 8 * (r >> 2) + (r & 3)
            return lambda: self.I(f"v_cmp_gt_i32 {pair(r)}, {key}, v{v}")
        L.append(cmp_(0))
        for r in range(16):
            if r < 15:
                L.append(cmp_(r + 1))
            if r > 0:
                L.append(lambda r=r: self.I(f"v_sub_f32 v{self.S(0)+r-1}, v{v+1}, v{self.S(8)+r-1}"))
            L.append(lambda r=r: self.I(f"v_cndmask_b32 v{self.S(8)+r}, 0, v{v+1}, {pair(r)}"))
        L.append(lambda: self.I(f"v_sub_f32 v{self.S(0)+15}, v{v+1}, v{self.S(8)+15}"))
        return L

    def att_loads_K(self):
        I = self.I
        ws = f"s[{self.S_WS}:{self.S_WS+3}]"
        I(f"s_mul_i32 s86, s{self.sWV}, {3*2048}")
        for i in range(3):
            I(f"s_add_u32 m0, s86, {KV_K + 2048*i}")
            if i < 2:
                I(f"buffer_load_dwordx4 v[{self.vQ+4*i}:{self.vQ+4*i+3}], v{self.vL16}, {ws}, s{self.sQO} offen offset:{1024*i} sc1", "K")
            for e in range(2):
                I(f"buffer_load_dwordx4 v{self.vL16}, {ws}, s{self.sKT+i} offen offset:{1024*e} sc1 lds", "K")

    def att_loads_V(self):
        I = self.I
        ws = f"s[{self.S_WS}:{self.S_WS+3}]"
        I(f"s_mul_i32 s86, s{self.sWV}, {3*2048}")
        for i in range(3):
            I(f"s_add_u32 m0, s86, {KV_V + 2048*i}\ns_add_u32 s87, s{self.sKT+i}, {56*512}")
            for e in range(2):
                I(f"buffer_load_dwordx4 v{self.vP+8+e}, {ws}, s87 offen offset:{1024*e} sc1 lds", "V")

    def attention(self):
        I, b, o = self.I, self.b, self.o
        KF = self.KF
        for s in range(o.nb1):
            for f in self.fin_rdw(s):
                f()
        b.wait_tags(("K",))
        I(f"ds_write_b64 v{self.vP+6}, v[{self.vP}:{self.vP+1}]")
        I(f"ds_write_b64 v{self.vP+7}, v[{self.vP+2}:{self.vP+3}] offset:4096")
        q = self.vQ
        I(f"v_bfi_b32 v{q}, v{self.vMA}, v{q}, v{self.vP+4}\nv_and_b32 v{q+1}, v{self.vMA}, v{q+1}")
        I(f"v_bfi_b32 v{q+6}, v{self.vMB}, v{q+6}, v{self.vP+4}\nv_and_b32 v{q+7}, v{self.vMB}, v{q+7}")
        b.waitcnt(lg=0)
        I("s_barrier")
        self.ts()
        order = [8, 7, 6, 5, 4, 3, 2, 1, 0]

        def rdk(i, bs):
            for s in range(2):
                r = KF + bs * 8 + 4 * s
                I(f"ds_read_b128 v[{r}:{r+3}], v{self.vKA} offset:{2048*i + 1024*s}")
        rdk(order[0], 0)
        rdk(order[1], 1)
        m = self.vM
        mx = []
        first = [True]

        def maxops(i):
            L = []
            s0 = self.S(i)
            for k in range(0, 16, 2):
                if first[0]:
                    L.append(f"v_max_f32 v{m}, v{s0}, v{s0+1}")
                    first[0] = False
                else:
                    L.append(f"v_max3_f32 v{m}, v{m}, v{s0+k}, v{s0+k+1}")
            return L
        bg = []
        for s in range(self.RING, self.RING + o.nb1):
            bg += self.fin_dma(s)
        for n, i in enumerate(order):
            bs = n % 3
            d = self.S(i)
            r = KF + bs * 8
            c = f"v[{d}:{d+15}]" if i in (0, 8) else "0"
            I(f"v_mfma_f32_32x32x16_bf16 v[{d}:{d+15}], v[{r}:{r+3}], v[{q}:{q+3}], {c}")
            if n + 2 < 9:
                rdk(order[n + 2], (n + 2) % 3)
            for _ in range(3):
                if mx:
                    I(mx.pop(0))
            I(f"v_mfma_f32_32x32x16_bf16 v[{d}:{d+15}], v[{r+4}:{r+7}], v[{q+4}:{q+7}], v[{d}:{d+15}]")
            if n >= 1:
                mx += maxops(order[n - 1])
            for _ in range(5 if n >= 1 else 0):
                if mx:
                    I(mx.pop(0))
            if n < 2:
                for _ in range(4):
                    bg.pop(0)()
        b.wait_tags(("V", "h"))
        I(f"ds_write_b64 v{self.vP+6}, v[{self.vP+4}:{self.vP+5}] offset:{KV_V - KV_K}")
        I(f"ds_write_b64 v{self.vP+7}, v[{self.vP+4}:{self.vP+5}] offset:{KV_V - KV_K + 4096}")
        mx += maxops(order[8])
        while mx:
            I(mx.pop(0))
        b.waitcnt(lg=0)
        I("s_barrier")

        def rdv(i, bs):
            L = []
            for s in range(2):
                for e in range(2):
                    r = KF + bs * 8 + 4 * s + 2 * e
                    L.append(f"ds_read_b64_tr_b16 v[{r}:{r+1}], v{self.vVA+e} offset:{2048*i + 256*s}")
            return L
        for t in rdv(order[0], 0):
            I(t)
        self.flag_store(1)
        I(f"v_mov_b32 v{m+1}, v{m}")
        I(f"v_permlane32_swap_b32 v{m}, v{m+1}")
        I(f"v_max_f32 v{m}, v{m}, v{m+1}")
        I(f"v_mul_f32 v{m}, s{self.sCS}, v{m}")
        I(f"s_mov_b32 s{self.sMSK}, 0x1ffff\ns_mov_b32 s{self.sMSK+1}, 0")
        self.ts()
        R = self.RING
        sched = {n: [] for n in range(9)}
        rd = lambda a, e: [f for s in range(a, e) for f in self.fin_rdw(s)]
        dm = lambda a, e: [f for s in range(a, e) for f in self.fin_dma(s)]
        sched[0] = rd(o.nb1, R)[:16] + bg[:12]
        sched[1] = rd(o.nb1, R)[16:] + bg[12:]
        sched[2] = dm(R + o.nb1, 28)[:16]
        sched[3] = dm(R + o.nb1, 28)[16:] + rd(R, R + 2)
        sched[4] = rd(R + 2, R + 7) + [lambda: self.poll_issue(self.vFA, self.vPOLL)]
        sched[5] = dm(28, 35)
        sched[6] = rd(R + 7, R + 10) + dm(35, 36) + [self.hook_poll_check]
        hl = [f for s in range(o.nh0) for f in self.fin_hload(s)]
        sched[7] = rd(R + 10, 28) + hl[:len(hl) // 2]
        sched[8] = hl[len(hl) // 2:]
        O = self.vO
        prev = None
        for n, i in enumerate(order):
            d = self.S(i)
            p = self.vP + 8 * (n % 2)
            L = []
            if o.pk:
                for k in range(0, 16, 2):
                    L.append(f"v_pk_fma_f32 v[{d+k}:{d+k+1}], v[{d+k}:{d+k+1}], s[{self.sNL2E}:{self.sCS}], v[{m}:{m+1}] op_sel:[0,1,0] op_sel_hi:[1,1,0] neg_lo:[0,0,1] neg_hi:[0,0,1]")
            else:
                for k in range(16):
                    L.append(f"v_fma_f32 v{d+k}, v{d+k}, s{self.sCS}, -v{m}")
            ex = [f"v_exp_f32 v{d+k}, v{d+k}" for k in range(16)]
            cv = [f"v_cvt_pk_bf16_f32 v{p+k}, v{d+2*k}, v{d+2*k+1}" for k in range(8)]
            seq = L + ex + cv
            vr = rdv(order[n + 1], (n + 1) % 2) if n + 1 < 9 else []
            main = []
            for k, t in enumerate(seq):
                main.append(lambda t=t: I(t))
                if prev is not None and k == 1:
                    main.append(lambda t=prev[0]: I(t))
                if prev is not None and k == 7:
                    main.append(lambda t=prev[1]: I(t))
                if k >= 10 and vr:
                    main.append(lambda t=vr.pop(0): I(t))
            for f in self.weave(main, sched[n], 0.0, 1.0):
                f()
            r = KF + (n % 2) * 8
            prev = (f"v_mfma_f32_32x32x16_bf16 v[{O}:{O+15}], v[{r}:{r+3}], v[{p}:{p+3}], " + ("0" if n == 0 else f"v[{O}:{O+15}]"),
                    f"v_mfma_f32_32x32x16_bf16 v[{O}:{O+15}], v[{r+4}:{r+7}], v[{p+4}:{p+7}], v[{O}:{O+15}]")
        I(prev[0])
        I(prev[1])
        t = self.vQ
        I(f"v_mul_f32 v{t}, s{self.sNL2E}, v{self.vZZ}\nv_exp_f32 v{t}, v{t}")
        z = self.vZZ + 1
        for a in range(2):
            I(f"v_mul_f32 v{z+a}, s{self.sNL2E}, v{z+a}\nv_exp_f32 v{z+a}, -v{z+a}")
        I(f"v_add_f32 v{t}, 1.0, v{t}")
        for a in range(2):
            I(f"v_add_f32 v{z+a}, 1.0, v{z+a}\nv_rcp_f32 v{z+a}, v{z+a}")
        I(f"v_cndmask_b32 v{t+1}, v{O+12}, v{O}, s[{self.sPAR}:{self.sPAR+1}]\nv_mov_b32 v{t+2}, v{t+1}")
        I(f"v_permlane32_swap_b32 v{t+1}, v{t+2}")
        I(f"v_cndmask_b32 v{t+1}, v{t+2}, v{t+1}, s[{self.sPAR}:{self.sPAR+1}]")
        I(f"v_mul_f32 v{t}, v{t}, v{t+1}\nv_rcp_f32 v{t}, v{t}")
        I(f"v_and_b32 v{t+1}, v{self.vMA}, v{t}\nv_and_b32 v{t+2}, v{self.vMB}, v{t}")
        for k in range(16):
            sc = t + 1 if k == 0 else (t + 2 if k == 12 else t)
            I(f"v_mul_f32 v{O+k}, v{O+k}, v{sc}")
        for f in self.cvt_store(O, self.sOO, 0, "o") + self.cvt_store(O + 8, self.sOO, 1024, "o"):
            f()

    def hook_poll_check(self):
        I = self.I
        self.poll_check(self.vFA, self.vPOLL, self.sMSK)
        v = self.vT
        I(f"v_and_b32 v{v}, 31, v0\nv_lshlrev_b32 v{v}, 2, v{v}")
        ws = f"s[{self.S_WS}:{self.S_WS+3}]"
        I(f"buffer_load_dword v{self.vZZ}, v{v}, {ws}, s{self.sZO} offen sc1", "z")
        I(f"buffer_load_dword v{self.vZZ+1}, v{v}, {ws}, s{self.sZF} offen sc1", "z")
        I(f"s_xor_b32 s{self.sZF}, s{self.sZF}, 0x80")
        I(f"buffer_load_dword v{self.vZZ+2}, v{v}, {ws}, s{self.sZF} offen sc1", "z")

    RING = 14

    def ring_addr(self, e):
        return (0, 2048 * e) if e < 6 else (1, 2048 * (e - 6))

    def final_setup(self):
        I = self.I
        v = self.vT
        I("s_lshr_b32 s86, s2, 3\ns_and_b32 s87, s2, 7\ns_mul_i32 s88, s86, 37\ns_lshr_b32 s88, s88, 8")
        I(f"s_mul_i32 s89, s88, 7\ns_sub_u32 s89, s86, s89\ns_cmp_lt_u32 s86, 28\ns_cselect_b32 s{self.sFIN}, 1, 0")
        I("s_min_u32 s88, s88, 3\ns_lshl_b32 s87, s87, 2\ns_add_u32 s87, s87, s88")
        I(f"s_lshr_b32 s90, s{self.sWV}, 1\ns_and_b32 s91, s{self.sWV}, 1")
        I(f"s_mul_i32 s92, s{self.sWV}, {448*896}\ns_lshl_b32 s89, s89, 7\ns_add_u32 s{self.sFW}, s92, s89")
        I(f"s_mul_i32 s92, s{self.sWV}, {112*896}\ns_add_u32 s{self.sFWO}, s92, s89")
        I(f"s_mul_i32 s{self.sFM0}, s{self.sWV}, {12*K}\ns_lshl_b32 s{self.sFM1}, s{self.sWV}, 14\ns_add_u32 s{self.sFM1}, s{self.sFM1}, {96*K}")
        I(f"v_lshrrev_b32 v{v}, 3, v0\nv_and_b32 v{v+1}, 2, v{v}\nv_lshlrev_b32 v{v+1}, 1, v{v+1}\nv_and_b32 v{v+2}, 7, v0\nv_xor_b32 v{v+1}, v{v+1}, v{v+2}")
        I(f"v_mul_u32_u24 v{v}, 0x380, v{v}\nv_lshl_add_u32 v{self.vFD}, v{v+1}, 4, v{v}\nv_add_u32 v{self.vFD+1}, {8*896-1024}, v{self.vFD}")
        I(f"v_bfe_u32 v{v}, v0, 2, 2\nv_lshrrev_b32 v{v+1}, 5, v0")
        I(f"v_and_b32 v{v+2}, 1, v0\nv_lshlrev_b32 v{v+2}, 4, v{v+2}\nv_bfe_u32 v{v+3}, v0, 1, 1\nv_lshl_add_u32 v{v+2}, v{v+3}, 3, v{v+2}")
        I(f"v_bfe_u32 v{v+3}, v0, 4, 1\nv_and_b32 v{v+4}, 2, v{v}\nv_xor_b32 v{v+3}, v{v+3}, v{v+4}\ns_lshl_b32 s92, s90, 1\nv_xor_b32 v{v+3}, s92, v{v+3}")
        I(f"v_lshl_add_u32 v{v+2}, v{v+3}, 5, v{v+2}\nv_lshl_add_u32 v{v+2}, v{v}, 7, v{v+2}")
        R = self.vFR
        I(f"v_lshl_add_u32 v{v+3}, v{v+1}, 10, v{v+2}\nv_add_u32 v{R}, s{self.sFM0}, v{v+3}\nv_xor_b32 v{R+1}, 64, v{R}")
        I(f"v_add_u32 v{R+2}, s{self.sFM1}, v{v+3}\nv_xor_b32 v{R+3}, 64, v{R+2}")
        I(f"v_lshlrev_b32 v{R+4}, 9, v{v+1}")
        I(f"s_lshl_b32 s93, s87, 1\ns_add_u32 s93, s93, s91\ns_mul_i32 s92, s93, {HO_MT}\ns_mul_i32 s88, s{self.sWV}, {28*1024}")
        I(f"s_add_u32 s92, s92, s88\ns_add_u32 s{self.sFH}, s92, {HO_OFF - HO_MT}")
        I(f"s_cmp_eq_u32 s91, 0\ns_cselect_b32 s92, {2*HO_MT}, 0")
        I(f"v_add_u32 v{R+5}, {HO_MT}, v{self.vL16}\nv_add_u32 v{R+6}, s92, v{self.vL16}")
        I(f"s_mul_i32 s92, s93, {32*896}\ns_add_u32 s92, s92, s89\ns_lshl_b32 s88, s90, 6\ns_add_u32 s{self.sFO}, s92, s88")
        I(f"s_lshl_b32 s92, s93, 7\ns_add_u32 s{self.sZF}, s92, {Z_OFF}")
        I(f"s_lshr_b32 s87, s87, 1\ns_lshl_b32 s87, s87, 8\ns_add_u32 s87, s87, {FL_OFF + 4096}")
        I(f"s_lshl_b32 s88, s{self.sRB}, 8\ns_add_u32 s88, s88, {FL_OFF + 4096 + 56}")
        I(f"v_lshlrev_b32 v{v}, 2, v0\nv_add_u32 v{v}, s87, v{v}\nv_mov_b32 v{v+1}, s88\nv_cmp_gt_u32 vcc, 16, v0\nv_cndmask_b32 v{self.vFA}, v{v+1}, v{v}, vcc")

    def fin_dma(self, step):
        I, b = self.I, self.b
        hi, c = self.ring_addr(step % self.RING)
        sm = self.sFM1 if hi else self.sFM0

        def first():
            if step >= self.RING:
                need = None
                for i, (_d, t) in enumerate(b.lg):
                    if t == f"rw{step - self.RING}":
                        need = len(b.lg) - 1 - i
                assert f"rw{step - self.RING}" in self.rw_done, step
                b.waitcnt(lg=need)
            I(f"s_add_u32 m0, s{sm}, {c}")
        L = [first]
        if step < 28:
            srd, so = self.S_WD, self.sFW
        else:
            srd, so = self.S_WO, self.sFWO
        if 0 < step < 28:
            L.append(lambda: I(f"s_add_u32 s{so}, s{so}, {16*896}"))
        elif step > 28:
            rows = [0, 16, 24, 40, 56, 72, 80, 96]
            d = rows[step - 28] - rows[step - 29]
            L.append(lambda: I(f"s_add_u32 s{so}, s{so}, {d*896}"))
        for e in range(2):
            L.append(lambda e=e: I(f"buffer_load_dwordx4 v{self.vFD+e}, s[{srd}:{srd+3}], s{so} offen offset:{1024*e} lds", f"w{step}"))
        return L

    rw_done = set()

    def fw(self, step, t):
        return (step * 8 if step < 28 else 224 + (step % 2) * 8) + 4 * t

    def fin_rdw(self, step):
        hi, c = self.ring_addr(step % self.RING)
        L = []
        for t in range(2):
            for e in range(2):
                r = self.fw(step, t) + 2 * e
                imm = c + (512 if step < 28 else 1024) * e

                def f(r=r, t=t, e=e, imm=imm):
                    if t == 0 and e == 0:
                        self.b.wait_tags((f"w{step}",))
                    self.I(f"ds_read_b64_tr_b16 a[{r}:{r+1}], v{self.vFR + 2*hi + t} offset:{imm}", f"rw{step}")
                    if t == 1 and e == 1:
                        self.rw_done.add(f"rw{step}")
                L.append(f)
        return L

    def fin_hload(self, step):
        I = self.I
        L = []
        R = self.vFR
        imm = 1024 * ((step if step < 28 else step - 28) % 4)
        if step == 28:
            L.append(lambda: I(f"s_mul_i32 s86, s{self.sWV}, {20*1024}\ns_sub_u32 s86, {88*1024}, s86\ns_add_u32 s{self.sFH}, s{self.sFH}, s86"))
        elif step % 4 == 0 and step > 0:
            L.append(lambda: I(f"s_add_u32 s{self.sFH}, s{self.sFH}, 0x1000"))
        for a in range(2):
            r = self.FH + (step % self.NH) * 8 + 4 * a
            L.append(lambda r=r, a=a: I(f"buffer_load_dwordx4 v[{r}:{r+3}], v{R+5+a}, s[{self.S_WS}:{self.S_WS+3}], s{self.sFH} offen offset:{imm} sc1", f"h{step}"))
        return L

    def final(self):
        I, b, o = self.I, self.b, self.o
        R = self.vFR
        z = self.vZZ + 1
        nh = o.nh0
        A = self.FACC
        I("\n".join(f"v_sub_u32 v{R+i}, v{R+i}, v{R+4}" for i in range(4)))
        I(f"s_mov_b32 s{self.sMSK}, 0xffff\ns_movk_i32 s{self.sT0}, 0x1000")
        for n in range(36):
            gaps = [[] for _ in range(4)]
            if 28 <= n + 1 < 36:
                rd = self.fin_rdw(n + 1)
                gaps[0] += rd[:2]
                gaps[1] += rd[2:]
            if n == o.opub:
                gaps[0].append(lambda: (b.wait_tags(("o",)), I("s_barrier"), self.flag_store(2)))
            if n == o.opoll_issue:
                gaps[1].append(lambda: self.poll_issue(self.vFA, self.vPOLL, soff=f"s{self.sT0}"))
            lim = 28 if n < o.opoll_check else 36
            if n == o.opoll_check:
                gaps[0].append(lambda: self.poll_check(self.vFA, self.vPOLL, self.sMSK, soff=f"s{self.sT0}"))
            cnt = 0
            while nh < lim and nh - self.NH < n and cnt < o.hrate:
                hl = self.fin_hload(nh)
                gaps[(2 * cnt + 1) % 4] += hl[:-1]
                gaps[(2 * cnt + 2) % 4 if cnt == 0 else 3] += hl[-1:]
                nh += 1
                cnt += 1
            if n == 28:
                for s in range(4):
                    for k in range(0, 16, 2):
                        I(f"v_pk_mul_f32 v[{A[s]+k}:{A[s]+k+1}], v[{A[s]+k}:{A[s]+k+1}], v[{z}:{z+1}] op_sel:[0,{s&1}] op_sel_hi:[1,{s&1}]")
            i = 0
            tiles = [(0, 0), (0, 1), (1, 0), (1, 1)] if n < 35 else [(0, 1), (1, 0), (1, 1), (0, 0)]
            for t, a in tiles:
                rw = self.fw(n, t)
                rh = self.FH + (n % self.NH) * 8 + 4 * a
                self.mfma(A[2 * t + a], f"a[{rw}:{rw+3}]", f"v[{rh}:{rh+3}]", n == 0)
                for f in gaps[i]:
                    f()
                i += 1
        self.ts()
        v = self.vT
        I(f"v_add_u32 v{v}, s{self.sFM0}, v{self.vL16}")
        for sg in range(1, 4):
            I(f"s_xor_b32 s86, s{self.sWV}, {sg}\ns_mul_i32 s86, s86, {12*K}\nv_add_u32 v{v+sg}, s86, v{self.vL16}")
        for sg in range(1, 4):
            for q in range(4):
                r = A[sg] + 4 * q
                I(f"ds_write_b128 v{v}, v[{r}:{r+3}] offset:{(sg-1)*4096 + q*1024}")
        I(f"v_and_b32 v{v+4}, 31, v0\nv_mul_u32_u24 v{v+4}, 0x380, v{v+4}\nv_lshrrev_b32 v{v+5}, 5, v0\nv_lshl_add_u32 v{v+4}, v{v+5}, 4, v{v+4}")
        b.waitcnt(lg=0)
        I("s_barrier")
        T = self.FH
        for q in range(4):
            for sg in range(1, 4):
                r = T + 16 * (sg - 1) + 4 * q
                I(f"ds_read_b128 v[{r}:{r+3}], v{v+sg} offset:{(sg-1)*4096 + q*1024}")
        a0 = A[0]
        for h in range(2):
            for k in range(8 * h, 8 * h + 8, 2):
                for sg in range(1, 4):
                    r = T + 16 * (sg - 1) + k
                    I(f"v_pk_add_f32 v[{a0+k}:{a0+k+1}], v[{a0+k}:{a0+k+1}], v[{r}:{r+1}]")
            r = a0 + 8 * h
            for i in range(4):
                I(f"v_cvt_pk_bf16_f32 v{r+i}, v{r+2*i}, v{r+2*i+1}")
            I(f"buffer_store_dwordx4 v[{r}:{r+3}], v{v+4}, s[{self.S_OUT}:{self.S_OUT+3}], s{self.sFO} offen offset:{32*h}")

    def build(self):
        I, b, o = self.I, self.b, self.o
        b.label(KNAME)
        self.prologue()
        self.ts(98)
        self.ts(1)
        self.sts_flush()
        self.ts()
        self.passA()
        self.ts()
        I(f"s_cmp_lg_u32 s{self.sISV}, 0\ns_cbranch_scc1 L_vpath")
        snap = b.snapshot()
        nts0 = self.nts
        self.passB_GU()
        gu_vm = list(b.vm)
        I("s_branch L_join")
        b.label("L_vpath")
        b.restore(snap)
        self.nts = nts0
        self.passB_V()
        b.label("L_join")
        vt = [t for _d, t in b.vm]
        gt = [t for _d, t in gu_vm]
        k = 0
        for t in gt:
            if k < len(vt) and t == vt[k] and not (t == "h" and k == len(vt) - 1):
                k += 1
        assert gt[-1] == "h" and vt[-1] == "h" and k == len(vt) - 1, (vt, gt)
        assert not b.lg
        self.ts()
        self.attention()
        self.ts()
        I(f"s_cmp_lg_u32 s{self.sFIN}, 0\ns_cbranch_scc0 L_nofinal")
        snap2 = b.snapshot()
        self.final()
        if o.ts:
            b.wait_all()
            self.ts(last=True)
        I("s_endpgm")
        b.label("L_nofinal")
        b.restore(snap2)
        b.wait_tags(("o",))
        I("s_barrier")
        self.flag_store(2)
        b.label("L_exit")
        b.raw("s_endpgm")

    def text(self):
        hdr = open("gated_mix__sliding_block__glu_gated_glu__prompt.s.ref").read().split("; Override launch")[0]
        s = hdr
        s += "; Generated by my own generator script (hand-designed schedule; no compiler output).\n"
        s += "; @launch grid=(256,1,1) block=(256,1,1) lds=163840\n"
        s += '.amdgcn_target "amdgcn-amd-amdhsa--gfx950"\n.text\n'
        s += f".globl {KNAME}\n.p2align 8\n.type {KNAME},@function\n"
        s += self.b.text()
        s += f""".section .rodata,"a"
.p2align 6
.amdhsa_kernel {KNAME}
  .amdhsa_next_free_vgpr 512
  .amdhsa_next_free_sgpr 102
  .amdhsa_accum_offset 256
  .amdhsa_group_segment_fixed_size 0
  .amdhsa_kernarg_size 88
  .amdhsa_user_sgpr_count 2
  .amdhsa_user_sgpr_kernarg_segment_ptr 1
  .amdhsa_system_sgpr_workgroup_id_x 1
.end_amdhsa_kernel
"""
        return s


def main():
    ap = argparse.ArgumentParser()
    ap.add_argument("-o", default="k.s")
    ap.add_argument("--ts", action="store_true")
    ap.add_argument("--cyc", action="store_true")
    ap.add_argument("--dbgts", type=int, default=0)
    ap.add_argument("--sts", action="store_true")
    ap.add_argument("--pk", type=int, default=1)
    ap.add_argument("--pkB", type=int, default=0)
    ap.add_argument("--align", type=int, default=1)
    ap.add_argument("--coop", type=int, default=1)
    ap.add_argument("--lead", type=int, default=2)
    ap.add_argument("--coopf", type=int, default=1)
    ap.add_argument("--pfw", type=int, default=20)
    ap.add_argument("--nb1", type=int, default=7)
    ap.add_argument("--kpoll", type=int, default=25)
    ap.add_argument("--nh0", type=int, default=8)
    ap.add_argument("--hrate", type=int, default=2)
    ap.add_argument("--opub", type=int, default=6)
    ap.add_argument("--opoll_issue", type=int, default=14)
    ap.add_argument("--opoll_check", type=int, default=18)
    o = ap.parse_args()
    g = G(o)
    g.build()
    open(o.o, "w").write(g.text())
    print(f"code bytes {g.b.off}, hazard nops {g.b.nops_added}, stamps {g.nts}", file=sys.stderr)


if __name__ == "__main__":
    main()
```

```python
import sys, math, argparse
from asmb import Builder

KNAME = "gated_mix__sliding_block__glu_gated_glu__prompt_kernel"
K = 1024
QKV_OFF = 0
QKV_MT = 168 * 512
HO_OFF = 0x600000
HO_MT = 144 * 1024
Z_OFF = 0xF00000
FL_OFF = 0xF10000
E_OFF = 0xF20000
TS_OFF = 0xF30000
WS_SIZE = 0x1000000
SLOT = 40 * K
CHUNK = 10 * K
PB_BASE = [120 * K, 136 * K, 0, 16 * K, 48 * K, 64 * K, 80 * K]
KV_K = 0
KV_V = 24 * K
RING_LO = 48 * K
RING_HI = 96 * K
NEG = 0xF149F2CA
LOG2E = 1.4426950408889634
SPIN_MAX = 1 << 18


def f32hex(x):
    import struct
    return "0x%08x" % struct.unpack("<I", struct.pack("<f", x))[0]


class G:
    def __init__(self, opt):
        self.o = opt
        self.b = Builder(align_opt=opt.align)
        self.nts = 0

    S_X, S_A, S_B, S_C, S_WS, S_WD, S_WO, S_OUT = 8, 12, 16, 20, 24, 28, 32, 36
    pDBG, pGW = 40, 42
    sWV, sRB, sJ, sISV = 44, 45, 46, 47
    sX, sA, sB, sC = 48, 49, 50, 51
    sSAB, sM0, sM0B, sA2, sB2 = 52, 53, 54, 55, 56
    sTAG = 57
    sQ0, sQ1, sH0, sH1 = 58, 59, 60, 61
    sNL2E, sCS = 62, 63
    sMSK, sMSK2, sPAR = 64, 66, 68
    sKT = 70
    sQO, sZO, sOO = 73, 74, 75
    sFIN, sFW, sFH, sFWO, sFM0, sFM1, sFO, sZF = 76, 77, 78, 79, 80, 81, 82, 83
    sSPIN, sT0 = 84, 85
    sT1, sT2, sT3 = 3, 4, 5
    sWRAP, sFHO, sDWO, sDHO = 0, 1, 6, 7
    sTS, sEX, sTM = 95, 96, 100
    vL16 = 1
    vXD = 2
    vWD = 6
    vXR = 12
    vWR = 24
    vT = 33
    vPFW, vPFC = 46, 47
    vPOLL = 48
    vZ = 49
    vFL = 50
    vAP = 51
    ACC_A = 52
    ACC_B = 148
    WF = 224
    KF = 4
    vO = 196
    vQ = 212
    vP = 220
    vKA = 236
    vVA = 237
    vM = 240
    vMA, vMB = 242, 239
    vZZ = 243
    vFA = 246
    vFD = 247
    vFR = 249
    FH = 84
    NH = 16
    FACC = [52, 68, 212, 228]
    SREG = {8: 52, 0: 68, 7: 84, 6: 100, 5: 116, 4: 132, 3: 148, 2: 164, 1: 180}

    def I(self, t, tag=None):
        self.b.I(t, tag)

    def srd(self, s, lo, hi, size):
        self.I(f"s_mov_b32 s{s}, {lo}\ns_mov_b32 s{s+1}, {hi}\ns_mov_b32 s{s+2}, {size}\ns_mov_b32 s{s+3}, 0x20000")

    def ts(self, sreg=None, last=False):
        if not self.o.ts or (self.o.lite and not last and sreg != 98):
            return
        n = self.nts
        self.nts += 1
        if sreg is None:
            self.b.raw(f"{'s_memtime' if self.o.cyc else 's_memrealtime'} s[{self.sTM}:{self.sTM+1}]")
            self.b.raw("s_waitcnt lgkmcnt(0)")
            self.b.lg = []
            sreg = self.sTM
        self.I(f"v_mov_b32 v{self.vT}, s{sreg}\nv_mov_b32 v{self.vT+1}, 0")
        self.I(f"s_mov_b64 s[{self.sEX}:{self.sEX+1}], exec\ns_mov_b64 exec, 1")
        if self.o.dbgts:
            u = self.uid()
            keep = list(self.b.vm)
            self.I(f"s_lshl_b32 s86, s2, 2\ns_add_u32 s86, s86, s{self.sWV}\ns_cmp_eq_u32 s86, {self.o.dbgts}\ns_cbranch_scc0 L_dts{u}")
            self.I(f"global_store_dword v{self.vT+1}, v{self.vT}, s[{self.pDBG}:{self.pDBG+1}] offset:{4*(n+1)} sc1")
            self.b.label(f"L_dts{u}")
            if n == 0 or last:
                self.I(f"s_cmp_eq_u32 s{self.sWV}, 0\ns_cbranch_scc0 L_dtt{u}")
                if n == 0:
                    self.I(f"v_not_b32 v{self.vT}, v{self.vT}")
                self.I(f"global_atomic_umax v{self.vT+1}, v{self.vT}, s[{self.pDBG}:{self.pDBG+1}] offset:{56 if n == 0 else 60} sc1")
                self.b.label(f"L_dtt{u}")
            self.b.vm = keep
        else:
            self.I(f"buffer_store_dword v{self.vT}, v{self.vT+1}, s[{self.S_WS}:{self.S_WS+3}], s{self.sTS} offen offset:{4*n}")
        self.I(f"s_mov_b64 exec, s[{self.sEX}:{self.sEX+1}]")

    soft = 0

    def sts(self):
        if not self.o.sts:
            return
        self.b.raw(f"{'s_memtime' if self.o.cyc else 's_memrealtime'} s[{self.sTM}:{self.sTM+1}]")
        self.b.raw("s_waitcnt lgkmcnt(0)")
        self.I(f"v_mov_b32 v{196+self.soft}, s{self.sTM}")
        self.soft += 1

    def sts_flush(self):
        for k in range(self.soft):
            self.I(f"v_readfirstlane_b32 s{self.sTM}, v{196+k}")
            self.ts(self.sTM)

    def lds(self, base, n, idx, const):
        return f"v{base + (const >> 16) * n + idx}", const & 0xFFFF

    def xf(self, M, n):
        r = (M * 28 + n) * 4
        return f"a[{r}:{r+3}]"

    def wf(self, bufset, t):
        r = self.WF + bufset * 12 + t * 4
        return r

    def acc(self, base, t, M):
        r = base + (t * 2 + M) * 16
        return r

    def prologue(self):
        I = self.I
        b = self.b
        if self.o.ts:
            b.raw(f"{'s_memtime' if self.o.cyc else 's_memrealtime'} s[98:99]")
        I("s_cmp_ge_u32 s2, 0x100\ns_cbranch_scc1 L_exit")
        b.raw("s_load_dwordx16 s[64:79], s[0:1], 0")
        b.raw("s_load_dwordx4 s[80:83], s[0:1], 64")
        b.raw(f"s_load_dwordx2 s[{self.S_WS}:{self.S_WS+1}], s[0:1], 80")
        I("s_getpc_b64 s[4:5]")
        b.label("L_pc")
        I("s_and_b32 s3, s2, 0xf8\nv_and_b32 v33, 7, v0\nv_add_lshl_u32 v33, v33, s3, 7\nv_min_u32 v33, L_exit-L_pc, v33")
        I("global_load_dword v45, v33, s[4:5]", tag="pf")
        b.vm[-1] = (set(), "pf")
        I("v_lshrrev_b32 v35, 6, v0\nv_and_b32 v0, 63, v0")
        I(f"v_readfirstlane_b32 s{self.sWV}, v35")
        I("s_and_b32 s3, s2, 7\ns_lshr_b32 s6, s2, 3")
        I(f"s_and_b32 s7, s3, 1\ns_lshl_b32 s7, s7, 3\ns_and_b32 s4, s6, 7\ns_add_u32 s{self.sRB}, s4, s7")
        I(f"s_lshr_b32 s7, s3, 1\ns_lshl_b32 s7, s7, 2\ns_lshr_b32 s5, s6, 3\ns_add_u32 s{self.sJ}, s5, s7")
        I(f"v_lshlrev_b32 v{self.vL16}, 4, v0")
        I("v_lshrrev_b32 v35, 3, v0\nv_and_b32 v36, 7, v0\nv_lshrrev_b32 v37, 4, v0")
        I("v_mul_u32_u24 v38, 0x380, v35")
        I("v_xor_b32 v39, v36, v37\nv_lshl_add_u32 v2, v39, 4, v38")
        I(f"v_xor_b32 v3, 64, v2\nv_add_u32 v3, {8*896-1024}, v3")
        I(f"v_add_u32 v4, {16*896-2048}, v2\nv_add_u32 v5, {16*896-2048}, v3")
        I("v_and_b32 v39, 2, v35\nv_lshlrev_b32 v39, 1, v39\nv_xor_b32 v39, v36, v39\nv_lshlrev_b32 v39, 4, v39")
        I(f"s_cmp_ge_u32 s{self.sJ}, 14\ns_cselect_b32 s{self.sISV}, 1, 0")
        I("s_movk_i32 s7, 0xe00\ns_movk_i32 s86, 0xa80\ns_cselect_b32 s7, s86, s7")
        I("v_mul_u32_u24 v40, 0xa80, v35\nv_add_u32 v10, v40, v39")
        I(f"v_add_u32 v11, {8*2688-1024}, v10")
        I("v_mul_u32_u24 v40, s7, v35\nv_add_u32 v6, v40, v39")
        I("s_lshl_b32 s86, s7, 3\ns_sub_u32 s86, s86, 0x400\nv_add_u32 v7, s86, v6")
        I("v_xor_b32 v8, 32, v6\nv_xor_b32 v9, 32, v7")
        I(f"s_lshl_b32 s{self.sSAB}, s7, 6")
        I("v_mul_u32_u24 v41, 0x380, v36\nv_lshl_add_u32 v41, v35, 7, v41")
        I(f"s_lshl_b32 s86, s4, 3\ns_lshl_b32 s87, s{self.sWV}, 1\ns_add_u32 s86, s86, s87")
        I("v_lshrrev_b32 v42, 1, v0\nv_lshlrev_b32 v42, 6, v42\nv_and_b32 v43, 1, v0\nv_add3_u32 v42, v42, v43, s86")
        I(f"v_mul_lo_u32 v{self.vPFW}, v42, s7\nv_mul_u32_u24 v{self.vPFC}, 0xa80, v42")
        I(f"s_lshl_b32 s86, s{self.sRB}, 2\ns_add_u32 s87, s86, s{self.sWV}\ns_mul_i32 s{self.sX}, s87, {32*896}")
        I(f"s_add_u32 s86, s86, s5\ns_lshl_b32 s86, s86, 2\ns_add_u32 s86, s86, s{self.sWV}\ns_mul_i32 s6, s86, {8*896}")
        I(f"s_lshl_b32 s86, s{self.sWV}, 4\ns_mul_i32 s87, s86, s7\ns_mul_i32 s88, s86, 0xa80")
        I(f"s_lshl_b32 s89, s{self.sJ}, 8\ns_lshl_b32 s90, s{self.sJ}, 7")
        I(f"s_lshl_b32 s91, s{self.sJ}, 9\ns_sub_u32 s91, s91, {42*128}")
        I(f"s_add_u32 s92, s91, 0x80\ns_add_u32 s93, s91, 0x100\ns_add_u32 s94, s89, 0x80")
        I(f"s_cmp_lg_u32 s{self.sISV}, 0")
        I(f"s_cselect_b32 s91, s91, s89\ns_cselect_b32 s92, s92, s89\ns_cselect_b32 s93, s93, s90")
        I(f"s_cselect_b32 s90, {17*128}, s94")
        I(f"s_add_u32 s{self.sA}, s91, s87\ns_add_u32 s{self.sB}, s92, s87\ns_add_u32 s{self.sC}, s93, s88")
        I(f"s_add_u32 s{self.sA2}, s90, s87\ns_add_u32 s{self.sB2}, s94, s87")
        I(f"s_mul_i32 s{self.sM0}, s{self.sWV}, {CHUNK}\ns_lshl_b32 s{self.sM0B}, s{self.sWV}, 12")
        WQ, WG_ = 448 * 2688, 448 * 3584
        I(f"s_mov_b32 s{self.S_X+2}, {2048*896}\ns_mov_b32 s{self.S_X+3}, 0x20000")
        I(f"s_cmp_lg_u32 s{self.sISV}, 0")
        for s_ in (self.S_A, self.S_B):
            I(f"s_mov_b32 s{s_+2}, {WG_}\ns_cselect_b32 s{s_+2}, {WQ}, s{s_+2}\ns_mov_b32 s{s_+3}, 0x20000")
        I(f"s_mov_b32 s{self.S_C+2}, {WQ}\ns_mov_b32 s{self.S_C+3}, 0x20000")
        b.raw("s_waitcnt lgkmcnt(0)")
        if self.o.ts and not self.o.lite:
            b.raw(f"{'s_memtime' if self.o.cyc else 's_memrealtime'} s[96:97]")
            b.raw("s_waitcnt lgkmcnt(0)")
            I("s_mov_b32 s99, s96")
        I(f"s_mov_b32 s{self.S_X}, s64\ns_mov_b32 s{self.S_X+1}, s65")
        for s_, lo in ((self.S_A, 72), (self.S_B, 74)):
            I(f"s_cselect_b32 s{s_}, s66, s{lo}\ns_cselect_b32 s{s_+1}, s67, s{lo+1}")
        I(f"s_mov_b32 s{self.S_C}, s66\ns_mov_b32 s{self.S_C+1}, s67")
        srd = lambda s_: f"s[{s_}:{s_+3}]"
        if self.o.coop:
            self.pf(41, self.S_X, "s6")
            self.pf(self.vPFW, self.S_A, "s91")
            self.pf(self.vPFW, self.S_B, "s92")
            self.pf(self.vPFC, self.S_C, "s93")
        self.sts()
        for ins in self.dma_stageA(0):
            ins()
        self.sts()
        I(f"s_mov_b32 s{self.S_WS+2}, {WS_SIZE}\ns_mov_b32 s{self.S_WS+3}, 0x20000")
        I(f"v_mov_b32 v{self.vZ}, 0\ns_mov_b32 s86, {E_OFF}")
        I(f"buffer_load_dword v{self.vPOLL}, v{self.vZ}, s[{self.S_WS}:{self.S_WS+3}], s86 offen sc1", tag="E")
        for st in range(1, self.o.lead):
            for ins in self.dma_stageA(st):
                ins()
        self.sts()
        self.srd(self.S_WD, "s76", "s77", 1792 * 896)
        self.srd(self.S_WO, "s68", "s69", 448 * 896)
        self.srd(self.S_OUT, "s80", "s81", 2048 * 896)
        I(f"s_mov_b64 s[{self.pDBG}:{self.pDBG+1}], s[82:83]\ns_mov_b64 s[{self.pGW}:{self.pGW+1}], s[78:79]")
        if self.o.ts:
            I(f"s_lshl_b32 s86, s2, 2\ns_add_u32 s86, s86, s{self.sWV}\ns_lshl_b32 s86, s86, 7\ns_add_u32 s{self.sTS}, s86, {TS_OFF}")
        I(f"s_lshr_b32 s86, s{self.sWV}, 1\ns_and_b32 s87, s{self.sWV}, 1")
        I("v_and_b32 v35, 31, v0\nv_lshrrev_b32 v36, 5, v0")
        I("v_bfe_u32 v37, v0, 1, 3\nv_xor_b32 v37, v37, v36")
        I(f"s_mul_i32 s88, s86, {2*CHUNK}\nv_lshlrev_b32 v38, 7, v35\nv_add_u32 v38, s88, v38")
        for ks in range(4):
            I(f"v_xor_b32 v39, {2*ks}, v37\nv_lshl_add_u32 v{self.vXR+ks}, v39, 4, v38")
        I("v_bfe_u32 v37, v0, 2, 2\nv_lshl_add_u32 v38, v36, 3, v37\nv_lshlrev_b32 v38, 7, v38")
        I("v_and_b32 v39, 1, v0\nv_lshlrev_b32 v39, 4, v39\nv_bfe_u32 v40, v0, 1, 1\nv_lshl_add_u32 v39, v40, 3, v39")
        I("v_add_u32 v38, v38, v39")
        I("v_bfe_u32 v39, v0, 4, 1\nv_and_b32 v40, 2, v37\nv_xor_b32 v40, v40, v39")
        I("s_lshl_b32 s88, s87, 1")
        I("v_xor_b32 v41, s88, v40")
        I(f"v_lshl_add_u32 v42, v41, 5, v38")
        I(f"v_add_u32 v{self.vWR}, 0x1000, v42")
        I(f"v_lshl_add_u32 v{self.vWR+1}, v39, 11, v42")
        I(f"v_xor_b32 v{self.vWR+2}, 32, v{self.vWR+1}")
        for st in (1, 2):
            for i in range(4):
                I(f"v_add_u32 v{self.vXR+4*st+i}, {65536*st}, v{self.vXR+i}")
            for i in range(3):
                I(f"v_add_u32 v{self.vWR+3*st+i}, {65536*st}, v{self.vWR+i}")
        I(f"s_lshl_b32 s88, s{self.sRB}, 2\ns_lshl_b32 s89, s86, 1\ns_add_u32 s88, s88, s89")
        I(f"s_mul_i32 s89, s88, {QKV_MT}\ns_lshl_b32 s90, s87, 11\ns_add_u32 s89, s89, s90")
        I(f"s_lshl_b32 s90, s{self.sJ}, 12\ns_lshl_b32 s91, s{self.sJ}, 14\ns_sub_u32 s91, s91, {40*4096}")
        I(f"s_cmp_lg_u32 s{self.sISV}, 0\ns_cselect_b32 s90, s91, s90\ns_add_u32 s{self.sQ0}, s89, s90")
        I(f"s_add_u32 s{self.sQ1}, s{self.sQ0}, {QKV_MT}")
        I(f"s_mul_i32 s89, s88, {HO_MT}\ns_lshl_b32 s90, s{self.sJ}, 13\ns_lshl_b32 s91, s87, 11\ns_add_u32 s89, s89, s90")
        I(f"s_add_u32 s89, s89, s91\ns_add_u32 s{self.sH0}, s89, {HO_OFF}\ns_add_u32 s{self.sH1}, s{self.sH0}, {HO_MT}")
        I(f"s_mov_b32 s{self.sNL2E}, {f32hex(-LOG2E)}\ns_mov_b32 s{self.sCS}, {f32hex(LOG2E / math.sqrt(28.0))}")
        I(f"s_lshl_b32 s88, s{self.sRB}, 8\ns_lshl_b32 s89, s{self.sJ}, 2\ns_add_u32 s88, s88, s89\ns_add_u32 s88, s88, {FL_OFF}")
        I(f"v_mov_b32 v{self.vFL}, s88")
        self.sts()
        self.setup = self.record(lambda: (self.poll_setup_att(), self.att_setup(), self.final_setup()))

    def record(self, fn):
        L = []
        real = self.I
        self.I = lambda t, tag=None: L.append(lambda: real(t, tag))
        fn()
        del self.I
        return L

    def dma_stageA(self, st):
        I = self.I
        base = (st % 4) * SLOT
        tag = f"st{st}"
        L = []
        L.append(lambda: I(f"s_add_u32 m0, s{self.sM0}, {base}"))
        for bq in range(4):
            L.append(lambda bq=bq: I(f"buffer_load_dwordx4 v{self.vXD+bq}, s[{self.S_X}:{self.S_X+3}], s{self.sX} offen offset:{1024*bq} lds", tag))
        prev = lambda: I(f"s_add_u32 s{self.sX}, s{self.sX}, 0x80")
        for seg, (srd, so, stp) in enumerate(((self.S_A, self.sA, self.sSAB), (self.S_B, self.sB, self.sSAB), (self.S_C, self.sC, None))):
            L.append(lambda seg=seg: I(f"s_add_u32 m0, s{self.sM0}, {base + 4096 + 2048*seg}"))
            L.append(prev)
            for e in range(2):
                L.append(lambda seg=seg, e=e, srd=srd, so=so: I(f"buffer_load_dwordx4 v{self.vWD+2*seg+e}, s[{srd}:{srd+3}], s{so} offen offset:{1024*e} lds", tag))
            prev = lambda so=so, stp=stp: I(f"s_add_u32 s{so}, s{so}, " + (f"s{stp}" if stp else str(64*2688)))
        L.append(prev)
        return L

    def dma_stageB(self, t):
        I = self.I
        base = PB_BASE[t]
        tag = f"st{7+t}"
        L = []
        prev = None
        if t == 0:
            prev = lambda: I(f"s_cmp_lg_u32 s{self.sISV}, 0\ns_cselect_b32 s{self.S_B+2}, 0, s{self.S_B+2}")
        for seg, (srd, so) in enumerate(((self.S_A, self.sA2), (self.S_B, self.sB2))):
            L.append(lambda seg=seg: I(f"s_add_u32 m0, s{self.sM0B}, {base + 2048*seg}"))
            if prev:
                L.append(prev)
            for e in range(2):
                L.append(lambda seg=seg, e=e, srd=srd, so=so: I(f"buffer_load_dwordx4 v{self.vWD+2*seg+e}, s[{srd}:{srd+3}], s{so} offen offset:{1024*e} lds", tag))
            prev = lambda so=so: I(f"s_add_u32 s{so}, s{so}, s{self.sSAB}")
        L.append(prev)
        return L

    def rd_w(self, bufset, slot_t, addr_t, const):
        out = []
        r = self.wf(bufset, slot_t)
        for e in range(2):
            v, imm = self.lds(self.vWR, 3, addr_t, const + 512 * e)
            out.append(lambda r=r, e=e, v=v, imm=imm: self.I(f"ds_read_b64_tr_b16 a[{r+2*e}:{r+2*e+1}], {v} offset:{imm}"))
        return out

    def rd_x(self, M, n):
        st, ks = divmod(n, 4)
        v, imm = self.lds(self.vXR, 4, ks, (st % 4) * SLOT + M * CHUNK)
        return [lambda: self.I(f"ds_read_b128 {self.xf(M, n)}, {v} offset:{imm}")]

    def readsA(self, n):
        st, ks = divmod(n, 4)
        c = (st % 4) * SLOT + ks * CHUNK + 4096
        bs = n % 2
        return [self.rd_w(bs, 0, 0, c), self.rd_x(0, n) + self.rd_x(1, n), self.rd_w(bs, 1, 1, c), self.rd_w(bs, 2, 2, c)]

    def readsB(self, n):
        t, ks = divmod(n, 4)
        c = PB_BASE[t] + ks * 4096
        bs = n % 2
        return [self.rd_w(bs, 1, 1, c), self.rd_w(bs, 2, 2, c)]

    def mfma(self, d, a, bb, first):
        c = "0" if first else f"v[{d}:{d+15}]"
        self.I(f"v_mfma_f32_32x32x16_bf16 v[{d}:{d+15}], {a}, {bb}, {c}")

    def dbg_load(self, tag=None):
        self.I(f"global_load_dword v{self.vPOLL}, v{self.vZ}, s[{self.pDBG}:{self.pDBG+1}] sc1", tag)

    def pf(self, v, srd, so):
        self.I(f"buffer_load_dword v{self.vT+12}, v{v}, s[{srd}:{srd+3}], {so} offen", "pf")
        self.b.vm[-1] = (set(), "pf")

    def passA(self):
        I, b, o = self.I, self.b, self.o
        b.wait_tags(("st0",))
        self.ts()
        I(f"s_or_b32 s86, s2, s{self.sWV}\ns_cmp_eq_u32 s86, 0\ns_cbranch_scc0 L_notag")
        snap_vm = list(b.vm)
        I(f"v_add_u32 v34, 2, v{self.vPOLL}\nv_or_b32 v34, 1, v34\ns_mov_b32 s86, {E_OFF}")
        I(f"s_mov_b64 exec, 1")
        I(f"buffer_store_dword v34, v{self.vZ}, s[{self.S_WS}:{self.S_WS+3}], s86 offen sc1")
        I(f"global_store_dword v{self.vZ}, v34, s[{self.pDBG}:{self.pDBG+1}] sc1")
        I(f"s_mov_b64 exec, -1")
        b.vm = [(set(), t) if t == "E" else (d, t) for d, t in snap_vm]
        b.label("L_notag")
        I("s_barrier")
        for grp in self.readsA(0):
            for f in grp:
                f()
        def stream(v):
            if v <= 6:
                return self.dma_stageA(v)
            if v == 7:
                return self.dma_stageB(0) + self.dma_stageB(1)
            if v == 8:
                return self.dma_stageB(2) + self.dma_stageB(3)
            return []
        pend = []
        nsetup = 0
        for n in range(28):
            st, ks = divmod(n, 4)
            bs = n % 2
            nxt = self.readsA(n + 1) if n < 27 else self.readsB(0)
            gaps = [[] for _ in range(6)]
            if ks == 0:
                pend += stream(st + o.lead)
            if ks == 3:
                def bar(st=st):
                    tags = (f"st{st+1}",) if st < 6 else ("st7", "st8")
                    b.wait_tags(tags, lg_all=True)
                    I("s_barrier")
                gaps[0].append(bar)
            extra = []
            if n == 13:
                extra.append(lambda: self.dbg_load("tagrd"))
            for i, grp in enumerate(nxt):
                gaps[i] += grp
            left = 4 - ks
            quota = -(-len(pend) // left)
            for gi, cap in ((2, 1), (3, 1), (4, 2), (5, 3)):
                for _ in range(cap):
                    if pend and quota > 0:
                        gaps[gi].append(pend.pop(0))
                        quota -= 1
            gaps[5] += extra
            cnt = min(math.ceil(len(self.setup) * (n + 1) / 26), len(self.setup)) - nsetup
            for k in range(cnt):
                gaps[min(5, 2 + (k * 4 + 2) // cnt)].append(self.setup[nsetup])
                nsetup += 1
            i = 0
            for t in range(3):
                for M in range(2):
                    r = self.wf(bs, t)
                    self.mfma(self.acc(self.ACC_A, t, M), f"a[{r}:{r+3}]", self.xf(M, n), n == 0)
                    for f in gaps[i]:
                        f()
                    i += 1
        assert not pend
        rest = []
        for v in range(7 + o.lead, 9):
            rest += stream(v)
        self.pend = rest + self.dma_stageB(4) + self.dma_stageB(5) + self.dma_stageB(6)

    def get_tag(self):
        I, b = self.I, self.b
        u = self.uid()
        I(f"v_readfirstlane_b32 s{self.sTAG}, v{self.vPOLL}")
        I(f"s_cmp_lg_u32 s{self.sTAG}, 0\ns_cbranch_scc1 L_gottag{u}")
        keep_vm, keep_lg = list(b.vm), list(b.lg)
        I(f"s_mov_b32 s{self.sSPIN}, 0")
        b.label(f"L_tagspin{u}")
        self.dbg_load()
        I(f"s_add_u32 s{self.sSPIN}, s{self.sSPIN}, 1\ns_cmp_gt_u32 s{self.sSPIN}, {SPIN_MAX}\ns_cbranch_scc1 L_exit")
        I(f"v_readfirstlane_b32 s{self.sTAG}, v{self.vPOLL}")
        I(f"s_cmp_lg_u32 s{self.sTAG}, 0\ns_cbranch_scc0 L_tagspin{u}")
        b.vm, b.lg = keep_vm, keep_lg
        b.label(f"L_gottag{u}")

    def cvt_store(self, r, so, imm, tag, voff=None):
        L = []
        for i in range(4):
            L.append(lambda i=i: self.I(f"v_cvt_pk_bf16_f32 v{r+i}, v{r+2*i}, v{r+2*i+1}"))
        v = self.vL16 if voff is None else voff
        L.append(lambda: self.I(f"buffer_store_dwordx4 v[{r}:{r+3}], v{v}, s[{self.S_WS}:{self.S_WS+3}], s{so} offen offset:{imm} sc1", tag))
        return L

    def sigmoid_tile(self, r, so, imm, tag, pk):
        I = self.I
        L = []
        if pk:
            for i in range(0, 8, 2):
                L.append(lambda i=i: I(f"v_pk_mul_f32 v[{r+i}:{r+i+1}], v[{r+i}:{r+i+1}], s[{self.sNL2E}:{self.sNL2E+1}] op_sel_hi:[1,0]"))
        else:
            for i in range(8):
                L.append(lambda i=i: I(f"v_mul_f32 v{r+i}, s{self.sNL2E}, v{r+i}"))
        for i in range(8):
            L.append(lambda i=i: I(f"v_exp_f32 v{r+i}, v{r+i}"))
        if pk:
            for i in range(0, 8, 2):
                L.append(lambda i=i: I(f"v_pk_add_f32 v[{r+i}:{r+i+1}], v[{r+i}:{r+i+1}], 1.0 op_sel_hi:[1,0]"))
        else:
            for i in range(8):
                L.append(lambda i=i: I(f"v_add_f32 v{r+i}, 1.0, v{r+i}"))
        for i in range(8):
            L.append(lambda i=i: I(f"v_rcp_f32 v{r+i}, v{r+i}"))
        if pk:
            for i in range(0, 8, 2):
                L.append(lambda i=i: I(f"v_pk_mul_f32 v[{r+i}:{r+i+1}], v[{r+i}:{r+i+1}], v[{r+8+i}:{r+9+i}]"))
        else:
            for i in range(8):
                L.append(lambda i=i: I(f"v_mul_f32 v{r+i}, v{r+i}, v{r+8+i}"))
        return L + self.cvt_store(r, so, imm, tag)

    def flag_store(self, phase):
        I = self.I
        lab = f"L_nofl{self.uid()}"
        I(f"s_cmp_eq_u32 s{self.sWV}, 0\ns_cbranch_scc0 {lab}")
        keep = list(self.b.vm)
        I(f"v_mov_b32 v{self.vT}, s{self.sTAG}\ns_mov_b64 exec, 1")
        I(f"s_movk_i32 s86, {4096*phase}")
        I(f"buffer_store_dword v{self.vT}, v{self.vFL}, s[{self.S_WS}:{self.S_WS+3}], s86 offen sc1")
        I("s_mov_b64 exec, -1")
        self.b.vm = keep
        self.b.label(lab)

    _uid = 0

    def uid(self):
        self._uid += 1
        return self._uid

    @staticmethod
    def weave(main, side, start=0.0, end=1.0):
        out = []
        n = len(main)
        a, e = int(start * n), max(int(end * n), int(start * n) + 1)
        k = 0
        for i, f in enumerate(main):
            out.append(f)
            if i >= a:
                want = min(len(side), math.ceil(len(side) * (i - a + 1) / (e - a)))
                while k < want:
                    out.append(side[k]); k += 1
        out += side[k:]
        return out

    def passB_GU(self):
        I, b, o = self.I, self.b, self.o
        pend = list(self.pend)
        epi = []
        for M, so in ((0, self.sQ0), (1, self.sQ1)):
            r = self.acc(self.ACC_A, 0, M)
            epi += self.cvt_store(r, so, 0, "qk") + self.cvt_store(r + 8, so, 1024, "qk")
        nqk = len(epi)
        for t in (1, 2):
            for M, so in ((0, self.sH0), (1, self.sH1)):
                epi += self.sigmoid_tile(self.acc(self.ACC_A, t, M), so, 1024 * (t - 1), "h", o.pkB)
        epi += self.att_masks()
        total = len(epi)
        first_gap = 3
        ngaps = 4 * 28
        done = 0
        g = 0
        for n in range(28):
            bs = n % 2
            gaps = [[] for _ in range(4)]
            if n in o.bs:
                self.ts()
            if n == 7:
                gaps[0].append(lambda: (b.wait_tags(("st9", "st10")), I("s_barrier")))
            if n == o.fl0 and n != 15:
                gaps[0].append(lambda: (b.wait_tags(("qk",)), I("s_barrier"), self.flag_store(0)))
            if n == 15:
                def bar():
                    b.wait_tags(("st11", "st12", "st13", "qk"), lg_all=True)
                    I("s_barrier")
                    if o.fl0 == 15:
                        self.flag_store(0)
                gaps[0].append(bar)
            if n < 27:
                nx = self.readsB(n + 1)
                gaps[0] += nx[0]
                gaps[1] += nx[1]
            if n == 1:
                gaps[3].append(self.get_tag)
            if o.fl0 + 1 <= n < o.fl0 + 1 + self.NB1:
                pend += self.fin_dma(n - o.fl0 - 1)
            if n == o.kchk:
                pend += [lambda: self.poll_check(self.vAP, self.vPOLL, self.sMSK)] + self.record(self.att_loads_K) + [lambda: self.poll_issue(self.vAP, self.vPOLL)]
            for gi in (2, 3):
                for _ in range(2 if n < o.kchk else 4):
                    if pend:
                        gaps[gi].append(pend.pop(0))
            if n == o.kpoll:
                gaps[3].append(lambda: self.poll_issue(self.vAP, self.vPOLL))
            i = 0
            for t in range(2):
                for M in range(2):
                    r = self.wf(bs, t + 1)
                    self.mfma(self.acc(self.ACC_B, t, M), f"a[{r}:{r+3}]", self.xf(M, n), n == 0)
                    for f in gaps[i]:
                        f()
                    g += 1
                    if g > first_gap:
                        want = min(total, math.ceil(total * (g - first_gap) / (4 * o.epi_end - first_gap)))
                        want = max(want, min(nqk, 3 * (g - first_gap)))
                        while done < want:
                            epi[done]()
                            done += 1
                    i += 1
        assert done == total and not pend
        self.ts()
        I(f"s_add_u32 s{self.sH0}, s{self.sH0}, 0x1000\ns_add_u32 s{self.sH1}, s{self.sH1}, 0x1000")
        T = []
        for t in (0, 1):
            for M, so in ((0, self.sH0), (1, self.sH1)):
                T.append(self.sigmoid_tile(self.acc(self.ACC_B, t, M), so, 1024 * t, "h", o.pk))
        self.postB(T)

    NB1 = 8

    def postB(self, T):
        I, b, o = self.I, self.b, self.o
        KF = self.KF
        rd = [f for s_ in range(self.NB1) for f in self.fin_rdw(s_)]
        for f in self.weave(T[0], rd[:16], 0.1, 1.0):
            f()
        self.poll_check(self.vAP, self.vPOLL, self.sMSK2)
        self.att_loads_V()
        for f in self.weave(T[1], rd[16:], 0.0, 1.0):
            f()
        self.ts()
        b.wait_tags(("K",))
        I(f"ds_write_b64 v{self.vP+6}, v[{self.vP}:{self.vP+1}]")
        I(f"ds_write_b64 v{self.vP+7}, v[{self.vP+2}:{self.vP+3}] offset:4096")
        q = self.vQ
        I(f"v_bfi_b32 v{q}, v{self.vMA}, v{q}, v{self.vP+4}\nv_and_b32 v{q+1}, v{self.vMA}, v{q+1}")
        I(f"v_bfi_b32 v{q+6}, v{self.vMB}, v{q+6}, v{self.vP+4}\nv_and_b32 v{q+7}, v{self.vMB}, v{q+7}")
        b.waitcnt(lg=0)
        I("s_barrier")
        self.ts()
        order = [8, 0, 7, 6, 5, 4, 3, 2, 1]

        def rdk(n):
            for s_ in range(2):
                r = KF + (n % 3) * 8 + 4 * s_
                I(f"ds_read_b128 v[{r}:{r+3}], v{self.vKA} offset:{2048*order[n] + 1024*s_}")
        rdk(0)
        rdk(1)
        m = self.vM
        mx = []

        def maxops(n):
            s0 = self.S(order[n])
            return [(lambda k=k: I(f"v_max_f32 v{m}, v{s0}, v{s0+1}" if (n == 0 and k == 0) else f"v_max3_f32 v{m}, v{m}, v{s0+k}, v{s0+k+1}")) for k in range(0, 16, 2)]
        vs = list(T[2]) + list(T[3][:-1])
        KH = 11
        bg = [f for s_ in range(self.NB1, self.NB1 + o.nbq) for f in self.fin_dma(s_)]
        self.bg_rest = self.NB1 + o.nbq
        for k in range(18):
            n, half = divmod(k, 2)
            d = self.S(order[n])
            r = KF + (n % 3) * 8 + 4 * half
            c = f"v[{d}:{d+15}]" if (half or order[n] in (0, 8)) else "0"
            if order[n] == 1:
                assert not vs
            I(f"v_mfma_f32_32x32x16_bf16 v[{d}:{d+15}], v[{r}:{r+3}], v[{q+4*half}:{q+4*half+3}], {c}")
            if half == 0 and n + 2 < 9:
                rdk(n + 2)
            if half == 1 and n >= 1:
                mx += maxops(n - 1)
            nv = math.ceil(len(vs) / (KH - k + 1)) if k <= KH else 0
            for _ in range(nv):
                vs.pop(0)()
            if k == KH:
                T[3][-1]()
            for _ in range(math.ceil(len(bg) / (18 - k))):
                bg.pop(0)()
            for _ in range(max(0, 5 - nv) if k < 17 else len(mx)):
                if mx:
                    mx.pop(0)()
        self.mx_rest = maxops(8)

    def passB_V(self):
        I, b, o = self.I, self.b, self.o
        for f in list(self.pend):
            f()
        self.srd(self.S_C, f"s{self.pGW}", f"s{self.pGW+1}", 896)
        I(f"s_add_u32 m0, s{self.sM0B}, {PB_BASE[0] + 2048}")
        I(f"buffer_load_dwordx4 v{self.vL16}, s[{self.S_C}:{self.S_C+3}], 0 offen lds", "gw")
        I(f"s_sub_u32 s{self.sT1}, s{self.sQ0}, 0x2000\ns_sub_u32 s{self.sT2}, s{self.sQ1}, 0x2000")
        I(f"v_add_u32 v{self.vT+2}, 0x1000, v{self.vL16}")
        self.get_tag()
        epi = []
        for M, so in ((0, self.sQ0), (1, self.sQ1)):
            r = self.acc(self.ACC_A, 0, M)
            epi += self.cvt_store(r, so, 0, "qk") + self.cvt_store(r + 8, so, 1024, "qk")
        for t in (1, 2):
            for M, so in ((0, self.sT1), (1, self.sT2)):
                r = self.acc(self.ACC_A, t, M)
                epi += self.cvt_store(r, so, 1024 * (t - 1), "qk") + self.cvt_store(r + 8, so, 1024 * (t - 1), "qk", voff=self.vT + 2)
        I(f"s_and_b32 s88, s{self.sWV}, 1\ns_sub_u32 s89, s{self.sJ}, 14\ns_xor_b32 s88, s88, s89\ns_lshl_b32 s88, s88, 6")
        for st in range(3):
            I(f"v_xor_b32 v{self.vWR+3*st}, s88, v{self.vWR+3*st}\nv_subrev_u32 v{self.vWR+3*st}, 0x1000, v{self.vWR+3*st}")
        I(f"s_lshl_b32 s88, s{self.sRB}, 2\ns_add_u32 s88, s88, s{self.sWV}")
        I(f"s_mul_i32 s88, s88, {QKV_MT}\ns_lshl_b32 s89, s89, 11\ns_add_u32 s88, s88, s89")
        I(f"s_add_u32 s{self.sT3}, s88, {8*17*512}")
        I(f"v_lshrrev_b32 v{self.vT+3}, 5, v0\nv_lshlrev_b32 v{self.vT+3}, 4, v{self.vT+3}")
        I(f"s_add_u32 s88, s{self.sM0B}, {PB_BASE[0] + 2048}\nv_add_u32 v{self.vT+3}, s88, v{self.vT+3}")
        I(f"v_and_b32 v{self.vT+4}, 31, v0\nv_lshlrev_b32 v{self.vT+4}, 2, v{self.vT+4}")
        D = self.ACC_B
        I(f"s_bitcmp1_b32 s{self.sWV}, 0\ns_cbranch_scc1 L_v_wc1")
        snap = b.snapshot()
        for wc in range(2):
            if wc == 1:
                b.label("L_v_wc1")
                b.restore(snap)
            e = list(epi)

            def rdv(n):
                t, ks = divmod(n, 4)
                return self.rd_w(n % 2, 0, 0, PB_BASE[t] + ks * 4096)
            for f in rdv(0):
                f()
            for n in range(28):
                if n == 7:
                    b.wait_tags(("st9", "st10"))
                    I("s_barrier")
                if n == 15:
                    b.wait_tags(("st11", "st12", "st13"))
                    I("s_barrier")
                if n < 27:
                    for f in rdv(n + 1):
                        f()
                r = self.wf(n % 2, 0)
                self.mfma(D, f"a[{r}:{r+3}]", self.xf(wc, n), n == 0)
                for _ in range(3):
                    if e:
                        e.pop(0)()
            assert not e
            for f in self.cvt_store(D, self.sT3, 0, "qk") + self.cvt_store(D + 8, self.sT3, 1024, "qk"):
                f()
            b.wait_tags(("gw",))
            I(f"ds_read_b128 a[{self.WF}:{self.WF+3}], v{self.vT+3}")
            mk = self.att_masks()
            for n in range(28):
                if n < 27:
                    r = self.WF + 4 * ((n + 1) % 3)
                    I(f"ds_read_b128 a[{r}:{r+3}], v{self.vT+3} offset:{32*(n+1)}")
                r = self.WF + 4 * (n % 3)
                self.mfma(D + 16, f"a[{r}:{r+3}]", self.xf(wc, n), n == 0)
                for _ in range(2):
                    if mk:
                        mk.pop(0)()
            I(f"v_mov_b32 v{self.vT+5}, v{D+16}")
            if wc == 0:
                I("s_branch L_v_done")
        b.label("L_v_done")
        b.wait_tags(("qk",), lg_all=True)
        I("s_barrier")
        self.flag_store(0)
        for s_ in range(self.NB1):
            for f in self.fin_dma(s_):
                f()
        self.poll_issue(self.vAP, self.vPOLL)
        self.poll_check(self.vAP, self.vPOLL, self.sMSK)
        self.att_loads_K()
        self.poll_issue(self.vAP, self.vPOLL)
        for _ in o.bs:
            self.ts()
        self.ts()
        self.postB([[], [], [], [lambda: I(f"buffer_store_dword v{self.vT+5}, v{self.vT+4}, s[{self.S_WS}:{self.S_WS+3}], s{self.sZO} offen sc1", "h")]])

    def poll_setup_att(self):
        I = self.I
        v, t = self.vAP, self.vT
        I(f"v_lshrrev_b32 v{v}, 4, v0\nv_add_u32 v{v}, s{self.sRB}, v{v}\nv_subrev_u32 v{v}, 2, v{v}\nv_max_i32 v{v}, 0, v{v}")
        I(f"v_min_u32 v{v}, 15, v{v}\nv_lshlrev_b32 v{v}, 8, v{v}\nv_and_b32 v{t}, 15, v0\nv_lshl_add_u32 v{v}, v{t}, 2, v{v}")
        I(f"v_add_u32 v{v}, {FL_OFF}, v{v}")
        I(f"s_mul_i32 s86, s{self.sJ}, 28\ns_add_u32 s87, s86, 27\ns_lshr_b32 s86, s86, 6\ns_lshr_b32 s87, s87, 6")
        I("s_lshl_b32 s88, 1, s86\ns_lshl_b32 s89, 1, s87\ns_or_b32 s88, s88, s89")
        I("s_lshl_b32 s89, s88, 7")
        I(f"s_mul_i32 s{self.sMSK}, s89, 0x10001\ns_or_b32 s{self.sMSK+1}, s88, s89")
        I("s_cmp_le_u32 s86, 3\ns_cselect_b32 s90, 0x4000, 0\ns_cmp_ge_u32 s87, 3\ns_cselect_b32 s91, 0x8000, 0\ns_or_b32 s90, s90, s91")
        I(f"s_mul_i32 s{self.sMSK2}, s90, 0x10001\ns_mov_b32 s{self.sMSK2+1}, s90")

    def poll_issue(self, vaddr, vdst, soff="0"):
        self.I(f"buffer_load_dword v{vdst}, v{vaddr}, s[{self.S_WS}:{self.S_WS+3}], {soff} offen sc1", "poll")

    def poll_check(self, vaddr, vdst, smask, soff="0"):
        I, b = self.I, self.b
        u = self.uid()
        I(f"v_cmp_ne_u32 vcc, s{self.sTAG}, v{vdst}")
        I(f"s_and_b64 vcc, vcc, s[{smask}:{smask+1}]\ns_cbranch_scc0 L_pok{u}")
        keep_vm, keep_lg = list(b.vm), list(b.lg)
        I(f"s_mov_b32 s{self.sSPIN}, 0")
        b.label(f"L_psp{u}")
        I(f"buffer_load_dword v{vdst}, v{vaddr}, s[{self.S_WS}:{self.S_WS+3}], {soff} offen sc1")
        I(f"s_add_u32 s{self.sSPIN}, s{self.sSPIN}, 1\ns_cmp_gt_u32 s{self.sSPIN}, {SPIN_MAX}\ns_cbranch_scc1 L_exit")
        I(f"v_cmp_ne_u32 vcc, s{self.sTAG}, v{vdst}")
        I(f"s_and_b64 vcc, vcc, s[{smask}:{smask+1}]\ns_cbranch_scc1 L_psp{u}")
        b.vm, b.lg = keep_vm, keep_lg
        b.label(f"L_pok{u}")

    def S(self, i):
        return self.SREG[i]

    def att_setup(self):
        I = self.I
        h = self.sJ
        I(f"s_and_b32 s86, s{h}, 1\ns_sub_u32 s{self.sPAR}, 0, s86\ns_mov_b32 s{self.sPAR+1}, s{self.sPAR}")
        I(f"s_mul_i32 s87, s{h}, 7\ns_lshr_b32 s87, s87, 1\ns_lshl_b32 s87, s87, 9")
        I(f"s_lshl_b32 s88, s{self.sRB}, 2\ns_mul_i32 s89, s{self.sWV}, 3\ns_add_u32 s89, s89, s88\ns_sub_u32 s89, s89, 8")
        for i in range(3):
            I(f"s_add_u32 s90, s89, {i}\ns_max_i32 s90, s90, 0\ns_mul_i32 s90, s90, {QKV_MT}\ns_add_u32 s90, s90, s87")
            I(f"s_add_u32 s{self.sKT+i}, s90, {56*512}")
        v = self.vT
        I(f"v_lshrrev_b32 v{v}, 5, v0\nv_add_u32 v{v+1}, s89, v{v}\nv_mov_b32 v{v+2}, 0xf149")
        I(f"v_cmp_gt_i32 vcc, 0, v{v+1}\nv_cndmask_b32 v{self.vP}, 0, v{v+2}, vcc\nv_mov_b32 v{self.vP+1}, 0")
        I(f"s_add_u32 s90, s89, 2\ns_cmp_lt_i32 s90, 0\ns_cselect_b32 s90, 0xf149, 0\nv_mov_b32 v{self.vP+2}, s90\nv_mov_b32 v{self.vP+3}, 0")
        I(f"v_mov_b32 v{self.vP+4}, 0x3f80\nv_mov_b32 v{self.vP+5}, 0")
        I(f"s_cmp_eq_u32 s86, 0\ns_cselect_b32 s90, {1536+8}, 0\ns_mul_i32 s91, s{self.sWV}, {3*2048}\ns_add_u32 s90, s90, s91\ns_add_u32 s90, s90, {KV_K}")
        I(f"v_and_b32 v{v+1}, 31, v0\nv_lshlrev_b32 v{v+1}, 4, v{v+1}\nv_add_u32 v{self.vP+7}, s90, v{v+1}\nv_lshl_add_u32 v{self.vP+6}, v{v}, 11, v{self.vP+7}")
        I(f"v_and_b32 v{v+1}, 31, v0\nv_lshlrev_b32 v{v+2}, 2, v{v}\nv_xor_b32 v{v+1}, v{v+1}, v{v+2}\nv_lshlrev_b32 v{v+1}, 4, v{v+1}")
        I(f"v_lshl_add_u32 v{self.vP+8}, v{v}, 9, v{v+1}\nv_xor_b32 v{self.vP+9}, 0x80, v{self.vP+8}")
        I(f"s_lshl_b32 s90, s{self.sWV}, 11\ns_add_u32 s91, s90, {KV_K}\nv_add_u32 v{self.vKA}, s91, v{self.vL16}")
        I(f"v_bfe_u32 v{v+1}, v0, 4, 1\nv_bfe_u32 v{v+2}, v0, 1, 1\nv_lshl_add_u32 v{v+1}, v{v+1}, 1, v{v+2}")
        I(f"v_xor_b32 v{v+2}, v{v}, v{v+1}\nv_lshlrev_b32 v{v+2}, 2, v{v+2}\nv_bfe_u32 v{v+3}, v0, 2, 2\nv_add_u32 v{v+2}, v{v+2}, v{v+3}")
        I(f"v_lshlrev_b32 v{v+2}, 4, v{v+2}\nv_lshl_add_u32 v{v+2}, v{v+1}, 9, v{v+2}\nv_and_b32 v{v+3}, 1, v0\nv_lshl_add_u32 v{v+2}, v{v+3}, 3, v{v+2}")
        I(f"s_add_u32 s91, s90, {KV_V}\nv_add_u32 v{self.vVA}, s91, v{v+2}\nv_xor_b32 v{self.vVA+1}, 0x80, v{self.vVA}")
        I(f"v_subrev_u32 v{v+1}, 1, v{v}\nv_and_b32 v{v+1}, s{self.sPAR}, v{v+1}\nv_not_b32 v{self.vMA}, v{v+1}")
        I(f"v_sub_u32 v{v+1}, 0, v{v}\ns_not_b32 s91, s{self.sPAR}\nv_and_b32 v{v+1}, s91, v{v+1}\nv_not_b32 v{self.vMB}, v{v+1}")
        I(f"s_add_u32 s88, s88, s{self.sWV}\ns_mul_i32 s90, s88, {QKV_MT}\ns_add_u32 s{self.sQO}, s90, s87")
        I(f"s_mul_i32 s90, s88, {HO_MT}\ns_lshl_b32 s91, s{h}, 11\ns_add_u32 s90, s90, s91\ns_add_u32 s{self.sOO}, s90, {HO_OFF + 112*1024}")
        I(f"s_lshl_b32 s90, s88, 7\ns_add_u32 s{self.sZO}, s90, {Z_OFF}")
        m = self.vM
        I(f"v_lshlrev_b32 v{m}, 2, v{v}\nv_and_b32 v{m+1}, 31, v0\nv_sub_u32 v{m}, v{m+1}, v{m}\nv_mov_b32 v{m+1}, {NEG}")

    def att_masks(self):
        L = []
        v = self.vM
        pair = lambda r: f"s[{88+2*(r&1)}:{89+2*(r&1)}]"
        def cmp_(r):
            key = 8 * (r >> 2) + (r & 3)
            return lambda: self.I(f"v_cmp_gt_i32 {pair(r)}, {key}, v{v}")
        L.append(cmp_(0))
        for r in range(16):
            if r < 15:
                L.append(cmp_(r + 1))
            if r > 0:
                L.append(lambda r=r: self.I(f"v_sub_f32 v{self.S(0)+r-1}, v{v+1}, v{self.S(8)+r-1}"))
            L.append(lambda r=r: self.I(f"v_cndmask_b32 v{self.S(8)+r}, 0, v{v+1}, {pair(r)}"))
        L.append(lambda: self.I(f"v_sub_f32 v{self.S(0)+15}, v{v+1}, v{self.S(8)+15}"))
        return L

    def att_loads_K(self):
        I = self.I
        ws = f"s[{self.S_WS}:{self.S_WS+3}]"
        I(f"s_mul_i32 s86, s{self.sWV}, {3*2048}")
        for i in range(3):
            I(f"s_add_u32 m0, s86, {KV_K + 2048*i}")
            if i < 2:
                I(f"buffer_load_dwordx4 v[{self.vQ+4*i}:{self.vQ+4*i+3}], v{self.vL16}, {ws}, s{self.sQO} offen offset:{1024*i} sc1", "K")
            for e in range(2):
                I(f"buffer_load_dwordx4 v{self.vL16}, {ws}, s{self.sKT+i} offen offset:{1024*e} sc1 lds", "K")

    def att_loads_V(self):
        I = self.I
        ws = f"s[{self.S_WS}:{self.S_WS+3}]"
        I(f"s_mul_i32 s86, s{self.sWV}, {3*2048}")
        for i in range(3):
            I(f"s_add_u32 m0, s86, {KV_V + 2048*i}\ns_add_u32 s87, s{self.sKT+i}, {56*512}")
            for e in range(2):
                I(f"buffer_load_dwordx4 v{self.vP+8+e}, {ws}, s87 offen offset:{1024*e} sc1 lds", "V")

    def attention(self):
        I, b, o = self.I, self.b, self.o
        KF = self.KF
        m = self.vM
        order = [8, 7, 6, 5, 4, 3, 2, 1, 0]
        b.wait_tags(("V",))
        I(f"ds_write_b64 v{self.vP+6}, v[{self.vP+4}:{self.vP+5}] offset:{KV_V - KV_K}")
        I(f"ds_write_b64 v{self.vP+7}, v[{self.vP+4}:{self.vP+5}] offset:{KV_V - KV_K + 4096}")
        for f in self.mx_rest:
            f()
        b.waitcnt(lg=0)
        I("s_barrier")

        def rdv(i, bs):
            L = []
            for s in range(2):
                for e in range(2):
                    r = KF + bs * 8 + 4 * s + 2 * e
                    L.append(f"ds_read_b64_tr_b16 v[{r}:{r+1}], v{self.vVA+e} offset:{2048*i + 256*s}")
            return L
        for t in rdv(order[0], 0):
            I(t)
        I(f"v_mov_b32 v{m+1}, v{m}")
        I(f"v_permlane32_swap_b32 v{m}, v{m+1}")
        I(f"v_max_f32 v{m}, v{m}, v{m+1}")
        I(f"v_mul_f32 v{m}, s{self.sCS}, v{m}")
        I(f"s_mov_b32 s{self.sMSK}, 0x1ffff\ns_mov_b32 s{self.sMSK+1}, 0")
        self.ts()
        sched = {n: [] for n in range(9)}
        rd = lambda a, e: [f for s in range(a, e) for f in self.fin_rdw(s)]
        dm = lambda a, e: [f for s in range(a, e) for f in self.fin_dma(s)]
        pub = lambda: (b.wait_tags(("h",)), I("s_barrier"), self.flag_store(1))
        mid = (self.bg_rest + 22) // 2
        sched[0] = dm(self.bg_rest, mid)
        sched[1] = dm(mid, 22) + rd(8, 10)
        sched[2] = rd(10, 14) + dm(22, 25)
        sched[3] = dm(25, 28) + rd(14, 18)
        sched[4] = rd(18, 22) + dm(28, 31)
        sched[5] = dm(31, 36)
        sched[6] = rd(22, 28)
        hl = [f for s in range(o.nh0) for f in self.fin_hload(s)]
        sched[7] = hl[:len(hl) // 2]
        sched[8] = hl[len(hl) // 2:]
        sched[o.hpub] = sched[o.hpub] + [pub]
        sched[o.hpoll] = sched[o.hpoll] + [lambda: self.poll_issue(self.vFA, self.vPOLL)]
        sched[7] = [self.hook_poll_check] + sched[7]
        O = self.vO
        prev = None
        for n, i in enumerate(order):
            if n in o.ss:
                self.ts()
            d = self.S(i)
            p = self.vP + 8 * (n % 2)
            L = []
            if o.pk:
                for k in range(0, 16, 2):
                    L.append(f"v_pk_fma_f32 v[{d+k}:{d+k+1}], v[{d+k}:{d+k+1}], s[{self.sNL2E}:{self.sCS}], v[{m}:{m+1}] op_sel:[0,1,0] op_sel_hi:[1,1,0] neg_lo:[0,0,1] neg_hi:[0,0,1]")
            else:
                for k in range(16):
                    L.append(f"v_fma_f32 v{d+k}, v{d+k}, s{self.sCS}, -v{m}")
            ex = [f"v_exp_f32 v{d+k}, v{d+k}" for k in range(16)]
            cv = [f"v_cvt_pk_bf16_f32 v{p+k}, v{d+2*k}, v{d+2*k+1}" for k in range(8)]
            seq = L + ex + cv
            vr = rdv(order[n + 1], (n + 1) % 2) if n + 1 < 9 else []
            main = []
            for k, t in enumerate(seq):
                main.append(lambda t=t: I(t))
                if prev is not None and k == 1:
                    main.append(lambda t=prev[0]: I(t))
                if prev is not None and k == 7:
                    main.append(lambda t=prev[1]: I(t))
                if k >= 10 and vr:
                    main.append(lambda t=vr.pop(0): I(t))
            for f in self.weave(main, sched[n], 0.0, 1.0):
                f()
            r = KF + (n % 2) * 8
            prev = (f"v_mfma_f32_32x32x16_bf16 v[{O}:{O+15}], v[{r}:{r+3}], v[{p}:{p+3}], " + ("0" if n == 0 else f"v[{O}:{O+15}]"),
                    f"v_mfma_f32_32x32x16_bf16 v[{O}:{O+15}], v[{r+4}:{r+7}], v[{p+4}:{p+7}], v[{O}:{O+15}]")
        I(prev[0])
        I(prev[1])
        t = self.vQ
        I(f"v_mul_f32 v{t}, s{self.sNL2E}, v{self.vZZ}\nv_exp_f32 v{t}, v{t}")
        z = self.vZZ + 1
        for a in range(2):
            I(f"v_mul_f32 v{z+a}, s{self.sNL2E}, v{z+a}\nv_exp_f32 v{z+a}, -v{z+a}")
        I(f"v_add_f32 v{t}, 1.0, v{t}")
        for a in range(2):
            I(f"v_add_f32 v{z+a}, 1.0, v{z+a}\nv_rcp_f32 v{z+a}, v{z+a}")
        I(f"v_cndmask_b32 v{t+1}, v{O+12}, v{O}, s[{self.sPAR}:{self.sPAR+1}]\nv_mov_b32 v{t+2}, v{t+1}")
        I(f"v_permlane32_swap_b32 v{t+1}, v{t+2}")
        I(f"v_cndmask_b32 v{t+1}, v{t+2}, v{t+1}, s[{self.sPAR}:{self.sPAR+1}]")
        I(f"v_mul_f32 v{t}, v{t}, v{t+1}\nv_rcp_f32 v{t}, v{t}")
        I(f"v_and_b32 v{t+1}, v{self.vMA}, v{t}\nv_and_b32 v{t+2}, v{self.vMB}, v{t}")
        for k in range(16):
            sc = t + 1 if k == 0 else (t + 2 if k == 12 else t)
            I(f"v_mul_f32 v{O+k}, v{O+k}, v{sc}")
        for f in self.cvt_store(O, self.sOO, 0, "o") + self.cvt_store(O + 8, self.sOO, 1024, "o"):
            f()

    def hook_poll_check(self):
        I = self.I
        self.poll_check(self.vFA, self.vPOLL, self.sMSK)
        v = self.vT
        I(f"v_and_b32 v{v}, 31, v0\nv_lshlrev_b32 v{v}, 2, v{v}")
        ws = f"s[{self.S_WS}:{self.S_WS+3}]"
        I(f"buffer_load_dword v{self.vZZ}, v{v}, {ws}, s{self.sZO} offen sc1", "z")
        I(f"buffer_load_dword v{self.vZZ+1}, v{v}, {ws}, s{self.sZF} offen sc1", "z")
        I(f"s_xor_b32 s{self.sZF}, s{self.sZF}, 0x80")
        I(f"buffer_load_dword v{self.vZZ+2}, v{v}, {ws}, s{self.sZF} offen sc1", "z")

    RING = 14

    def ring_addr(self, e):
        return (1, 2048 * e) if e < 8 else (0, 2048 * (e - 8))

    def final_setup(self):
        I = self.I
        v = self.vT
        I("s_lshr_b32 s86, s2, 3\ns_and_b32 s87, s2, 7\ns_mul_i32 s88, s86, 37\ns_lshr_b32 s88, s88, 8")
        I(f"s_mul_i32 s89, s88, 7\ns_sub_u32 s89, s86, s89\ns_cmp_lt_u32 s86, 28\ns_cselect_b32 s{self.sFIN}, 1, 0")
        I("s_min_u32 s88, s88, 3\ns_lshl_b32 s87, s87, 2\ns_add_u32 s87, s87, s88")
        I(f"s_lshr_b32 s90, s{self.sWV}, 1\ns_and_b32 s91, s{self.sWV}, 1")
        I(f"s_lshl_b32 s92, s88, 1\ns_add_u32 s92, s92, s89\ns_cmp_ge_u32 s92, 7\ns_cselect_b32 s93, 7, 0\ns_sub_u32 s94, s92, s93")
        if self.o.rot != 1:
            I({0: "s_mov_b32 s94, 0", 2: "s_mov_b32 s94, s89", 3: "s_lshl_b32 s94, s88, 1"}[self.o.rot])
        I(f"s_sub_u32 s{self.sWRAP}, 7, s94\ns_and_b32 s86, s89, {1 if self.o.rot in (1, 2) else 0}")
        I(f"s_mul_i32 s92, s{self.sWV}, {448*896}\ns_lshl_b32 s89, s89, 7\ns_add_u32 s{self.sFW}, s92, s89")
        I(f"s_mul_i32 s92, s94, {64*896}\ns_add_u32 s{self.sFW}, s{self.sFW}, s92")
        I(f"s_mul_i32 s92, s{self.sWV}, {112*896}\ns_add_u32 s{self.sFWO}, s92, s89\ns_mul_i32 s92, s86, {56*896}\ns_add_u32 s{self.sFWO}, s{self.sFWO}, s92")
        I(f"s_cmp_lg_u32 s86, 0\ns_mov_b32 s{self.sDWO}, {16*896}\ns_cselect_b32 s{self.sDWO}, {(-96*896) & 0xFFFFFFFF}, s{self.sDWO}")
        I(f"s_cmp_lg_u32 s86, 0\ns_movk_i32 s{self.sDHO}, 0x1000\ns_cselect_b32 s{self.sDHO}, 0xfffff000, s{self.sDHO}")
        I(f"s_cmp_lg_u32 s{self.sFIN}, 0\ns_cselect_b32 s{self.S_WD+2}, s{self.S_WD+2}, 0\ns_cselect_b32 s{self.S_WO+2}, s{self.S_WO+2}, 0")
        I(f"s_mul_i32 s{self.sFM0}, s{self.sWV}, {12*K}\ns_add_u32 s{self.sFM0}, s{self.sFM0}, {RING_LO}")
        I(f"s_lshl_b32 s{self.sFM1}, s{self.sWV}, 14\ns_add_u32 s{self.sFM1}, s{self.sFM1}, {RING_HI}")
        I(f"v_lshrrev_b32 v{v}, 3, v0\nv_and_b32 v{v+1}, 2, v{v}\nv_lshlrev_b32 v{v+1}, 1, v{v+1}\nv_and_b32 v{v+2}, 7, v0\nv_xor_b32 v{v+1}, v{v+1}, v{v+2}")
        I(f"v_mul_u32_u24 v{v}, 0x380, v{v}\nv_lshl_add_u32 v{self.vFD}, v{v+1}, 4, v{v}\nv_add_u32 v{self.vFD+1}, {8*896-1024}, v{self.vFD}")
        I(f"v_bfe_u32 v{v}, v0, 2, 2\nv_lshrrev_b32 v{v+1}, 5, v0")
        I(f"v_and_b32 v{v+2}, 1, v0\nv_lshlrev_b32 v{v+2}, 4, v{v+2}\nv_bfe_u32 v{v+3}, v0, 1, 1\nv_lshl_add_u32 v{v+2}, v{v+3}, 3, v{v+2}")
        I(f"v_bfe_u32 v{v+3}, v0, 4, 1\nv_and_b32 v{v+4}, 2, v{v}\nv_xor_b32 v{v+3}, v{v+3}, v{v+4}\ns_lshl_b32 s92, s90, 1\nv_xor_b32 v{v+3}, s92, v{v+3}")
        I(f"v_lshl_add_u32 v{v+2}, v{v+3}, 5, v{v+2}\nv_lshl_add_u32 v{v+2}, v{v}, 7, v{v+2}")
        R = self.vFR
        I(f"v_lshl_add_u32 v{v+3}, v{v+1}, 10, v{v+2}\nv_add_u32 v{R}, s{self.sFM0}, v{v+3}\nv_xor_b32 v{R+1}, 64, v{R}")
        I(f"v_add_u32 v{R+2}, s{self.sFM1}, v{v+3}\nv_xor_b32 v{R+3}, 64, v{R+2}")
        I(f"v_lshlrev_b32 v{R+4}, 9, v{v+1}")
        I(f"s_lshl_b32 s93, s87, 1\ns_add_u32 s93, s93, s91\ns_mul_i32 s92, s93, {HO_MT}\ns_mul_i32 s88, s{self.sWV}, {28*1024}")
        I(f"s_add_u32 s92, s92, {HO_OFF - HO_MT}\ns_add_u32 s88, s88, s92\ns_lshl_b32 s94, s94, 12\ns_add_u32 s{self.sFH}, s88, s94")
        I(f"s_lshl_b32 s88, s{self.sWV}, 1\ns_add_u32 s88, s88, s86\ns_lshl_b32 s88, s88, 12\ns_add_u32 s88, s88, s92\ns_add_u32 s{self.sFHO}, s88, {112*1024}")
        I(f"s_cmp_eq_u32 s91, 0\ns_cselect_b32 s92, {2*HO_MT}, 0")
        I(f"v_add_u32 v{R+5}, {HO_MT}, v{self.vL16}\nv_add_u32 v{R+6}, s92, v{self.vL16}")
        I(f"s_mul_i32 s92, s93, {32*896}\ns_add_u32 s92, s92, s89\ns_lshl_b32 s88, s90, 6\ns_add_u32 s{self.sFO}, s92, s88")
        I(f"s_lshl_b32 s92, s93, 7\ns_add_u32 s{self.sZF}, s92, {Z_OFF}")
        I(f"s_lshr_b32 s87, s87, 1\ns_lshl_b32 s87, s87, 8\ns_add_u32 s87, s87, {FL_OFF + 4096}")
        I(f"s_lshl_b32 s88, s{self.sRB}, 8\ns_add_u32 s88, s88, {FL_OFF + 4096 + 56}")
        I(f"v_lshlrev_b32 v{v}, 2, v0\nv_add_u32 v{v}, s87, v{v}\nv_mov_b32 v{v+1}, s88\nv_cmp_gt_u32 vcc, 16, v0\nv_cndmask_b32 v{self.vFA}, v{v+1}, v{v}, vcc")

    def fin_dma(self, step):
        I, b = self.I, self.b
        hi, c = self.ring_addr(step % self.RING)
        sm = self.sFM1 if hi else self.sFM0

        def first():
            if step >= self.RING:
                need = None
                for i, (_d, t) in enumerate(b.lg):
                    if t == f"rw{step - self.RING}":
                        need = len(b.lg) - 1 - i
                assert f"rw{step - self.RING}" in self.rw_done, step
                b.waitcnt(lg=need)
            I(f"s_add_u32 m0, s{sm}, {c}")
        L = [first]
        if step < 28:
            srd, so = self.S_WD, self.sFW
        else:
            srd, so = self.S_WO, self.sFWO
        if 0 < step < 28 and step % 4 == 0:
            L.append(lambda: I(f"s_cmp_eq_u32 s{self.sWRAP}, {step//4}\ns_cselect_b32 s86, {(-448*896) & 0xFFFFFFFF}, 0\ns_add_u32 s{so}, s{so}, s86\ns_add_u32 s{so}, s{so}, {16*896}"))
        elif 0 < step < 28:
            L.append(lambda: I(f"s_add_u32 s{so}, s{so}, {16*896}"))
        elif step == 32:
            L.append(lambda: I(f"s_add_u32 s{so}, s{so}, s{self.sDWO}"))
        elif step > 28:
            rows = [0, 16, 24, 40]
            d = rows[step % 4] - rows[step % 4 - 1]
            L.append(lambda: I(f"s_add_u32 s{so}, s{so}, {d*896}"))
        for e in range(2):
            L.append(lambda e=e: I(f"buffer_load_dwordx4 v{self.vFD+e}, s[{srd}:{srd+3}], s{so} offen offset:{1024*e} lds", f"w{step}"))
        return L

    rw_done = set()

    def fw(self, step, t):
        return (step * 8 if step < 28 else 224 + (step % 2) * 8) + 4 * t

    def fin_rdw(self, step):
        hi, c = self.ring_addr(step % self.RING)
        L = []
        for t in range(2):
            for e in range(2):
                r = self.fw(step, t) + 2 * e
                imm = c + (512 if step < 28 else 1024) * e

                def f(r=r, t=t, e=e, imm=imm):
                    if t == 0 and e == 0:
                        self.b.wait_tags((f"w{step}",))
                    self.I(f"ds_read_b64_tr_b16 a[{r}:{r+1}], v{self.vFR + 2*hi + t} offset:{imm}", f"rw{step}")
                    if t == 1 and e == 1:
                        self.rw_done.add(f"rw{step}")
                L.append(f)
        return L

    def fin_hload(self, step):
        I = self.I
        L = []
        R = self.vFR
        imm = 1024 * ((step if step < 28 else step - 28) % 4)
        if step == 28:
            L.append(lambda: I(f"s_mov_b32 s{self.sFH}, s{self.sFHO}"))
        elif step == 32:
            L.append(lambda: I(f"s_add_u32 s{self.sFH}, s{self.sFH}, s{self.sDHO}"))
        elif step % 4 == 0 and step > 0:
            L.append(lambda: I(f"s_cmp_eq_u32 s{self.sWRAP}, {step//4}\ns_cselect_b32 s86, {(-28*1024) & 0xFFFFFFFF}, 0\ns_add_u32 s{self.sFH}, s{self.sFH}, s86\ns_add_u32 s{self.sFH}, s{self.sFH}, 0x1000"))
        for a in range(2):
            r = self.FH + (step % self.NH) * 8 + 4 * a
            L.append(lambda r=r, a=a: I(f"buffer_load_dwordx4 v[{r}:{r+3}], v{R+5+a}, s[{self.S_WS}:{self.S_WS+3}], s{self.sFH} offen offset:{imm} sc1", f"h{step}"))
        return L

    def final(self):
        I, b, o = self.I, self.b, self.o
        R = self.vFR
        z = self.vZZ + 1
        nh = o.nh0
        A = self.FACC
        I("\n".join(f"v_sub_u32 v{R+i}, v{R+i}, v{R+4}" for i in range(4)))
        I(f"s_mov_b32 s{self.sMSK}, 0xffff\ns_movk_i32 s{self.sT0}, 0x1000")
        for n in range(36):
            gaps = [[] for _ in range(4)]
            if n in o.fs:
                self.ts()
            if 28 <= n + 1 < 36:
                rd = self.fin_rdw(n + 1)
                gaps[0] += rd[:2]
                gaps[1] += rd[2:]
            if n == o.opub:
                gaps[0].append(lambda: (b.wait_tags(("o",)), I("s_barrier"), self.flag_store(2)))
            if n == o.opoll_issue:
                gaps[1].append(lambda: self.poll_issue(self.vFA, self.vPOLL, soff=f"s{self.sT0}"))
            lim = 28 if n < o.opoll_check else 36
            if n == o.opoll_check:
                gaps[0].append(lambda: self.poll_check(self.vFA, self.vPOLL, self.sMSK, soff=f"s{self.sT0}"))
            cnt = 0
            while nh < lim and nh - self.NH < n and cnt < o.hrate:
                hl = self.fin_hload(nh)
                gaps[(2 * cnt + 1) % 4] += hl[:-1]
                gaps[(2 * cnt + 2) % 4 if cnt == 0 else 3] += hl[-1:]
                nh += 1
                cnt += 1
            if n == 28:
                for s in range(4):
                    for k in range(0, 16, 2):
                        I(f"v_pk_mul_f32 v[{A[s]+k}:{A[s]+k+1}], v[{A[s]+k}:{A[s]+k+1}], v[{z}:{z+1}] op_sel:[0,{s&1}] op_sel_hi:[1,{s&1}]")
            i = 0
            tiles = [(0, 0), (0, 1), (1, 0), (1, 1)] if n < 35 else [(0, 1), (1, 0), (1, 1), (0, 0)]
            for t, a in tiles:
                rw = self.fw(n, t)
                rh = self.FH + (n % self.NH) * 8 + 4 * a
                self.mfma(A[2 * t + a], f"a[{rw}:{rw+3}]", f"v[{rh}:{rh+3}]", n == 0)
                for f in gaps[i]:
                    f()
                i += 1
        self.ts()
        v = self.vT
        I(f"v_add_u32 v{v}, s{self.sFM0}, v{self.vL16}")
        for sg in range(1, 4):
            I(f"s_xor_b32 s86, s{self.sWV}, {sg}\ns_mul_i32 s86, s86, {12*K}\ns_add_u32 s86, s86, {RING_LO}\nv_add_u32 v{v+sg}, s86, v{self.vL16}")
        for sg in range(1, 4):
            for q in range(4):
                r = A[sg] + 4 * q
                I(f"ds_write_b128 v{v}, v[{r}:{r+3}] offset:{(sg-1)*4096 + q*1024}")
        I(f"v_and_b32 v{v+4}, 31, v0\nv_mul_u32_u24 v{v+4}, 0x380, v{v+4}\nv_lshrrev_b32 v{v+5}, 5, v0\nv_lshl_add_u32 v{v+4}, v{v+5}, 4, v{v+4}")
        b.waitcnt(lg=0)
        I("s_barrier")
        T = self.FH
        for q in range(4):
            for sg in range(1, 4):
                r = T + 16 * (sg - 1) + 4 * q
                I(f"ds_read_b128 v[{r}:{r+3}], v{v+sg} offset:{(sg-1)*4096 + q*1024}")
        a0 = A[0]
        for h in range(2):
            for k in range(8 * h, 8 * h + 8, 2):
                for sg in range(1, 4):
                    r = T + 16 * (sg - 1) + k
                    I(f"v_pk_add_f32 v[{a0+k}:{a0+k+1}], v[{a0+k}:{a0+k+1}], v[{r}:{r+1}]")
            r = a0 + 8 * h
            for i in range(4):
                I(f"v_cvt_pk_bf16_f32 v{r+i}, v{r+2*i}, v{r+2*i+1}")
            I(f"buffer_store_dwordx4 v[{r}:{r+3}], v{v+4}, s[{self.S_OUT}:{self.S_OUT+3}], s{self.sFO} offen offset:{32*h}")

    def build(self):
        I, b, o = self.I, self.b, self.o
        b.label(KNAME)
        self.prologue()
        self.ts(98)
        self.ts(99)
        self.sts_flush()
        self.ts()
        self.passA()
        self.ts()
        I(f"s_cmp_lg_u32 s{self.sISV}, 0\ns_cbranch_scc1 L_vpath")
        snap = b.snapshot()
        nts0 = self.nts
        self.passB_GU()
        gu_vm = list(b.vm)
        gu_lg = [t for _d, t in b.lg]
        I("s_branch L_join")
        b.label("L_vpath")
        b.restore(snap)
        self.nts = nts0
        self.passB_V()
        b.label("L_join")
        vt = [t for _d, t in b.vm]
        gt = [t for _d, t in gu_vm]
        after = lambda L, t: L[::-1].index(t) if t in L else 10 ** 6
        for t in set(vt) | set(gt):
            if t is not None:
                assert after(vt, t) <= after(gt, t), (t, vt, gt)
        assert [t for _d, t in b.lg] == gu_lg
        self.ts()
        self.attention()
        self.ts()
        I(f"s_cmp_lg_u32 s{self.sFIN}, 0\ns_cbranch_scc0 L_nofinal")
        snap2 = b.snapshot()
        self.final()
        if o.ts:
            b.wait_all()
            self.ts(last=True)
        I("s_endpgm")
        b.label("L_nofinal")
        b.restore(snap2)
        b.wait_tags(("o",))
        I("s_barrier")
        self.flag_store(2)
        b.label("L_exit")
        b.raw("s_endpgm")

    def text(self):
        hdr = open("gated_mix__sliding_block__glu_gated_glu__prompt.s.ref").read().split("; Override launch")[0]
        s = hdr
        s += "; Generated by my own generator script (hand-designed schedule; no compiler output).\n"
        s += "; @launch grid=(256,1,1) block=(256,1,1) lds=163840\n"
        s += '.amdgcn_target "amdgcn-amd-amdhsa--gfx950"\n.text\n'
        s += f".globl {KNAME}\n.p2align 8\n.type {KNAME},@function\n"
        s += self.b.text()
        s += f""".section .rodata,"a"
.p2align 6
.amdhsa_kernel {KNAME}
  .amdhsa_next_free_vgpr 512
  .amdhsa_next_free_sgpr 102
  .amdhsa_accum_offset 256
  .amdhsa_group_segment_fixed_size 0
  .amdhsa_kernarg_size 88
  .amdhsa_user_sgpr_count 2
  .amdhsa_user_sgpr_kernarg_segment_ptr 1
  .amdhsa_system_sgpr_workgroup_id_x 1
.end_amdhsa_kernel
"""
        return s


def main():
    ap = argparse.ArgumentParser()
    ap.add_argument("-o", default="k.s")
    ap.add_argument("--ts", action="store_true")
    ap.add_argument("--cyc", action="store_true")
    ap.add_argument("--lite", action="store_true")
    ap.add_argument("--dbgts", type=int, default=0)
    ap.add_argument("--sts", action="store_true")
    ap.add_argument("--pk", type=int, default=1)
    ap.add_argument("--pkB", type=int, default=0)
    ap.add_argument("--align", type=int, default=1)
    ap.add_argument("--coop", type=int, default=0)
    ap.add_argument("--lead", type=int, default=2)
    ap.add_argument("--rot", type=int, default=0)
    ap.add_argument("--fl0", type=int, default=11)
    ap.add_argument("--kpoll", type=int, default=21)
    ap.add_argument("--kchk", type=int, default=25)
    ap.add_argument("--epi_end", type=int, default=28)
    ap.add_argument("--nbq", type=int, default=6)
    ap.add_argument("--hpub", type=int, default=1)
    ap.add_argument("--hpoll", type=int, default=5)
    ap.add_argument("--nh0", type=int, default=8)
    ap.add_argument("--hrate", type=int, default=2)
    ap.add_argument("--opub", type=int, default=6)
    ap.add_argument("--opoll_issue", type=int, default=14)
    ap.add_argument("--opoll_check", type=int, default=18)
    for k in ("fs", "bs", "ss"):
        ap.add_argument("--" + k, default="", type=lambda t: [int(x) for x in t.split(",") if x])
    o = ap.parse_args()
    g = G(o)
    g.build()
    open(o.o, "w").write(g.text())
    print(f"code bytes {g.b.off}, hazard nops {g.b.nops_added}, stamps {g.nts}", file=sys.stderr)


if __name__ == "__main__":
    main()
```

```python
import sys, math, argparse
from asmb import Builder

KNAME = "gated_mix__sliding_block__glu_gated_glu__prompt_kernel"
K = 1024
QKV_OFF = 0
QKV_MT = 168 * 512
HO_OFF = 0x600000
HO_MT = 144 * 1024
Z_OFF = 0xF00000
FL_OFF = 0xF10000
E_OFF = 0xF20000
TS_OFF = 0xF30000
WS_SIZE = 0x1000000
SLOT = 40 * K
CHUNK = 10 * K
PB_BASE = [120 * K, 136 * K, 0, 16 * K, 48 * K, 64 * K, 80 * K]
KV_K = 0
KV_V = 24 * K
RING_LO = 48 * K
RING_HI = 96 * K
NEG = 0xF149F2CA
LOG2E = 1.4426950408889634
SPIN_MAX = 1 << 18


def f32hex(x):
    import struct
    return "0x%08x" % struct.unpack("<I", struct.pack("<f", x))[0]


class G:
    def __init__(self, opt):
        self.o = opt
        self.b = Builder(align_opt=opt.align)
        self.nts = 0

    S_X, S_A, S_B, S_C, S_WS, S_WD, S_WO, S_OUT = 8, 12, 16, 20, 24, 28, 32, 36
    pDBG, pGW = 40, 42
    sWV, sRB, sJ, sISV = 44, 45, 46, 47
    sX, sA, sB, sC = 48, 49, 50, 51
    sSAB, sM0, sM0B, sA2, sB2 = 52, 53, 54, 55, 56
    sTAG = 57
    sQ0, sQ1, sH0, sH1 = 58, 59, 60, 61
    sNL2E, sCS = 62, 63
    sMSK, sMSK2, sPAR = 64, 66, 68
    sKT = 70
    sQO, sZO, sOO = 73, 74, 75
    sFIN, sFW, sFH, sFWO, sFM0, sFM1, sFO, sZF = 76, 77, 78, 79, 80, 81, 82, 83
    sSPIN, sT0 = 84, 85
    sT1, sT2, sT3 = 3, 4, 5
    sWRAP, sFHO, sDWO, sDHO = 0, 1, 6, 7
    sTS, sEX, sTM = 95, 96, 100
    vL16 = 1
    vXD = 2
    vWD = 6
    vXR = 12
    vWR = 24
    vT = 33
    vPFW, vPFC = 46, 47
    vPOLL = 48
    vZ = 49
    vFL = 50
    vAP = 51
    ACC_A = 52
    ACC_B = 148
    WF = 224
    KF = 4
    vO = 196
    vQ = 212
    vP = 220
    vKA = 236
    vVA = 237
    vM = 240
    vMA, vMB = 242, 239
    vZZ = 243
    vFA = 246
    vFD = 247
    vFR = 249
    FH = 84
    NH = 16
    FACC = [52, 68, 212, 228]
    SREG = {8: 52, 0: 68, 7: 84, 6: 100, 5: 116, 4: 132, 3: 148, 2: 164, 1: 180}

    def I(self, t, tag=None):
        self.b.I(t, tag)

    def srd(self, s, lo, hi, size):
        self.I(f"s_mov_b32 s{s}, {lo}\ns_mov_b32 s{s+1}, {hi}\ns_mov_b32 s{s+2}, {size}\ns_mov_b32 s{s+3}, 0x20000")

    def ts(self, sreg=None, last=False):
        if not self.o.ts or (self.o.lite and not last and sreg != 98):
            return
        n = self.nts
        self.nts += 1
        if sreg is None:
            self.b.raw(f"{'s_memtime' if self.o.cyc else 's_memrealtime'} s[{self.sTM}:{self.sTM+1}]")
            self.b.raw("s_waitcnt lgkmcnt(0)")
            self.b.lg = []
            sreg = self.sTM
        self.I(f"v_mov_b32 v{self.vT}, s{sreg}\nv_mov_b32 v{self.vT+1}, 0")
        self.I(f"s_mov_b64 s[{self.sEX}:{self.sEX+1}], exec\ns_mov_b64 exec, 1")
        if self.o.dbgts:
            u = self.uid()
            keep = list(self.b.vm)
            self.I(f"s_lshl_b32 s86, s2, 2\ns_add_u32 s86, s86, s{self.sWV}\ns_cmp_eq_u32 s86, {self.o.dbgts}\ns_cbranch_scc0 L_dts{u}")
            self.I(f"global_store_dword v{self.vT+1}, v{self.vT}, s[{self.pDBG}:{self.pDBG+1}] offset:{4*(n+1)} sc1")
            self.b.label(f"L_dts{u}")
            if n == 0 or last:
                self.I(f"s_cmp_eq_u32 s{self.sWV}, 0\ns_cbranch_scc0 L_dtt{u}")
                if n == 0:
                    self.I(f"v_not_b32 v{self.vT}, v{self.vT}")
                self.I(f"global_atomic_umax v{self.vT+1}, v{self.vT}, s[{self.pDBG}:{self.pDBG+1}] offset:{56 if n == 0 else 60} sc1")
                self.b.label(f"L_dtt{u}")
            self.b.vm = keep
        else:
            self.I(f"buffer_store_dword v{self.vT}, v{self.vT+1}, s[{self.S_WS}:{self.S_WS+3}], s{self.sTS} offen offset:{4*n}")
        self.I(f"s_mov_b64 exec, s[{self.sEX}:{self.sEX+1}]")

    soft = 0

    def sts(self):
        if not self.o.sts:
            return
        self.b.raw(f"{'s_memtime' if self.o.cyc else 's_memrealtime'} s[{self.sTM}:{self.sTM+1}]")
        self.b.raw("s_waitcnt lgkmcnt(0)")
        self.I(f"v_mov_b32 v{196+self.soft}, s{self.sTM}")
        self.soft += 1

    def sts_flush(self):
        for k in range(self.soft):
            self.I(f"v_readfirstlane_b32 s{self.sTM}, v{196+k}")
            self.ts(self.sTM)

    def lds(self, base, n, idx, const):
        return f"v{base + (const >> 16) * n + idx}", const & 0xFFFF

    def xf(self, M, n):
        r = (M * 28 + n) * 4
        return f"a[{r}:{r+3}]"

    def wf(self, bufset, t):
        r = self.WF + bufset * 12 + t * 4
        return r

    def acc(self, base, t, M):
        r = base + (t * 2 + M) * 16
        return r

    def prologue(self):
        I = self.I
        b = self.b
        if self.o.ts or self.o.thr:
            b.raw(f"{'s_memtime' if self.o.cyc else 's_memrealtime'} s[98:99]")
        I("s_cmp_ge_u32 s2, 0x100\ns_cbranch_scc1 L_exit")
        b.raw("s_load_dwordx16 s[64:79], s[0:1], 0")
        b.raw("s_load_dwordx4 s[80:83], s[0:1], 64")
        b.raw(f"s_load_dwordx2 s[{self.S_WS}:{self.S_WS+1}], s[0:1], 80")
        I("s_getpc_b64 s[4:5]")
        b.label("L_pc")
        I("s_and_b32 s3, s2, 0xf8\nv_and_b32 v33, 7, v0\nv_add_lshl_u32 v33, v33, s3, 7\nv_min_u32 v33, L_exit-L_pc, v33")
        I("global_load_dword v45, v33, s[4:5]", tag="pf")
        b.vm[-1] = (set(), "pf")
        I("v_lshrrev_b32 v35, 6, v0\nv_and_b32 v0, 63, v0")
        I(f"v_readfirstlane_b32 s{self.sWV}, v35")
        I("s_and_b32 s3, s2, 7\ns_lshr_b32 s6, s2, 3")
        I(f"s_and_b32 s7, s3, 1\ns_lshl_b32 s7, s7, 3\ns_and_b32 s4, s6, 7\ns_add_u32 s{self.sRB}, s4, s7")
        I(f"s_lshr_b32 s7, s3, 1\ns_lshl_b32 s7, s7, 2\ns_lshr_b32 s5, s6, 3\ns_add_u32 s{self.sJ}, s5, s7")
        I(f"v_lshlrev_b32 v{self.vL16}, 4, v0")
        I("v_lshrrev_b32 v35, 3, v0\nv_and_b32 v36, 7, v0\nv_lshrrev_b32 v37, 4, v0")
        I("v_mul_u32_u24 v38, 0x380, v35")
        I("v_xor_b32 v39, v36, v37\nv_lshl_add_u32 v2, v39, 4, v38")
        I(f"v_xor_b32 v3, 64, v2\nv_add_u32 v3, {8*896-1024}, v3")
        I(f"v_add_u32 v4, {16*896-2048}, v2\nv_add_u32 v5, {16*896-2048}, v3")
        I("v_and_b32 v39, 2, v35\nv_lshlrev_b32 v39, 1, v39\nv_xor_b32 v39, v36, v39\nv_lshlrev_b32 v39, 4, v39")
        I(f"s_cmp_ge_u32 s{self.sJ}, 14\ns_cselect_b32 s{self.sISV}, 1, 0")
        I("s_movk_i32 s7, 0xe00\ns_movk_i32 s86, 0xa80\ns_cselect_b32 s7, s86, s7")
        I("v_mul_u32_u24 v40, 0xa80, v35\nv_add_u32 v10, v40, v39")
        I(f"v_add_u32 v11, {8*2688-1024}, v10")
        I("v_mul_u32_u24 v40, s7, v35\nv_add_u32 v6, v40, v39")
        I("s_lshl_b32 s86, s7, 3\ns_sub_u32 s86, s86, 0x400\nv_add_u32 v7, s86, v6")
        I("v_xor_b32 v8, 32, v6\nv_xor_b32 v9, 32, v7")
        I(f"s_lshl_b32 s{self.sSAB}, s7, 6")
        I("v_mul_u32_u24 v41, 0x380, v36\nv_lshl_add_u32 v41, v35, 7, v41")
        I(f"s_lshl_b32 s86, s4, 3\ns_lshl_b32 s87, s{self.sWV}, 1\ns_add_u32 s86, s86, s87")
        I("v_lshrrev_b32 v42, 1, v0\nv_lshlrev_b32 v42, 6, v42\nv_and_b32 v43, 1, v0\nv_add3_u32 v42, v42, v43, s86")
        I(f"v_mul_lo_u32 v{self.vPFW}, v42, s7\nv_mul_u32_u24 v{self.vPFC}, 0xa80, v42")
        I(f"s_lshl_b32 s86, s{self.sRB}, 2\ns_add_u32 s87, s86, s{self.sWV}\ns_mul_i32 s{self.sX}, s87, {32*896}")
        I(f"s_add_u32 s86, s86, s5\ns_lshl_b32 s86, s86, 2\ns_add_u32 s86, s86, s{self.sWV}\ns_mul_i32 s6, s86, {8*896}")
        I(f"s_lshl_b32 s86, s{self.sWV}, 4\ns_mul_i32 s87, s86, s7\ns_mul_i32 s88, s86, 0xa80")
        I(f"s_lshl_b32 s89, s{self.sJ}, 8\ns_lshl_b32 s90, s{self.sJ}, 7")
        I(f"s_lshl_b32 s91, s{self.sJ}, 9\ns_sub_u32 s91, s91, {42*128}")
        I(f"s_add_u32 s92, s91, 0x80\ns_add_u32 s93, s91, 0x100\ns_add_u32 s94, s89, 0x80")
        I(f"s_cmp_lg_u32 s{self.sISV}, 0")
        I(f"s_cselect_b32 s91, s91, s89\ns_cselect_b32 s92, s92, s89\ns_cselect_b32 s93, s93, s90")
        I(f"s_cselect_b32 s90, {17*128}, s94")
        I(f"s_add_u32 s{self.sA}, s91, s87\ns_add_u32 s{self.sB}, s92, s87\ns_add_u32 s{self.sC}, s93, s88")
        I(f"s_add_u32 s{self.sA2}, s90, s87\ns_add_u32 s{self.sB2}, s94, s87")
        I(f"s_mul_i32 s{self.sM0}, s{self.sWV}, {CHUNK}\ns_lshl_b32 s{self.sM0B}, s{self.sWV}, 12")
        WQ, WG_ = 448 * 2688, 448 * 3584
        I(f"s_mov_b32 s{self.S_X+2}, {2048*896}\ns_mov_b32 s{self.S_X+3}, 0x20000")
        I(f"s_cmp_lg_u32 s{self.sISV}, 0")
        for s_ in (self.S_A, self.S_B):
            I(f"s_mov_b32 s{s_+2}, {WG_}\ns_cselect_b32 s{s_+2}, {WQ}, s{s_+2}\ns_mov_b32 s{s_+3}, 0x20000")
        I(f"s_mov_b32 s{self.S_C+2}, {WQ}\ns_mov_b32 s{self.S_C+3}, 0x20000")
        b.raw("s_waitcnt lgkmcnt(0)")
        if self.o.ts and not self.o.lite:
            b.raw(f"{'s_memtime' if self.o.cyc else 's_memrealtime'} s[96:97]")
            b.raw("s_waitcnt lgkmcnt(0)")
            I("s_mov_b32 s99, s96")
        I(f"s_mov_b32 s{self.S_X}, s64\ns_mov_b32 s{self.S_X+1}, s65")
        for s_, lo in ((self.S_A, 72), (self.S_B, 74)):
            I(f"s_cselect_b32 s{s_}, s66, s{lo}\ns_cselect_b32 s{s_+1}, s67, s{lo+1}")
        I(f"s_mov_b32 s{self.S_C}, s66\ns_mov_b32 s{self.S_C+1}, s67")
        srd = lambda s_: f"s[{s_}:{s_+3}]"
        if self.o.coop:
            self.pf(41, self.S_X, "s6")
            self.pf(self.vPFW, self.S_A, "s91")
            self.pf(self.vPFW, self.S_B, "s92")
            self.pf(self.vPFC, self.S_C, "s93")
        self.sts()
        for ins in self.dma_stageA(0):
            ins()
        self.sts()
        I(f"s_mov_b32 s{self.S_WS+2}, {WS_SIZE}\ns_mov_b32 s{self.S_WS+3}, 0x20000")
        I(f"v_mov_b32 v{self.vZ}, 0\ns_mov_b32 s86, {E_OFF}")
        I(f"buffer_load_dword v{self.vPOLL}, v{self.vZ}, s[{self.S_WS}:{self.S_WS+3}], s86 offen sc1", tag="E")
        for st in range(1, self.o.lead):
            for ins in self.dma_stageA(st):
                ins()
        self.sts()
        self.srd(self.S_WD, "s76", "s77", 1792 * 896)
        self.srd(self.S_WO, "s68", "s69", 448 * 896)
        self.srd(self.S_OUT, "s80", "s81", 2048 * 896)
        I(f"s_mov_b64 s[{self.pDBG}:{self.pDBG+1}], s[82:83]\ns_mov_b64 s[{self.pGW}:{self.pGW+1}], s[78:79]")
        if self.o.ts:
            I(f"s_lshl_b32 s86, s2, 2\ns_add_u32 s86, s86, s{self.sWV}\ns_lshl_b32 s86, s86, 7\ns_add_u32 s{self.sTS}, s86, {TS_OFF}")
        I(f"s_lshr_b32 s86, s{self.sWV}, 1\ns_and_b32 s87, s{self.sWV}, 1")
        I("v_and_b32 v35, 31, v0\nv_lshrrev_b32 v36, 5, v0")
        I("v_bfe_u32 v37, v0, 1, 3\nv_xor_b32 v37, v37, v36")
        I(f"s_mul_i32 s88, s86, {2*CHUNK}\nv_lshlrev_b32 v38, 7, v35\nv_add_u32 v38, s88, v38")
        for ks in range(4):
            I(f"v_xor_b32 v39, {2*ks}, v37\nv_lshl_add_u32 v{self.vXR+ks}, v39, 4, v38")
        I("v_bfe_u32 v37, v0, 2, 2\nv_lshl_add_u32 v38, v36, 3, v37\nv_lshlrev_b32 v38, 7, v38")
        I("v_and_b32 v39, 1, v0\nv_lshlrev_b32 v39, 4, v39\nv_bfe_u32 v40, v0, 1, 1\nv_lshl_add_u32 v39, v40, 3, v39")
        I("v_add_u32 v38, v38, v39")
        I("v_bfe_u32 v39, v0, 4, 1\nv_and_b32 v40, 2, v37\nv_xor_b32 v40, v40, v39")
        I("s_lshl_b32 s88, s87, 1")
        I("v_xor_b32 v41, s88, v40")
        I(f"v_lshl_add_u32 v42, v41, 5, v38")
        I(f"v_add_u32 v{self.vWR}, 0x1000, v42")
        I(f"v_lshl_add_u32 v{self.vWR+1}, v39, 11, v42")
        I(f"v_xor_b32 v{self.vWR+2}, 32, v{self.vWR+1}")
        for st in (1, 2):
            for i in range(4):
                I(f"v_add_u32 v{self.vXR+4*st+i}, {65536*st}, v{self.vXR+i}")
            for i in range(3):
                I(f"v_add_u32 v{self.vWR+3*st+i}, {65536*st}, v{self.vWR+i}")
        I(f"s_lshl_b32 s88, s{self.sRB}, 2\ns_lshl_b32 s89, s86, 1\ns_add_u32 s88, s88, s89")
        I(f"s_mul_i32 s89, s88, {QKV_MT}\ns_lshl_b32 s90, s87, 11\ns_add_u32 s89, s89, s90")
        I(f"s_lshl_b32 s90, s{self.sJ}, 12\ns_lshl_b32 s91, s{self.sJ}, 14\ns_sub_u32 s91, s91, {40*4096}")
        I(f"s_cmp_lg_u32 s{self.sISV}, 0\ns_cselect_b32 s90, s91, s90\ns_add_u32 s{self.sQ0}, s89, s90")
        I(f"s_add_u32 s{self.sQ1}, s{self.sQ0}, {QKV_MT}")
        I(f"s_mul_i32 s89, s88, {HO_MT}\ns_lshl_b32 s90, s{self.sJ}, 13\ns_lshl_b32 s91, s87, 11\ns_add_u32 s89, s89, s90")
        I(f"s_add_u32 s89, s89, s91\ns_add_u32 s{self.sH0}, s89, {HO_OFF}\ns_add_u32 s{self.sH1}, s{self.sH0}, {HO_MT}")
        I(f"s_mov_b32 s{self.sNL2E}, {f32hex(-LOG2E)}\ns_mov_b32 s{self.sCS}, {f32hex(LOG2E / math.sqrt(28.0))}")
        I(f"s_lshl_b32 s88, s{self.sRB}, 8\ns_lshl_b32 s89, s{self.sJ}, 2\ns_add_u32 s88, s88, s89\ns_add_u32 s88, s88, {FL_OFF}")
        I(f"v_mov_b32 v{self.vFL}, s88")
        self.sts()
        self.setup = self.record(lambda: (self.poll_setup_att(), self.att_setup(), self.final_setup()))

    def record(self, fn):
        L = []
        real = self.I
        self.I = lambda t, tag=None: L.append(lambda: real(t, tag))
        fn()
        del self.I
        return L

    def dma_stageA(self, st):
        I = self.I
        base = (st % 4) * SLOT
        tag = f"st{st}"
        L = []
        L.append(lambda: I(f"s_add_u32 m0, s{self.sM0}, {base}"))
        for bq in range(4):
            L.append(lambda bq=bq: I(f"buffer_load_dwordx4 v{self.vXD+bq}, s[{self.S_X}:{self.S_X+3}], s{self.sX} offen offset:{1024*bq} lds", tag))
        prev = lambda: I(f"s_add_u32 s{self.sX}, s{self.sX}, 0x80")
        for seg, (srd, so, stp) in enumerate(((self.S_A, self.sA, self.sSAB), (self.S_B, self.sB, self.sSAB), (self.S_C, self.sC, None))):
            L.append(lambda seg=seg: I(f"s_add_u32 m0, s{self.sM0}, {base + 4096 + 2048*seg}"))
            L.append(prev)
            for e in range(2):
                L.append(lambda seg=seg, e=e, srd=srd, so=so: I(f"buffer_load_dwordx4 v{self.vWD+2*seg+e}, s[{srd}:{srd+3}], s{so} offen offset:{1024*e} lds", tag))
            prev = lambda so=so, stp=stp: I(f"s_add_u32 s{so}, s{so}, " + (f"s{stp}" if stp else str(64*2688)))
        L.append(prev)
        return L

    def dma_stageB(self, t):
        I = self.I
        base = PB_BASE[t]
        tag = f"st{7+t}"
        L = []
        prev = None
        if t == 0:
            prev = lambda: I(f"s_cmp_lg_u32 s{self.sISV}, 0\ns_cselect_b32 s{self.S_B+2}, 0, s{self.S_B+2}")
        for seg, (srd, so) in enumerate(((self.S_A, self.sA2), (self.S_B, self.sB2))):
            L.append(lambda seg=seg: I(f"s_add_u32 m0, s{self.sM0B}, {base + 2048*seg}"))
            if prev:
                L.append(prev)
            for e in range(2):
                L.append(lambda seg=seg, e=e, srd=srd, so=so: I(f"buffer_load_dwordx4 v{self.vWD+2*seg+e}, s[{srd}:{srd+3}], s{so} offen offset:{1024*e} lds", tag))
            prev = lambda so=so: I(f"s_add_u32 s{so}, s{so}, s{self.sSAB}")
        L.append(prev)
        return L

    def rd_w(self, bufset, slot_t, addr_t, const):
        out = []
        r = self.wf(bufset, slot_t)
        for e in range(2):
            v, imm = self.lds(self.vWR, 3, addr_t, const + 512 * e)
            out.append(lambda r=r, e=e, v=v, imm=imm: self.I(f"ds_read_b64_tr_b16 a[{r+2*e}:{r+2*e+1}], {v} offset:{imm}"))
        return out

    def rd_x(self, M, n):
        st, ks = divmod(n, 4)
        v, imm = self.lds(self.vXR, 4, ks, (st % 4) * SLOT + M * CHUNK)
        return [lambda: self.I(f"ds_read_b128 {self.xf(M, n)}, {v} offset:{imm}")]

    def readsA(self, n):
        st, ks = divmod(n, 4)
        c = (st % 4) * SLOT + ks * CHUNK + 4096
        bs = n % 2
        return [self.rd_w(bs, 0, 0, c), self.rd_x(0, n) + self.rd_x(1, n), self.rd_w(bs, 1, 1, c), self.rd_w(bs, 2, 2, c)]

    def readsB(self, n):
        t, ks = divmod(n, 4)
        c = PB_BASE[t] + ks * 4096
        bs = n % 2
        return [self.rd_w(bs, 1, 1, c), self.rd_w(bs, 2, 2, c)]

    def mfma(self, d, a, bb, first):
        c = "0" if first else f"v[{d}:{d+15}]"
        self.I(f"v_mfma_f32_32x32x16_bf16 v[{d}:{d+15}], {a}, {bb}, {c}")

    def dbg_load(self, tag=None):
        self.I(f"global_load_dword v{self.vPOLL}, v{self.vZ}, s[{self.pDBG}:{self.pDBG+1}] sc1", tag)

    def pf(self, v, srd, so):
        self.I(f"buffer_load_dword v{self.vT+12}, v{v}, s[{srd}:{srd+3}], {so} offen", "pf")
        self.b.vm[-1] = (set(), "pf")

    def passA(self):
        I, b, o = self.I, self.b, self.o
        b.wait_tags(("st0",))
        self.ts()
        I(f"s_or_b32 s86, s2, s{self.sWV}\ns_cmp_eq_u32 s86, 0\ns_cbranch_scc0 L_notag")
        snap_vm = list(b.vm)
        I(f"v_add_u32 v34, 2, v{self.vPOLL}\nv_or_b32 v34, 1, v34\ns_mov_b32 s86, {E_OFF}")
        if o.thr:
            I("v_mov_b32 v34, s98\nv_or_b32 v34, 1, v34")
        I(f"s_mov_b64 exec, 1")
        I(f"buffer_store_dword v34, v{self.vZ}, s[{self.S_WS}:{self.S_WS+3}], s86 offen sc1")
        I(f"global_store_dword v{self.vZ}, v34, s[{self.pDBG}:{self.pDBG+1}] sc1")
        I(f"s_mov_b64 exec, -1")
        b.vm = [(set(), t) if t == "E" else (d, t) for d, t in snap_vm]
        b.label("L_notag")
        I("s_barrier")
        for grp in self.readsA(0):
            for f in grp:
                f()
        def stream(v):
            if v <= 6:
                return self.dma_stageA(v)
            if v == 7:
                return self.dma_stageB(0) + self.dma_stageB(1)
            if v == 8:
                return self.dma_stageB(2) + self.dma_stageB(3)
            return []
        pend = []
        nsetup = 0
        for n in range(28):
            st, ks = divmod(n, 4)
            bs = n % 2
            nxt = self.readsA(n + 1) if n < 27 else self.readsB(0)
            gaps = [[] for _ in range(6)]
            if ks == 0:
                pend += stream(st + o.lead)
            if ks == 3:
                def bar(st=st):
                    tags = (f"st{st+1}",) if st < 6 else ("st7", "st8")
                    b.wait_tags(tags, lg_all=True)
                    I("s_barrier")
                gaps[0].append(bar)
            extra = []
            if n == 13:
                extra.append(lambda: self.dbg_load("tagrd"))
            for i, grp in enumerate(nxt):
                gaps[i] += grp
            left = 4 - ks
            quota = -(-len(pend) // left)
            for gi, cap in ((2, 1), (3, 1), (4, 2), (5, 3)):
                for _ in range(cap):
                    if pend and quota > 0:
                        gaps[gi].append(pend.pop(0))
                        quota -= 1
            gaps[5] += extra
            cnt = min(math.ceil(len(self.setup) * (n + 1) / 26), len(self.setup)) - nsetup
            for k in range(cnt):
                gaps[min(5, 2 + (k * 4 + 2) // cnt)].append(self.setup[nsetup])
                nsetup += 1
            i = 0
            for t in range(3):
                for M in range(2):
                    r = self.wf(bs, t)
                    self.mfma(self.acc(self.ACC_A, t, M), f"a[{r}:{r+3}]", self.xf(M, n), n == 0)
                    for f in gaps[i]:
                        f()
                    i += 1
        assert not pend
        rest = []
        for v in range(7 + o.lead, 9):
            rest += stream(v)
        self.pend = rest + self.dma_stageB(4) + self.dma_stageB(5) + self.dma_stageB(6)

    def get_tag(self):
        I, b = self.I, self.b
        u = self.uid()
        I(f"v_readfirstlane_b32 s{self.sTAG}, v{self.vPOLL}")
        I(f"s_cmp_lg_u32 s{self.sTAG}, 0\ns_cbranch_scc1 L_gottag{u}")
        keep_vm, keep_lg = list(b.vm), list(b.lg)
        I(f"s_mov_b32 s{self.sSPIN}, 0")
        b.label(f"L_tagspin{u}")
        self.dbg_load()
        I(f"s_add_u32 s{self.sSPIN}, s{self.sSPIN}, 1\ns_cmp_gt_u32 s{self.sSPIN}, {SPIN_MAX}\ns_cbranch_scc1 L_exit")
        I(f"v_readfirstlane_b32 s{self.sTAG}, v{self.vPOLL}")
        I(f"s_cmp_lg_u32 s{self.sTAG}, 0\ns_cbranch_scc0 L_tagspin{u}")
        b.vm, b.lg = keep_vm, keep_lg
        b.label(f"L_gottag{u}")

    def cvt_store(self, r, so, imm, tag, voff=None):
        L = []
        for i in range(4):
            L.append(lambda i=i: self.I(f"v_cvt_pk_bf16_f32 v{r+i}, v{r+2*i}, v{r+2*i+1}"))
        v = self.vL16 if voff is None else voff
        L.append(lambda: self.I(f"buffer_store_dwordx4 v[{r}:{r+3}], v{v}, s[{self.S_WS}:{self.S_WS+3}], s{so} offen offset:{imm} sc1", tag))
        return L

    def sigmoid_tile(self, r, so, imm, tag, pk):
        I = self.I
        L = []
        if pk:
            for i in range(0, 8, 2):
                L.append(lambda i=i: I(f"v_pk_mul_f32 v[{r+i}:{r+i+1}], v[{r+i}:{r+i+1}], s[{self.sNL2E}:{self.sNL2E+1}] op_sel_hi:[1,0]"))
        else:
            for i in range(8):
                L.append(lambda i=i: I(f"v_mul_f32 v{r+i}, s{self.sNL2E}, v{r+i}"))
        for i in range(8):
            L.append(lambda i=i: I(f"v_exp_f32 v{r+i}, v{r+i}"))
        if pk:
            for i in range(0, 8, 2):
                L.append(lambda i=i: I(f"v_pk_add_f32 v[{r+i}:{r+i+1}], v[{r+i}:{r+i+1}], 1.0 op_sel_hi:[1,0]"))
        else:
            for i in range(8):
                L.append(lambda i=i: I(f"v_add_f32 v{r+i}, 1.0, v{r+i}"))
        for i in range(8):
            L.append(lambda i=i: I(f"v_rcp_f32 v{r+i}, v{r+i}"))
        if pk:
            for i in range(0, 8, 2):
                L.append(lambda i=i: I(f"v_pk_mul_f32 v[{r+i}:{r+i+1}], v[{r+i}:{r+i+1}], v[{r+8+i}:{r+9+i}]"))
        else:
            for i in range(8):
                L.append(lambda i=i: I(f"v_mul_f32 v{r+i}, v{r+i}, v{r+8+i}"))
        return L + self.cvt_store(r, so, imm, tag)

    def flag_store(self, phase):
        I = self.I
        lab = f"L_nofl{self.uid()}"
        I(f"s_cmp_eq_u32 s{self.sWV}, 0\ns_cbranch_scc0 {lab}")
        keep = list(self.b.vm)
        I(f"v_mov_b32 v{self.vT}, s{self.sTAG}\ns_mov_b64 exec, 1")
        I(f"s_movk_i32 s86, {4096*phase}")
        I(f"buffer_store_dword v{self.vT}, v{self.vFL}, s[{self.S_WS}:{self.S_WS+3}], s86 offen sc1")
        I("s_mov_b64 exec, -1")
        self.b.vm = keep
        self.b.label(lab)

    _uid = 0

    def uid(self):
        self._uid += 1
        return self._uid

    @staticmethod
    def weave(main, side, start=0.0, end=1.0):
        out = []
        n = len(main)
        a, e = int(start * n), max(int(end * n), int(start * n) + 1)
        k = 0
        for i, f in enumerate(main):
            out.append(f)
            if i >= a:
                want = min(len(side), math.ceil(len(side) * (i - a + 1) / (e - a)))
                while k < want:
                    out.append(side[k]); k += 1
        out += side[k:]
        return out

    def passB_GU(self):
        I, b, o = self.I, self.b, self.o
        pend = list(self.pend)
        epi = []
        for M, so in ((0, self.sQ0), (1, self.sQ1)):
            r = self.acc(self.ACC_A, 0, M)
            epi += self.cvt_store(r, so, 0, "qk") + self.cvt_store(r + 8, so, 1024, "qk")
        nqk = len(epi)
        for t in (1, 2):
            for M, so in ((0, self.sH0), (1, self.sH1)):
                epi += self.sigmoid_tile(self.acc(self.ACC_A, t, M), so, 1024 * (t - 1), "h", o.pkB)
        epi += self.att_masks()
        total = len(epi)
        first_gap = 3
        ngaps = 4 * 28
        done = 0
        g = 0
        for n in range(28):
            bs = n % 2
            gaps = [[] for _ in range(4)]
            if n in o.bs:
                self.ts()
            if n == 7:
                gaps[0].append(lambda: (b.wait_tags(("st9", "st10")), I("s_barrier")))
            if n == o.fl0 and n != 15:
                gaps[0].append(lambda: (b.wait_tags(("qk",)), I("s_barrier"), self.flag_store(0)))
            if n == 15:
                def bar():
                    b.wait_tags(("st11", "st12", "st13", "qk"), lg_all=True)
                    I("s_barrier")
                    if o.fl0 == 15:
                        self.flag_store(0)
                gaps[0].append(bar)
            if n < 27:
                nx = self.readsB(n + 1)
                gaps[0] += nx[0]
                gaps[1] += nx[1]
            if n == 1:
                gaps[3].append(self.get_tag)
            if o.fl0 + 1 <= n < o.fl0 + 1 + self.NB1:
                pend += self.fin_dma(n - o.fl0 - 1)
            if n == o.kchk:
                pend += [lambda: self.poll_check(self.vAP, self.vPOLL, self.sMSK)] + self.record(self.att_loads_K) + [lambda: self.poll_issue(self.vAP, self.vPOLL)]
            for gi in (2, 3):
                for _ in range(2 if n < o.kchk else 4):
                    if pend:
                        gaps[gi].append(pend.pop(0))
            if n == o.kpoll:
                gaps[3].append(lambda: self.poll_issue(self.vAP, self.vPOLL))
            i = 0
            for t in range(2):
                for M in range(2):
                    r = self.wf(bs, t + 1)
                    self.mfma(self.acc(self.ACC_B, t, M), f"a[{r}:{r+3}]", self.xf(M, n), n == 0)
                    for f in gaps[i]:
                        f()
                    g += 1
                    if g > first_gap:
                        want = min(total, math.ceil(total * (g - first_gap) / (4 * o.epi_end - first_gap)))
                        want = max(want, min(nqk, 3 * (g - first_gap)))
                        while done < want:
                            epi[done]()
                            done += 1
                    i += 1
        assert done == total and not pend
        self.ts()
        I(f"s_add_u32 s{self.sH0}, s{self.sH0}, 0x1000\ns_add_u32 s{self.sH1}, s{self.sH1}, 0x1000")
        T = []
        for t in (0, 1):
            for M, so in ((0, self.sH0), (1, self.sH1)):
                T.append(self.sigmoid_tile(self.acc(self.ACC_B, t, M), so, 1024 * t, "h", o.pk))
        self.postB(T)

    NB1 = 8

    def postB(self, T):
        I, b, o = self.I, self.b, self.o
        KF = self.KF
        rd = [f for s_ in range(self.NB1) for f in self.fin_rdw(s_)]
        for f in self.weave(T[0], rd[:16], 0.1, 1.0):
            f()
        self.poll_check(self.vAP, self.vPOLL, self.sMSK2)
        self.att_loads_V()
        for f in self.weave(T[1], rd[16:], 0.0, 1.0):
            f()
        self.ts()
        b.wait_tags(("K",))
        I(f"ds_write_b64 v{self.vP+6}, v[{self.vP}:{self.vP+1}]")
        I(f"ds_write_b64 v{self.vP+7}, v[{self.vP+2}:{self.vP+3}] offset:4096")
        q = self.vQ
        I(f"v_bfi_b32 v{q}, v{self.vMA}, v{q}, v{self.vP+4}\nv_and_b32 v{q+1}, v{self.vMA}, v{q+1}")
        I(f"v_bfi_b32 v{q+6}, v{self.vMB}, v{q+6}, v{self.vP+4}\nv_and_b32 v{q+7}, v{self.vMB}, v{q+7}")
        b.waitcnt(lg=0)
        I("s_barrier")
        self.ts()
        order = [8, 0, 7, 6, 5, 4, 3, 2, 1]

        def rdk(n):
            for s_ in range(2):
                r = KF + (n % 3) * 8 + 4 * s_
                I(f"ds_read_b128 v[{r}:{r+3}], v{self.vKA} offset:{2048*order[n] + 1024*s_}")
        rdk(0)
        rdk(1)
        m = self.vM
        mx = []

        def maxops(n):
            s0 = self.S(order[n])
            return [(lambda k=k: I(f"v_max_f32 v{m}, v{s0}, v{s0+1}" if (n == 0 and k == 0) else f"v_max3_f32 v{m}, v{m}, v{s0+k}, v{s0+k+1}")) for k in range(0, 16, 2)]
        vs = list(T[2]) + list(T[3][:-1])
        KH = 11
        bg = [f for s_ in range(self.NB1, self.NB1 + o.nbq) for f in self.fin_dma(s_)]
        self.bg_rest = self.NB1 + o.nbq
        for k in range(18):
            n, half = divmod(k, 2)
            d = self.S(order[n])
            r = KF + (n % 3) * 8 + 4 * half
            c = f"v[{d}:{d+15}]" if (half or order[n] in (0, 8)) else "0"
            if order[n] == 1:
                assert not vs
            I(f"v_mfma_f32_32x32x16_bf16 v[{d}:{d+15}], v[{r}:{r+3}], v[{q+4*half}:{q+4*half+3}], {c}")
            if half == 0 and n + 2 < 9:
                rdk(n + 2)
            if half == 1 and n >= 1:
                mx += maxops(n - 1)
            nv = math.ceil(len(vs) / (KH - k + 1)) if k <= KH else 0
            for _ in range(nv):
                vs.pop(0)()
            if k == KH:
                T[3][-1]()
            for _ in range(math.ceil(len(bg) / (18 - k))):
                bg.pop(0)()
            for _ in range(max(0, 5 - nv) if k < 17 else len(mx)):
                if mx:
                    mx.pop(0)()
        self.mx_rest = maxops(8)

    def passB_V(self):
        I, b, o = self.I, self.b, self.o
        for f in list(self.pend):
            f()
        self.srd(self.S_C, f"s{self.pGW}", f"s{self.pGW+1}", 896)
        I(f"s_add_u32 m0, s{self.sM0B}, {PB_BASE[0] + 2048}")
        I(f"buffer_load_dwordx4 v{self.vL16}, s[{self.S_C}:{self.S_C+3}], 0 offen lds", "gw")
        I(f"s_sub_u32 s{self.sT1}, s{self.sQ0}, 0x2000\ns_sub_u32 s{self.sT2}, s{self.sQ1}, 0x2000")
        I(f"v_add_u32 v{self.vT+2}, 0x1000, v{self.vL16}")
        self.get_tag()
        epi = []
        for M, so in ((0, self.sQ0), (1, self.sQ1)):
            r = self.acc(self.ACC_A, 0, M)
            epi += self.cvt_store(r, so, 0, "qk") + self.cvt_store(r + 8, so, 1024, "qk")
        for t in (1, 2):
            for M, so in ((0, self.sT1), (1, self.sT2)):
                r = self.acc(self.ACC_A, t, M)
                epi += self.cvt_store(r, so, 1024 * (t - 1), "qk") + self.cvt_store(r + 8, so, 1024 * (t - 1), "qk", voff=self.vT + 2)
        I(f"s_and_b32 s88, s{self.sWV}, 1\ns_sub_u32 s89, s{self.sJ}, 14\ns_xor_b32 s88, s88, s89\ns_lshl_b32 s88, s88, 6")
        for st in range(3):
            I(f"v_xor_b32 v{self.vWR+3*st}, s88, v{self.vWR+3*st}\nv_subrev_u32 v{self.vWR+3*st}, 0x1000, v{self.vWR+3*st}")
        I(f"s_lshl_b32 s88, s{self.sRB}, 2\ns_add_u32 s88, s88, s{self.sWV}")
        I(f"s_mul_i32 s88, s88, {QKV_MT}\ns_lshl_b32 s89, s89, 11\ns_add_u32 s88, s88, s89")
        I(f"s_add_u32 s{self.sT3}, s88, {8*17*512}")
        I(f"v_lshrrev_b32 v{self.vT+3}, 5, v0\nv_lshlrev_b32 v{self.vT+3}, 4, v{self.vT+3}")
        I(f"s_add_u32 s88, s{self.sM0B}, {PB_BASE[0] + 2048}\nv_add_u32 v{self.vT+3}, s88, v{self.vT+3}")
        I(f"v_and_b32 v{self.vT+4}, 31, v0\nv_lshlrev_b32 v{self.vT+4}, 2, v{self.vT+4}")
        D = self.ACC_B
        I(f"s_bitcmp1_b32 s{self.sWV}, 0\ns_cbranch_scc1 L_v_wc1")
        snap = b.snapshot()
        for wc in range(2):
            if wc == 1:
                b.label("L_v_wc1")
                b.restore(snap)
            e = list(epi)

            def rdv(n):
                t, ks = divmod(n, 4)
                return self.rd_w(n % 2, 0, 0, PB_BASE[t] + ks * 4096)
            for f in rdv(0):
                f()
            for n in range(28):
                if n == 7:
                    b.wait_tags(("st9", "st10"))
                    I("s_barrier")
                if n == 15:
                    b.wait_tags(("st11", "st12", "st13"))
                    I("s_barrier")
                if n < 27:
                    for f in rdv(n + 1):
                        f()
                r = self.wf(n % 2, 0)
                self.mfma(D, f"a[{r}:{r+3}]", self.xf(wc, n), n == 0)
                for _ in range(3):
                    if e:
                        e.pop(0)()
            assert not e
            for f in self.cvt_store(D, self.sT3, 0, "qk") + self.cvt_store(D + 8, self.sT3, 1024, "qk"):
                f()
            b.wait_tags(("gw",))
            I(f"ds_read_b128 a[{self.WF}:{self.WF+3}], v{self.vT+3}")
            mk = self.att_masks()
            for n in range(28):
                if n < 27:
                    r = self.WF + 4 * ((n + 1) % 3)
                    I(f"ds_read_b128 a[{r}:{r+3}], v{self.vT+3} offset:{32*(n+1)}")
                r = self.WF + 4 * (n % 3)
                self.mfma(D + 16, f"a[{r}:{r+3}]", self.xf(wc, n), n == 0)
                for _ in range(2):
                    if mk:
                        mk.pop(0)()
            I(f"v_mov_b32 v{self.vT+5}, v{D+16}")
            if wc == 0:
                I("s_branch L_v_done")
        b.label("L_v_done")
        b.wait_tags(("qk",), lg_all=True)
        I("s_barrier")
        self.flag_store(0)
        for s_ in range(self.NB1):
            for f in self.fin_dma(s_):
                f()
        self.poll_issue(self.vAP, self.vPOLL)
        self.poll_check(self.vAP, self.vPOLL, self.sMSK)
        self.att_loads_K()
        self.poll_issue(self.vAP, self.vPOLL)
        for _ in o.bs:
            self.ts()
        self.ts()
        self.postB([[], [], [], [lambda: I(f"buffer_store_dword v{self.vT+5}, v{self.vT+4}, s[{self.S_WS}:{self.S_WS+3}], s{self.sZO} offen sc1", "h")]])

    def poll_setup_att(self):
        I = self.I
        v, t = self.vAP, self.vT
        I(f"v_lshrrev_b32 v{v}, 4, v0\nv_add_u32 v{v}, s{self.sRB}, v{v}\nv_subrev_u32 v{v}, 2, v{v}\nv_max_i32 v{v}, 0, v{v}")
        I(f"v_min_u32 v{v}, 15, v{v}\nv_lshlrev_b32 v{v}, 8, v{v}\nv_and_b32 v{t}, 15, v0\nv_lshl_add_u32 v{v}, v{t}, 2, v{v}")
        I(f"v_add_u32 v{v}, {FL_OFF}, v{v}")
        I(f"s_mul_i32 s86, s{self.sJ}, 28\ns_add_u32 s87, s86, 27\ns_lshr_b32 s86, s86, 6\ns_lshr_b32 s87, s87, 6")
        I("s_lshl_b32 s88, 1, s86\ns_lshl_b32 s89, 1, s87\ns_or_b32 s88, s88, s89")
        I("s_lshl_b32 s89, s88, 7")
        I(f"s_mul_i32 s{self.sMSK}, s89, 0x10001\ns_or_b32 s{self.sMSK+1}, s88, s89")
        I("s_cmp_le_u32 s86, 3\ns_cselect_b32 s90, 0x4000, 0\ns_cmp_ge_u32 s87, 3\ns_cselect_b32 s91, 0x8000, 0\ns_or_b32 s90, s90, s91")
        I(f"s_mul_i32 s{self.sMSK2}, s90, 0x10001\ns_mov_b32 s{self.sMSK2+1}, s90")

    def poll_issue(self, vaddr, vdst, soff="0"):
        self.I(f"buffer_load_dword v{vdst}, v{vaddr}, s[{self.S_WS}:{self.S_WS+3}], {soff} offen sc1", "poll")

    def poll_check(self, vaddr, vdst, smask, soff="0"):
        I, b = self.I, self.b
        u = self.uid()
        I(f"v_cmp_ne_u32 vcc, s{self.sTAG}, v{vdst}")
        I(f"s_and_b64 vcc, vcc, s[{smask}:{smask+1}]\ns_cbranch_scc0 L_pok{u}")
        keep_vm, keep_lg = list(b.vm), list(b.lg)
        I(f"s_mov_b32 s{self.sSPIN}, 0")
        b.label(f"L_psp{u}")
        I(f"buffer_load_dword v{vdst}, v{vaddr}, s[{self.S_WS}:{self.S_WS+3}], {soff} offen sc1")
        I(f"s_add_u32 s{self.sSPIN}, s{self.sSPIN}, 1\ns_cmp_gt_u32 s{self.sSPIN}, {SPIN_MAX}\ns_cbranch_scc1 L_exit")
        I(f"v_cmp_ne_u32 vcc, s{self.sTAG}, v{vdst}")
        I(f"s_and_b64 vcc, vcc, s[{smask}:{smask+1}]\ns_cbranch_scc1 L_psp{u}")
        b.vm, b.lg = keep_vm, keep_lg
        b.label(f"L_pok{u}")

    def S(self, i):
        return self.SREG[i]

    def att_setup(self):
        I = self.I
        h = self.sJ
        I(f"s_and_b32 s86, s{h}, 1\ns_sub_u32 s{self.sPAR}, 0, s86\ns_mov_b32 s{self.sPAR+1}, s{self.sPAR}")
        I(f"s_mul_i32 s87, s{h}, 7\ns_lshr_b32 s87, s87, 1\ns_lshl_b32 s87, s87, 9")
        I(f"s_lshl_b32 s88, s{self.sRB}, 2\ns_mul_i32 s89, s{self.sWV}, 3\ns_add_u32 s89, s89, s88\ns_sub_u32 s89, s89, 8")
        for i in range(3):
            I(f"s_add_u32 s90, s89, {i}\ns_max_i32 s90, s90, 0\ns_mul_i32 s90, s90, {QKV_MT}\ns_add_u32 s90, s90, s87")
            I(f"s_add_u32 s{self.sKT+i}, s90, {56*512}")
        v = self.vT
        I(f"v_lshrrev_b32 v{v}, 5, v0\nv_add_u32 v{v+1}, s89, v{v}\nv_mov_b32 v{v+2}, 0xf149")
        I(f"v_cmp_gt_i32 vcc, 0, v{v+1}\nv_cndmask_b32 v{self.vP}, 0, v{v+2}, vcc\nv_mov_b32 v{self.vP+1}, 0")
        I(f"s_add_u32 s90, s89, 2\ns_cmp_lt_i32 s90, 0\ns_cselect_b32 s90, 0xf149, 0\nv_mov_b32 v{self.vP+2}, s90\nv_mov_b32 v{self.vP+3}, 0")
        I(f"v_mov_b32 v{self.vP+4}, 0x3f80\nv_mov_b32 v{self.vP+5}, 0")
        I(f"s_cmp_eq_u32 s86, 0\ns_cselect_b32 s90, {1536+8}, 0\ns_mul_i32 s91, s{self.sWV}, {3*2048}\ns_add_u32 s90, s90, s91\ns_add_u32 s90, s90, {KV_K}")
        I(f"v_and_b32 v{v+1}, 31, v0\nv_lshlrev_b32 v{v+1}, 4, v{v+1}\nv_add_u32 v{self.vP+7}, s90, v{v+1}\nv_lshl_add_u32 v{self.vP+6}, v{v}, 11, v{self.vP+7}")
        I(f"v_and_b32 v{v+1}, 31, v0\nv_lshlrev_b32 v{v+2}, 2, v{v}\nv_xor_b32 v{v+1}, v{v+1}, v{v+2}\nv_lshlrev_b32 v{v+1}, 4, v{v+1}")
        I(f"v_lshl_add_u32 v{self.vP+8}, v{v}, 9, v{v+1}\nv_xor_b32 v{self.vP+9}, 0x80, v{self.vP+8}")
        I(f"s_lshl_b32 s90, s{self.sWV}, 11\ns_add_u32 s91, s90, {KV_K}\nv_add_u32 v{self.vKA}, s91, v{self.vL16}")
        I(f"v_bfe_u32 v{v+1}, v0, 4, 1\nv_bfe_u32 v{v+2}, v0, 1, 1\nv_lshl_add_u32 v{v+1}, v{v+1}, 1, v{v+2}")
        I(f"v_xor_b32 v{v+2}, v{v}, v{v+1}\nv_lshlrev_b32 v{v+2}, 2, v{v+2}\nv_bfe_u32 v{v+3}, v0, 2, 2\nv_add_u32 v{v+2}, v{v+2}, v{v+3}")
        I(f"v_lshlrev_b32 v{v+2}, 4, v{v+2}\nv_lshl_add_u32 v{v+2}, v{v+1}, 9, v{v+2}\nv_and_b32 v{v+3}, 1, v0\nv_lshl_add_u32 v{v+2}, v{v+3}, 3, v{v+2}")
        I(f"s_add_u32 s91, s90, {KV_V}\nv_add_u32 v{self.vVA}, s91, v{v+2}\nv_xor_b32 v{self.vVA+1}, 0x80, v{self.vVA}")
        I(f"v_subrev_u32 v{v+1}, 1, v{v}\nv_and_b32 v{v+1}, s{self.sPAR}, v{v+1}\nv_not_b32 v{self.vMA}, v{v+1}")
        I(f"v_sub_u32 v{v+1}, 0, v{v}\ns_not_b32 s91, s{self.sPAR}\nv_and_b32 v{v+1}, s91, v{v+1}\nv_not_b32 v{self.vMB}, v{v+1}")
        I(f"s_add_u32 s88, s88, s{self.sWV}\ns_mul_i32 s90, s88, {QKV_MT}\ns_add_u32 s{self.sQO}, s90, s87")
        I(f"s_mul_i32 s90, s88, {HO_MT}\ns_lshl_b32 s91, s{h}, 11\ns_add_u32 s90, s90, s91\ns_add_u32 s{self.sOO}, s90, {HO_OFF + 112*1024}")
        I(f"s_lshl_b32 s90, s88, 7\ns_add_u32 s{self.sZO}, s90, {Z_OFF}")
        m = self.vM
        I(f"v_lshlrev_b32 v{m}, 2, v{v}\nv_and_b32 v{m+1}, 31, v0\nv_sub_u32 v{m}, v{m+1}, v{m}\nv_mov_b32 v{m+1}, {NEG}")

    def att_masks(self):
        L = []
        v = self.vM
        pair = lambda r: f"s[{88+2*(r&1)}:{89+2*(r&1)}]"
        def cmp_(r):
            key = 8 * (r >> 2) + (r & 3)
            return lambda: self.I(f"v_cmp_gt_i32 {pair(r)}, {key}, v{v}")
        L.append(cmp_(0))
        for r in range(16):
            if r < 15:
                L.append(cmp_(r + 1))
            if r > 0:
                L.append(lambda r=r: self.I(f"v_sub_f32 v{self.S(0)+r-1}, v{v+1}, v{self.S(8)+r-1}"))
            L.append(lambda r=r: self.I(f"v_cndmask_b32 v{self.S(8)+r}, 0, v{v+1}, {pair(r)}"))
        L.append(lambda: self.I(f"v_sub_f32 v{self.S(0)+15}, v{v+1}, v{self.S(8)+15}"))
        return L

    def att_loads_K(self):
        I = self.I
        ws = f"s[{self.S_WS}:{self.S_WS+3}]"
        I(f"s_mul_i32 s86, s{self.sWV}, {3*2048}")
        for i in range(3):
            I(f"s_add_u32 m0, s86, {KV_K + 2048*i}")
            if i < 2:
                I(f"buffer_load_dwordx4 v[{self.vQ+4*i}:{self.vQ+4*i+3}], v{self.vL16}, {ws}, s{self.sQO} offen offset:{1024*i} sc1", "K")
            for e in range(2):
                I(f"buffer_load_dwordx4 v{self.vL16}, {ws}, s{self.sKT+i} offen offset:{1024*e} sc1 lds", "K")

    def att_loads_V(self):
        I = self.I
        ws = f"s[{self.S_WS}:{self.S_WS+3}]"
        I(f"s_mul_i32 s86, s{self.sWV}, {3*2048}")
        for i in range(3):
            I(f"s_add_u32 m0, s86, {KV_V + 2048*i}\ns_add_u32 s87, s{self.sKT+i}, {56*512}")
            for e in range(2):
                I(f"buffer_load_dwordx4 v{self.vP+8+e}, {ws}, s87 offen offset:{1024*e} sc1 lds", "V")

    def attention(self):
        I, b, o = self.I, self.b, self.o
        KF = self.KF
        m = self.vM
        order = [8, 7, 6, 5, 4, 3, 2, 1, 0]
        b.wait_tags(("V",))
        I(f"ds_write_b64 v{self.vP+6}, v[{self.vP+4}:{self.vP+5}] offset:{KV_V - KV_K}")
        I(f"ds_write_b64 v{self.vP+7}, v[{self.vP+4}:{self.vP+5}] offset:{KV_V - KV_K + 4096}")
        for f in self.mx_rest:
            f()
        b.waitcnt(lg=0)
        I("s_barrier")

        def rdv(i, bs):
            L = []
            for s in range(2):
                for e in range(2):
                    r = KF + bs * 8 + 4 * s + 2 * e
                    L.append(f"ds_read_b64_tr_b16 v[{r}:{r+1}], v{self.vVA+e} offset:{2048*i + 256*s}")
            return L
        for t in rdv(order[0], 0):
            I(t)
        I(f"v_mov_b32 v{m+1}, v{m}")
        I(f"v_permlane32_swap_b32 v{m}, v{m+1}")
        I(f"v_max_f32 v{m}, v{m}, v{m+1}")
        I(f"v_mul_f32 v{m}, s{self.sCS}, v{m}")
        I(f"s_mov_b32 s{self.sMSK}, 0x1ffff\ns_mov_b32 s{self.sMSK+1}, 0")
        self.ts()
        sched = {n: [] for n in range(9)}
        rd = lambda a, e: [f for s in range(a, e) for f in self.fin_rdw(s)]
        dm = lambda a, e: [f for s in range(a, e) for f in self.fin_dma(s)]
        pub = lambda: (b.wait_tags(("h",)), I("s_barrier"), self.flag_store(1))
        mid = (self.bg_rest + 22) // 2
        sched[0] = dm(self.bg_rest, mid)
        sched[1] = dm(mid, 22) + rd(8, 10)
        sched[2] = rd(10, 14) + dm(22, 25)
        sched[3] = dm(25, 28) + rd(14, 18)
        sched[4] = rd(18, 22) + dm(28, 31)
        sched[5] = dm(31, 36)
        sched[6] = rd(22, 28)
        hl = [f for s in range(o.nh0) for f in self.fin_hload(s)]
        sched[7] = hl[:len(hl) // 2]
        sched[8] = hl[len(hl) // 2:]
        sched[o.hpub] = sched[o.hpub] + [pub]
        sched[o.hpoll] = sched[o.hpoll] + [lambda: self.poll_issue(self.vFA, self.vPOLL)]
        sched[7] = [self.hook_poll_check] + sched[7]
        O = self.vO
        prev = None
        for n, i in enumerate(order):
            if n in o.ss:
                self.ts()
            d = self.S(i)
            p = self.vP + 8 * (n % 2)
            L = []
            if o.pk:
                for k in range(0, 16, 2):
                    L.append(f"v_pk_fma_f32 v[{d+k}:{d+k+1}], v[{d+k}:{d+k+1}], s[{self.sNL2E}:{self.sCS}], v[{m}:{m+1}] op_sel:[0,1,0] op_sel_hi:[1,1,0] neg_lo:[0,0,1] neg_hi:[0,0,1]")
            else:
                for k in range(16):
                    L.append(f"v_fma_f32 v{d+k}, v{d+k}, s{self.sCS}, -v{m}")
            ex = [f"v_exp_f32 v{d+k}, v{d+k}" for k in range(16)]
            cv = [f"v_cvt_pk_bf16_f32 v{p+k}, v{d+2*k}, v{d+2*k+1}" for k in range(8)]
            seq = L + ex + cv
            vr = rdv(order[n + 1], (n + 1) % 2) if n + 1 < 9 else []
            main = []
            for k, t in enumerate(seq):
                main.append(lambda t=t: I(t))
                if prev is not None and k == 1:
                    main.append(lambda t=prev[0]: I(t))
                if prev is not None and k == 7:
                    main.append(lambda t=prev[1]: I(t))
                if k >= 10 and vr:
                    main.append(lambda t=vr.pop(0): I(t))
            for f in self.weave(main, sched[n], 0.0, 1.0):
                f()
            r = KF + (n % 2) * 8
            prev = (f"v_mfma_f32_32x32x16_bf16 v[{O}:{O+15}], v[{r}:{r+3}], v[{p}:{p+3}], " + ("0" if n == 0 else f"v[{O}:{O+15}]"),
                    f"v_mfma_f32_32x32x16_bf16 v[{O}:{O+15}], v[{r+4}:{r+7}], v[{p+4}:{p+7}], v[{O}:{O+15}]")
        I(prev[0])
        I(prev[1])
        t = self.vQ
        I(f"v_mul_f32 v{t}, s{self.sNL2E}, v{self.vZZ}\nv_exp_f32 v{t}, v{t}")
        z = self.vZZ + 1
        for a in range(2):
            I(f"v_mul_f32 v{z+a}, s{self.sNL2E}, v{z+a}\nv_exp_f32 v{z+a}, -v{z+a}")
        I(f"v_add_f32 v{t}, 1.0, v{t}")
        for a in range(2):
            I(f"v_add_f32 v{z+a}, 1.0, v{z+a}\nv_rcp_f32 v{z+a}, v{z+a}")
        I(f"v_cndmask_b32 v{t+1}, v{O+12}, v{O}, s[{self.sPAR}:{self.sPAR+1}]\nv_mov_b32 v{t+2}, v{t+1}")
        I(f"v_permlane32_swap_b32 v{t+1}, v{t+2}")
        I(f"v_cndmask_b32 v{t+1}, v{t+2}, v{t+1}, s[{self.sPAR}:{self.sPAR+1}]")
        I(f"v_mul_f32 v{t}, v{t}, v{t+1}\nv_rcp_f32 v{t}, v{t}")
        I(f"v_and_b32 v{t+1}, v{self.vMA}, v{t}\nv_and_b32 v{t+2}, v{self.vMB}, v{t}")
        for k in range(16):
            sc = t + 1 if k == 0 else (t + 2 if k == 12 else t)
            I(f"v_mul_f32 v{O+k}, v{O+k}, v{sc}")
        for f in self.cvt_store(O, self.sOO, 0, "o") + self.cvt_store(O + 8, self.sOO, 1024, "o"):
            f()

    def hook_poll_check(self):
        I = self.I
        self.poll_check(self.vFA, self.vPOLL, self.sMSK)
        v = self.vT
        I(f"v_and_b32 v{v}, 31, v0\nv_lshlrev_b32 v{v}, 2, v{v}")
        ws = f"s[{self.S_WS}:{self.S_WS+3}]"
        I(f"buffer_load_dword v{self.vZZ}, v{v}, {ws}, s{self.sZO} offen sc1", "z")
        I(f"buffer_load_dword v{self.vZZ+1}, v{v}, {ws}, s{self.sZF} offen sc1", "z")
        I(f"s_xor_b32 s{self.sZF}, s{self.sZF}, 0x80")
        I(f"buffer_load_dword v{self.vZZ+2}, v{v}, {ws}, s{self.sZF} offen sc1", "z")

    RING = 14

    def ring_addr(self, e):
        return (1, 2048 * e) if e < 8 else (0, 2048 * (e - 8))

    def final_setup(self):
        I = self.I
        v = self.vT
        I("s_lshr_b32 s86, s2, 3\ns_and_b32 s87, s2, 7\ns_mul_i32 s88, s86, 37\ns_lshr_b32 s88, s88, 8")
        I(f"s_mul_i32 s89, s88, 7\ns_sub_u32 s89, s86, s89\ns_cmp_lt_u32 s86, 28\ns_cselect_b32 s{self.sFIN}, 1, 0")
        I("s_min_u32 s88, s88, 3\ns_lshl_b32 s87, s87, 2\ns_add_u32 s87, s87, s88")
        I(f"s_lshr_b32 s90, s{self.sWV}, 1\ns_and_b32 s91, s{self.sWV}, 1")
        I(f"s_lshl_b32 s92, s88, 1\ns_add_u32 s92, s92, s89\ns_cmp_ge_u32 s92, 7\ns_cselect_b32 s93, 7, 0\ns_sub_u32 s94, s92, s93")
        if self.o.rot != 1:
            I({0: "s_mov_b32 s94, 0", 2: "s_mov_b32 s94, s89", 3: "s_lshl_b32 s94, s88, 1"}[self.o.rot])
        I(f"s_sub_u32 s{self.sWRAP}, 7, s94\ns_and_b32 s86, s89, {1 if self.o.rot in (1, 2) else 0}")
        I(f"s_mul_i32 s92, s{self.sWV}, {448*896}\ns_lshl_b32 s89, s89, 7\ns_add_u32 s{self.sFW}, s92, s89")
        I(f"s_mul_i32 s92, s94, {64*896}\ns_add_u32 s{self.sFW}, s{self.sFW}, s92")
        I(f"s_mul_i32 s92, s{self.sWV}, {112*896}\ns_add_u32 s{self.sFWO}, s92, s89\ns_mul_i32 s92, s86, {56*896}\ns_add_u32 s{self.sFWO}, s{self.sFWO}, s92")
        I(f"s_cmp_lg_u32 s86, 0\ns_mov_b32 s{self.sDWO}, {16*896}\ns_cselect_b32 s{self.sDWO}, {(-96*896) & 0xFFFFFFFF}, s{self.sDWO}")
        I(f"s_cmp_lg_u32 s86, 0\ns_movk_i32 s{self.sDHO}, 0x1000\ns_cselect_b32 s{self.sDHO}, 0xfffff000, s{self.sDHO}")
        I(f"s_cmp_lg_u32 s{self.sFIN}, 0\ns_cselect_b32 s{self.S_WD+2}, s{self.S_WD+2}, 0\ns_cselect_b32 s{self.S_WO+2}, s{self.S_WO+2}, 0")
        I(f"s_mul_i32 s{self.sFM0}, s{self.sWV}, {12*K}\ns_add_u32 s{self.sFM0}, s{self.sFM0}, {RING_LO}")
        I(f"s_lshl_b32 s{self.sFM1}, s{self.sWV}, 14\ns_add_u32 s{self.sFM1}, s{self.sFM1}, {RING_HI}")
        I(f"v_lshrrev_b32 v{v}, 3, v0\nv_and_b32 v{v+1}, 2, v{v}\nv_lshlrev_b32 v{v+1}, 1, v{v+1}\nv_and_b32 v{v+2}, 7, v0\nv_xor_b32 v{v+1}, v{v+1}, v{v+2}")
        I(f"v_mul_u32_u24 v{v}, 0x380, v{v}\nv_lshl_add_u32 v{self.vFD}, v{v+1}, 4, v{v}\nv_add_u32 v{self.vFD+1}, {8*896-1024}, v{self.vFD}")
        I(f"v_bfe_u32 v{v}, v0, 2, 2\nv_lshrrev_b32 v{v+1}, 5, v0")
        I(f"v_and_b32 v{v+2}, 1, v0\nv_lshlrev_b32 v{v+2}, 4, v{v+2}\nv_bfe_u32 v{v+3}, v0, 1, 1\nv_lshl_add_u32 v{v+2}, v{v+3}, 3, v{v+2}")
        I(f"v_bfe_u32 v{v+3}, v0, 4, 1\nv_and_b32 v{v+4}, 2, v{v}\nv_xor_b32 v{v+3}, v{v+3}, v{v+4}\ns_lshl_b32 s92, s90, 1\nv_xor_b32 v{v+3}, s92, v{v+3}")
        I(f"v_lshl_add_u32 v{v+2}, v{v+3}, 5, v{v+2}\nv_lshl_add_u32 v{v+2}, v{v}, 7, v{v+2}")
        R = self.vFR
        I(f"v_lshl_add_u32 v{v+3}, v{v+1}, 10, v{v+2}\nv_add_u32 v{R}, s{self.sFM0}, v{v+3}\nv_xor_b32 v{R+1}, 64, v{R}")
        I(f"v_add_u32 v{R+2}, s{self.sFM1}, v{v+3}\nv_xor_b32 v{R+3}, 64, v{R+2}")
        I(f"v_lshlrev_b32 v{R+4}, 9, v{v+1}")
        I(f"s_lshl_b32 s93, s87, 1\ns_add_u32 s93, s93, s91\ns_mul_i32 s92, s93, {HO_MT}\ns_mul_i32 s88, s{self.sWV}, {28*1024}")
        I(f"s_add_u32 s92, s92, {HO_OFF - HO_MT}\ns_add_u32 s88, s88, s92\ns_lshl_b32 s94, s94, 12\ns_add_u32 s{self.sFH}, s88, s94")
        I(f"s_lshl_b32 s88, s{self.sWV}, 1\ns_add_u32 s88, s88, s86\ns_lshl_b32 s88, s88, 12\ns_add_u32 s88, s88, s92\ns_add_u32 s{self.sFHO}, s88, {112*1024}")
        I(f"s_cmp_eq_u32 s91, 0\ns_cselect_b32 s92, {2*HO_MT}, 0")
        I(f"v_add_u32 v{R+5}, {HO_MT}, v{self.vL16}\nv_add_u32 v{R+6}, s92, v{self.vL16}")
        I(f"s_mul_i32 s92, s93, {32*896}\ns_add_u32 s92, s92, s89\ns_lshl_b32 s88, s90, 6\ns_add_u32 s{self.sFO}, s92, s88")
        I(f"s_lshl_b32 s92, s93, 7\ns_add_u32 s{self.sZF}, s92, {Z_OFF}")
        I(f"s_lshr_b32 s87, s87, 1\ns_lshl_b32 s87, s87, 8\ns_add_u32 s87, s87, {FL_OFF + 4096}")
        I(f"s_lshl_b32 s88, s{self.sRB}, 8\ns_add_u32 s88, s88, {FL_OFF + 4096 + 56}")
        I(f"v_lshlrev_b32 v{v}, 2, v0\nv_add_u32 v{v}, s87, v{v}\nv_mov_b32 v{v+1}, s88\nv_cmp_gt_u32 vcc, 16, v0\nv_cndmask_b32 v{self.vFA}, v{v+1}, v{v}, vcc")

    def fin_dma(self, step):
        I, b = self.I, self.b
        hi, c = self.ring_addr(step % self.RING)
        sm = self.sFM1 if hi else self.sFM0

        def first():
            if step >= self.RING:
                need = None
                for i, (_d, t) in enumerate(b.lg):
                    if t == f"rw{step - self.RING}":
                        need = len(b.lg) - 1 - i
                assert f"rw{step - self.RING}" in self.rw_done, step
                b.waitcnt(lg=need)
            I(f"s_add_u32 m0, s{sm}, {c}")
        L = [first]
        if step < 28:
            srd, so = self.S_WD, self.sFW
        else:
            srd, so = self.S_WO, self.sFWO
        if 0 < step < 28 and step % 4 == 0:
            L.append(lambda: I(f"s_cmp_eq_u32 s{self.sWRAP}, {step//4}\ns_cselect_b32 s86, {(-448*896) & 0xFFFFFFFF}, 0\ns_add_u32 s{so}, s{so}, s86\ns_add_u32 s{so}, s{so}, {16*896}"))
        elif 0 < step < 28:
            L.append(lambda: I(f"s_add_u32 s{so}, s{so}, {16*896}"))
        elif step == 32:
            L.append(lambda: I(f"s_add_u32 s{so}, s{so}, s{self.sDWO}"))
        elif step > 28:
            rows = [0, 16, 24, 40]
            d = rows[step % 4] - rows[step % 4 - 1]
            L.append(lambda: I(f"s_add_u32 s{so}, s{so}, {d*896}"))
        for e in range(2):
            L.append(lambda e=e: I(f"buffer_load_dwordx4 v{self.vFD+e}, s[{srd}:{srd+3}], s{so} offen offset:{1024*e} lds", f"w{step}"))
        return L

    rw_done = set()

    def fw(self, step, t):
        return (step * 8 if step < 28 else 224 + (step % 2) * 8) + 4 * t

    def fin_rdw(self, step):
        hi, c = self.ring_addr(step % self.RING)
        L = []
        for t in range(2):
            for e in range(2):
                r = self.fw(step, t) + 2 * e
                imm = c + (512 if step < 28 else 1024) * e

                def f(r=r, t=t, e=e, imm=imm):
                    if t == 0 and e == 0:
                        self.b.wait_tags((f"w{step}",))
                    self.I(f"ds_read_b64_tr_b16 a[{r}:{r+1}], v{self.vFR + 2*hi + t} offset:{imm}", f"rw{step}")
                    if t == 1 and e == 1:
                        self.rw_done.add(f"rw{step}")
                L.append(f)
        return L

    def fin_hload(self, step):
        I = self.I
        L = []
        R = self.vFR
        imm = 1024 * ((step if step < 28 else step - 28) % 4)
        if step == 28:
            L.append(lambda: I(f"s_mov_b32 s{self.sFH}, s{self.sFHO}"))
        elif step == 32:
            L.append(lambda: I(f"s_add_u32 s{self.sFH}, s{self.sFH}, s{self.sDHO}"))
        elif step % 4 == 0 and step > 0:
            L.append(lambda: I(f"s_cmp_eq_u32 s{self.sWRAP}, {step//4}\ns_cselect_b32 s86, {(-28*1024) & 0xFFFFFFFF}, 0\ns_add_u32 s{self.sFH}, s{self.sFH}, s86\ns_add_u32 s{self.sFH}, s{self.sFH}, 0x1000"))
        for a in range(2):
            r = self.FH + (step % self.NH) * 8 + 4 * a
            L.append(lambda r=r, a=a: I(f"buffer_load_dwordx4 v[{r}:{r+3}], v{R+5+a}, s[{self.S_WS}:{self.S_WS+3}], s{self.sFH} offen offset:{imm} sc1", f"h{step}"))
        return L

    def final(self):
        I, b, o = self.I, self.b, self.o
        R = self.vFR
        z = self.vZZ + 1
        nh = o.nh0
        A = self.FACC
        I("\n".join(f"v_sub_u32 v{R+i}, v{R+i}, v{R+4}" for i in range(4)))
        I(f"s_mov_b32 s{self.sMSK}, 0xffff\ns_movk_i32 s{self.sT0}, 0x1000")
        for n in range(36):
            gaps = [[] for _ in range(4)]
            if n in o.fs:
                self.ts()
            if 28 <= n + 1 < 36:
                rd = self.fin_rdw(n + 1)
                gaps[0] += rd[:2]
                gaps[1] += rd[2:]
            if n == o.opub:
                gaps[0].append(lambda: (b.wait_tags(("o",)), I("s_barrier"), self.flag_store(2)))
            if n == o.opoll_issue:
                gaps[1].append(lambda: self.poll_issue(self.vFA, self.vPOLL, soff=f"s{self.sT0}"))
            lim = 28 if n < o.opoll_check else 36
            if n == o.opoll_check:
                gaps[0].append(lambda: self.poll_check(self.vFA, self.vPOLL, self.sMSK, soff=f"s{self.sT0}"))
            cnt = 0
            while nh < lim and nh - self.NH < n and cnt < o.hrate:
                hl = self.fin_hload(nh)
                gaps[(2 * cnt + 1) % 4] += hl[:-1]
                gaps[(2 * cnt + 2) % 4 if cnt == 0 else 3] += hl[-1:]
                nh += 1
                cnt += 1
            if n == 28:
                for s in range(4):
                    for k in range(0, 16, 2):
                        I(f"v_pk_mul_f32 v[{A[s]+k}:{A[s]+k+1}], v[{A[s]+k}:{A[s]+k+1}], v[{z}:{z+1}] op_sel:[0,{s&1}] op_sel_hi:[1,{s&1}]")
            i = 0
            tiles = [(0, 0), (0, 1), (1, 0), (1, 1)] if n < 35 else [(0, 1), (1, 0), (1, 1), (0, 0)]
            for t, a in tiles:
                rw = self.fw(n, t)
                rh = self.FH + (n % self.NH) * 8 + 4 * a
                self.mfma(A[2 * t + a], f"a[{rw}:{rw+3}]", f"v[{rh}:{rh+3}]", n == 0)
                for f in gaps[i]:
                    f()
                i += 1
        self.ts()
        v = self.vT
        I(f"v_add_u32 v{v}, s{self.sFM0}, v{self.vL16}")
        for sg in range(1, 4):
            I(f"s_xor_b32 s86, s{self.sWV}, {sg}\ns_mul_i32 s86, s86, {12*K}\ns_add_u32 s86, s86, {RING_LO}\nv_add_u32 v{v+sg}, s86, v{self.vL16}")
        for sg in range(1, 4):
            for q in range(4):
                r = A[sg] + 4 * q
                I(f"ds_write_b128 v{v}, v[{r}:{r+3}] offset:{(sg-1)*4096 + q*1024}")
        I(f"v_and_b32 v{v+4}, 31, v0\nv_mul_u32_u24 v{v+4}, 0x380, v{v+4}\nv_lshrrev_b32 v{v+5}, 5, v0\nv_lshl_add_u32 v{v+4}, v{v+5}, 4, v{v+4}")
        b.waitcnt(lg=0)
        I("s_barrier")
        T = self.FH
        for q in range(4):
            for sg in range(1, 4):
                r = T + 16 * (sg - 1) + 4 * q
                I(f"ds_read_b128 v[{r}:{r+3}], v{v+sg} offset:{(sg-1)*4096 + q*1024}")
        a0 = A[0]
        for h in range(2):
            for k in range(8 * h, 8 * h + 8, 2):
                for sg in range(1, 4):
                    r = T + 16 * (sg - 1) + k
                    I(f"v_pk_add_f32 v[{a0+k}:{a0+k+1}], v[{a0+k}:{a0+k+1}], v[{r}:{r+1}]")
            r = a0 + 8 * h
            for i in range(4):
                I(f"v_cvt_pk_bf16_f32 v{r+i}, v{r+2*i}, v{r+2*i+1}")
            if o.thr and h == 0:
                b.raw("s_memrealtime s[100:101]")
                b.raw("s_waitcnt lgkmcnt(0)")
                I(f"s_sub_u32 s100, s100, s{self.sTAG}\ns_cmp_gt_i32 s100, {o.thr}\ns_cselect_b32 s100, 0x7fc07fc0, 0\nv_or_b32 v{r}, s100, v{r}")
            I(f"buffer_store_dwordx4 v[{r}:{r+3}], v{v+4}, s[{self.S_OUT}:{self.S_OUT+3}], s{self.sFO} offen offset:{32*h}")

    def build(self):
        I, b, o = self.I, self.b, self.o
        b.label(KNAME)
        self.prologue()
        self.ts(98)
        self.ts(99)
        self.sts_flush()
        self.ts()
        self.passA()
        self.ts()
        I(f"s_cmp_lg_u32 s{self.sISV}, 0\ns_cbranch_scc1 L_vpath")
        snap = b.snapshot()
        nts0 = self.nts
        self.passB_GU()
        gu_vm = list(b.vm)
        gu_lg = [t for _d, t in b.lg]
        I("s_branch L_join")
        b.label("L_vpath")
        b.restore(snap)
        self.nts = nts0
        self.passB_V()
        b.label("L_join")
        vt = [t for _d, t in b.vm]
        gt = [t for _d, t in gu_vm]
        after = lambda L, t: L[::-1].index(t) if t in L else 10 ** 6
        for t in set(vt) | set(gt):
            if t is not None:
                assert after(vt, t) <= after(gt, t), (t, vt, gt)
        assert [t for _d, t in b.lg] == gu_lg
        self.ts()
        self.attention()
        self.ts()
        I(f"s_cmp_lg_u32 s{self.sFIN}, 0\ns_cbranch_scc0 L_nofinal")
        snap2 = b.snapshot()
        self.final()
        if o.ts:
            b.wait_all()
            self.ts(last=True)
        I("s_endpgm")
        b.label("L_nofinal")
        b.restore(snap2)
        b.wait_tags(("o",))
        I("s_barrier")
        self.flag_store(2)
        b.label("L_exit")
        b.raw("s_endpgm")

    def text(self):
        hdr = open("gated_mix__sliding_block__glu_gated_glu__prompt.s.ref").read().split("; Override launch")[0]
        s = hdr
        s += "; Generated by my own generator script (hand-designed schedule; no compiler output).\n"
        s += "; @launch grid=(256,1,1) block=(256,1,1) lds=163840\n"
        s += '.amdgcn_target "amdgcn-amd-amdhsa--gfx950"\n.text\n'
        s += f".globl {KNAME}\n.p2align 8\n.type {KNAME},@function\n"
        s += self.b.text()
        s += f""".section .rodata,"a"
.p2align 6
.amdhsa_kernel {KNAME}
  .amdhsa_next_free_vgpr 512
  .amdhsa_next_free_sgpr 102
  .amdhsa_accum_offset 256
  .amdhsa_group_segment_fixed_size 0
  .amdhsa_kernarg_size 88
  .amdhsa_user_sgpr_count 2
  .amdhsa_user_sgpr_kernarg_segment_ptr 1
  .amdhsa_system_sgpr_workgroup_id_x 1
.end_amdhsa_kernel
"""
        return s


def main():
    ap = argparse.ArgumentParser()
    ap.add_argument("-o", default="k.s")
    ap.add_argument("--ts", action="store_true")
    ap.add_argument("--cyc", action="store_true")
    ap.add_argument("--thr", type=int, default=0)
    ap.add_argument("--lite", action="store_true")
    ap.add_argument("--dbgts", type=int, default=0)
    ap.add_argument("--sts", action="store_true")
    ap.add_argument("--pk", type=int, default=1)
    ap.add_argument("--pkB", type=int, default=0)
    ap.add_argument("--align", type=int, default=1)
    ap.add_argument("--coop", type=int, default=0)
    ap.add_argument("--lead", type=int, default=2)
    ap.add_argument("--rot", type=int, default=0)
    ap.add_argument("--fl0", type=int, default=11)
    ap.add_argument("--kpoll", type=int, default=21)
    ap.add_argument("--kchk", type=int, default=25)
    ap.add_argument("--epi_end", type=int, default=28)
    ap.add_argument("--nbq", type=int, default=6)
    ap.add_argument("--hpub", type=int, default=1)
    ap.add_argument("--hpoll", type=int, default=5)
    ap.add_argument("--nh0", type=int, default=8)
    ap.add_argument("--hrate", type=int, default=2)
    ap.add_argument("--opub", type=int, default=6)
    ap.add_argument("--opoll_issue", type=int, default=14)
    ap.add_argument("--opoll_check", type=int, default=18)
    for k in ("fs", "bs", "ss"):
        ap.add_argument("--" + k, default="", type=lambda t: [int(x) for x in t.split(",") if x])
    o = ap.parse_args()
    g = G(o)
    g.build()
    open(o.o, "w").write(g.text())
    print(f"code bytes {g.b.off}, hazard nops {g.b.nops_added}, stamps {g.nts}", file=sys.stderr)


if __name__ == "__main__":
    main()
```

```python
import sys, math, argparse
from asmb import Builder

KNAME = "gated_mix__sliding_block__glu_gated_glu__prompt_kernel"
K = 1024
QKV_OFF = 0
QKV_MT = 168 * 512
HO_OFF = 0x600000
HO_MT = 144 * 1024
Z_OFF = 0xF00000
FL_OFF = 0xF10000
E_OFF = 0xF20000
TS_OFF = 0xF30000
WS_SIZE = 0x1000000
SLOT = 40 * K
CHUNK = 10 * K
PB_BASE = [120 * K, 136 * K, 0, 16 * K, 48 * K, 64 * K, 80 * K]
KV_K = 0
KV_V = 24 * K
RING_LO = 48 * K
RING_HI = 96 * K
NEG = 0xF149F2CA
LOG2E = 1.4426950408889634
SPIN_MAX = 1 << 18


def f32hex(x):
    import struct
    return "0x%08x" % struct.unpack("<I", struct.pack("<f", x))[0]


class G:
    def __init__(self, opt):
        self.o = opt
        self.b = Builder(align_opt=opt.align)
        self.nts = 0

    S_X, S_A, S_B, S_C, S_WS, S_WD, S_WO, S_OUT = 8, 12, 16, 20, 24, 28, 32, 36
    pDBG, pGW = 40, 42
    sWV, sRB, sJ, sISV = 44, 45, 46, 47
    sX, sA, sB, sC = 48, 49, 50, 51
    sSAB, sM0, sM0B, sA2, sB2 = 52, 53, 54, 55, 56
    sTAG = 57
    sQ0, sQ1, sH0, sH1 = 58, 59, 60, 61
    sNL2E, sCS = 62, 63
    sMSK, sMSK2, sPAR = 64, 66, 68
    sKT = 70
    sQO, sZO, sOO = 73, 74, 75
    sFIN, sFW, sFH, sFWO, sFM0, sFM1, sFO, sZF = 76, 77, 78, 79, 80, 81, 82, 83
    sSPIN, sT0 = 84, 85
    sT1, sT2, sT3 = 3, 4, 5
    sWRAP, sFHO, sDWO, sDHO = 0, 1, 6, 7
    sTS, sEX, sTM = 95, 96, 100
    vL16 = 1
    vXD = 2
    vWD = 6
    vXR = 12
    vWR = 24
    vT = 33
    vPFW, vPFC = 46, 47
    vPOLL = 48
    vZ = 49
    vFL = 50
    vAP = 51
    ACC_A = 52
    ACC_B = 148
    WF = 224
    KF = 4
    vO = 196
    vQ = 212
    vP = 220
    vKA = 236
    vVA = 237
    vM = 240
    vMA, vMB = 242, 239
    vZZ = 243
    vFA = 246
    vFD = 247
    vFR = 249
    FH = 84
    NH = 16
    FACC = [52, 68, 212, 228]
    SREG = {8: 52, 0: 68, 7: 84, 6: 100, 5: 116, 4: 132, 3: 148, 2: 164, 1: 180}

    def I(self, t, tag=None):
        self.b.I(t, tag)

    def srd(self, s, lo, hi, size):
        self.I(f"s_mov_b32 s{s}, {lo}\ns_mov_b32 s{s+1}, {hi}\ns_mov_b32 s{s+2}, {size}\ns_mov_b32 s{s+3}, 0x20000")

    def ts(self, sreg=None, last=False):
        if not self.o.ts or (self.o.lite and not last and sreg != 98):
            return
        n = self.nts
        self.nts += 1
        if sreg is None:
            self.b.raw(f"{'s_memtime' if self.o.cyc else 's_memrealtime'} s[{self.sTM}:{self.sTM+1}]")
            self.b.raw("s_waitcnt lgkmcnt(0)")
            self.b.lg = []
            sreg = self.sTM
        self.I(f"v_mov_b32 v{self.vT}, s{sreg}\nv_mov_b32 v{self.vT+1}, 0")
        self.I(f"s_mov_b64 s[{self.sEX}:{self.sEX+1}], exec\ns_mov_b64 exec, 1")
        if self.o.dbgts:
            u = self.uid()
            keep = list(self.b.vm)
            self.I(f"s_lshl_b32 s86, s2, 2\ns_add_u32 s86, s86, s{self.sWV}\ns_cmp_eq_u32 s86, {self.o.dbgts}\ns_cbranch_scc0 L_dts{u}")
            self.I(f"global_store_dword v{self.vT+1}, v{self.vT}, s[{self.pDBG}:{self.pDBG+1}] offset:{4*(n+1)} sc1")
            self.b.label(f"L_dts{u}")
            if n == 0 or last:
                self.I(f"s_cmp_eq_u32 s{self.sWV}, 0\ns_cbranch_scc0 L_dtt{u}")
                if n == 0:
                    self.I(f"v_not_b32 v{self.vT}, v{self.vT}")
                self.I(f"global_atomic_umax v{self.vT+1}, v{self.vT}, s[{self.pDBG}:{self.pDBG+1}] offset:{56 if n == 0 else 60} sc1")
                self.b.label(f"L_dtt{u}")
            self.b.vm = keep
        else:
            self.I(f"buffer_store_dword v{self.vT}, v{self.vT+1}, s[{self.S_WS}:{self.S_WS+3}], s{self.sTS} offen offset:{4*n}")
        self.I(f"s_mov_b64 exec, s[{self.sEX}:{self.sEX+1}]")

    soft = 0

    def sts(self):
        if not self.o.sts:
            return
        self.b.raw(f"{'s_memtime' if self.o.cyc else 's_memrealtime'} s[{self.sTM}:{self.sTM+1}]")
        self.b.raw("s_waitcnt lgkmcnt(0)")
        self.I(f"v_mov_b32 v{196+self.soft}, s{self.sTM}")
        self.soft += 1

    def sts_flush(self):
        for k in range(self.soft):
            self.I(f"v_readfirstlane_b32 s{self.sTM}, v{196+k}")
            self.ts(self.sTM)

    def lds(self, base, n, idx, const):
        return f"v{base + (const >> 16) * n + idx}", const & 0xFFFF

    def xf(self, M, n):
        r = (M * 28 + n) * 4
        return f"a[{r}:{r+3}]"

    def wf(self, bufset, t):
        r = self.WF + bufset * 12 + t * 4
        return r

    def acc(self, base, t, M):
        r = base + (t * 2 + M) * 16
        return r

    def prologue(self):
        I = self.I
        b = self.b
        if self.o.ts or self.o.thr:
            b.raw(f"{'s_memtime' if self.o.cyc else 's_memrealtime'} s[98:99]")
        I("s_cmp_ge_u32 s2, 0x100\ns_cbranch_scc1 L_exit")
        if self.o.badmap:
            I("s_and_b32 s3, s2, 31\ns_lshl_b32 s3, s3, 3\ns_lshr_b32 s2, s2, 5\ns_or_b32 s2, s2, s3")
        b.raw("s_load_dwordx16 s[64:79], s[0:1], 0")
        b.raw("s_load_dwordx4 s[80:83], s[0:1], 64")
        b.raw(f"s_load_dwordx2 s[{self.S_WS}:{self.S_WS+1}], s[0:1], 80")
        I("s_getpc_b64 s[4:5]")
        b.label("L_pc")
        I("s_and_b32 s3, s2, 0xf8\nv_and_b32 v33, 7, v0\nv_add_lshl_u32 v33, v33, s3, 7\nv_min_u32 v33, L_exit-L_pc, v33")
        I("global_load_dword v45, v33, s[4:5]", tag="pf")
        b.vm[-1] = (set(), "pf")
        I("v_lshrrev_b32 v35, 6, v0\nv_and_b32 v0, 63, v0")
        I(f"v_readfirstlane_b32 s{self.sWV}, v35")
        I("s_and_b32 s3, s2, 7\ns_lshr_b32 s6, s2, 3")
        I(f"s_and_b32 s7, s3, 1\ns_lshl_b32 s7, s7, 3\ns_and_b32 s4, s6, 7\ns_add_u32 s{self.sRB}, s4, s7")
        I(f"s_lshr_b32 s7, s3, 1\ns_lshl_b32 s7, s7, 2\ns_lshr_b32 s5, s6, 3\ns_add_u32 s{self.sJ}, s5, s7")
        I(f"v_lshlrev_b32 v{self.vL16}, 4, v0")
        I("v_lshrrev_b32 v35, 3, v0\nv_and_b32 v36, 7, v0\nv_lshrrev_b32 v37, 4, v0")
        I("v_mul_u32_u24 v38, 0x380, v35")
        I("v_xor_b32 v39, v36, v37\nv_lshl_add_u32 v2, v39, 4, v38")
        I(f"v_xor_b32 v3, 64, v2\nv_add_u32 v3, {8*896-1024}, v3")
        I(f"v_add_u32 v4, {16*896-2048}, v2\nv_add_u32 v5, {16*896-2048}, v3")
        I("v_and_b32 v39, 2, v35\nv_lshlrev_b32 v39, 1, v39\nv_xor_b32 v39, v36, v39\nv_lshlrev_b32 v39, 4, v39")
        I(f"s_cmp_ge_u32 s{self.sJ}, 14\ns_cselect_b32 s{self.sISV}, 1, 0")
        I("s_movk_i32 s7, 0xe00\ns_movk_i32 s86, 0xa80\ns_cselect_b32 s7, s86, s7")
        I("v_mul_u32_u24 v40, 0xa80, v35\nv_add_u32 v10, v40, v39")
        I(f"v_add_u32 v11, {8*2688-1024}, v10")
        I("v_mul_u32_u24 v40, s7, v35\nv_add_u32 v6, v40, v39")
        I("s_lshl_b32 s86, s7, 3\ns_sub_u32 s86, s86, 0x400\nv_add_u32 v7, s86, v6")
        I("v_xor_b32 v8, 32, v6\nv_xor_b32 v9, 32, v7")
        I(f"s_lshl_b32 s{self.sSAB}, s7, 6")
        I("v_mul_u32_u24 v41, 0x380, v36\nv_lshl_add_u32 v41, v35, 7, v41")
        I(f"s_lshl_b32 s86, s4, 3\ns_lshl_b32 s87, s{self.sWV}, 1\ns_add_u32 s86, s86, s87")
        I("v_lshrrev_b32 v42, 1, v0\nv_lshlrev_b32 v42, 6, v42\nv_and_b32 v43, 1, v0\nv_add3_u32 v42, v42, v43, s86")
        I(f"v_mul_lo_u32 v{self.vPFW}, v42, s7\nv_mul_u32_u24 v{self.vPFC}, 0xa80, v42")
        I(f"s_lshl_b32 s86, s{self.sRB}, 2\ns_add_u32 s87, s86, s{self.sWV}\ns_mul_i32 s{self.sX}, s87, {32*896}")
        I(f"s_add_u32 s86, s86, s5\ns_lshl_b32 s86, s86, 2\ns_add_u32 s86, s86, s{self.sWV}\ns_mul_i32 s6, s86, {8*896}")
        I(f"s_lshl_b32 s86, s{self.sWV}, 4\ns_mul_i32 s87, s86, s7\ns_mul_i32 s88, s86, 0xa80")
        I(f"s_lshl_b32 s89, s{self.sJ}, 8\ns_lshl_b32 s90, s{self.sJ}, 7")
        I(f"s_lshl_b32 s91, s{self.sJ}, 9\ns_sub_u32 s91, s91, {42*128}")
        I(f"s_add_u32 s92, s91, 0x80\ns_add_u32 s93, s91, 0x100\ns_add_u32 s94, s89, 0x80")
        I(f"s_cmp_lg_u32 s{self.sISV}, 0")
        I(f"s_cselect_b32 s91, s91, s89\ns_cselect_b32 s92, s92, s89\ns_cselect_b32 s93, s93, s90")
        I(f"s_cselect_b32 s90, {17*128}, s94")
        I(f"s_add_u32 s{self.sA}, s91, s87\ns_add_u32 s{self.sB}, s92, s87\ns_add_u32 s{self.sC}, s93, s88")
        I(f"s_add_u32 s{self.sA2}, s90, s87\ns_add_u32 s{self.sB2}, s94, s87")
        I(f"s_mul_i32 s{self.sM0}, s{self.sWV}, {CHUNK}\ns_lshl_b32 s{self.sM0B}, s{self.sWV}, 12")
        WQ, WG_ = 448 * 2688, 448 * 3584
        I(f"s_mov_b32 s{self.S_X+2}, {2048*896}\ns_mov_b32 s{self.S_X+3}, 0x20000")
        I(f"s_cmp_lg_u32 s{self.sISV}, 0")
        for s_ in (self.S_A, self.S_B):
            I(f"s_mov_b32 s{s_+2}, {WG_}\ns_cselect_b32 s{s_+2}, {WQ}, s{s_+2}\ns_mov_b32 s{s_+3}, 0x20000")
        I(f"s_mov_b32 s{self.S_C+2}, {WQ}\ns_mov_b32 s{self.S_C+3}, 0x20000")
        b.raw("s_waitcnt lgkmcnt(0)")
        if self.o.ts and not self.o.lite:
            b.raw(f"{'s_memtime' if self.o.cyc else 's_memrealtime'} s[96:97]")
            b.raw("s_waitcnt lgkmcnt(0)")
            I("s_mov_b32 s99, s96")
        I(f"s_mov_b32 s{self.S_X}, s64\ns_mov_b32 s{self.S_X+1}, s65")
        for s_, lo in ((self.S_A, 72), (self.S_B, 74)):
            I(f"s_cselect_b32 s{s_}, s66, s{lo}\ns_cselect_b32 s{s_+1}, s67, s{lo+1}")
        I(f"s_mov_b32 s{self.S_C}, s66\ns_mov_b32 s{self.S_C+1}, s67")
        srd = lambda s_: f"s[{s_}:{s_+3}]"
        if self.o.coop:
            self.pf(41, self.S_X, "s6")
            self.pf(self.vPFW, self.S_A, "s91")
            self.pf(self.vPFW, self.S_B, "s92")
            self.pf(self.vPFC, self.S_C, "s93")
        self.sts()
        for ins in self.dma_stageA(0):
            ins()
        self.sts()
        I(f"s_mov_b32 s{self.S_WS+2}, {WS_SIZE}\ns_mov_b32 s{self.S_WS+3}, 0x20000")
        I(f"v_mov_b32 v{self.vZ}, 0\ns_mov_b32 s86, {E_OFF}")
        I(f"buffer_load_dword v{self.vPOLL}, v{self.vZ}, s[{self.S_WS}:{self.S_WS+3}], s86 offen sc1", tag="E")
        for st in range(1, self.o.lead):
            for ins in self.dma_stageA(st):
                ins()
        self.sts()
        self.srd(self.S_WD, "s76", "s77", 1792 * 896)
        self.srd(self.S_WO, "s68", "s69", 448 * 896)
        self.srd(self.S_OUT, "s80", "s81", 2048 * 896)
        I(f"s_mov_b64 s[{self.pDBG}:{self.pDBG+1}], s[82:83]\ns_mov_b64 s[{self.pGW}:{self.pGW+1}], s[78:79]")
        if self.o.ts:
            I(f"s_lshl_b32 s86, s2, 2\ns_add_u32 s86, s86, s{self.sWV}\ns_lshl_b32 s86, s86, 7\ns_add_u32 s{self.sTS}, s86, {TS_OFF}")
        I(f"s_lshr_b32 s86, s{self.sWV}, 1\ns_and_b32 s87, s{self.sWV}, 1")
        I("v_and_b32 v35, 31, v0\nv_lshrrev_b32 v36, 5, v0")
        I("v_bfe_u32 v37, v0, 1, 3\nv_xor_b32 v37, v37, v36")
        I(f"s_mul_i32 s88, s86, {2*CHUNK}\nv_lshlrev_b32 v38, 7, v35\nv_add_u32 v38, s88, v38")
        for ks in range(4):
            I(f"v_xor_b32 v39, {2*ks}, v37\nv_lshl_add_u32 v{self.vXR+ks}, v39, 4, v38")
        I("v_bfe_u32 v37, v0, 2, 2\nv_lshl_add_u32 v38, v36, 3, v37\nv_lshlrev_b32 v38, 7, v38")
        I("v_and_b32 v39, 1, v0\nv_lshlrev_b32 v39, 4, v39\nv_bfe_u32 v40, v0, 1, 1\nv_lshl_add_u32 v39, v40, 3, v39")
        I("v_add_u32 v38, v38, v39")
        I("v_bfe_u32 v39, v0, 4, 1\nv_and_b32 v40, 2, v37\nv_xor_b32 v40, v40, v39")
        I("s_lshl_b32 s88, s87, 1")
        I("v_xor_b32 v41, s88, v40")
        I(f"v_lshl_add_u32 v42, v41, 5, v38")
        I(f"v_add_u32 v{self.vWR}, 0x1000, v42")
        I(f"v_lshl_add_u32 v{self.vWR+1}, v39, 11, v42")
        I(f"v_xor_b32 v{self.vWR+2}, 32, v{self.vWR+1}")
        for st in (1, 2):
            for i in range(4):
                I(f"v_add_u32 v{self.vXR+4*st+i}, {65536*st}, v{self.vXR+i}")
            for i in range(3):
                I(f"v_add_u32 v{self.vWR+3*st+i}, {65536*st}, v{self.vWR+i}")
        I(f"s_lshl_b32 s88, s{self.sRB}, 2\ns_lshl_b32 s89, s86, 1\ns_add_u32 s88, s88, s89")
        I(f"s_mul_i32 s89, s88, {QKV_MT}\ns_lshl_b32 s90, s87, 11\ns_add_u32 s89, s89, s90")
        I(f"s_lshl_b32 s90, s{self.sJ}, 12\ns_lshl_b32 s91, s{self.sJ}, 14\ns_sub_u32 s91, s91, {40*4096}")
        I(f"s_cmp_lg_u32 s{self.sISV}, 0\ns_cselect_b32 s90, s91, s90\ns_add_u32 s{self.sQ0}, s89, s90")
        I(f"s_add_u32 s{self.sQ1}, s{self.sQ0}, {QKV_MT}")
        I(f"s_mul_i32 s89, s88, {HO_MT}\ns_lshl_b32 s90, s{self.sJ}, 13\ns_lshl_b32 s91, s87, 11\ns_add_u32 s89, s89, s90")
        I(f"s_add_u32 s89, s89, s91\ns_add_u32 s{self.sH0}, s89, {HO_OFF}\ns_add_u32 s{self.sH1}, s{self.sH0}, {HO_MT}")
        I(f"s_mov_b32 s{self.sNL2E}, {f32hex(-LOG2E)}\ns_mov_b32 s{self.sCS}, {f32hex(LOG2E / math.sqrt(28.0))}")
        I(f"s_lshl_b32 s88, s{self.sRB}, 8\ns_lshl_b32 s89, s{self.sJ}, 2\ns_add_u32 s88, s88, s89\ns_add_u32 s88, s88, {FL_OFF}")
        I(f"v_mov_b32 v{self.vFL}, s88")
        self.sts()
        self.setup = self.record(lambda: (self.poll_setup_att(), self.att_setup(), self.final_setup()))

    def record(self, fn):
        L = []
        real = self.I
        self.I = lambda t, tag=None: L.append(lambda: real(t, tag))
        fn()
        del self.I
        return L

    def dma_stageA(self, st):
        I = self.I
        base = (st % 4) * SLOT
        tag = f"st{st}"
        L = []
        L.append(lambda: I(f"s_add_u32 m0, s{self.sM0}, {base}"))
        for bq in range(4):
            L.append(lambda bq=bq: I(f"buffer_load_dwordx4 v{self.vXD+bq}, s[{self.S_X}:{self.S_X+3}], s{self.sX} offen offset:{1024*bq} lds", tag))
        prev = lambda: I(f"s_add_u32 s{self.sX}, s{self.sX}, 0x80")
        for seg, (srd, so, stp) in enumerate(((self.S_A, self.sA, self.sSAB), (self.S_B, self.sB, self.sSAB), (self.S_C, self.sC, None))):
            L.append(lambda seg=seg: I(f"s_add_u32 m0, s{self.sM0}, {base + 4096 + 2048*seg}"))
            L.append(prev)
            for e in range(2):
                L.append(lambda seg=seg, e=e, srd=srd, so=so: I(f"buffer_load_dwordx4 v{self.vWD+2*seg+e}, s[{srd}:{srd+3}], s{so} offen offset:{1024*e} lds", tag))
            prev = lambda so=so, stp=stp: I(f"s_add_u32 s{so}, s{so}, " + (f"s{stp}" if stp else str(64*2688)))
        L.append(prev)
        return L

    def dma_stageB(self, t):
        I = self.I
        base = PB_BASE[t]
        tag = f"st{7+t}"
        L = []
        prev = None
        if t == 0:
            prev = lambda: I(f"s_cmp_lg_u32 s{self.sISV}, 0\ns_cselect_b32 s{self.S_B+2}, 0, s{self.S_B+2}")
        for seg, (srd, so) in enumerate(((self.S_A, self.sA2), (self.S_B, self.sB2))):
            L.append(lambda seg=seg: I(f"s_add_u32 m0, s{self.sM0B}, {base + 2048*seg}"))
            if prev:
                L.append(prev)
            for e in range(2):
                L.append(lambda seg=seg, e=e, srd=srd, so=so: I(f"buffer_load_dwordx4 v{self.vWD+2*seg+e}, s[{srd}:{srd+3}], s{so} offen offset:{1024*e} lds", tag))
            prev = lambda so=so: I(f"s_add_u32 s{so}, s{so}, s{self.sSAB}")
        L.append(prev)
        return L

    def rd_w(self, bufset, slot_t, addr_t, const):
        out = []
        r = self.wf(bufset, slot_t)
        for e in range(2):
            v, imm = self.lds(self.vWR, 3, addr_t, const + 512 * e)
            out.append(lambda r=r, e=e, v=v, imm=imm: self.I(f"ds_read_b64_tr_b16 a[{r+2*e}:{r+2*e+1}], {v} offset:{imm}"))
        return out

    def rd_x(self, M, n):
        st, ks = divmod(n, 4)
        v, imm = self.lds(self.vXR, 4, ks, (st % 4) * SLOT + M * CHUNK)
        return [lambda: self.I(f"ds_read_b128 {self.xf(M, n)}, {v} offset:{imm}")]

    def readsA(self, n):
        st, ks = divmod(n, 4)
        c = (st % 4) * SLOT + ks * CHUNK + 4096
        bs = n % 2
        return [self.rd_w(bs, 0, 0, c), self.rd_x(0, n) + self.rd_x(1, n), self.rd_w(bs, 1, 1, c), self.rd_w(bs, 2, 2, c)]

    def readsB(self, n):
        t, ks = divmod(n, 4)
        c = PB_BASE[t] + ks * 4096
        bs = n % 2
        return [self.rd_w(bs, 1, 1, c), self.rd_w(bs, 2, 2, c)]

    def mfma(self, d, a, bb, first):
        c = "0" if first else f"v[{d}:{d+15}]"
        self.I(f"v_mfma_f32_32x32x16_bf16 v[{d}:{d+15}], {a}, {bb}, {c}")

    def dbg_load(self, tag=None):
        self.I(f"global_load_dword v{self.vPOLL}, v{self.vZ}, s[{self.pDBG}:{self.pDBG+1}] sc1", tag)

    def pf(self, v, srd, so):
        self.I(f"buffer_load_dword v{self.vT+12}, v{v}, s[{srd}:{srd+3}], {so} offen", "pf")
        self.b.vm[-1] = (set(), "pf")

    def passA(self):
        I, b, o = self.I, self.b, self.o
        b.wait_tags(("st0",))
        self.ts()
        if o.thr:
            I(f"s_getreg_b32 s86, hwreg(HW_REG_XCC_ID, 0, 4)\ns_and_b32 s87, s2, 7\ns_cmp_lg_u32 s86, s87\ns_cbranch_scc0 L_xok")
            kv = list(b.vm)
            I(f"v_mov_b32 v34, 1\nglobal_store_dword v{self.vZ}, v34, s[{self.pDBG}:{self.pDBG+1}] offset:128 sc1")
            b.vm = kv
            b.label("L_xok")
        I(f"s_or_b32 s86, s2, s{self.sWV}\ns_cmp_eq_u32 s86, 0\ns_cbranch_scc0 L_notag")
        snap_vm = list(b.vm)
        I(f"v_add_u32 v34, 2, v{self.vPOLL}\nv_or_b32 v34, 1, v34\ns_mov_b32 s86, {E_OFF}")
        if o.thr:
            I("v_mov_b32 v34, s98\nv_or_b32 v34, 1, v34")
        I(f"s_mov_b64 exec, 1")
        I(f"buffer_store_dword v34, v{self.vZ}, s[{self.S_WS}:{self.S_WS+3}], s86 offen sc1")
        I(f"global_store_dword v{self.vZ}, v34, s[{self.pDBG}:{self.pDBG+1}] sc1")
        I(f"s_mov_b64 exec, -1")
        b.vm = [(set(), t) if t == "E" else (d, t) for d, t in snap_vm]
        b.label("L_notag")
        I("s_barrier")
        for grp in self.readsA(0):
            for f in grp:
                f()
        def stream(v):
            if v <= 6:
                return self.dma_stageA(v)
            if v == 7:
                return self.dma_stageB(0) + self.dma_stageB(1)
            if v == 8:
                return self.dma_stageB(2) + self.dma_stageB(3)
            return []
        pend = []
        nsetup = 0
        for n in range(28):
            st, ks = divmod(n, 4)
            bs = n % 2
            nxt = self.readsA(n + 1) if n < 27 else self.readsB(0)
            gaps = [[] for _ in range(6)]
            if ks == 0:
                pend += stream(st + o.lead)
            if ks == 3:
                def bar(st=st):
                    tags = (f"st{st+1}",) if st < 6 else ("st7", "st8")
                    b.wait_tags(tags, lg_all=True)
                    I("s_barrier")
                gaps[0].append(bar)
            extra = []
            if n == 13:
                extra.append(lambda: self.dbg_load("tagrd"))
            for i, grp in enumerate(nxt):
                gaps[i] += grp
            left = 4 - ks
            quota = -(-len(pend) // left)
            for gi, cap in ((2, 1), (3, 1), (4, 2), (5, 3)):
                for _ in range(cap):
                    if pend and quota > 0:
                        gaps[gi].append(pend.pop(0))
                        quota -= 1
            gaps[5] += extra
            cnt = min(math.ceil(len(self.setup) * (n + 1) / 26), len(self.setup)) - nsetup
            for k in range(cnt):
                gaps[min(5, 2 + (k * 4 + 2) // cnt)].append(self.setup[nsetup])
                nsetup += 1
            i = 0
            for t in range(3):
                for M in range(2):
                    r = self.wf(bs, t)
                    self.mfma(self.acc(self.ACC_A, t, M), f"a[{r}:{r+3}]", self.xf(M, n), n == 0)
                    for f in gaps[i]:
                        f()
                    i += 1
        assert not pend
        rest = []
        for v in range(7 + o.lead, 9):
            rest += stream(v)
        self.pend = rest + self.dma_stageB(4) + self.dma_stageB(5) + self.dma_stageB(6)

    def get_tag(self):
        I, b = self.I, self.b
        u = self.uid()
        I(f"v_readfirstlane_b32 s{self.sTAG}, v{self.vPOLL}")
        I(f"s_cmp_lg_u32 s{self.sTAG}, 0\ns_cbranch_scc1 L_gottag{u}")
        keep_vm, keep_lg = list(b.vm), list(b.lg)
        I(f"s_mov_b32 s{self.sSPIN}, 0")
        b.label(f"L_tagspin{u}")
        self.dbg_load()
        I(f"s_add_u32 s{self.sSPIN}, s{self.sSPIN}, 1\ns_cmp_gt_u32 s{self.sSPIN}, {SPIN_MAX}\ns_cbranch_scc1 L_exit")
        I(f"v_readfirstlane_b32 s{self.sTAG}, v{self.vPOLL}")
        I(f"s_cmp_lg_u32 s{self.sTAG}, 0\ns_cbranch_scc0 L_tagspin{u}")
        b.vm, b.lg = keep_vm, keep_lg
        b.label(f"L_gottag{u}")

    def cvt_store(self, r, so, imm, tag, voff=None):
        L = []
        for i in range(4):
            L.append(lambda i=i: self.I(f"v_cvt_pk_bf16_f32 v{r+i}, v{r+2*i}, v{r+2*i+1}"))
        v = self.vL16 if voff is None else voff
        L.append(lambda: self.I(f"buffer_store_dwordx4 v[{r}:{r+3}], v{v}, s[{self.S_WS}:{self.S_WS+3}], s{so} offen offset:{imm} sc1", tag))
        return L

    def sigmoid_tile(self, r, so, imm, tag, pk):
        I = self.I
        L = []
        if pk:
            for i in range(0, 8, 2):
                L.append(lambda i=i: I(f"v_pk_mul_f32 v[{r+i}:{r+i+1}], v[{r+i}:{r+i+1}], s[{self.sNL2E}:{self.sNL2E+1}] op_sel_hi:[1,0]"))
        else:
            for i in range(8):
                L.append(lambda i=i: I(f"v_mul_f32 v{r+i}, s{self.sNL2E}, v{r+i}"))
        for i in range(8):
            L.append(lambda i=i: I(f"v_exp_f32 v{r+i}, v{r+i}"))
        if pk:
            for i in range(0, 8, 2):
                L.append(lambda i=i: I(f"v_pk_add_f32 v[{r+i}:{r+i+1}], v[{r+i}:{r+i+1}], 1.0 op_sel_hi:[1,0]"))
        else:
            for i in range(8):
                L.append(lambda i=i: I(f"v_add_f32 v{r+i}, 1.0, v{r+i}"))
        for i in range(8):
            L.append(lambda i=i: I(f"v_rcp_f32 v{r+i}, v{r+i}"))
        if pk:
            for i in range(0, 8, 2):
                L.append(lambda i=i: I(f"v_pk_mul_f32 v[{r+i}:{r+i+1}], v[{r+i}:{r+i+1}], v[{r+8+i}:{r+9+i}]"))
        else:
            for i in range(8):
                L.append(lambda i=i: I(f"v_mul_f32 v{r+i}, v{r+i}, v{r+8+i}"))
        return L + self.cvt_store(r, so, imm, tag)

    def flag_store(self, phase):
        I = self.I
        lab = f"L_nofl{self.uid()}"
        I(f"s_cmp_eq_u32 s{self.sWV}, 0\ns_cbranch_scc0 {lab}")
        keep = list(self.b.vm)
        I(f"v_mov_b32 v{self.vT}, s{self.sTAG}\ns_mov_b64 exec, 1")
        I(f"s_movk_i32 s86, {4096*phase}")
        I(f"buffer_store_dword v{self.vT}, v{self.vFL}, s[{self.S_WS}:{self.S_WS+3}], s86 offen sc1")
        I("s_mov_b64 exec, -1")
        self.b.vm = keep
        self.b.label(lab)

    _uid = 0

    def uid(self):
        self._uid += 1
        return self._uid

    @staticmethod
    def weave(main, side, start=0.0, end=1.0):
        out = []
        n = len(main)
        a, e = int(start * n), max(int(end * n), int(start * n) + 1)
        k = 0
        for i, f in enumerate(main):
            out.append(f)
            if i >= a:
                want = min(len(side), math.ceil(len(side) * (i - a + 1) / (e - a)))
                while k < want:
                    out.append(side[k]); k += 1
        out += side[k:]
        return out

    def passB_GU(self):
        I, b, o = self.I, self.b, self.o
        pend = list(self.pend)
        epi = []
        for M, so in ((0, self.sQ0), (1, self.sQ1)):
            r = self.acc(self.ACC_A, 0, M)
            epi += self.cvt_store(r, so, 0, "qk") + self.cvt_store(r + 8, so, 1024, "qk")
        nqk = len(epi)
        for t in (1, 2):
            for M, so in ((0, self.sH0), (1, self.sH1)):
                epi += self.sigmoid_tile(self.acc(self.ACC_A, t, M), so, 1024 * (t - 1), "h", o.pkB)
        epi += self.att_masks()
        total = len(epi)
        first_gap = 3
        ngaps = 4 * 28
        done = 0
        g = 0
        for n in range(28):
            bs = n % 2
            gaps = [[] for _ in range(4)]
            if n in o.bs:
                self.ts()
            if n == 7:
                gaps[0].append(lambda: (b.wait_tags(("st9", "st10")), I("s_barrier")))
            if n == o.fl0 and n != 15:
                gaps[0].append(lambda: (b.wait_tags(("qk",)), I("s_barrier"), self.flag_store(0)))
            if n == 15:
                def bar():
                    b.wait_tags(("st11", "st12", "st13", "qk"), lg_all=True)
                    I("s_barrier")
                    if o.fl0 == 15:
                        self.flag_store(0)
                gaps[0].append(bar)
            if n < 27:
                nx = self.readsB(n + 1)
                gaps[0] += nx[0]
                gaps[1] += nx[1]
            if n == 1:
                gaps[3].append(self.get_tag)
            if o.fl0 + 1 <= n < o.fl0 + 1 + self.NB1:
                pend += self.fin_dma(n - o.fl0 - 1)
            if n == o.kchk:
                pend += [lambda: self.poll_check(self.vAP, self.vPOLL, self.sMSK)] + self.record(self.att_loads_K) + [lambda: self.poll_issue(self.vAP, self.vPOLL)]
            for gi in (2, 3):
                for _ in range(2 if n < o.kchk else 4):
                    if pend:
                        gaps[gi].append(pend.pop(0))
            if n == o.kpoll:
                gaps[3].append(lambda: self.poll_issue(self.vAP, self.vPOLL))
            i = 0
            for t in range(2):
                for M in range(2):
                    r = self.wf(bs, t + 1)
                    self.mfma(self.acc(self.ACC_B, t, M), f"a[{r}:{r+3}]", self.xf(M, n), n == 0)
                    for f in gaps[i]:
                        f()
                    g += 1
                    if g > first_gap:
                        want = min(total, math.ceil(total * (g - first_gap) / (4 * o.epi_end - first_gap)))
                        want = max(want, min(nqk, 3 * (g - first_gap)))
                        while done < want:
                            epi[done]()
                            done += 1
                    i += 1
        assert done == total and not pend
        self.ts()
        I(f"s_add_u32 s{self.sH0}, s{self.sH0}, 0x1000\ns_add_u32 s{self.sH1}, s{self.sH1}, 0x1000")
        T = []
        for t in (0, 1):
            for M, so in ((0, self.sH0), (1, self.sH1)):
                T.append(self.sigmoid_tile(self.acc(self.ACC_B, t, M), so, 1024 * t, "h", o.pk))
        self.postB(T)

    NB1 = 8

    def postB(self, T):
        I, b, o = self.I, self.b, self.o
        KF = self.KF
        rd = [f for s_ in range(self.NB1) for f in self.fin_rdw(s_)]
        for f in self.weave(T[0], rd[:16], 0.1, 1.0):
            f()
        self.poll_check(self.vAP, self.vPOLL, self.sMSK2)
        self.att_loads_V()
        for f in self.weave(T[1], rd[16:], 0.0, 1.0):
            f()
        self.ts()
        b.wait_tags(("K",))
        I(f"ds_write_b64 v{self.vP+6}, v[{self.vP}:{self.vP+1}]")
        I(f"ds_write_b64 v{self.vP+7}, v[{self.vP+2}:{self.vP+3}] offset:4096")
        q = self.vQ
        I(f"v_bfi_b32 v{q}, v{self.vMA}, v{q}, v{self.vP+4}\nv_and_b32 v{q+1}, v{self.vMA}, v{q+1}")
        I(f"v_bfi_b32 v{q+6}, v{self.vMB}, v{q+6}, v{self.vP+4}\nv_and_b32 v{q+7}, v{self.vMB}, v{q+7}")
        b.waitcnt(lg=0)
        I("s_barrier")
        self.ts()
        order = [8, 0, 7, 6, 5, 4, 3, 2, 1]

        def rdk(n):
            for s_ in range(2):
                r = KF + (n % 3) * 8 + 4 * s_
                I(f"ds_read_b128 v[{r}:{r+3}], v{self.vKA} offset:{2048*order[n] + 1024*s_}")
        rdk(0)
        rdk(1)
        m = self.vM
        mx = []

        def maxops(n):
            s0 = self.S(order[n])
            return [(lambda k=k: I(f"v_max_f32 v{m}, v{s0}, v{s0+1}" if (n == 0 and k == 0) else f"v_max3_f32 v{m}, v{m}, v{s0+k}, v{s0+k+1}")) for k in range(0, 16, 2)]
        vs = list(T[2]) + list(T[3][:-1])
        KH = 11
        bg = [f for s_ in range(self.NB1, self.NB1 + o.nbq) for f in self.fin_dma(s_)]
        self.bg_rest = self.NB1 + o.nbq
        for k in range(18):
            n, half = divmod(k, 2)
            d = self.S(order[n])
            r = KF + (n % 3) * 8 + 4 * half
            c = f"v[{d}:{d+15}]" if (half or order[n] in (0, 8)) else "0"
            if order[n] == 1:
                assert not vs
            I(f"v_mfma_f32_32x32x16_bf16 v[{d}:{d+15}], v[{r}:{r+3}], v[{q+4*half}:{q+4*half+3}], {c}")
            if half == 0 and n + 2 < 9:
                rdk(n + 2)
            if half == 1 and n >= 1:
                mx += maxops(n - 1)
            nv = math.ceil(len(vs) / (KH - k + 1)) if k <= KH else 0
            for _ in range(nv):
                vs.pop(0)()
            if k == KH:
                T[3][-1]()
            for _ in range(math.ceil(len(bg) / (18 - k))):
                bg.pop(0)()
            for _ in range(max(0, 5 - nv) if k < 17 else len(mx)):
                if mx:
                    mx.pop(0)()
        self.mx_rest = maxops(8)

    def passB_V(self):
        I, b, o = self.I, self.b, self.o
        for f in list(self.pend):
            f()
        self.srd(self.S_C, f"s{self.pGW}", f"s{self.pGW+1}", 896)
        I(f"s_add_u32 m0, s{self.sM0B}, {PB_BASE[0] + 2048}")
        I(f"buffer_load_dwordx4 v{self.vL16}, s[{self.S_C}:{self.S_C+3}], 0 offen lds", "gw")
        I(f"s_sub_u32 s{self.sT1}, s{self.sQ0}, 0x2000\ns_sub_u32 s{self.sT2}, s{self.sQ1}, 0x2000")
        I(f"v_add_u32 v{self.vT+2}, 0x1000, v{self.vL16}")
        self.get_tag()
        epi = []
        for M, so in ((0, self.sQ0), (1, self.sQ1)):
            r = self.acc(self.ACC_A, 0, M)
            epi += self.cvt_store(r, so, 0, "qk") + self.cvt_store(r + 8, so, 1024, "qk")
        for t in (1, 2):
            for M, so in ((0, self.sT1), (1, self.sT2)):
                r = self.acc(self.ACC_A, t, M)
                epi += self.cvt_store(r, so, 1024 * (t - 1), "qk") + self.cvt_store(r + 8, so, 1024 * (t - 1), "qk", voff=self.vT + 2)
        I(f"s_and_b32 s88, s{self.sWV}, 1\ns_sub_u32 s89, s{self.sJ}, 14\ns_xor_b32 s88, s88, s89\ns_lshl_b32 s88, s88, 6")
        for st in range(3):
            I(f"v_xor_b32 v{self.vWR+3*st}, s88, v{self.vWR+3*st}\nv_subrev_u32 v{self.vWR+3*st}, 0x1000, v{self.vWR+3*st}")
        I(f"s_lshl_b32 s88, s{self.sRB}, 2\ns_add_u32 s88, s88, s{self.sWV}")
        I(f"s_mul_i32 s88, s88, {QKV_MT}\ns_lshl_b32 s89, s89, 11\ns_add_u32 s88, s88, s89")
        I(f"s_add_u32 s{self.sT3}, s88, {8*17*512}")
        I(f"v_lshrrev_b32 v{self.vT+3}, 5, v0\nv_lshlrev_b32 v{self.vT+3}, 4, v{self.vT+3}")
        I(f"s_add_u32 s88, s{self.sM0B}, {PB_BASE[0] + 2048}\nv_add_u32 v{self.vT+3}, s88, v{self.vT+3}")
        I(f"v_and_b32 v{self.vT+4}, 31, v0\nv_lshlrev_b32 v{self.vT+4}, 2, v{self.vT+4}")
        D = self.ACC_B
        I(f"s_bitcmp1_b32 s{self.sWV}, 0\ns_cbranch_scc1 L_v_wc1")
        snap = b.snapshot()
        for wc in range(2):
            if wc == 1:
                b.label("L_v_wc1")
                b.restore(snap)
            e = list(epi)

            def rdv(n):
                t, ks = divmod(n, 4)
                return self.rd_w(n % 2, 0, 0, PB_BASE[t] + ks * 4096)
            for f in rdv(0):
                f()
            for n in range(28):
                if n == 7:
                    b.wait_tags(("st9", "st10"))
                    I("s_barrier")
                if n == 15:
                    b.wait_tags(("st11", "st12", "st13"))
                    I("s_barrier")
                if n < 27:
                    for f in rdv(n + 1):
                        f()
                r = self.wf(n % 2, 0)
                self.mfma(D, f"a[{r}:{r+3}]", self.xf(wc, n), n == 0)
                for _ in range(3):
                    if e:
                        e.pop(0)()
            assert not e
            for f in self.cvt_store(D, self.sT3, 0, "qk") + self.cvt_store(D + 8, self.sT3, 1024, "qk"):
                f()
            b.wait_tags(("gw",))
            I(f"ds_read_b128 a[{self.WF}:{self.WF+3}], v{self.vT+3}")
            mk = self.att_masks()
            for n in range(28):
                if n < 27:
                    r = self.WF + 4 * ((n + 1) % 3)
                    I(f"ds_read_b128 a[{r}:{r+3}], v{self.vT+3} offset:{32*(n+1)}")
                r = self.WF + 4 * (n % 3)
                self.mfma(D + 16, f"a[{r}:{r+3}]", self.xf(wc, n), n == 0)
                for _ in range(2):
                    if mk:
                        mk.pop(0)()
            I(f"v_mov_b32 v{self.vT+5}, v{D+16}")
            if wc == 0:
                I("s_branch L_v_done")
        b.label("L_v_done")
        b.wait_tags(("qk",), lg_all=True)
        I("s_barrier")
        self.flag_store(0)
        for s_ in range(self.NB1):
            for f in self.fin_dma(s_):
                f()
        self.poll_issue(self.vAP, self.vPOLL)
        self.poll_check(self.vAP, self.vPOLL, self.sMSK)
        self.att_loads_K()
        self.poll_issue(self.vAP, self.vPOLL)
        for _ in o.bs:
            self.ts()
        self.ts()
        self.postB([[], [], [], [lambda: I(f"buffer_store_dword v{self.vT+5}, v{self.vT+4}, s[{self.S_WS}:{self.S_WS+3}], s{self.sZO} offen sc1", "h")]])

    def poll_setup_att(self):
        I = self.I
        v, t = self.vAP, self.vT
        I(f"v_lshrrev_b32 v{v}, 4, v0\nv_add_u32 v{v}, s{self.sRB}, v{v}\nv_subrev_u32 v{v}, 2, v{v}\nv_max_i32 v{v}, 0, v{v}")
        I(f"v_min_u32 v{v}, 15, v{v}\nv_lshlrev_b32 v{v}, 8, v{v}\nv_and_b32 v{t}, 15, v0\nv_lshl_add_u32 v{v}, v{t}, 2, v{v}")
        I(f"v_add_u32 v{v}, {FL_OFF}, v{v}")
        I(f"s_mul_i32 s86, s{self.sJ}, 28\ns_add_u32 s87, s86, 27\ns_lshr_b32 s86, s86, 6\ns_lshr_b32 s87, s87, 6")
        I("s_lshl_b32 s88, 1, s86\ns_lshl_b32 s89, 1, s87\ns_or_b32 s88, s88, s89")
        I("s_lshl_b32 s89, s88, 7")
        I(f"s_mul_i32 s{self.sMSK}, s89, 0x10001\ns_or_b32 s{self.sMSK+1}, s88, s89")
        I("s_cmp_le_u32 s86, 3\ns_cselect_b32 s90, 0x4000, 0\ns_cmp_ge_u32 s87, 3\ns_cselect_b32 s91, 0x8000, 0\ns_or_b32 s90, s90, s91")
        I(f"s_mul_i32 s{self.sMSK2}, s90, 0x10001\ns_mov_b32 s{self.sMSK2+1}, s90")

    def poll_issue(self, vaddr, vdst, soff="0"):
        self.I(f"buffer_load_dword v{vdst}, v{vaddr}, s[{self.S_WS}:{self.S_WS+3}], {soff} offen sc1", "poll")

    def poll_check(self, vaddr, vdst, smask, soff="0"):
        I, b = self.I, self.b
        u = self.uid()
        I(f"v_cmp_ne_u32 vcc, s{self.sTAG}, v{vdst}")
        I(f"s_and_b64 vcc, vcc, s[{smask}:{smask+1}]\ns_cbranch_scc0 L_pok{u}")
        keep_vm, keep_lg = list(b.vm), list(b.lg)
        I(f"s_mov_b32 s{self.sSPIN}, 0")
        b.label(f"L_psp{u}")
        I(f"buffer_load_dword v{vdst}, v{vaddr}, s[{self.S_WS}:{self.S_WS+3}], {soff} offen sc1")
        I(f"s_add_u32 s{self.sSPIN}, s{self.sSPIN}, 1\ns_cmp_gt_u32 s{self.sSPIN}, {SPIN_MAX}\ns_cbranch_scc1 L_exit")
        I(f"v_cmp_ne_u32 vcc, s{self.sTAG}, v{vdst}")
        I(f"s_and_b64 vcc, vcc, s[{smask}:{smask+1}]\ns_cbranch_scc1 L_psp{u}")
        b.vm, b.lg = keep_vm, keep_lg
        b.label(f"L_pok{u}")

    def S(self, i):
        return self.SREG[i]

    def att_setup(self):
        I = self.I
        h = self.sJ
        I(f"s_and_b32 s86, s{h}, 1\ns_sub_u32 s{self.sPAR}, 0, s86\ns_mov_b32 s{self.sPAR+1}, s{self.sPAR}")
        I(f"s_mul_i32 s87, s{h}, 7\ns_lshr_b32 s87, s87, 1\ns_lshl_b32 s87, s87, 9")
        I(f"s_lshl_b32 s88, s{self.sRB}, 2\ns_mul_i32 s89, s{self.sWV}, 3\ns_add_u32 s89, s89, s88\ns_sub_u32 s89, s89, 8")
        for i in range(3):
            I(f"s_add_u32 s90, s89, {i}\ns_max_i32 s90, s90, 0\ns_mul_i32 s90, s90, {QKV_MT}\ns_add_u32 s90, s90, s87")
            I(f"s_add_u32 s{self.sKT+i}, s90, {56*512}")
        v = self.vT
        I(f"v_lshrrev_b32 v{v}, 5, v0\nv_add_u32 v{v+1}, s89, v{v}\nv_mov_b32 v{v+2}, 0xf149")
        I(f"v_cmp_gt_i32 vcc, 0, v{v+1}\nv_cndmask_b32 v{self.vP}, 0, v{v+2}, vcc\nv_mov_b32 v{self.vP+1}, 0")
        I(f"s_add_u32 s90, s89, 2\ns_cmp_lt_i32 s90, 0\ns_cselect_b32 s90, 0xf149, 0\nv_mov_b32 v{self.vP+2}, s90\nv_mov_b32 v{self.vP+3}, 0")
        I(f"v_mov_b32 v{self.vP+4}, 0x3f80\nv_mov_b32 v{self.vP+5}, 0")
        I(f"s_cmp_eq_u32 s86, 0\ns_cselect_b32 s90, {1536+8}, 0\ns_mul_i32 s91, s{self.sWV}, {3*2048}\ns_add_u32 s90, s90, s91\ns_add_u32 s90, s90, {KV_K}")
        I(f"v_and_b32 v{v+1}, 31, v0\nv_lshlrev_b32 v{v+1}, 4, v{v+1}\nv_add_u32 v{self.vP+7}, s90, v{v+1}\nv_lshl_add_u32 v{self.vP+6}, v{v}, 11, v{self.vP+7}")
        I(f"v_and_b32 v{v+1}, 31, v0\nv_lshlrev_b32 v{v+2}, 2, v{v}\nv_xor_b32 v{v+1}, v{v+1}, v{v+2}\nv_lshlrev_b32 v{v+1}, 4, v{v+1}")
        I(f"v_lshl_add_u32 v{self.vP+8}, v{v}, 9, v{v+1}\nv_xor_b32 v{self.vP+9}, 0x80, v{self.vP+8}")
        I(f"s_lshl_b32 s90, s{self.sWV}, 11\ns_add_u32 s91, s90, {KV_K}\nv_add_u32 v{self.vKA}, s91, v{self.vL16}")
        I(f"v_bfe_u32 v{v+1}, v0, 4, 1\nv_bfe_u32 v{v+2}, v0, 1, 1\nv_lshl_add_u32 v{v+1}, v{v+1}, 1, v{v+2}")
        I(f"v_xor_b32 v{v+2}, v{v}, v{v+1}\nv_lshlrev_b32 v{v+2}, 2, v{v+2}\nv_bfe_u32 v{v+3}, v0, 2, 2\nv_add_u32 v{v+2}, v{v+2}, v{v+3}")
        I(f"v_lshlrev_b32 v{v+2}, 4, v{v+2}\nv_lshl_add_u32 v{v+2}, v{v+1}, 9, v{v+2}\nv_and_b32 v{v+3}, 1, v0\nv_lshl_add_u32 v{v+2}, v{v+3}, 3, v{v+2}")
        I(f"s_add_u32 s91, s90, {KV_V}\nv_add_u32 v{self.vVA}, s91, v{v+2}\nv_xor_b32 v{self.vVA+1}, 0x80, v{self.vVA}")
        I(f"v_subrev_u32 v{v+1}, 1, v{v}\nv_and_b32 v{v+1}, s{self.sPAR}, v{v+1}\nv_not_b32 v{self.vMA}, v{v+1}")
        I(f"v_sub_u32 v{v+1}, 0, v{v}\ns_not_b32 s91, s{self.sPAR}\nv_and_b32 v{v+1}, s91, v{v+1}\nv_not_b32 v{self.vMB}, v{v+1}")
        I(f"s_add_u32 s88, s88, s{self.sWV}\ns_mul_i32 s90, s88, {QKV_MT}\ns_add_u32 s{self.sQO}, s90, s87")
        I(f"s_mul_i32 s90, s88, {HO_MT}\ns_lshl_b32 s91, s{h}, 11\ns_add_u32 s90, s90, s91\ns_add_u32 s{self.sOO}, s90, {HO_OFF + 112*1024}")
        I(f"s_lshl_b32 s90, s88, 7\ns_add_u32 s{self.sZO}, s90, {Z_OFF}")
        m = self.vM
        I(f"v_lshlrev_b32 v{m}, 2, v{v}\nv_and_b32 v{m+1}, 31, v0\nv_sub_u32 v{m}, v{m+1}, v{m}\nv_mov_b32 v{m+1}, {NEG}")

    def att_masks(self):
        L = []
        v = self.vM
        pair = lambda r: f"s[{88+2*(r&1)}:{89+2*(r&1)}]"
        def cmp_(r):
            key = 8 * (r >> 2) + (r & 3)
            return lambda: self.I(f"v_cmp_gt_i32 {pair(r)}, {key}, v{v}")
        L.append(cmp_(0))
        for r in range(16):
            if r < 15:
                L.append(cmp_(r + 1))
            if r > 0:
                L.append(lambda r=r: self.I(f"v_sub_f32 v{self.S(0)+r-1}, v{v+1}, v{self.S(8)+r-1}"))
            L.append(lambda r=r: self.I(f"v_cndmask_b32 v{self.S(8)+r}, 0, v{v+1}, {pair(r)}"))
        L.append(lambda: self.I(f"v_sub_f32 v{self.S(0)+15}, v{v+1}, v{self.S(8)+15}"))
        return L

    def att_loads_K(self):
        I = self.I
        ws = f"s[{self.S_WS}:{self.S_WS+3}]"
        I(f"s_mul_i32 s86, s{self.sWV}, {3*2048}")
        for i in range(3):
            I(f"s_add_u32 m0, s86, {KV_K + 2048*i}")
            if i < 2:
                I(f"buffer_load_dwordx4 v[{self.vQ+4*i}:{self.vQ+4*i+3}], v{self.vL16}, {ws}, s{self.sQO} offen offset:{1024*i} sc1", "K")
            for e in range(2):
                I(f"buffer_load_dwordx4 v{self.vL16}, {ws}, s{self.sKT+i} offen offset:{1024*e} sc1 lds", "K")

    def att_loads_V(self):
        I = self.I
        ws = f"s[{self.S_WS}:{self.S_WS+3}]"
        I(f"s_mul_i32 s86, s{self.sWV}, {3*2048}")
        for i in range(3):
            I(f"s_add_u32 m0, s86, {KV_V + 2048*i}\ns_add_u32 s87, s{self.sKT+i}, {56*512}")
            for e in range(2):
                I(f"buffer_load_dwordx4 v{self.vP+8+e}, {ws}, s87 offen offset:{1024*e} sc1 lds", "V")

    def attention(self):
        I, b, o = self.I, self.b, self.o
        KF = self.KF
        m = self.vM
        order = [8, 7, 6, 5, 4, 3, 2, 1, 0]
        b.wait_tags(("V",))
        I(f"ds_write_b64 v{self.vP+6}, v[{self.vP+4}:{self.vP+5}] offset:{KV_V - KV_K}")
        I(f"ds_write_b64 v{self.vP+7}, v[{self.vP+4}:{self.vP+5}] offset:{KV_V - KV_K + 4096}")
        for f in self.mx_rest:
            f()
        b.waitcnt(lg=0)
        I("s_barrier")

        def rdv(i, bs):
            L = []
            for s in range(2):
                for e in range(2):
                    r = KF + bs * 8 + 4 * s + 2 * e
                    L.append(f"ds_read_b64_tr_b16 v[{r}:{r+1}], v{self.vVA+e} offset:{2048*i + 256*s}")
            return L
        for t in rdv(order[0], 0):
            I(t)
        I(f"v_mov_b32 v{m+1}, v{m}")
        I(f"v_permlane32_swap_b32 v{m}, v{m+1}")
        I(f"v_max_f32 v{m}, v{m}, v{m+1}")
        I(f"v_mul_f32 v{m}, s{self.sCS}, v{m}")
        I(f"s_mov_b32 s{self.sMSK}, 0x1ffff\ns_mov_b32 s{self.sMSK+1}, 0")
        self.ts()
        sched = {n: [] for n in range(9)}
        rd = lambda a, e: [f for s in range(a, e) for f in self.fin_rdw(s)]
        dm = lambda a, e: [f for s in range(a, e) for f in self.fin_dma(s)]
        pub = lambda: (b.wait_tags(("h",)), I("s_barrier"), self.flag_store(1))
        mid = (self.bg_rest + 22) // 2
        sched[0] = dm(self.bg_rest, mid)
        sched[1] = dm(mid, 22) + rd(8, 10)
        sched[2] = rd(10, 14) + dm(22, 25)
        sched[3] = dm(25, 28) + rd(14, 18)
        sched[4] = rd(18, 22) + dm(28, 31)
        sched[5] = dm(31, 36)
        sched[6] = rd(22, 28)
        hl = [f for s in range(o.nh0) for f in self.fin_hload(s)]
        sched[7] = hl[:len(hl) // 2]
        sched[8] = hl[len(hl) // 2:]
        sched[o.hpub] = sched[o.hpub] + [pub]
        sched[o.hpoll] = sched[o.hpoll] + [lambda: self.poll_issue(self.vFA, self.vPOLL)]
        sched[7] = [self.hook_poll_check] + sched[7]
        O = self.vO
        prev = None
        for n, i in enumerate(order):
            if n in o.ss:
                self.ts()
            d = self.S(i)
            p = self.vP + 8 * (n % 2)
            L = []
            if o.pk:
                for k in range(0, 16, 2):
                    L.append(f"v_pk_fma_f32 v[{d+k}:{d+k+1}], v[{d+k}:{d+k+1}], s[{self.sNL2E}:{self.sCS}], v[{m}:{m+1}] op_sel:[0,1,0] op_sel_hi:[1,1,0] neg_lo:[0,0,1] neg_hi:[0,0,1]")
            else:
                for k in range(16):
                    L.append(f"v_fma_f32 v{d+k}, v{d+k}, s{self.sCS}, -v{m}")
            ex = [f"v_exp_f32 v{d+k}, v{d+k}" for k in range(16)]
            cv = [f"v_cvt_pk_bf16_f32 v{p+k}, v{d+2*k}, v{d+2*k+1}" for k in range(8)]
            seq = L + ex + cv
            vr = rdv(order[n + 1], (n + 1) % 2) if n + 1 < 9 else []
            main = []
            for k, t in enumerate(seq):
                main.append(lambda t=t: I(t))
                if prev is not None and k == 1:
                    main.append(lambda t=prev[0]: I(t))
                if prev is not None and k == 7:
                    main.append(lambda t=prev[1]: I(t))
                if k >= 10 and vr:
                    main.append(lambda t=vr.pop(0): I(t))
            for f in self.weave(main, sched[n], 0.0, 1.0):
                f()
            r = KF + (n % 2) * 8
            prev = (f"v_mfma_f32_32x32x16_bf16 v[{O}:{O+15}], v[{r}:{r+3}], v[{p}:{p+3}], " + ("0" if n == 0 else f"v[{O}:{O+15}]"),
                    f"v_mfma_f32_32x32x16_bf16 v[{O}:{O+15}], v[{r+4}:{r+7}], v[{p+4}:{p+7}], v[{O}:{O+15}]")
        I(prev[0])
        I(prev[1])
        t = self.vQ
        I(f"v_mul_f32 v{t}, s{self.sNL2E}, v{self.vZZ}\nv_exp_f32 v{t}, v{t}")
        z = self.vZZ + 1
        for a in range(2):
            I(f"v_mul_f32 v{z+a}, s{self.sNL2E}, v{z+a}\nv_exp_f32 v{z+a}, -v{z+a}")
        I(f"v_add_f32 v{t}, 1.0, v{t}")
        for a in range(2):
            I(f"v_add_f32 v{z+a}, 1.0, v{z+a}\nv_rcp_f32 v{z+a}, v{z+a}")
        I(f"v_cndmask_b32 v{t+1}, v{O+12}, v{O}, s[{self.sPAR}:{self.sPAR+1}]\nv_mov_b32 v{t+2}, v{t+1}")
        I(f"v_permlane32_swap_b32 v{t+1}, v{t+2}")
        I(f"v_cndmask_b32 v{t+1}, v{t+2}, v{t+1}, s[{self.sPAR}:{self.sPAR+1}]")
        I(f"v_mul_f32 v{t}, v{t}, v{t+1}\nv_rcp_f32 v{t}, v{t}")
        I(f"v_and_b32 v{t+1}, v{self.vMA}, v{t}\nv_and_b32 v{t+2}, v{self.vMB}, v{t}")
        for k in range(16):
            sc = t + 1 if k == 0 else (t + 2 if k == 12 else t)
            I(f"v_mul_f32 v{O+k}, v{O+k}, v{sc}")
        for f in self.cvt_store(O, self.sOO, 0, "o") + self.cvt_store(O + 8, self.sOO, 1024, "o"):
            f()

    def hook_poll_check(self):
        I = self.I
        self.poll_check(self.vFA, self.vPOLL, self.sMSK)
        v = self.vT
        I(f"v_and_b32 v{v}, 31, v0\nv_lshlrev_b32 v{v}, 2, v{v}")
        ws = f"s[{self.S_WS}:{self.S_WS+3}]"
        I(f"buffer_load_dword v{self.vZZ}, v{v}, {ws}, s{self.sZO} offen sc1", "z")
        I(f"buffer_load_dword v{self.vZZ+1}, v{v}, {ws}, s{self.sZF} offen sc1", "z")
        I(f"s_xor_b32 s{self.sZF}, s{self.sZF}, 0x80")
        I(f"buffer_load_dword v{self.vZZ+2}, v{v}, {ws}, s{self.sZF} offen sc1", "z")

    RING = 14

    def ring_addr(self, e):
        return (1, 2048 * e) if e < 8 else (0, 2048 * (e - 8))

    def final_setup(self):
        I = self.I
        v = self.vT
        I("s_lshr_b32 s86, s2, 3\ns_and_b32 s87, s2, 7\ns_mul_i32 s88, s86, 37\ns_lshr_b32 s88, s88, 8")
        I(f"s_mul_i32 s89, s88, 7\ns_sub_u32 s89, s86, s89\ns_cmp_lt_u32 s86, 28\ns_cselect_b32 s{self.sFIN}, 1, 0")
        I("s_min_u32 s88, s88, 3\ns_lshl_b32 s87, s87, 2\ns_add_u32 s87, s87, s88")
        I(f"s_lshr_b32 s90, s{self.sWV}, 1\ns_and_b32 s91, s{self.sWV}, 1")
        I(f"s_lshl_b32 s92, s88, 1\ns_add_u32 s92, s92, s89\ns_cmp_ge_u32 s92, 7\ns_cselect_b32 s93, 7, 0\ns_sub_u32 s94, s92, s93")
        if self.o.rot != 1:
            I({0: "s_mov_b32 s94, 0", 2: "s_mov_b32 s94, s89", 3: "s_lshl_b32 s94, s88, 1"}[self.o.rot])
        I(f"s_sub_u32 s{self.sWRAP}, 7, s94\ns_and_b32 s86, s89, {1 if self.o.rot in (1, 2) else 0}")
        I(f"s_mul_i32 s92, s{self.sWV}, {448*896}\ns_lshl_b32 s89, s89, 7\ns_add_u32 s{self.sFW}, s92, s89")
        I(f"s_mul_i32 s92, s94, {64*896}\ns_add_u32 s{self.sFW}, s{self.sFW}, s92")
        I(f"s_mul_i32 s92, s{self.sWV}, {112*896}\ns_add_u32 s{self.sFWO}, s92, s89\ns_mul_i32 s92, s86, {56*896}\ns_add_u32 s{self.sFWO}, s{self.sFWO}, s92")
        I(f"s_cmp_lg_u32 s86, 0\ns_mov_b32 s{self.sDWO}, {16*896}\ns_cselect_b32 s{self.sDWO}, {(-96*896) & 0xFFFFFFFF}, s{self.sDWO}")
        I(f"s_cmp_lg_u32 s86, 0\ns_movk_i32 s{self.sDHO}, 0x1000\ns_cselect_b32 s{self.sDHO}, 0xfffff000, s{self.sDHO}")
        I(f"s_cmp_lg_u32 s{self.sFIN}, 0\ns_cselect_b32 s{self.S_WD+2}, s{self.S_WD+2}, 0\ns_cselect_b32 s{self.S_WO+2}, s{self.S_WO+2}, 0")
        I(f"s_mul_i32 s{self.sFM0}, s{self.sWV}, {12*K}\ns_add_u32 s{self.sFM0}, s{self.sFM0}, {RING_LO}")
        I(f"s_lshl_b32 s{self.sFM1}, s{self.sWV}, 14\ns_add_u32 s{self.sFM1}, s{self.sFM1}, {RING_HI}")
        I(f"v_lshrrev_b32 v{v}, 3, v0\nv_and_b32 v{v+1}, 2, v{v}\nv_lshlrev_b32 v{v+1}, 1, v{v+1}\nv_and_b32 v{v+2}, 7, v0\nv_xor_b32 v{v+1}, v{v+1}, v{v+2}")
        I(f"v_mul_u32_u24 v{v}, 0x380, v{v}\nv_lshl_add_u32 v{self.vFD}, v{v+1}, 4, v{v}\nv_add_u32 v{self.vFD+1}, {8*896-1024}, v{self.vFD}")
        I(f"v_bfe_u32 v{v}, v0, 2, 2\nv_lshrrev_b32 v{v+1}, 5, v0")
        I(f"v_and_b32 v{v+2}, 1, v0\nv_lshlrev_b32 v{v+2}, 4, v{v+2}\nv_bfe_u32 v{v+3}, v0, 1, 1\nv_lshl_add_u32 v{v+2}, v{v+3}, 3, v{v+2}")
        I(f"v_bfe_u32 v{v+3}, v0, 4, 1\nv_and_b32 v{v+4}, 2, v{v}\nv_xor_b32 v{v+3}, v{v+3}, v{v+4}\ns_lshl_b32 s92, s90, 1\nv_xor_b32 v{v+3}, s92, v{v+3}")
        I(f"v_lshl_add_u32 v{v+2}, v{v+3}, 5, v{v+2}\nv_lshl_add_u32 v{v+2}, v{v}, 7, v{v+2}")
        R = self.vFR
        I(f"v_lshl_add_u32 v{v+3}, v{v+1}, 10, v{v+2}\nv_add_u32 v{R}, s{self.sFM0}, v{v+3}\nv_xor_b32 v{R+1}, 64, v{R}")
        I(f"v_add_u32 v{R+2}, s{self.sFM1}, v{v+3}\nv_xor_b32 v{R+3}, 64, v{R+2}")
        I(f"v_lshlrev_b32 v{R+4}, 9, v{v+1}")
        I(f"s_lshl_b32 s93, s87, 1\ns_add_u32 s93, s93, s91\ns_mul_i32 s92, s93, {HO_MT}\ns_mul_i32 s88, s{self.sWV}, {28*1024}")
        I(f"s_add_u32 s92, s92, {HO_OFF - HO_MT}\ns_add_u32 s88, s88, s92\ns_lshl_b32 s94, s94, 12\ns_add_u32 s{self.sFH}, s88, s94")
        I(f"s_lshl_b32 s88, s{self.sWV}, 1\ns_add_u32 s88, s88, s86\ns_lshl_b32 s88, s88, 12\ns_add_u32 s88, s88, s92\ns_add_u32 s{self.sFHO}, s88, {112*1024}")
        I(f"s_cmp_eq_u32 s91, 0\ns_cselect_b32 s92, {2*HO_MT}, 0")
        I(f"v_add_u32 v{R+5}, {HO_MT}, v{self.vL16}\nv_add_u32 v{R+6}, s92, v{self.vL16}")
        I(f"s_mul_i32 s92, s93, {32*896}\ns_add_u32 s92, s92, s89\ns_lshl_b32 s88, s90, 6\ns_add_u32 s{self.sFO}, s92, s88")
        I(f"s_lshl_b32 s92, s93, 7\ns_add_u32 s{self.sZF}, s92, {Z_OFF}")
        I(f"s_lshr_b32 s87, s87, 1\ns_lshl_b32 s87, s87, 8\ns_add_u32 s87, s87, {FL_OFF + 4096}")
        I(f"s_lshl_b32 s88, s{self.sRB}, 8\ns_add_u32 s88, s88, {FL_OFF + 4096 + 56}")
        I(f"v_lshlrev_b32 v{v}, 2, v0\nv_add_u32 v{v}, s87, v{v}\nv_mov_b32 v{v+1}, s88\nv_cmp_gt_u32 vcc, 16, v0\nv_cndmask_b32 v{self.vFA}, v{v+1}, v{v}, vcc")

    def fin_dma(self, step):
        I, b = self.I, self.b
        hi, c = self.ring_addr(step % self.RING)
        sm = self.sFM1 if hi else self.sFM0

        def first():
            if step >= self.RING:
                need = None
                for i, (_d, t) in enumerate(b.lg):
                    if t == f"rw{step - self.RING}":
                        need = len(b.lg) - 1 - i
                assert f"rw{step - self.RING}" in self.rw_done, step
                b.waitcnt(lg=need)
            I(f"s_add_u32 m0, s{sm}, {c}")
        L = [first]
        if step < 28:
            srd, so = self.S_WD, self.sFW
        else:
            srd, so = self.S_WO, self.sFWO
        if 0 < step < 28 and step % 4 == 0:
            L.append(lambda: I(f"s_cmp_eq_u32 s{self.sWRAP}, {step//4}\ns_cselect_b32 s86, {(-448*896) & 0xFFFFFFFF}, 0\ns_add_u32 s{so}, s{so}, s86\ns_add_u32 s{so}, s{so}, {16*896}"))
        elif 0 < step < 28:
            L.append(lambda: I(f"s_add_u32 s{so}, s{so}, {16*896}"))
        elif step == 32:
            L.append(lambda: I(f"s_add_u32 s{so}, s{so}, s{self.sDWO}"))
        elif step > 28:
            rows = [0, 16, 24, 40]
            d = rows[step % 4] - rows[step % 4 - 1]
            L.append(lambda: I(f"s_add_u32 s{so}, s{so}, {d*896}"))
        for e in range(2):
            L.append(lambda e=e: I(f"buffer_load_dwordx4 v{self.vFD+e}, s[{srd}:{srd+3}], s{so} offen offset:{1024*e} lds", f"w{step}"))
        return L

    rw_done = set()

    def fw(self, step, t):
        return (step * 8 if step < 28 else 224 + (step % 2) * 8) + 4 * t

    def fin_rdw(self, step):
        hi, c = self.ring_addr(step % self.RING)
        L = []
        for t in range(2):
            for e in range(2):
                r = self.fw(step, t) + 2 * e
                imm = c + (512 if step < 28 else 1024) * e

                def f(r=r, t=t, e=e, imm=imm):
                    if t == 0 and e == 0:
                        self.b.wait_tags((f"w{step}",))
                    self.I(f"ds_read_b64_tr_b16 a[{r}:{r+1}], v{self.vFR + 2*hi + t} offset:{imm}", f"rw{step}")
                    if t == 1 and e == 1:
                        self.rw_done.add(f"rw{step}")
                L.append(f)
        return L

    def fin_hload(self, step):
        I = self.I
        L = []
        R = self.vFR
        imm = 1024 * ((step if step < 28 else step - 28) % 4)
        if step == 28:
            L.append(lambda: I(f"s_mov_b32 s{self.sFH}, s{self.sFHO}"))
        elif step == 32:
            L.append(lambda: I(f"s_add_u32 s{self.sFH}, s{self.sFH}, s{self.sDHO}"))
        elif step % 4 == 0 and step > 0:
            L.append(lambda: I(f"s_cmp_eq_u32 s{self.sWRAP}, {step//4}\ns_cselect_b32 s86, {(-28*1024) & 0xFFFFFFFF}, 0\ns_add_u32 s{self.sFH}, s{self.sFH}, s86\ns_add_u32 s{self.sFH}, s{self.sFH}, 0x1000"))
        for a in range(2):
            r = self.FH + (step % self.NH) * 8 + 4 * a
            L.append(lambda r=r, a=a: I(f"buffer_load_dwordx4 v[{r}:{r+3}], v{R+5+a}, s[{self.S_WS}:{self.S_WS+3}], s{self.sFH} offen offset:{imm} sc1", f"h{step}"))
        return L

    def final(self):
        I, b, o = self.I, self.b, self.o
        R = self.vFR
        z = self.vZZ + 1
        nh = o.nh0
        A = self.FACC
        I("\n".join(f"v_sub_u32 v{R+i}, v{R+i}, v{R+4}" for i in range(4)))
        I(f"s_mov_b32 s{self.sMSK}, 0xffff\ns_movk_i32 s{self.sT0}, 0x1000")
        for n in range(36):
            gaps = [[] for _ in range(4)]
            if n in o.fs:
                self.ts()
            if 28 <= n + 1 < 36:
                rd = self.fin_rdw(n + 1)
                gaps[0] += rd[:2]
                gaps[1] += rd[2:]
            if n == o.opub:
                gaps[0].append(lambda: (b.wait_tags(("o",)), I("s_barrier"), self.flag_store(2)))
            if n == o.opoll_issue:
                gaps[1].append(lambda: self.poll_issue(self.vFA, self.vPOLL, soff=f"s{self.sT0}"))
            lim = 28 if n < o.opoll_check else 36
            if n == o.opoll_check:
                gaps[0].append(lambda: self.poll_check(self.vFA, self.vPOLL, self.sMSK, soff=f"s{self.sT0}"))
            cnt = 0
            while nh < lim and nh - self.NH < n and cnt < o.hrate:
                hl = self.fin_hload(nh)
                gaps[(2 * cnt + 1) % 4] += hl[:-1]
                gaps[(2 * cnt + 2) % 4 if cnt == 0 else 3] += hl[-1:]
                nh += 1
                cnt += 1
            if n == 28:
                for s in range(4):
                    for k in range(0, 16, 2):
                        I(f"v_pk_mul_f32 v[{A[s]+k}:{A[s]+k+1}], v[{A[s]+k}:{A[s]+k+1}], v[{z}:{z+1}] op_sel:[0,{s&1}] op_sel_hi:[1,{s&1}]")
            i = 0
            tiles = [(0, 0), (0, 1), (1, 0), (1, 1)] if n < 35 else [(0, 1), (1, 0), (1, 1), (0, 0)]
            for t, a in tiles:
                rw = self.fw(n, t)
                rh = self.FH + (n % self.NH) * 8 + 4 * a
                self.mfma(A[2 * t + a], f"a[{rw}:{rw+3}]", f"v[{rh}:{rh+3}]", n == 0)
                for f in gaps[i]:
                    f()
                i += 1
        self.ts()
        v = self.vT
        I(f"v_add_u32 v{v}, s{self.sFM0}, v{self.vL16}")
        for sg in range(1, 4):
            I(f"s_xor_b32 s86, s{self.sWV}, {sg}\ns_mul_i32 s86, s86, {12*K}\ns_add_u32 s86, s86, {RING_LO}\nv_add_u32 v{v+sg}, s86, v{self.vL16}")
        for sg in range(1, 4):
            for q in range(4):
                r = A[sg] + 4 * q
                I(f"ds_write_b128 v{v}, v[{r}:{r+3}] offset:{(sg-1)*4096 + q*1024}")
        I(f"v_and_b32 v{v+4}, 31, v0\nv_mul_u32_u24 v{v+4}, 0x380, v{v+4}\nv_lshrrev_b32 v{v+5}, 5, v0\nv_lshl_add_u32 v{v+4}, v{v+5}, 4, v{v+4}")
        b.waitcnt(lg=0)
        I("s_barrier")
        T = self.FH
        for q in range(4):
            for sg in range(1, 4):
                r = T + 16 * (sg - 1) + 4 * q
                I(f"ds_read_b128 v[{r}:{r+3}], v{v+sg} offset:{(sg-1)*4096 + q*1024}")
        a0 = A[0]
        for h in range(2):
            for k in range(8 * h, 8 * h + 8, 2):
                for sg in range(1, 4):
                    r = T + 16 * (sg - 1) + k
                    I(f"v_pk_add_f32 v[{a0+k}:{a0+k+1}], v[{a0+k}:{a0+k+1}], v[{r}:{r+1}]")
            r = a0 + 8 * h
            for i in range(4):
                I(f"v_cvt_pk_bf16_f32 v{r+i}, v{r+2*i}, v{r+2*i+1}")
            if o.thr and h == 0:
                b.raw("s_memrealtime s[100:101]")
                b.raw("s_waitcnt lgkmcnt(0)")
                I(f"global_load_dword v{self.vPOLL}, v{self.vZ}, s[{self.pDBG}:{self.pDBG+1}] offset:128 sc1\nv_readfirstlane_b32 s101, v{self.vPOLL}")
                I(f"s_sub_u32 s100, s100, s{self.sTAG}\ns_cmp_gt_i32 s100, {o.thr}\ns_cselect_b32 s100, 0x7fc07fc0, 0")
                I(f"s_cmp_lg_u32 s101, 0\ns_cselect_b32 s100, 0, s100\nv_or_b32 v{r}, s100, v{r}")
            I(f"buffer_store_dwordx4 v[{r}:{r+3}], v{v+4}, s[{self.S_OUT}:{self.S_OUT+3}], s{self.sFO} offen offset:{32*h}")

    def build(self):
        I, b, o = self.I, self.b, self.o
        b.label(KNAME)
        self.prologue()
        self.ts(98)
        self.ts(99)
        self.sts_flush()
        self.ts()
        self.passA()
        self.ts()
        I(f"s_cmp_lg_u32 s{self.sISV}, 0\ns_cbranch_scc1 L_vpath")
        snap = b.snapshot()
        nts0 = self.nts
        self.passB_GU()
        gu_vm = list(b.vm)
        gu_lg = [t for _d, t in b.lg]
        I("s_branch L_join")
        b.label("L_vpath")
        b.restore(snap)
        self.nts = nts0
        self.passB_V()
        b.label("L_join")
        vt = [t for _d, t in b.vm]
        gt = [t for _d, t in gu_vm]
        after = lambda L, t: L[::-1].index(t) if t in L else 10 ** 6
        for t in set(vt) | set(gt):
            if t is not None:
                assert after(vt, t) <= after(gt, t), (t, vt, gt)
        assert [t for _d, t in b.lg] == gu_lg
        self.ts()
        self.attention()
        self.ts()
        I(f"s_cmp_lg_u32 s{self.sFIN}, 0\ns_cbranch_scc0 L_nofinal")
        snap2 = b.snapshot()
        self.final()
        if o.ts:
            b.wait_all()
            self.ts(last=True)
        I("s_endpgm")
        b.label("L_nofinal")
        b.restore(snap2)
        b.wait_tags(("o",))
        I("s_barrier")
        self.flag_store(2)
        b.label("L_exit")
        b.raw("s_endpgm")

    def text(self):
        hdr = open("gated_mix__sliding_block__glu_gated_glu__prompt.s.ref").read().split("; Override launch")[0]
        s = hdr
        s += "; Generated by my own generator script (hand-designed schedule; no compiler output).\n"
        s += "; @launch grid=(256,1,1) block=(256,1,1) lds=163840\n"
        s += '.amdgcn_target "amdgcn-amd-amdhsa--gfx950"\n.text\n'
        s += f".globl {KNAME}\n.p2align 8\n.type {KNAME},@function\n"
        s += self.b.text()
        s += f""".section .rodata,"a"
.p2align 6
.amdhsa_kernel {KNAME}
  .amdhsa_next_free_vgpr 512
  .amdhsa_next_free_sgpr 102
  .amdhsa_accum_offset 256
  .amdhsa_group_segment_fixed_size 0
  .amdhsa_kernarg_size 88
  .amdhsa_user_sgpr_count 2
  .amdhsa_user_sgpr_kernarg_segment_ptr 1
  .amdhsa_system_sgpr_workgroup_id_x 1
.end_amdhsa_kernel
"""
        return s


def main():
    ap = argparse.ArgumentParser()
    ap.add_argument("-o", default="k.s")
    ap.add_argument("--ts", action="store_true")
    ap.add_argument("--cyc", action="store_true")
    ap.add_argument("--badmap", type=int, default=0)
    ap.add_argument("--thr", type=int, default=0)
    ap.add_argument("--lite", action="store_true")
    ap.add_argument("--dbgts", type=int, default=0)
    ap.add_argument("--sts", action="store_true")
    ap.add_argument("--pk", type=int, default=1)
    ap.add_argument("--pkB", type=int, default=0)
    ap.add_argument("--align", type=int, default=1)
    ap.add_argument("--coop", type=int, default=0)
    ap.add_argument("--lead", type=int, default=2)
    ap.add_argument("--rot", type=int, default=0)
    ap.add_argument("--fl0", type=int, default=11)
    ap.add_argument("--kpoll", type=int, default=21)
    ap.add_argument("--kchk", type=int, default=25)
    ap.add_argument("--epi_end", type=int, default=28)
    ap.add_argument("--nbq", type=int, default=6)
    ap.add_argument("--hpub", type=int, default=1)
    ap.add_argument("--hpoll", type=int, default=5)
    ap.add_argument("--nh0", type=int, default=8)
    ap.add_argument("--hrate", type=int, default=2)
    ap.add_argument("--opub", type=int, default=6)
    ap.add_argument("--opoll_issue", type=int, default=14)
    ap.add_argument("--opoll_check", type=int, default=18)
    for k in ("fs", "bs", "ss"):
        ap.add_argument("--" + k, default="", type=lambda t: [int(x) for x in t.split(",") if x])
    o = ap.parse_args()
    g = G(o)
    g.build()
    open(o.o, "w").write(g.text())
    print(f"code bytes {g.b.off}, hazard nops {g.b.nops_added}, stamps {g.nts}", file=sys.stderr)


if __name__ == "__main__":
    main()
```

```python
import sys, math, argparse
from asmb import Builder

KNAME = "gated_mix__sliding_block__glu_gated_glu__prompt_kernel"
K = 1024
QKV_OFF = 0
QKV_MT = 168 * 512
HO_OFF = 0x600000
HO_MT = 144 * 1024
Z_OFF = 0xF00000
FL_OFF = 0xF10000
E_OFF = 0xF20000
TS_OFF = 0xF30000
WS_SIZE = 0x1000000
SLOT = 40 * K
CHUNK = 10 * K
PB_BASE = [120 * K, 136 * K, 0, 16 * K, 48 * K, 64 * K, 80 * K]
KV_K = 0
KV_V = 24 * K
RING_LO = 48 * K
RING_HI = 96 * K
NEG = 0xF149F2CA
LOG2E = 1.4426950408889634
SPIN_MAX = 1 << 18


def f32hex(x):
    import struct
    return "0x%08x" % struct.unpack("<I", struct.pack("<f", x))[0]


class G:
    def __init__(self, opt):
        self.o = opt
        self.b = Builder(align_opt=opt.align)
        self.nts = 0

    S_X, S_A, S_B, S_C, S_WS, S_WD, S_WO, S_OUT = 8, 12, 16, 20, 24, 28, 32, 36
    pDBG, pGW = 40, 42
    sWV, sRB, sJ, sISV = 44, 45, 46, 47
    sX, sA, sB, sC = 48, 49, 50, 51
    sSAB, sM0, sM0B, sA2, sB2 = 52, 53, 54, 55, 56
    sTAG = 57
    sQ0, sQ1, sH0, sH1 = 58, 59, 60, 61
    sNL2E, sCS = 62, 63
    sMSK, sMSK2, sPAR = 64, 66, 68
    sKT = 70
    sQO, sZO, sOO = 73, 74, 75
    sFIN, sFW, sFH, sFWO, sFM0, sFM1, sFO, sZF = 76, 77, 78, 79, 80, 81, 82, 83
    sSPIN, sT0 = 84, 85
    sT1, sT2, sT3 = 3, 4, 5
    sWRAP, sFHO, sDWO, sDHO = 0, 1, 6, 7
    sTS, sEX, sTM = 95, 96, 100
    vL16 = 1
    vXD = 2
    vWD = 6
    vXR = 12
    vWR = 24
    vT = 33
    vPFW, vPFC = 46, 47
    vPOLL = 48
    vZ = 49
    vFL = 50
    vAP = 51
    ACC_A = 52
    ACC_B = 148
    WF = 224
    KF = 4
    vO = 196
    vQ = 212
    vP = 220
    vKA = 236
    vVA = 237
    vM = 240
    vMA, vMB = 242, 239
    vZZ = 243
    vFA = 246
    vFD = 247
    vFR = 249
    FH = 84
    NH = 16
    FACC = [52, 68, 212, 228]
    SREG = {8: 52, 0: 68, 7: 84, 6: 100, 5: 116, 4: 132, 3: 148, 2: 164, 1: 180}

    def I(self, t, tag=None):
        self.b.I(t, tag)

    def srd(self, s, lo, hi, size):
        self.I(f"s_mov_b32 s{s}, {lo}\ns_mov_b32 s{s+1}, {hi}\ns_mov_b32 s{s+2}, {size}\ns_mov_b32 s{s+3}, 0x20000")

    def ts(self, sreg=None, last=False):
        if not self.o.ts or (self.o.lite and not last and sreg != 98):
            return
        n = self.nts
        self.nts += 1
        if sreg is None:
            self.b.raw(f"{'s_memtime' if self.o.cyc else 's_memrealtime'} s[{self.sTM}:{self.sTM+1}]")
            self.b.raw("s_waitcnt lgkmcnt(0)")
            self.b.lg = []
            sreg = self.sTM
        self.I(f"v_mov_b32 v{self.vT}, s{sreg}\nv_mov_b32 v{self.vT+1}, 0")
        self.I(f"s_mov_b64 s[{self.sEX}:{self.sEX+1}], exec\ns_mov_b64 exec, 1")
        if self.o.dbgts:
            u = self.uid()
            keep = list(self.b.vm)
            self.I(f"s_lshl_b32 s86, s2, 2\ns_add_u32 s86, s86, s{self.sWV}\ns_cmp_eq_u32 s86, {self.o.dbgts}\ns_cbranch_scc0 L_dts{u}")
            self.I(f"global_store_dword v{self.vT+1}, v{self.vT}, s[{self.pDBG}:{self.pDBG+1}] offset:{4*(n+1)} sc1")
            self.b.label(f"L_dts{u}")
            if n == 0 or last:
                self.I(f"s_cmp_eq_u32 s{self.sWV}, 0\ns_cbranch_scc0 L_dtt{u}")
                if n == 0:
                    self.I(f"v_not_b32 v{self.vT}, v{self.vT}")
                self.I(f"global_atomic_umax v{self.vT+1}, v{self.vT}, s[{self.pDBG}:{self.pDBG+1}] offset:{56 if n == 0 else 60} sc1")
                self.b.label(f"L_dtt{u}")
            self.b.vm = keep
        else:
            self.I(f"buffer_store_dword v{self.vT}, v{self.vT+1}, s[{self.S_WS}:{self.S_WS+3}], s{self.sTS} offen offset:{4*n}")
        self.I(f"s_mov_b64 exec, s[{self.sEX}:{self.sEX+1}]")

    soft = 0

    def sts(self):
        if not self.o.sts:
            return
        self.b.raw(f"{'s_memtime' if self.o.cyc else 's_memrealtime'} s[{self.sTM}:{self.sTM+1}]")
        self.b.raw("s_waitcnt lgkmcnt(0)")
        self.I(f"v_mov_b32 v{196+self.soft}, s{self.sTM}")
        self.soft += 1

    def sts_flush(self):
        for k in range(self.soft):
            self.I(f"v_readfirstlane_b32 s{self.sTM}, v{196+k}")
            self.ts(self.sTM)

    def lds(self, base, n, idx, const):
        return f"v{base + (const >> 16) * n + idx}", const & 0xFFFF

    def xf(self, M, n):
        r = (M * 28 + n) * 4
        return f"a[{r}:{r+3}]"

    def wf(self, bufset, t):
        r = self.WF + bufset * 12 + t * 4
        return r

    def acc(self, base, t, M):
        r = base + (t * 2 + M) * 16
        return r

    def prologue(self):
        I = self.I
        b = self.b
        if self.o.ts or self.o.thr:
            b.raw(f"{'s_memtime' if self.o.cyc else 's_memrealtime'} s[98:99]")
        I("s_cmp_ge_u32 s2, 0x100\ns_cbranch_scc1 L_exit")
        if self.o.badmap:
            I("s_and_b32 s3, s2, 31\ns_lshl_b32 s3, s3, 3\ns_lshr_b32 s2, s2, 5\ns_or_b32 s2, s2, s3")
        b.raw("s_load_dwordx16 s[64:79], s[0:1], 0")
        b.raw("s_load_dwordx4 s[80:83], s[0:1], 64")
        b.raw(f"s_load_dwordx2 s[{self.S_WS}:{self.S_WS+1}], s[0:1], 80")
        I("s_getpc_b64 s[4:5]")
        b.label("L_pc")
        I("s_and_b32 s3, s2, 0xf8\nv_and_b32 v33, 7, v0\nv_add_lshl_u32 v33, v33, s3, 7\nv_min_u32 v33, L_exit-L_pc, v33")
        I("global_load_dword v45, v33, s[4:5]", tag="pf")
        b.vm[-1] = (set(), "pf")
        I("v_lshrrev_b32 v35, 6, v0\nv_and_b32 v0, 63, v0")
        I(f"v_readfirstlane_b32 s{self.sWV}, v35")
        I("s_and_b32 s3, s2, 7\ns_lshr_b32 s6, s2, 3")
        I(f"s_and_b32 s7, s3, 1\ns_lshl_b32 s7, s7, 3\ns_and_b32 s4, s6, 7\ns_add_u32 s{self.sRB}, s4, s7")
        I(f"s_lshr_b32 s7, s3, 1\ns_lshl_b32 s7, s7, 2\ns_lshr_b32 s5, s6, 3\ns_add_u32 s{self.sJ}, s5, s7")
        I(f"v_lshlrev_b32 v{self.vL16}, 4, v0")
        I("v_lshrrev_b32 v35, 3, v0\nv_and_b32 v36, 7, v0\nv_lshrrev_b32 v37, 4, v0")
        I("v_mul_u32_u24 v38, 0x380, v35")
        I("v_xor_b32 v39, v36, v37\nv_lshl_add_u32 v2, v39, 4, v38")
        I(f"v_xor_b32 v3, 64, v2\nv_add_u32 v3, {8*896-1024}, v3")
        I(f"v_add_u32 v4, {16*896-2048}, v2\nv_add_u32 v5, {16*896-2048}, v3")
        I("v_and_b32 v39, 2, v35\nv_lshlrev_b32 v39, 1, v39\nv_xor_b32 v39, v36, v39\nv_lshlrev_b32 v39, 4, v39")
        I(f"s_cmp_ge_u32 s{self.sJ}, 14\ns_cselect_b32 s{self.sISV}, 1, 0")
        I("s_movk_i32 s7, 0xe00\ns_movk_i32 s86, 0xa80\ns_cselect_b32 s7, s86, s7")
        I("v_mul_u32_u24 v40, 0xa80, v35\nv_add_u32 v10, v40, v39")
        I(f"v_add_u32 v11, {8*2688-1024}, v10")
        I("v_mul_u32_u24 v40, s7, v35\nv_add_u32 v6, v40, v39")
        I("s_lshl_b32 s86, s7, 3\ns_sub_u32 s86, s86, 0x400\nv_add_u32 v7, s86, v6")
        I("v_xor_b32 v8, 32, v6\nv_xor_b32 v9, 32, v7")
        I(f"s_lshl_b32 s{self.sSAB}, s7, 6")
        I("v_mul_u32_u24 v41, 0x380, v36\nv_lshl_add_u32 v41, v35, 7, v41")
        I(f"s_lshl_b32 s86, s4, 3\ns_lshl_b32 s87, s{self.sWV}, 1\ns_add_u32 s86, s86, s87")
        I("v_lshrrev_b32 v42, 1, v0\nv_lshlrev_b32 v42, 6, v42\nv_and_b32 v43, 1, v0\nv_add3_u32 v42, v42, v43, s86")
        I(f"v_mul_lo_u32 v{self.vPFW}, v42, s7\nv_mul_u32_u24 v{self.vPFC}, 0xa80, v42")
        I(f"s_lshl_b32 s86, s{self.sRB}, 2\ns_add_u32 s87, s86, s{self.sWV}\ns_mul_i32 s{self.sX}, s87, {32*896}")
        I(f"s_add_u32 s86, s86, s5\ns_lshl_b32 s86, s86, 2\ns_add_u32 s86, s86, s{self.sWV}\ns_mul_i32 s6, s86, {8*896}")
        I(f"s_lshl_b32 s86, s{self.sWV}, 4\ns_mul_i32 s87, s86, s7\ns_mul_i32 s88, s86, 0xa80")
        I(f"s_lshl_b32 s89, s{self.sJ}, 8\ns_lshl_b32 s90, s{self.sJ}, 7")
        I(f"s_lshl_b32 s91, s{self.sJ}, 9\ns_sub_u32 s91, s91, {42*128}")
        I(f"s_add_u32 s92, s91, 0x80\ns_add_u32 s93, s91, 0x100\ns_add_u32 s94, s89, 0x80")
        I(f"s_cmp_lg_u32 s{self.sISV}, 0")
        I(f"s_cselect_b32 s91, s91, s89\ns_cselect_b32 s92, s92, s89\ns_cselect_b32 s93, s93, s90")
        I(f"s_cselect_b32 s90, {17*128}, s94")
        I(f"s_add_u32 s{self.sA}, s91, s87\ns_add_u32 s{self.sB}, s92, s87\ns_add_u32 s{self.sC}, s93, s88")
        I(f"s_add_u32 s{self.sA2}, s90, s87\ns_add_u32 s{self.sB2}, s94, s87")
        I(f"s_mul_i32 s{self.sM0}, s{self.sWV}, {CHUNK}\ns_lshl_b32 s{self.sM0B}, s{self.sWV}, 12")
        WQ, WG_ = 448 * 2688, 448 * 3584
        I(f"s_mov_b32 s{self.S_X+2}, {2048*896}\ns_mov_b32 s{self.S_X+3}, 0x20000")
        I(f"s_cmp_lg_u32 s{self.sISV}, 0")
        for s_ in (self.S_A, self.S_B):
            I(f"s_mov_b32 s{s_+2}, {WG_}\ns_cselect_b32 s{s_+2}, {WQ}, s{s_+2}\ns_mov_b32 s{s_+3}, 0x20000")
        I(f"s_mov_b32 s{self.S_C+2}, {WQ}\ns_mov_b32 s{self.S_C+3}, 0x20000")
        b.raw("s_waitcnt lgkmcnt(0)")
        if self.o.ts and not self.o.lite:
            b.raw(f"{'s_memtime' if self.o.cyc else 's_memrealtime'} s[96:97]")
            b.raw("s_waitcnt lgkmcnt(0)")
            I("s_mov_b32 s99, s96")
        I(f"s_mov_b32 s{self.S_X}, s64\ns_mov_b32 s{self.S_X+1}, s65")
        for s_, lo in ((self.S_A, 72), (self.S_B, 74)):
            I(f"s_cselect_b32 s{s_}, s66, s{lo}\ns_cselect_b32 s{s_+1}, s67, s{lo+1}")
        I(f"s_mov_b32 s{self.S_C}, s66\ns_mov_b32 s{self.S_C+1}, s67")
        srd = lambda s_: f"s[{s_}:{s_+3}]"
        if self.o.coop:
            self.pf(41, self.S_X, "s6")
            self.pf(self.vPFW, self.S_A, "s91")
            self.pf(self.vPFW, self.S_B, "s92")
            self.pf(self.vPFC, self.S_C, "s93")
        self.sts()
        for ins in self.dma_stageA(0):
            ins()
        self.sts()
        I(f"s_mov_b32 s{self.S_WS+2}, {WS_SIZE}\ns_mov_b32 s{self.S_WS+3}, 0x20000")
        I(f"v_mov_b32 v{self.vZ}, 0\ns_mov_b32 s86, {E_OFF}")
        I(f"buffer_load_dword v{self.vPOLL}, v{self.vZ}, s[{self.S_WS}:{self.S_WS+3}], s86 offen sc1", tag="E")
        for st in range(1, self.o.lead):
            for ins in self.dma_stageA(st):
                ins()
        self.sts()
        self.srd(self.S_WD, "s76", "s77", 1792 * 896)
        self.srd(self.S_WO, "s68", "s69", 448 * 896)
        self.srd(self.S_OUT, "s80", "s81", 2048 * 896)
        I(f"s_mov_b64 s[{self.pDBG}:{self.pDBG+1}], s[82:83]\ns_mov_b64 s[{self.pGW}:{self.pGW+1}], s[78:79]")
        if self.o.ts:
            I(f"s_lshl_b32 s86, s2, 2\ns_add_u32 s86, s86, s{self.sWV}\ns_lshl_b32 s86, s86, 7\ns_add_u32 s{self.sTS}, s86, {TS_OFF}")
        I(f"s_lshr_b32 s86, s{self.sWV}, 1\ns_and_b32 s87, s{self.sWV}, 1")
        I("v_and_b32 v35, 31, v0\nv_lshrrev_b32 v36, 5, v0")
        I("v_bfe_u32 v37, v0, 1, 3\nv_xor_b32 v37, v37, v36")
        I(f"s_mul_i32 s88, s86, {2*CHUNK}\nv_lshlrev_b32 v38, 7, v35\nv_add_u32 v38, s88, v38")
        for ks in range(4):
            I(f"v_xor_b32 v39, {2*ks}, v37\nv_lshl_add_u32 v{self.vXR+ks}, v39, 4, v38")
        I("v_bfe_u32 v37, v0, 2, 2\nv_lshl_add_u32 v38, v36, 3, v37\nv_lshlrev_b32 v38, 7, v38")
        I("v_and_b32 v39, 1, v0\nv_lshlrev_b32 v39, 4, v39\nv_bfe_u32 v40, v0, 1, 1\nv_lshl_add_u32 v39, v40, 3, v39")
        I("v_add_u32 v38, v38, v39")
        I("v_bfe_u32 v39, v0, 4, 1\nv_and_b32 v40, 2, v37\nv_xor_b32 v40, v40, v39")
        I("s_lshl_b32 s88, s87, 1")
        I("v_xor_b32 v41, s88, v40")
        I(f"v_lshl_add_u32 v42, v41, 5, v38")
        I(f"v_add_u32 v{self.vWR}, 0x1000, v42")
        I(f"v_lshl_add_u32 v{self.vWR+1}, v39, 11, v42")
        I(f"v_xor_b32 v{self.vWR+2}, 32, v{self.vWR+1}")
        for st in (1, 2):
            for i in range(4):
                I(f"v_add_u32 v{self.vXR+4*st+i}, {65536*st}, v{self.vXR+i}")
            for i in range(3):
                I(f"v_add_u32 v{self.vWR+3*st+i}, {65536*st}, v{self.vWR+i}")
        I(f"s_lshl_b32 s88, s{self.sRB}, 2\ns_lshl_b32 s89, s86, 1\ns_add_u32 s88, s88, s89")
        I(f"s_mul_i32 s89, s88, {QKV_MT}\ns_lshl_b32 s90, s87, 11\ns_add_u32 s89, s89, s90")
        I(f"s_lshl_b32 s90, s{self.sJ}, 12\ns_lshl_b32 s91, s{self.sJ}, 14\ns_sub_u32 s91, s91, {40*4096}")
        I(f"s_cmp_lg_u32 s{self.sISV}, 0\ns_cselect_b32 s90, s91, s90\ns_add_u32 s{self.sQ0}, s89, s90")
        I(f"s_add_u32 s{self.sQ1}, s{self.sQ0}, {QKV_MT}")
        I(f"s_mul_i32 s89, s88, {HO_MT}\ns_lshl_b32 s90, s{self.sJ}, 13\ns_lshl_b32 s91, s87, 11\ns_add_u32 s89, s89, s90")
        I(f"s_add_u32 s89, s89, s91\ns_add_u32 s{self.sH0}, s89, {HO_OFF}\ns_add_u32 s{self.sH1}, s{self.sH0}, {HO_MT}")
        I(f"s_mov_b32 s{self.sNL2E}, {f32hex(-LOG2E)}\ns_mov_b32 s{self.sCS}, {f32hex(LOG2E / math.sqrt(28.0))}")
        I(f"s_lshl_b32 s88, s{self.sRB}, 8\ns_lshl_b32 s89, s{self.sJ}, 2\ns_add_u32 s88, s88, s89\ns_add_u32 s88, s88, {FL_OFF}")
        I(f"v_mov_b32 v{self.vFL}, s88")
        self.sts()
        self.setup = self.record(lambda: (self.poll_setup_att(), self.att_setup(), self.final_setup()))

    def record(self, fn):
        L = []
        real = self.I
        self.I = lambda t, tag=None: L.append(lambda: real(t, tag))
        fn()
        del self.I
        return L

    def dma_stageA(self, st):
        I = self.I
        base = (st % 4) * SLOT
        tag = f"st{st}"
        L = []
        L.append(lambda: I(f"s_add_u32 m0, s{self.sM0}, {base}"))
        for bq in range(4):
            L.append(lambda bq=bq: I(f"buffer_load_dwordx4 v{self.vXD+bq}, s[{self.S_X}:{self.S_X+3}], s{self.sX} offen offset:{1024*bq} lds", tag))
        prev = lambda: I(f"s_add_u32 s{self.sX}, s{self.sX}, 0x80")
        for seg, (srd, so, stp) in enumerate(((self.S_A, self.sA, self.sSAB), (self.S_B, self.sB, self.sSAB), (self.S_C, self.sC, None))):
            L.append(lambda seg=seg: I(f"s_add_u32 m0, s{self.sM0}, {base + 4096 + 2048*seg}"))
            L.append(prev)
            for e in range(2):
                L.append(lambda seg=seg, e=e, srd=srd, so=so: I(f"buffer_load_dwordx4 v{self.vWD+2*seg+e}, s[{srd}:{srd+3}], s{so} offen offset:{1024*e} lds", tag))
            prev = lambda so=so, stp=stp: I(f"s_add_u32 s{so}, s{so}, " + (f"s{stp}" if stp else str(64*2688)))
        L.append(prev)
        return L

    def dma_stageB(self, t):
        I = self.I
        base = PB_BASE[t]
        tag = f"st{7+t}"
        L = []
        prev = None
        if t == 0:
            prev = lambda: I(f"s_cmp_lg_u32 s{self.sISV}, 0\ns_cselect_b32 s{self.S_B+2}, 0, s{self.S_B+2}")
        for seg, (srd, so) in enumerate(((self.S_A, self.sA2), (self.S_B, self.sB2))):
            L.append(lambda seg=seg: I(f"s_add_u32 m0, s{self.sM0B}, {base + 2048*seg}"))
            if prev:
                L.append(prev)
            for e in range(2):
                L.append(lambda seg=seg, e=e, srd=srd, so=so: I(f"buffer_load_dwordx4 v{self.vWD+2*seg+e}, s[{srd}:{srd+3}], s{so} offen offset:{1024*e} lds", tag))
            prev = lambda so=so: I(f"s_add_u32 s{so}, s{so}, s{self.sSAB}")
        L.append(prev)
        return L

    def rd_w(self, bufset, slot_t, addr_t, const):
        out = []
        r = self.wf(bufset, slot_t)
        for e in range(2):
            v, imm = self.lds(self.vWR, 3, addr_t, const + 512 * e)
            out.append(lambda r=r, e=e, v=v, imm=imm: self.I(f"ds_read_b64_tr_b16 a[{r+2*e}:{r+2*e+1}], {v} offset:{imm}"))
        return out

    def rd_x(self, M, n):
        st, ks = divmod(n, 4)
        v, imm = self.lds(self.vXR, 4, ks, (st % 4) * SLOT + M * CHUNK)
        return [lambda: self.I(f"ds_read_b128 {self.xf(M, n)}, {v} offset:{imm}")]

    def readsA(self, n):
        st, ks = divmod(n, 4)
        c = (st % 4) * SLOT + ks * CHUNK + 4096
        bs = n % 2
        return [self.rd_w(bs, 0, 0, c), self.rd_x(0, n) + self.rd_x(1, n), self.rd_w(bs, 1, 1, c), self.rd_w(bs, 2, 2, c)]

    def readsB(self, n):
        t, ks = divmod(n, 4)
        c = PB_BASE[t] + ks * 4096
        bs = n % 2
        return [self.rd_w(bs, 1, 1, c), self.rd_w(bs, 2, 2, c)]

    def mfma(self, d, a, bb, first):
        c = "0" if first else f"v[{d}:{d+15}]"
        self.I(f"v_mfma_f32_32x32x16_bf16 v[{d}:{d+15}], {a}, {bb}, {c}")

    def dbg_load(self, tag=None):
        self.I(f"global_load_dword v{self.vPOLL}, v{self.vZ}, s[{self.pDBG}:{self.pDBG+1}] sc1", tag)

    def pf(self, v, srd, so):
        self.I(f"buffer_load_dword v{self.vT+12}, v{v}, s[{srd}:{srd+3}], {so} offen", "pf")
        self.b.vm[-1] = (set(), "pf")

    def passA(self):
        I, b, o = self.I, self.b, self.o
        b.wait_tags(("st0",))
        self.ts()
        if o.thr:
            I(f"s_getreg_b32 s86, hwreg(HW_REG_XCC_ID, 0, 4)\ns_and_b32 s87, s2, 7\ns_cmp_lg_u32 s86, s87\ns_cbranch_scc0 L_xok")
            kv = list(b.vm)
            I(f"v_mov_b32 v34, 1\nglobal_store_dword v{self.vZ}, v34, s[{self.pDBG}:{self.pDBG+1}] offset:128 sc1")
            b.vm = kv
            b.label("L_xok")
        I(f"s_or_b32 s86, s2, s{self.sWV}\ns_cmp_eq_u32 s86, 0\ns_cbranch_scc0 L_notag")
        snap_vm = list(b.vm)
        I(f"v_add_u32 v34, 2, v{self.vPOLL}\nv_or_b32 v34, 1, v34\ns_mov_b32 s86, {E_OFF}")
        if o.thr:
            I(f"v_readfirstlane_b32 s87, v{self.vPOLL}\ns_sub_u32 s88, s98, s87\ns_cmp_lt_u32 s88, 0x8000000\ns_cselect_b32 s88, 1, 0")
            I(f"s_cmp_eq_u32 s87, 0xfbfbfbfb\ns_cselect_b32 s89, {o.thrpat}, {1 - o.thrpat} ^ 1 ^ 1\ns_or_b32 s88, s88, s89\nv_mov_b32 v35, s88".replace(f"{1 - o.thrpat} ^ 1 ^ 1", str(1 - o.thrpat)))
            I(f"global_store_dword v{self.vZ}, v35, s[{self.pDBG}:{self.pDBG+1}] offset:132 sc1")
            I("v_mov_b32 v34, s98\nv_or_b32 v34, 1, v34")
        I(f"s_mov_b64 exec, 1")
        I(f"buffer_store_dword v34, v{self.vZ}, s[{self.S_WS}:{self.S_WS+3}], s86 offen sc1")
        I(f"global_store_dword v{self.vZ}, v34, s[{self.pDBG}:{self.pDBG+1}] sc1")
        I(f"s_mov_b64 exec, -1")
        b.vm = [(set(), t) if t == "E" else (d, t) for d, t in snap_vm]
        b.label("L_notag")
        I("s_barrier")
        for grp in self.readsA(0):
            for f in grp:
                f()
        def stream(v):
            if v <= 6:
                return self.dma_stageA(v)
            if v == 7:
                return self.dma_stageB(0) + self.dma_stageB(1)
            if v == 8:
                return self.dma_stageB(2) + self.dma_stageB(3)
            return []
        pend = []
        nsetup = 0
        for n in range(28):
            st, ks = divmod(n, 4)
            bs = n % 2
            nxt = self.readsA(n + 1) if n < 27 else self.readsB(0)
            gaps = [[] for _ in range(6)]
            if ks == 0:
                pend += stream(st + o.lead)
            if ks == 3:
                def bar(st=st):
                    tags = (f"st{st+1}",) if st < 6 else ("st7", "st8")
                    b.wait_tags(tags, lg_all=True)
                    I("s_barrier")
                gaps[0].append(bar)
            extra = []
            if n == 13:
                extra.append(lambda: self.dbg_load("tagrd"))
            for i, grp in enumerate(nxt):
                gaps[i] += grp
            left = 4 - ks
            quota = -(-len(pend) // left)
            for gi, cap in ((2, 1), (3, 1), (4, 2), (5, 3)):
                for _ in range(cap):
                    if pend and quota > 0:
                        gaps[gi].append(pend.pop(0))
                        quota -= 1
            gaps[5] += extra
            cnt = min(math.ceil(len(self.setup) * (n + 1) / 26), len(self.setup)) - nsetup
            for k in range(cnt):
                gaps[min(5, 2 + (k * 4 + 2) // cnt)].append(self.setup[nsetup])
                nsetup += 1
            i = 0
            for t in range(3):
                for M in range(2):
                    r = self.wf(bs, t)
                    self.mfma(self.acc(self.ACC_A, t, M), f"a[{r}:{r+3}]", self.xf(M, n), n == 0)
                    for f in gaps[i]:
                        f()
                    i += 1
        assert not pend
        rest = []
        for v in range(7 + o.lead, 9):
            rest += stream(v)
        self.pend = rest + self.dma_stageB(4) + self.dma_stageB(5) + self.dma_stageB(6)

    def get_tag(self):
        I, b = self.I, self.b
        u = self.uid()
        I(f"v_readfirstlane_b32 s{self.sTAG}, v{self.vPOLL}")
        I(f"s_cmp_lg_u32 s{self.sTAG}, 0\ns_cbranch_scc1 L_gottag{u}")
        keep_vm, keep_lg = list(b.vm), list(b.lg)
        I(f"s_mov_b32 s{self.sSPIN}, 0")
        b.label(f"L_tagspin{u}")
        self.dbg_load()
        I(f"s_add_u32 s{self.sSPIN}, s{self.sSPIN}, 1\ns_cmp_gt_u32 s{self.sSPIN}, {SPIN_MAX}\ns_cbranch_scc1 L_exit")
        I(f"v_readfirstlane_b32 s{self.sTAG}, v{self.vPOLL}")
        I(f"s_cmp_lg_u32 s{self.sTAG}, 0\ns_cbranch_scc0 L_tagspin{u}")
        b.vm, b.lg = keep_vm, keep_lg
        b.label(f"L_gottag{u}")

    def cvt_store(self, r, so, imm, tag, voff=None):
        L = []
        for i in range(4):
            L.append(lambda i=i: self.I(f"v_cvt_pk_bf16_f32 v{r+i}, v{r+2*i}, v{r+2*i+1}"))
        v = self.vL16 if voff is None else voff
        L.append(lambda: self.I(f"buffer_store_dwordx4 v[{r}:{r+3}], v{v}, s[{self.S_WS}:{self.S_WS+3}], s{so} offen offset:{imm} sc1", tag))
        return L

    def sigmoid_tile(self, r, so, imm, tag, pk):
        I = self.I
        L = []
        if pk:
            for i in range(0, 8, 2):
                L.append(lambda i=i: I(f"v_pk_mul_f32 v[{r+i}:{r+i+1}], v[{r+i}:{r+i+1}], s[{self.sNL2E}:{self.sNL2E+1}] op_sel_hi:[1,0]"))
        else:
            for i in range(8):
                L.append(lambda i=i: I(f"v_mul_f32 v{r+i}, s{self.sNL2E}, v{r+i}"))
        for i in range(8):
            L.append(lambda i=i: I(f"v_exp_f32 v{r+i}, v{r+i}"))
        if pk:
            for i in range(0, 8, 2):
                L.append(lambda i=i: I(f"v_pk_add_f32 v[{r+i}:{r+i+1}], v[{r+i}:{r+i+1}], 1.0 op_sel_hi:[1,0]"))
        else:
            for i in range(8):
                L.append(lambda i=i: I(f"v_add_f32 v{r+i}, 1.0, v{r+i}"))
        for i in range(8):
            L.append(lambda i=i: I(f"v_rcp_f32 v{r+i}, v{r+i}"))
        if pk:
            for i in range(0, 8, 2):
                L.append(lambda i=i: I(f"v_pk_mul_f32 v[{r+i}:{r+i+1}], v[{r+i}:{r+i+1}], v[{r+8+i}:{r+9+i}]"))
        else:
            for i in range(8):
                L.append(lambda i=i: I(f"v_mul_f32 v{r+i}, v{r+i}, v{r+8+i}"))
        return L + self.cvt_store(r, so, imm, tag)

    def flag_store(self, phase):
        I = self.I
        lab = f"L_nofl{self.uid()}"
        I(f"s_cmp_eq_u32 s{self.sWV}, 0\ns_cbranch_scc0 {lab}")
        keep = list(self.b.vm)
        I(f"v_mov_b32 v{self.vT}, s{self.sTAG}\ns_mov_b64 exec, 1")
        I(f"s_movk_i32 s86, {4096*phase}")
        I(f"buffer_store_dword v{self.vT}, v{self.vFL}, s[{self.S_WS}:{self.S_WS+3}], s86 offen sc1")
        I("s_mov_b64 exec, -1")
        self.b.vm = keep
        self.b.label(lab)

    _uid = 0

    def uid(self):
        self._uid += 1
        return self._uid

    @staticmethod
    def weave(main, side, start=0.0, end=1.0):
        out = []
        n = len(main)
        a, e = int(start * n), max(int(end * n), int(start * n) + 1)
        k = 0
        for i, f in enumerate(main):
            out.append(f)
            if i >= a:
                want = min(len(side), math.ceil(len(side) * (i - a + 1) / (e - a)))
                while k < want:
                    out.append(side[k]); k += 1
        out += side[k:]
        return out

    def passB_GU(self):
        I, b, o = self.I, self.b, self.o
        pend = list(self.pend)
        epi = []
        for M, so in ((0, self.sQ0), (1, self.sQ1)):
            r = self.acc(self.ACC_A, 0, M)
            epi += self.cvt_store(r, so, 0, "qk") + self.cvt_store(r + 8, so, 1024, "qk")
        nqk = len(epi)
        for t in (1, 2):
            for M, so in ((0, self.sH0), (1, self.sH1)):
                epi += self.sigmoid_tile(self.acc(self.ACC_A, t, M), so, 1024 * (t - 1), "h", o.pkB)
        epi += self.att_masks()
        total = len(epi)
        first_gap = 3
        ngaps = 4 * 28
        done = 0
        g = 0
        for n in range(28):
            bs = n % 2
            gaps = [[] for _ in range(4)]
            if n in o.bs:
                self.ts()
            if n == 7:
                gaps[0].append(lambda: (b.wait_tags(("st9", "st10")), I("s_barrier")))
            if n == o.fl0 and n != 15:
                gaps[0].append(lambda: (b.wait_tags(("qk",)), I("s_barrier"), self.flag_store(0)))
            if n == 15:
                def bar():
                    b.wait_tags(("st11", "st12", "st13", "qk"), lg_all=True)
                    I("s_barrier")
                    if o.fl0 == 15:
                        self.flag_store(0)
                gaps[0].append(bar)
            if n < 27:
                nx = self.readsB(n + 1)
                gaps[0] += nx[0]
                gaps[1] += nx[1]
            if n == 1:
                gaps[3].append(self.get_tag)
            if o.fl0 + 1 <= n < o.fl0 + 1 + self.NB1:
                pend += self.fin_dma(n - o.fl0 - 1)
            if n == o.kchk:
                pend += [lambda: self.poll_check(self.vAP, self.vPOLL, self.sMSK)] + self.record(self.att_loads_K) + [lambda: self.poll_issue(self.vAP, self.vPOLL)]
            for gi in (2, 3):
                for _ in range(2 if n < o.kchk else 4):
                    if pend:
                        gaps[gi].append(pend.pop(0))
            if n == o.kpoll:
                gaps[3].append(lambda: self.poll_issue(self.vAP, self.vPOLL))
            i = 0
            for t in range(2):
                for M in range(2):
                    r = self.wf(bs, t + 1)
                    self.mfma(self.acc(self.ACC_B, t, M), f"a[{r}:{r+3}]", self.xf(M, n), n == 0)
                    for f in gaps[i]:
                        f()
                    g += 1
                    if g > first_gap:
                        want = min(total, math.ceil(total * (g - first_gap) / (4 * o.epi_end - first_gap)))
                        want = max(want, min(nqk, 3 * (g - first_gap)))
                        while done < want:
                            epi[done]()
                            done += 1
                    i += 1
        assert done == total and not pend
        self.ts()
        I(f"s_add_u32 s{self.sH0}, s{self.sH0}, 0x1000\ns_add_u32 s{self.sH1}, s{self.sH1}, 0x1000")
        T = []
        for t in (0, 1):
            for M, so in ((0, self.sH0), (1, self.sH1)):
                T.append(self.sigmoid_tile(self.acc(self.ACC_B, t, M), so, 1024 * t, "h", o.pk))
        self.postB(T)

    NB1 = 8

    def postB(self, T):
        I, b, o = self.I, self.b, self.o
        KF = self.KF
        rd = [f for s_ in range(self.NB1) for f in self.fin_rdw(s_)]
        for f in self.weave(T[0], rd[:16], 0.1, 1.0):
            f()
        self.poll_check(self.vAP, self.vPOLL, self.sMSK2)
        self.att_loads_V()
        for f in self.weave(T[1], rd[16:], 0.0, 1.0):
            f()
        self.ts()
        b.wait_tags(("K",))
        I(f"ds_write_b64 v{self.vP+6}, v[{self.vP}:{self.vP+1}]")
        I(f"ds_write_b64 v{self.vP+7}, v[{self.vP+2}:{self.vP+3}] offset:4096")
        q = self.vQ
        I(f"v_bfi_b32 v{q}, v{self.vMA}, v{q}, v{self.vP+4}\nv_and_b32 v{q+1}, v{self.vMA}, v{q+1}")
        I(f"v_bfi_b32 v{q+6}, v{self.vMB}, v{q+6}, v{self.vP+4}\nv_and_b32 v{q+7}, v{self.vMB}, v{q+7}")
        b.waitcnt(lg=0)
        I("s_barrier")
        self.ts()
        order = [8, 0, 7, 6, 5, 4, 3, 2, 1]

        def rdk(n):
            for s_ in range(2):
                r = KF + (n % 3) * 8 + 4 * s_
                I(f"ds_read_b128 v[{r}:{r+3}], v{self.vKA} offset:{2048*order[n] + 1024*s_}")
        rdk(0)
        rdk(1)
        m = self.vM
        mx = []

        def maxops(n):
            s0 = self.S(order[n])
            return [(lambda k=k: I(f"v_max_f32 v{m}, v{s0}, v{s0+1}" if (n == 0 and k == 0) else f"v_max3_f32 v{m}, v{m}, v{s0+k}, v{s0+k+1}")) for k in range(0, 16, 2)]
        vs = list(T[2]) + list(T[3][:-1])
        KH = 11
        bg = [f for s_ in range(self.NB1, self.NB1 + o.nbq) for f in self.fin_dma(s_)]
        self.bg_rest = self.NB1 + o.nbq
        for k in range(18):
            n, half = divmod(k, 2)
            d = self.S(order[n])
            r = KF + (n % 3) * 8 + 4 * half
            c = f"v[{d}:{d+15}]" if (half or order[n] in (0, 8)) else "0"
            if order[n] == 1:
                assert not vs
            I(f"v_mfma_f32_32x32x16_bf16 v[{d}:{d+15}], v[{r}:{r+3}], v[{q+4*half}:{q+4*half+3}], {c}")
            if half == 0 and n + 2 < 9:
                rdk(n + 2)
            if half == 1 and n >= 1:
                mx += maxops(n - 1)
            nv = math.ceil(len(vs) / (KH - k + 1)) if k <= KH else 0
            for _ in range(nv):
                vs.pop(0)()
            if k == KH:
                T[3][-1]()
            for _ in range(math.ceil(len(bg) / (18 - k))):
                bg.pop(0)()
            for _ in range(max(0, 5 - nv) if k < 17 else len(mx)):
                if mx:
                    mx.pop(0)()
        self.mx_rest = maxops(8)

    def passB_V(self):
        I, b, o = self.I, self.b, self.o
        for f in list(self.pend):
            f()
        self.srd(self.S_C, f"s{self.pGW}", f"s{self.pGW+1}", 896)
        I(f"s_add_u32 m0, s{self.sM0B}, {PB_BASE[0] + 2048}")
        I(f"buffer_load_dwordx4 v{self.vL16}, s[{self.S_C}:{self.S_C+3}], 0 offen lds", "gw")
        I(f"s_sub_u32 s{self.sT1}, s{self.sQ0}, 0x2000\ns_sub_u32 s{self.sT2}, s{self.sQ1}, 0x2000")
        I(f"v_add_u32 v{self.vT+2}, 0x1000, v{self.vL16}")
        self.get_tag()
        epi = []
        for M, so in ((0, self.sQ0), (1, self.sQ1)):
            r = self.acc(self.ACC_A, 0, M)
            epi += self.cvt_store(r, so, 0, "qk") + self.cvt_store(r + 8, so, 1024, "qk")
        for t in (1, 2):
            for M, so in ((0, self.sT1), (1, self.sT2)):
                r = self.acc(self.ACC_A, t, M)
                epi += self.cvt_store(r, so, 1024 * (t - 1), "qk") + self.cvt_store(r + 8, so, 1024 * (t - 1), "qk", voff=self.vT + 2)
        I(f"s_and_b32 s88, s{self.sWV}, 1\ns_sub_u32 s89, s{self.sJ}, 14\ns_xor_b32 s88, s88, s89\ns_lshl_b32 s88, s88, 6")
        for st in range(3):
            I(f"v_xor_b32 v{self.vWR+3*st}, s88, v{self.vWR+3*st}\nv_subrev_u32 v{self.vWR+3*st}, 0x1000, v{self.vWR+3*st}")
        I(f"s_lshl_b32 s88, s{self.sRB}, 2\ns_add_u32 s88, s88, s{self.sWV}")
        I(f"s_mul_i32 s88, s88, {QKV_MT}\ns_lshl_b32 s89, s89, 11\ns_add_u32 s88, s88, s89")
        I(f"s_add_u32 s{self.sT3}, s88, {8*17*512}")
        I(f"v_lshrrev_b32 v{self.vT+3}, 5, v0\nv_lshlrev_b32 v{self.vT+3}, 4, v{self.vT+3}")
        I(f"s_add_u32 s88, s{self.sM0B}, {PB_BASE[0] + 2048}\nv_add_u32 v{self.vT+3}, s88, v{self.vT+3}")
        I(f"v_and_b32 v{self.vT+4}, 31, v0\nv_lshlrev_b32 v{self.vT+4}, 2, v{self.vT+4}")
        D = self.ACC_B
        I(f"s_bitcmp1_b32 s{self.sWV}, 0\ns_cbranch_scc1 L_v_wc1")
        snap = b.snapshot()
        for wc in range(2):
            if wc == 1:
                b.label("L_v_wc1")
                b.restore(snap)
            e = list(epi)

            def rdv(n):
                t, ks = divmod(n, 4)
                return self.rd_w(n % 2, 0, 0, PB_BASE[t] + ks * 4096)
            for f in rdv(0):
                f()
            for n in range(28):
                if n == 7:
                    b.wait_tags(("st9", "st10"))
                    I("s_barrier")
                if n == 15:
                    b.wait_tags(("st11", "st12", "st13"))
                    I("s_barrier")
                if n < 27:
                    for f in rdv(n + 1):
                        f()
                r = self.wf(n % 2, 0)
                self.mfma(D, f"a[{r}:{r+3}]", self.xf(wc, n), n == 0)
                for _ in range(3):
                    if e:
                        e.pop(0)()
            assert not e
            for f in self.cvt_store(D, self.sT3, 0, "qk") + self.cvt_store(D + 8, self.sT3, 1024, "qk"):
                f()
            b.wait_tags(("gw",))
            I(f"ds_read_b128 a[{self.WF}:{self.WF+3}], v{self.vT+3}")
            mk = self.att_masks()
            for n in range(28):
                if n < 27:
                    r = self.WF + 4 * ((n + 1) % 3)
                    I(f"ds_read_b128 a[{r}:{r+3}], v{self.vT+3} offset:{32*(n+1)}")
                r = self.WF + 4 * (n % 3)
                self.mfma(D + 16, f"a[{r}:{r+3}]", self.xf(wc, n), n == 0)
                for _ in range(2):
                    if mk:
                        mk.pop(0)()
            I(f"v_mov_b32 v{self.vT+5}, v{D+16}")
            if wc == 0:
                I("s_branch L_v_done")
        b.label("L_v_done")
        b.wait_tags(("qk",), lg_all=True)
        I("s_barrier")
        self.flag_store(0)
        for s_ in range(self.NB1):
            for f in self.fin_dma(s_):
                f()
        self.poll_issue(self.vAP, self.vPOLL)
        self.poll_check(self.vAP, self.vPOLL, self.sMSK)
        self.att_loads_K()
        self.poll_issue(self.vAP, self.vPOLL)
        for _ in o.bs:
            self.ts()
        self.ts()
        self.postB([[], [], [], [lambda: I(f"buffer_store_dword v{self.vT+5}, v{self.vT+4}, s[{self.S_WS}:{self.S_WS+3}], s{self.sZO} offen sc1", "h")]])

    def poll_setup_att(self):
        I = self.I
        v, t = self.vAP, self.vT
        I(f"v_lshrrev_b32 v{v}, 4, v0\nv_add_u32 v{v}, s{self.sRB}, v{v}\nv_subrev_u32 v{v}, 2, v{v}\nv_max_i32 v{v}, 0, v{v}")
        I(f"v_min_u32 v{v}, 15, v{v}\nv_lshlrev_b32 v{v}, 8, v{v}\nv_and_b32 v{t}, 15, v0\nv_lshl_add_u32 v{v}, v{t}, 2, v{v}")
        I(f"v_add_u32 v{v}, {FL_OFF}, v{v}")
        I(f"s_mul_i32 s86, s{self.sJ}, 28\ns_add_u32 s87, s86, 27\ns_lshr_b32 s86, s86, 6\ns_lshr_b32 s87, s87, 6")
        I("s_lshl_b32 s88, 1, s86\ns_lshl_b32 s89, 1, s87\ns_or_b32 s88, s88, s89")
        I("s_lshl_b32 s89, s88, 7")
        I(f"s_mul_i32 s{self.sMSK}, s89, 0x10001\ns_or_b32 s{self.sMSK+1}, s88, s89")
        I("s_cmp_le_u32 s86, 3\ns_cselect_b32 s90, 0x4000, 0\ns_cmp_ge_u32 s87, 3\ns_cselect_b32 s91, 0x8000, 0\ns_or_b32 s90, s90, s91")
        I(f"s_mul_i32 s{self.sMSK2}, s90, 0x10001\ns_mov_b32 s{self.sMSK2+1}, s90")

    def poll_issue(self, vaddr, vdst, soff="0"):
        self.I(f"buffer_load_dword v{vdst}, v{vaddr}, s[{self.S_WS}:{self.S_WS+3}], {soff} offen sc1", "poll")

    def poll_check(self, vaddr, vdst, smask, soff="0"):
        I, b = self.I, self.b
        u = self.uid()
        I(f"v_cmp_ne_u32 vcc, s{self.sTAG}, v{vdst}")
        I(f"s_and_b64 vcc, vcc, s[{smask}:{smask+1}]\ns_cbranch_scc0 L_pok{u}")
        keep_vm, keep_lg = list(b.vm), list(b.lg)
        I(f"s_mov_b32 s{self.sSPIN}, 0")
        b.label(f"L_psp{u}")
        I(f"buffer_load_dword v{vdst}, v{vaddr}, s[{self.S_WS}:{self.S_WS+3}], {soff} offen sc1")
        I(f"s_add_u32 s{self.sSPIN}, s{self.sSPIN}, 1\ns_cmp_gt_u32 s{self.sSPIN}, {SPIN_MAX}\ns_cbranch_scc1 L_exit")
        I(f"v_cmp_ne_u32 vcc, s{self.sTAG}, v{vdst}")
        I(f"s_and_b64 vcc, vcc, s[{smask}:{smask+1}]\ns_cbranch_scc1 L_psp{u}")
        b.vm, b.lg = keep_vm, keep_lg
        b.label(f"L_pok{u}")

    def S(self, i):
        return self.SREG[i]

    def att_setup(self):
        I = self.I
        h = self.sJ
        I(f"s_and_b32 s86, s{h}, 1\ns_sub_u32 s{self.sPAR}, 0, s86\ns_mov_b32 s{self.sPAR+1}, s{self.sPAR}")
        I(f"s_mul_i32 s87, s{h}, 7\ns_lshr_b32 s87, s87, 1\ns_lshl_b32 s87, s87, 9")
        I(f"s_lshl_b32 s88, s{self.sRB}, 2\ns_mul_i32 s89, s{self.sWV}, 3\ns_add_u32 s89, s89, s88\ns_sub_u32 s89, s89, 8")
        for i in range(3):
            I(f"s_add_u32 s90, s89, {i}\ns_max_i32 s90, s90, 0\ns_mul_i32 s90, s90, {QKV_MT}\ns_add_u32 s90, s90, s87")
            I(f"s_add_u32 s{self.sKT+i}, s90, {56*512}")
        v = self.vT
        I(f"v_lshrrev_b32 v{v}, 5, v0\nv_add_u32 v{v+1}, s89, v{v}\nv_mov_b32 v{v+2}, 0xf149")
        I(f"v_cmp_gt_i32 vcc, 0, v{v+1}\nv_cndmask_b32 v{self.vP}, 0, v{v+2}, vcc\nv_mov_b32 v{self.vP+1}, 0")
        I(f"s_add_u32 s90, s89, 2\ns_cmp_lt_i32 s90, 0\ns_cselect_b32 s90, 0xf149, 0\nv_mov_b32 v{self.vP+2}, s90\nv_mov_b32 v{self.vP+3}, 0")
        I(f"v_mov_b32 v{self.vP+4}, 0x3f80\nv_mov_b32 v{self.vP+5}, 0")
        I(f"s_cmp_eq_u32 s86, 0\ns_cselect_b32 s90, {1536+8}, 0\ns_mul_i32 s91, s{self.sWV}, {3*2048}\ns_add_u32 s90, s90, s91\ns_add_u32 s90, s90, {KV_K}")
        I(f"v_and_b32 v{v+1}, 31, v0\nv_lshlrev_b32 v{v+1}, 4, v{v+1}\nv_add_u32 v{self.vP+7}, s90, v{v+1}\nv_lshl_add_u32 v{self.vP+6}, v{v}, 11, v{self.vP+7}")
        I(f"v_and_b32 v{v+1}, 31, v0\nv_lshlrev_b32 v{v+2}, 2, v{v}\nv_xor_b32 v{v+1}, v{v+1}, v{v+2}\nv_lshlrev_b32 v{v+1}, 4, v{v+1}")
        I(f"v_lshl_add_u32 v{self.vP+8}, v{v}, 9, v{v+1}\nv_xor_b32 v{self.vP+9}, 0x80, v{self.vP+8}")
        I(f"s_lshl_b32 s90, s{self.sWV}, 11\ns_add_u32 s91, s90, {KV_K}\nv_add_u32 v{self.vKA}, s91, v{self.vL16}")
        I(f"v_bfe_u32 v{v+1}, v0, 4, 1\nv_bfe_u32 v{v+2}, v0, 1, 1\nv_lshl_add_u32 v{v+1}, v{v+1}, 1, v{v+2}")
        I(f"v_xor_b32 v{v+2}, v{v}, v{v+1}\nv_lshlrev_b32 v{v+2}, 2, v{v+2}\nv_bfe_u32 v{v+3}, v0, 2, 2\nv_add_u32 v{v+2}, v{v+2}, v{v+3}")
        I(f"v_lshlrev_b32 v{v+2}, 4, v{v+2}\nv_lshl_add_u32 v{v+2}, v{v+1}, 9, v{v+2}\nv_and_b32 v{v+3}, 1, v0\nv_lshl_add_u32 v{v+2}, v{v+3}, 3, v{v+2}")
        I(f"s_add_u32 s91, s90, {KV_V}\nv_add_u32 v{self.vVA}, s91, v{v+2}\nv_xor_b32 v{self.vVA+1}, 0x80, v{self.vVA}")
        I(f"v_subrev_u32 v{v+1}, 1, v{v}\nv_and_b32 v{v+1}, s{self.sPAR}, v{v+1}\nv_not_b32 v{self.vMA}, v{v+1}")
        I(f"v_sub_u32 v{v+1}, 0, v{v}\ns_not_b32 s91, s{self.sPAR}\nv_and_b32 v{v+1}, s91, v{v+1}\nv_not_b32 v{self.vMB}, v{v+1}")
        I(f"s_add_u32 s88, s88, s{self.sWV}\ns_mul_i32 s90, s88, {QKV_MT}\ns_add_u32 s{self.sQO}, s90, s87")
        I(f"s_mul_i32 s90, s88, {HO_MT}\ns_lshl_b32 s91, s{h}, 11\ns_add_u32 s90, s90, s91\ns_add_u32 s{self.sOO}, s90, {HO_OFF + 112*1024}")
        I(f"s_lshl_b32 s90, s88, 7\ns_add_u32 s{self.sZO}, s90, {Z_OFF}")
        m = self.vM
        I(f"v_lshlrev_b32 v{m}, 2, v{v}\nv_and_b32 v{m+1}, 31, v0\nv_sub_u32 v{m}, v{m+1}, v{m}\nv_mov_b32 v{m+1}, {NEG}")

    def att_masks(self):
        L = []
        v = self.vM
        pair = lambda r: f"s[{88+2*(r&1)}:{89+2*(r&1)}]"
        def cmp_(r):
            key = 8 * (r >> 2) + (r & 3)
            return lambda: self.I(f"v_cmp_gt_i32 {pair(r)}, {key}, v{v}")
        L.append(cmp_(0))
        for r in range(16):
            if r < 15:
                L.append(cmp_(r + 1))
            if r > 0:
                L.append(lambda r=r: self.I(f"v_sub_f32 v{self.S(0)+r-1}, v{v+1}, v{self.S(8)+r-1}"))
            L.append(lambda r=r: self.I(f"v_cndmask_b32 v{self.S(8)+r}, 0, v{v+1}, {pair(r)}"))
        L.append(lambda: self.I(f"v_sub_f32 v{self.S(0)+15}, v{v+1}, v{self.S(8)+15}"))
        return L

    def att_loads_K(self):
        I = self.I
        ws = f"s[{self.S_WS}:{self.S_WS+3}]"
        I(f"s_mul_i32 s86, s{self.sWV}, {3*2048}")
        for i in range(3):
            I(f"s_add_u32 m0, s86, {KV_K + 2048*i}")
            if i < 2:
                I(f"buffer_load_dwordx4 v[{self.vQ+4*i}:{self.vQ+4*i+3}], v{self.vL16}, {ws}, s{self.sQO} offen offset:{1024*i} sc1", "K")
            for e in range(2):
                I(f"buffer_load_dwordx4 v{self.vL16}, {ws}, s{self.sKT+i} offen offset:{1024*e} sc1 lds", "K")

    def att_loads_V(self):
        I = self.I
        ws = f"s[{self.S_WS}:{self.S_WS+3}]"
        I(f"s_mul_i32 s86, s{self.sWV}, {3*2048}")
        for i in range(3):
            I(f"s_add_u32 m0, s86, {KV_V + 2048*i}\ns_add_u32 s87, s{self.sKT+i}, {56*512}")
            for e in range(2):
                I(f"buffer_load_dwordx4 v{self.vP+8+e}, {ws}, s87 offen offset:{1024*e} sc1 lds", "V")

    def attention(self):
        I, b, o = self.I, self.b, self.o
        KF = self.KF
        m = self.vM
        order = [8, 7, 6, 5, 4, 3, 2, 1, 0]
        b.wait_tags(("V",))
        I(f"ds_write_b64 v{self.vP+6}, v[{self.vP+4}:{self.vP+5}] offset:{KV_V - KV_K}")
        I(f"ds_write_b64 v{self.vP+7}, v[{self.vP+4}:{self.vP+5}] offset:{KV_V - KV_K + 4096}")
        for f in self.mx_rest:
            f()
        b.waitcnt(lg=0)
        I("s_barrier")

        def rdv(i, bs):
            L = []
            for s in range(2):
                for e in range(2):
                    r = KF + bs * 8 + 4 * s + 2 * e
                    L.append(f"ds_read_b64_tr_b16 v[{r}:{r+1}], v{self.vVA+e} offset:{2048*i + 256*s}")
            return L
        for t in rdv(order[0], 0):
            I(t)
        I(f"v_mov_b32 v{m+1}, v{m}")
        I(f"v_permlane32_swap_b32 v{m}, v{m+1}")
        I(f"v_max_f32 v{m}, v{m}, v{m+1}")
        I(f"v_mul_f32 v{m}, s{self.sCS}, v{m}")
        I(f"s_mov_b32 s{self.sMSK}, 0x1ffff\ns_mov_b32 s{self.sMSK+1}, 0")
        self.ts()
        sched = {n: [] for n in range(9)}
        rd = lambda a, e: [f for s in range(a, e) for f in self.fin_rdw(s)]
        dm = lambda a, e: [f for s in range(a, e) for f in self.fin_dma(s)]
        pub = lambda: (b.wait_tags(("h",)), I("s_barrier"), self.flag_store(1))
        mid = (self.bg_rest + 22) // 2
        sched[0] = dm(self.bg_rest, mid)
        sched[1] = dm(mid, 22) + rd(8, 10)
        sched[2] = rd(10, 14) + dm(22, 25)
        sched[3] = dm(25, 28) + rd(14, 18)
        sched[4] = rd(18, 22) + dm(28, 31)
        sched[5] = dm(31, 36)
        sched[6] = rd(22, 28)
        hl = [f for s in range(o.nh0) for f in self.fin_hload(s)]
        sched[7] = hl[:len(hl) // 2]
        sched[8] = hl[len(hl) // 2:]
        sched[o.hpub] = sched[o.hpub] + [pub]
        sched[o.hpoll] = sched[o.hpoll] + [lambda: self.poll_issue(self.vFA, self.vPOLL)]
        sched[7] = [self.hook_poll_check] + sched[7]
        O = self.vO
        prev = None
        for n, i in enumerate(order):
            if n in o.ss:
                self.ts()
            d = self.S(i)
            p = self.vP + 8 * (n % 2)
            L = []
            if o.pk:
                for k in range(0, 16, 2):
                    L.append(f"v_pk_fma_f32 v[{d+k}:{d+k+1}], v[{d+k}:{d+k+1}], s[{self.sNL2E}:{self.sCS}], v[{m}:{m+1}] op_sel:[0,1,0] op_sel_hi:[1,1,0] neg_lo:[0,0,1] neg_hi:[0,0,1]")
            else:
                for k in range(16):
                    L.append(f"v_fma_f32 v{d+k}, v{d+k}, s{self.sCS}, -v{m}")
            ex = [f"v_exp_f32 v{d+k}, v{d+k}" for k in range(16)]
            cv = [f"v_cvt_pk_bf16_f32 v{p+k}, v{d+2*k}, v{d+2*k+1}" for k in range(8)]
            seq = L + ex + cv
            vr = rdv(order[n + 1], (n + 1) % 2) if n + 1 < 9 else []
            main = []
            for k, t in enumerate(seq):
                main.append(lambda t=t: I(t))
                if prev is not None and k == 1:
                    main.append(lambda t=prev[0]: I(t))
                if prev is not None and k == 7:
                    main.append(lambda t=prev[1]: I(t))
                if k >= 10 and vr:
                    main.append(lambda t=vr.pop(0): I(t))
            for f in self.weave(main, sched[n], 0.0, 1.0):
                f()
            r = KF + (n % 2) * 8
            prev = (f"v_mfma_f32_32x32x16_bf16 v[{O}:{O+15}], v[{r}:{r+3}], v[{p}:{p+3}], " + ("0" if n == 0 else f"v[{O}:{O+15}]"),
                    f"v_mfma_f32_32x32x16_bf16 v[{O}:{O+15}], v[{r+4}:{r+7}], v[{p+4}:{p+7}], v[{O}:{O+15}]")
        I(prev[0])
        I(prev[1])
        t = self.vQ
        I(f"v_mul_f32 v{t}, s{self.sNL2E}, v{self.vZZ}\nv_exp_f32 v{t}, v{t}")
        z = self.vZZ + 1
        for a in range(2):
            I(f"v_mul_f32 v{z+a}, s{self.sNL2E}, v{z+a}\nv_exp_f32 v{z+a}, -v{z+a}")
        I(f"v_add_f32 v{t}, 1.0, v{t}")
        for a in range(2):
            I(f"v_add_f32 v{z+a}, 1.0, v{z+a}\nv_rcp_f32 v{z+a}, v{z+a}")
        I(f"v_cndmask_b32 v{t+1}, v{O+12}, v{O}, s[{self.sPAR}:{self.sPAR+1}]\nv_mov_b32 v{t+2}, v{t+1}")
        I(f"v_permlane32_swap_b32 v{t+1}, v{t+2}")
        I(f"v_cndmask_b32 v{t+1}, v{t+2}, v{t+1}, s[{self.sPAR}:{self.sPAR+1}]")
        I(f"v_mul_f32 v{t}, v{t}, v{t+1}\nv_rcp_f32 v{t}, v{t}")
        I(f"v_and_b32 v{t+1}, v{self.vMA}, v{t}\nv_and_b32 v{t+2}, v{self.vMB}, v{t}")
        for k in range(16):
            sc = t + 1 if k == 0 else (t + 2 if k == 12 else t)
            I(f"v_mul_f32 v{O+k}, v{O+k}, v{sc}")
        for f in self.cvt_store(O, self.sOO, 0, "o") + self.cvt_store(O + 8, self.sOO, 1024, "o"):
            f()

    def hook_poll_check(self):
        I = self.I
        self.poll_check(self.vFA, self.vPOLL, self.sMSK)
        v = self.vT
        I(f"v_and_b32 v{v}, 31, v0\nv_lshlrev_b32 v{v}, 2, v{v}")
        ws = f"s[{self.S_WS}:{self.S_WS+3}]"
        I(f"buffer_load_dword v{self.vZZ}, v{v}, {ws}, s{self.sZO} offen sc1", "z")
        I(f"buffer_load_dword v{self.vZZ+1}, v{v}, {ws}, s{self.sZF} offen sc1", "z")
        I(f"s_xor_b32 s{self.sZF}, s{self.sZF}, 0x80")
        I(f"buffer_load_dword v{self.vZZ+2}, v{v}, {ws}, s{self.sZF} offen sc1", "z")

    RING = 14

    def ring_addr(self, e):
        return (1, 2048 * e) if e < 8 else (0, 2048 * (e - 8))

    def final_setup(self):
        I = self.I
        v = self.vT
        I("s_lshr_b32 s86, s2, 3\ns_and_b32 s87, s2, 7\ns_mul_i32 s88, s86, 37\ns_lshr_b32 s88, s88, 8")
        I(f"s_mul_i32 s89, s88, 7\ns_sub_u32 s89, s86, s89\ns_cmp_lt_u32 s86, 28\ns_cselect_b32 s{self.sFIN}, 1, 0")
        I("s_min_u32 s88, s88, 3\ns_lshl_b32 s87, s87, 2\ns_add_u32 s87, s87, s88")
        I(f"s_lshr_b32 s90, s{self.sWV}, 1\ns_and_b32 s91, s{self.sWV}, 1")
        I(f"s_lshl_b32 s92, s88, 1\ns_add_u32 s92, s92, s89\ns_cmp_ge_u32 s92, 7\ns_cselect_b32 s93, 7, 0\ns_sub_u32 s94, s92, s93")
        if self.o.rot != 1:
            I({0: "s_mov_b32 s94, 0", 2: "s_mov_b32 s94, s89", 3: "s_lshl_b32 s94, s88, 1"}[self.o.rot])
        I(f"s_sub_u32 s{self.sWRAP}, 7, s94\ns_and_b32 s86, s89, {1 if self.o.rot in (1, 2) else 0}")
        I(f"s_mul_i32 s92, s{self.sWV}, {448*896}\ns_lshl_b32 s89, s89, 7\ns_add_u32 s{self.sFW}, s92, s89")
        I(f"s_mul_i32 s92, s94, {64*896}\ns_add_u32 s{self.sFW}, s{self.sFW}, s92")
        I(f"s_mul_i32 s92, s{self.sWV}, {112*896}\ns_add_u32 s{self.sFWO}, s92, s89\ns_mul_i32 s92, s86, {56*896}\ns_add_u32 s{self.sFWO}, s{self.sFWO}, s92")
        I(f"s_cmp_lg_u32 s86, 0\ns_mov_b32 s{self.sDWO}, {16*896}\ns_cselect_b32 s{self.sDWO}, {(-96*896) & 0xFFFFFFFF}, s{self.sDWO}")
        I(f"s_cmp_lg_u32 s86, 0\ns_movk_i32 s{self.sDHO}, 0x1000\ns_cselect_b32 s{self.sDHO}, 0xfffff000, s{self.sDHO}")
        I(f"s_cmp_lg_u32 s{self.sFIN}, 0\ns_cselect_b32 s{self.S_WD+2}, s{self.S_WD+2}, 0\ns_cselect_b32 s{self.S_WO+2}, s{self.S_WO+2}, 0")
        I(f"s_mul_i32 s{self.sFM0}, s{self.sWV}, {12*K}\ns_add_u32 s{self.sFM0}, s{self.sFM0}, {RING_LO}")
        I(f"s_lshl_b32 s{self.sFM1}, s{self.sWV}, 14\ns_add_u32 s{self.sFM1}, s{self.sFM1}, {RING_HI}")
        I(f"v_lshrrev_b32 v{v}, 3, v0\nv_and_b32 v{v+1}, 2, v{v}\nv_lshlrev_b32 v{v+1}, 1, v{v+1}\nv_and_b32 v{v+2}, 7, v0\nv_xor_b32 v{v+1}, v{v+1}, v{v+2}")
        I(f"v_mul_u32_u24 v{v}, 0x380, v{v}\nv_lshl_add_u32 v{self.vFD}, v{v+1}, 4, v{v}\nv_add_u32 v{self.vFD+1}, {8*896-1024}, v{self.vFD}")
        I(f"v_bfe_u32 v{v}, v0, 2, 2\nv_lshrrev_b32 v{v+1}, 5, v0")
        I(f"v_and_b32 v{v+2}, 1, v0\nv_lshlrev_b32 v{v+2}, 4, v{v+2}\nv_bfe_u32 v{v+3}, v0, 1, 1\nv_lshl_add_u32 v{v+2}, v{v+3}, 3, v{v+2}")
        I(f"v_bfe_u32 v{v+3}, v0, 4, 1\nv_and_b32 v{v+4}, 2, v{v}\nv_xor_b32 v{v+3}, v{v+3}, v{v+4}\ns_lshl_b32 s92, s90, 1\nv_xor_b32 v{v+3}, s92, v{v+3}")
        I(f"v_lshl_add_u32 v{v+2}, v{v+3}, 5, v{v+2}\nv_lshl_add_u32 v{v+2}, v{v}, 7, v{v+2}")
        R = self.vFR
        I(f"v_lshl_add_u32 v{v+3}, v{v+1}, 10, v{v+2}\nv_add_u32 v{R}, s{self.sFM0}, v{v+3}\nv_xor_b32 v{R+1}, 64, v{R}")
        I(f"v_add_u32 v{R+2}, s{self.sFM1}, v{v+3}\nv_xor_b32 v{R+3}, 64, v{R+2}")
        I(f"v_lshlrev_b32 v{R+4}, 9, v{v+1}")
        I(f"s_lshl_b32 s93, s87, 1\ns_add_u32 s93, s93, s91\ns_mul_i32 s92, s93, {HO_MT}\ns_mul_i32 s88, s{self.sWV}, {28*1024}")
        I(f"s_add_u32 s92, s92, {HO_OFF - HO_MT}\ns_add_u32 s88, s88, s92\ns_lshl_b32 s94, s94, 12\ns_add_u32 s{self.sFH}, s88, s94")
        I(f"s_lshl_b32 s88, s{self.sWV}, 1\ns_add_u32 s88, s88, s86\ns_lshl_b32 s88, s88, 12\ns_add_u32 s88, s88, s92\ns_add_u32 s{self.sFHO}, s88, {112*1024}")
        I(f"s_cmp_eq_u32 s91, 0\ns_cselect_b32 s92, {2*HO_MT}, 0")
        I(f"v_add_u32 v{R+5}, {HO_MT}, v{self.vL16}\nv_add_u32 v{R+6}, s92, v{self.vL16}")
        I(f"s_mul_i32 s92, s93, {32*896}\ns_add_u32 s92, s92, s89\ns_lshl_b32 s88, s90, 6\ns_add_u32 s{self.sFO}, s92, s88")
        I(f"s_lshl_b32 s92, s93, 7\ns_add_u32 s{self.sZF}, s92, {Z_OFF}")
        I(f"s_lshr_b32 s87, s87, 1\ns_lshl_b32 s87, s87, 8\ns_add_u32 s87, s87, {FL_OFF + 4096}")
        I(f"s_lshl_b32 s88, s{self.sRB}, 8\ns_add_u32 s88, s88, {FL_OFF + 4096 + 56}")
        I(f"v_lshlrev_b32 v{v}, 2, v0\nv_add_u32 v{v}, s87, v{v}\nv_mov_b32 v{v+1}, s88\nv_cmp_gt_u32 vcc, 16, v0\nv_cndmask_b32 v{self.vFA}, v{v+1}, v{v}, vcc")

    def fin_dma(self, step):
        I, b = self.I, self.b
        hi, c = self.ring_addr(step % self.RING)
        sm = self.sFM1 if hi else self.sFM0

        def first():
            if step >= self.RING:
                need = None
                for i, (_d, t) in enumerate(b.lg):
                    if t == f"rw{step - self.RING}":
                        need = len(b.lg) - 1 - i
                assert f"rw{step - self.RING}" in self.rw_done, step
                b.waitcnt(lg=need)
            I(f"s_add_u32 m0, s{sm}, {c}")
        L = [first]
        if step < 28:
            srd, so = self.S_WD, self.sFW
        else:
            srd, so = self.S_WO, self.sFWO
        if 0 < step < 28 and step % 4 == 0:
            L.append(lambda: I(f"s_cmp_eq_u32 s{self.sWRAP}, {step//4}\ns_cselect_b32 s86, {(-448*896) & 0xFFFFFFFF}, 0\ns_add_u32 s{so}, s{so}, s86\ns_add_u32 s{so}, s{so}, {16*896}"))
        elif 0 < step < 28:
            L.append(lambda: I(f"s_add_u32 s{so}, s{so}, {16*896}"))
        elif step == 32:
            L.append(lambda: I(f"s_add_u32 s{so}, s{so}, s{self.sDWO}"))
        elif step > 28:
            rows = [0, 16, 24, 40]
            d = rows[step % 4] - rows[step % 4 - 1]
            L.append(lambda: I(f"s_add_u32 s{so}, s{so}, {d*896}"))
        for e in range(2):
            L.append(lambda e=e: I(f"buffer_load_dwordx4 v{self.vFD+e}, s[{srd}:{srd+3}], s{so} offen offset:{1024*e} lds", f"w{step}"))
        return L

    rw_done = set()

    def fw(self, step, t):
        return (step * 8 if step < 28 else 224 + (step % 2) * 8) + 4 * t

    def fin_rdw(self, step):
        hi, c = self.ring_addr(step % self.RING)
        L = []
        for t in range(2):
            for e in range(2):
                r = self.fw(step, t) + 2 * e
                imm = c + (512 if step < 28 else 1024) * e

                def f(r=r, t=t, e=e, imm=imm):
                    if t == 0 and e == 0:
                        self.b.wait_tags((f"w{step}",))
                    self.I(f"ds_read_b64_tr_b16 a[{r}:{r+1}], v{self.vFR + 2*hi + t} offset:{imm}", f"rw{step}")
                    if t == 1 and e == 1:
                        self.rw_done.add(f"rw{step}")
                L.append(f)
        return L

    def fin_hload(self, step):
        I = self.I
        L = []
        R = self.vFR
        imm = 1024 * ((step if step < 28 else step - 28) % 4)
        if step == 28:
            L.append(lambda: I(f"s_mov_b32 s{self.sFH}, s{self.sFHO}"))
        elif step == 32:
            L.append(lambda: I(f"s_add_u32 s{self.sFH}, s{self.sFH}, s{self.sDHO}"))
        elif step % 4 == 0 and step > 0:
            L.append(lambda: I(f"s_cmp_eq_u32 s{self.sWRAP}, {step//4}\ns_cselect_b32 s86, {(-28*1024) & 0xFFFFFFFF}, 0\ns_add_u32 s{self.sFH}, s{self.sFH}, s86\ns_add_u32 s{self.sFH}, s{self.sFH}, 0x1000"))
        for a in range(2):
            r = self.FH + (step % self.NH) * 8 + 4 * a
            L.append(lambda r=r, a=a: I(f"buffer_load_dwordx4 v[{r}:{r+3}], v{R+5+a}, s[{self.S_WS}:{self.S_WS+3}], s{self.sFH} offen offset:{imm} sc1", f"h{step}"))
        return L

    def final(self):
        I, b, o = self.I, self.b, self.o
        R = self.vFR
        z = self.vZZ + 1
        nh = o.nh0
        A = self.FACC
        I("\n".join(f"v_sub_u32 v{R+i}, v{R+i}, v{R+4}" for i in range(4)))
        I(f"s_mov_b32 s{self.sMSK}, 0xffff\ns_movk_i32 s{self.sT0}, 0x1000")
        for n in range(36):
            gaps = [[] for _ in range(4)]
            if n in o.fs:
                self.ts()
            if 28 <= n + 1 < 36:
                rd = self.fin_rdw(n + 1)
                gaps[0] += rd[:2]
                gaps[1] += rd[2:]
            if n == o.opub:
                gaps[0].append(lambda: (b.wait_tags(("o",)), I("s_barrier"), self.flag_store(2)))
            if n == o.opoll_issue:
                gaps[1].append(lambda: self.poll_issue(self.vFA, self.vPOLL, soff=f"s{self.sT0}"))
            lim = 28 if n < o.opoll_check else 36
            if n == o.opoll_check:
                gaps[0].append(lambda: self.poll_check(self.vFA, self.vPOLL, self.sMSK, soff=f"s{self.sT0}"))
            cnt = 0
            while nh < lim and nh - self.NH < n and cnt < o.hrate:
                hl = self.fin_hload(nh)
                gaps[(2 * cnt + 1) % 4] += hl[:-1]
                gaps[(2 * cnt + 2) % 4 if cnt == 0 else 3] += hl[-1:]
                nh += 1
                cnt += 1
            if n == 28:
                for s in range(4):
                    for k in range(0, 16, 2):
                        I(f"v_pk_mul_f32 v[{A[s]+k}:{A[s]+k+1}], v[{A[s]+k}:{A[s]+k+1}], v[{z}:{z+1}] op_sel:[0,{s&1}] op_sel_hi:[1,{s&1}]")
            i = 0
            tiles = [(0, 0), (0, 1), (1, 0), (1, 1)] if n < 35 else [(0, 1), (1, 0), (1, 1), (0, 0)]
            for t, a in tiles:
                rw = self.fw(n, t)
                rh = self.FH + (n % self.NH) * 8 + 4 * a
                self.mfma(A[2 * t + a], f"a[{rw}:{rw+3}]", f"v[{rh}:{rh+3}]", n == 0)
                for f in gaps[i]:
                    f()
                i += 1
        self.ts()
        v = self.vT
        I(f"v_add_u32 v{v}, s{self.sFM0}, v{self.vL16}")
        for sg in range(1, 4):
            I(f"s_xor_b32 s86, s{self.sWV}, {sg}\ns_mul_i32 s86, s86, {12*K}\ns_add_u32 s86, s86, {RING_LO}\nv_add_u32 v{v+sg}, s86, v{self.vL16}")
        for sg in range(1, 4):
            for q in range(4):
                r = A[sg] + 4 * q
                I(f"ds_write_b128 v{v}, v[{r}:{r+3}] offset:{(sg-1)*4096 + q*1024}")
        I(f"v_and_b32 v{v+4}, 31, v0\nv_mul_u32_u24 v{v+4}, 0x380, v{v+4}\nv_lshrrev_b32 v{v+5}, 5, v0\nv_lshl_add_u32 v{v+4}, v{v+5}, 4, v{v+4}")
        b.waitcnt(lg=0)
        I("s_barrier")
        T = self.FH
        for q in range(4):
            for sg in range(1, 4):
                r = T + 16 * (sg - 1) + 4 * q
                I(f"ds_read_b128 v[{r}:{r+3}], v{v+sg} offset:{(sg-1)*4096 + q*1024}")
        a0 = A[0]
        for h in range(2):
            for k in range(8 * h, 8 * h + 8, 2):
                for sg in range(1, 4):
                    r = T + 16 * (sg - 1) + k
                    I(f"v_pk_add_f32 v[{a0+k}:{a0+k+1}], v[{a0+k}:{a0+k+1}], v[{r}:{r+1}]")
            r = a0 + 8 * h
            for i in range(4):
                I(f"v_cvt_pk_bf16_f32 v{r+i}, v{r+2*i}, v{r+2*i+1}")
            if o.thr and h == 0:
                b.raw("s_memrealtime s[100:101]")
                b.raw("s_waitcnt lgkmcnt(0)")
                I(f"global_load_dwordx2 v[46:47], v{self.vZ}, s[{self.pDBG}:{self.pDBG+1}] offset:128 sc1\nv_or_b32 v46, v46, v47\nv_readfirstlane_b32 s101, v46")
                I(f"s_sub_u32 s100, s100, s{self.sTAG}\ns_cmp_gt_i32 s100, {o.thr}\ns_cselect_b32 s100, 0x7fc07fc0, 0")
                I(f"s_cmp_lg_u32 s101, 0\ns_cselect_b32 s100, 0, s100\nv_or_b32 v{r}, s100, v{r}")
            I(f"buffer_store_dwordx4 v[{r}:{r+3}], v{v+4}, s[{self.S_OUT}:{self.S_OUT+3}], s{self.sFO} offen offset:{32*h}")

    def build(self):
        I, b, o = self.I, self.b, self.o
        b.label(KNAME)
        self.prologue()
        self.ts(98)
        self.ts(99)
        self.sts_flush()
        self.ts()
        self.passA()
        self.ts()
        I(f"s_cmp_lg_u32 s{self.sISV}, 0\ns_cbranch_scc1 L_vpath")
        snap = b.snapshot()
        nts0 = self.nts
        self.passB_GU()
        gu_vm = list(b.vm)
        gu_lg = [t for _d, t in b.lg]
        I("s_branch L_join")
        b.label("L_vpath")
        b.restore(snap)
        self.nts = nts0
        self.passB_V()
        b.label("L_join")
        vt = [t for _d, t in b.vm]
        gt = [t for _d, t in gu_vm]
        after = lambda L, t: L[::-1].index(t) if t in L else 10 ** 6
        for t in set(vt) | set(gt):
            if t is not None:
                assert after(vt, t) <= after(gt, t), (t, vt, gt)
        assert [t for _d, t in b.lg] == gu_lg
        self.ts()
        self.attention()
        self.ts()
        I(f"s_cmp_lg_u32 s{self.sFIN}, 0\ns_cbranch_scc0 L_nofinal")
        snap2 = b.snapshot()
        self.final()
        if o.ts:
            b.wait_all()
            self.ts(last=True)
        I("s_endpgm")
        b.label("L_nofinal")
        b.restore(snap2)
        b.wait_tags(("o",))
        I("s_barrier")
        self.flag_store(2)
        b.label("L_exit")
        b.raw("s_endpgm")

    def text(self):
        hdr = open("gated_mix__sliding_block__glu_gated_glu__prompt.s.ref").read().split("; Override launch")[0]
        s = hdr
        s += "; Generated by my own generator script (hand-designed schedule; no compiler output).\n"
        s += "; @launch grid=(256,1,1) block=(256,1,1) lds=163840\n"
        s += '.amdgcn_target "amdgcn-amd-amdhsa--gfx950"\n.text\n'
        s += f".globl {KNAME}\n.p2align 8\n.type {KNAME},@function\n"
        s += self.b.text()
        s += f""".section .rodata,"a"
.p2align 6
.amdhsa_kernel {KNAME}
  .amdhsa_next_free_vgpr 512
  .amdhsa_next_free_sgpr 102
  .amdhsa_accum_offset 256
  .amdhsa_group_segment_fixed_size 0
  .amdhsa_kernarg_size 88
  .amdhsa_user_sgpr_count 2
  .amdhsa_user_sgpr_kernarg_segment_ptr 1
  .amdhsa_system_sgpr_workgroup_id_x 1
.end_amdhsa_kernel
"""
        return s


def main():
    ap = argparse.ArgumentParser()
    ap.add_argument("-o", default="k.s")
    ap.add_argument("--ts", action="store_true")
    ap.add_argument("--cyc", action="store_true")
    ap.add_argument("--thrpat", type=int, default=1)
    ap.add_argument("--badmap", type=int, default=0)
    ap.add_argument("--thr", type=int, default=0)
    ap.add_argument("--lite", action="store_true")
    ap.add_argument("--dbgts", type=int, default=0)
    ap.add_argument("--sts", action="store_true")
    ap.add_argument("--pk", type=int, default=1)
    ap.add_argument("--pkB", type=int, default=0)
    ap.add_argument("--align", type=int, default=1)
    ap.add_argument("--coop", type=int, default=0)
    ap.add_argument("--lead", type=int, default=2)
    ap.add_argument("--rot", type=int, default=0)
    ap.add_argument("--fl0", type=int, default=11)
    ap.add_argument("--kpoll", type=int, default=21)
    ap.add_argument("--kchk", type=int, default=25)
    ap.add_argument("--epi_end", type=int, default=28)
    ap.add_argument("--nbq", type=int, default=6)
    ap.add_argument("--hpub", type=int, default=1)
    ap.add_argument("--hpoll", type=int, default=5)
    ap.add_argument("--nh0", type=int, default=8)
    ap.add_argument("--hrate", type=int, default=2)
    ap.add_argument("--opub", type=int, default=6)
    ap.add_argument("--opoll_issue", type=int, default=14)
    ap.add_argument("--opoll_check", type=int, default=18)
    for k in ("fs", "bs", "ss"):
        ap.add_argument("--" + k, default="", type=lambda t: [int(x) for x in t.split(",") if x])
    o = ap.parse_args()
    g = G(o)
    g.build()
    open(o.o, "w").write(g.text())
    print(f"code bytes {g.b.off}, hazard nops {g.b.nops_added}, stamps {g.nts}", file=sys.stderr)


if __name__ == "__main__":
    main()
```

```python
import sys, math, argparse
from asmb import Builder

KNAME = "gated_mix__sliding_block__glu_gated_glu__prompt_kernel"
K = 1024
QKV_OFF = 0
QKV_MT = 168 * 512
HO_OFF = 0x600000
HO_MT = 144 * 1024
Z_OFF = 0xF00000
FL_OFF = 0xF10000
E_OFF = 0xF20000
TS_OFF = 0xF30000
WS_SIZE = 0x1000000
SLOT = 40 * K
CHUNK = 10 * K
PB_BASE = [120 * K, 136 * K, 0, 16 * K, 48 * K, 64 * K, 80 * K]
KV_K = 0
KV_V = 24 * K
RING_LO = 48 * K
RING_HI = 96 * K
NEG = 0xF149F2CA
LOG2E = 1.4426950408889634
SPIN_MAX = 1 << 18


def f32hex(x):
    import struct
    return "0x%08x" % struct.unpack("<I", struct.pack("<f", x))[0]


class G:
    def __init__(self, opt):
        self.o = opt
        self.b = Builder(align_opt=opt.align)
        self.nts = 0

    S_X, S_A, S_B, S_C, S_WS, S_WD, S_WO, S_OUT = 8, 12, 16, 20, 24, 28, 32, 36
    pDBG, pGW = 40, 42
    sWV, sRB, sJ, sISV = 44, 45, 46, 47
    sX, sA, sB, sC = 48, 49, 50, 51
    sSAB, sM0, sM0B, sA2, sB2 = 52, 53, 54, 55, 56
    sTAG = 57
    sQ0, sQ1, sH0, sH1 = 58, 59, 60, 61
    sNL2E, sCS = 62, 63
    sMSK, sMSK2, sPAR = 64, 66, 68
    sKT = 70
    sQO, sZO, sOO = 73, 74, 75
    sFIN, sFW, sFH, sFWO, sFM0, sFM1, sFO, sZF = 76, 77, 78, 79, 80, 81, 82, 83
    sSPIN, sT0 = 84, 85
    sT1, sT2, sT3 = 3, 4, 5
    sWRAP, sFHO, sDWO, sDHO = 0, 1, 6, 7
    sTS, sEX, sTM = 95, 96, 100
    vL16 = 1
    vXD = 2
    vWD = 6
    vXR = 12
    vWR = 24
    vT = 33
    vPFW, vPFC = 46, 47
    vPOLL = 48
    vZ = 49
    vFL = 50
    vAP = 51
    ACC_A = 52
    ACC_B = 148
    WF = 224
    KF = 4
    vO = 196
    vQ = 212
    vP = 220
    vKA = 236
    vVA = 237
    vM = 240
    vMA, vMB = 242, 239
    vZZ = 243
    vFA = 246
    vFD = 247
    vFR = 249
    FH = 84
    NH = 16
    FACC = [52, 68, 212, 228]
    SREG = {8: 52, 0: 68, 7: 84, 6: 100, 5: 116, 4: 132, 3: 148, 2: 164, 1: 180}

    def I(self, t, tag=None):
        self.b.I(t, tag)

    def srd(self, s, lo, hi, size):
        self.I(f"s_mov_b32 s{s}, {lo}\ns_mov_b32 s{s+1}, {hi}\ns_mov_b32 s{s+2}, {size}\ns_mov_b32 s{s+3}, 0x20000")

    def ts(self, sreg=None, last=False):
        if not self.o.ts or (self.o.lite and not last and sreg != 98):
            return
        n = self.nts
        self.nts += 1
        if sreg is None:
            self.b.raw(f"{'s_memtime' if self.o.cyc else 's_memrealtime'} s[{self.sTM}:{self.sTM+1}]")
            self.b.raw("s_waitcnt lgkmcnt(0)")
            self.b.lg = []
            sreg = self.sTM
        self.I(f"v_mov_b32 v{self.vT}, s{sreg}\nv_mov_b32 v{self.vT+1}, 0")
        self.I(f"s_mov_b64 s[{self.sEX}:{self.sEX+1}], exec\ns_mov_b64 exec, 1")
        if self.o.dbgts:
            u = self.uid()
            keep = list(self.b.vm)
            self.I(f"s_lshl_b32 s86, s2, 2\ns_add_u32 s86, s86, s{self.sWV}\ns_cmp_eq_u32 s86, {self.o.dbgts}\ns_cbranch_scc0 L_dts{u}")
            self.I(f"global_store_dword v{self.vT+1}, v{self.vT}, s[{self.pDBG}:{self.pDBG+1}] offset:{4*(n+1)} sc1")
            self.b.label(f"L_dts{u}")
            if n == 0 or last:
                self.I(f"s_cmp_eq_u32 s{self.sWV}, 0\ns_cbranch_scc0 L_dtt{u}")
                if n == 0:
                    self.I(f"v_not_b32 v{self.vT}, v{self.vT}")
                self.I(f"global_atomic_umax v{self.vT+1}, v{self.vT}, s[{self.pDBG}:{self.pDBG+1}] offset:{56 if n == 0 else 60} sc1")
                self.b.label(f"L_dtt{u}")
            self.b.vm = keep
        else:
            self.I(f"buffer_store_dword v{self.vT}, v{self.vT+1}, s[{self.S_WS}:{self.S_WS+3}], s{self.sTS} offen offset:{4*n}")
        self.I(f"s_mov_b64 exec, s[{self.sEX}:{self.sEX+1}]")

    soft = 0

    def sts(self):
        if not self.o.sts:
            return
        self.b.raw(f"{'s_memtime' if self.o.cyc else 's_memrealtime'} s[{self.sTM}:{self.sTM+1}]")
        self.b.raw("s_waitcnt lgkmcnt(0)")
        self.I(f"v_mov_b32 v{196+self.soft}, s{self.sTM}")
        self.soft += 1

    def sts_flush(self):
        for k in range(self.soft):
            self.I(f"v_readfirstlane_b32 s{self.sTM}, v{196+k}")
            self.ts(self.sTM)

    def lds(self, base, n, idx, const):
        return f"v{base + (const >> 16) * n + idx}", const & 0xFFFF

    def xf(self, M, n):
        r = (M * 28 + n) * 4
        return f"a[{r}:{r+3}]"

    def wf(self, bufset, t):
        r = self.WF + bufset * 12 + t * 4
        return r

    def acc(self, base, t, M):
        r = base + (t * 2 + M) * 16
        return r

    def prologue(self):
        I = self.I
        b = self.b
        if self.o.ts or self.o.thr:
            b.raw(f"{'s_memtime' if self.o.cyc else 's_memrealtime'} s[98:99]")
        I("s_cmp_ge_u32 s2, 0x100\ns_cbranch_scc1 L_exit")
        if self.o.badmap:
            I("s_and_b32 s3, s2, 31\ns_lshl_b32 s3, s3, 3\ns_lshr_b32 s2, s2, 5\ns_or_b32 s2, s2, s3")
        b.raw("s_load_dwordx16 s[64:79], s[0:1], 0")
        b.raw("s_load_dwordx4 s[80:83], s[0:1], 64")
        b.raw(f"s_load_dwordx2 s[{self.S_WS}:{self.S_WS+1}], s[0:1], 80")
        I("s_getpc_b64 s[4:5]")
        b.label("L_pc")
        I("s_and_b32 s3, s2, 0xf8\nv_and_b32 v33, 7, v0\nv_add_lshl_u32 v33, v33, s3, 7\nv_min_u32 v33, L_exit-L_pc, v33")
        I("global_load_dword v45, v33, s[4:5]", tag="pf")
        b.vm[-1] = (set(), "pf")
        I("v_lshrrev_b32 v35, 6, v0\nv_and_b32 v0, 63, v0")
        I(f"v_readfirstlane_b32 s{self.sWV}, v35")
        I("s_and_b32 s3, s2, 7\ns_lshr_b32 s6, s2, 3")
        I(f"s_and_b32 s7, s3, 1\ns_lshl_b32 s7, s7, 3\ns_and_b32 s4, s6, 7\ns_add_u32 s{self.sRB}, s4, s7")
        I(f"s_lshr_b32 s7, s3, 1\ns_lshl_b32 s7, s7, 2\ns_lshr_b32 s5, s6, 3\ns_add_u32 s{self.sJ}, s5, s7")
        I(f"v_lshlrev_b32 v{self.vL16}, 4, v0")
        I("v_lshrrev_b32 v35, 3, v0\nv_and_b32 v36, 7, v0\nv_lshrrev_b32 v37, 4, v0")
        I("v_mul_u32_u24 v38, 0x380, v35")
        I("v_xor_b32 v39, v36, v37\nv_lshl_add_u32 v2, v39, 4, v38")
        I(f"v_xor_b32 v3, 64, v2\nv_add_u32 v3, {8*896-1024}, v3")
        I(f"v_add_u32 v4, {16*896-2048}, v2\nv_add_u32 v5, {16*896-2048}, v3")
        I("v_and_b32 v39, 2, v35\nv_lshlrev_b32 v39, 1, v39\nv_xor_b32 v39, v36, v39\nv_lshlrev_b32 v39, 4, v39")
        I(f"s_cmp_ge_u32 s{self.sJ}, 14\ns_cselect_b32 s{self.sISV}, 1, 0")
        I("s_movk_i32 s7, 0xe00\ns_movk_i32 s86, 0xa80\ns_cselect_b32 s7, s86, s7")
        I("v_mul_u32_u24 v40, 0xa80, v35\nv_add_u32 v10, v40, v39")
        I(f"v_add_u32 v11, {8*2688-1024}, v10")
        I("v_mul_u32_u24 v40, s7, v35\nv_add_u32 v6, v40, v39")
        I("s_lshl_b32 s86, s7, 3\ns_sub_u32 s86, s86, 0x400\nv_add_u32 v7, s86, v6")
        I("v_xor_b32 v8, 32, v6\nv_xor_b32 v9, 32, v7")
        I(f"s_lshl_b32 s{self.sSAB}, s7, 6")
        if self.o.coop:
            I("v_lshrrev_b32 v42, 1, v0\nv_and_b32 v43, 1, v0\nv_lshlrev_b32 v44, 7, v43")
            I("v_mul_u32_u24 v41, 0x380, v43\nv_lshl_add_u32 v41, v42, 7, v41")
            I(f"v_mul_u32_u24 v{self.vPFW}, s{self.sSAB}, v42\nv_add_u32 v{self.vPFW}, v{self.vPFW}, v44")
            I(f"v_mul_u32_u24 v{self.vPFC}, {64*2688}, v42\nv_add_u32 v{self.vPFC}, v{self.vPFC}, v44\nv_lshlrev_b32 v44, 7, v0")
        I(f"s_lshl_b32 s86, s{self.sRB}, 2\ns_add_u32 s87, s86, s{self.sWV}\ns_mul_i32 s{self.sX}, s87, {32*896}")
        if self.o.coop:
            I(f"s_mul_i32 s3, s87, s7\ns_mul_i32 s4, s87, 0xa80")
            I(f"s_lshl_b32 s86, s{self.sRB}, 4\ns_add_u32 s86, s86, s{self.sJ}\ns_lshl_b32 s86, s86, 2\ns_add_u32 s86, s86, s{self.sWV}")
            I(f"s_mul_i32 s6, s86, {2*896}\ns_mul_i32 s86, s86, 49\ns_lshr_b32 s5, s86, 4\ns_lshl_b32 s5, s5, 7\ns_lshr_b32 s86, s86, 2\ns_lshl_b32 s95, s86, 7")
        I(f"s_lshl_b32 s86, s{self.sWV}, 4\ns_mul_i32 s87, s86, s7\ns_mul_i32 s88, s86, 0xa80")
        I(f"s_lshl_b32 s89, s{self.sJ}, 8\ns_lshl_b32 s90, s{self.sJ}, 7")
        I(f"s_lshl_b32 s91, s{self.sJ}, 9\ns_sub_u32 s91, s91, {42*128}")
        I(f"s_add_u32 s92, s91, 0x80\ns_add_u32 s93, s91, 0x100\ns_add_u32 s94, s89, 0x80")
        I(f"s_cmp_lg_u32 s{self.sISV}, 0")
        I(f"s_cselect_b32 s91, s91, s89\ns_cselect_b32 s92, s92, s89\ns_cselect_b32 s93, s93, s90")
        I(f"s_cselect_b32 s90, {17*128}, s94")
        I(f"s_add_u32 s{self.sA}, s91, s87\ns_add_u32 s{self.sB}, s92, s87\ns_add_u32 s{self.sC}, s93, s88")
        I(f"s_add_u32 s{self.sA2}, s90, s87\ns_add_u32 s{self.sB2}, s94, s87")
        I(f"s_mul_i32 s{self.sM0}, s{self.sWV}, {CHUNK}\ns_lshl_b32 s{self.sM0B}, s{self.sWV}, 12")
        WQ, WG_ = 448 * 2688, 448 * 3584
        I(f"s_mov_b32 s{self.S_X+2}, {2048*896}\ns_mov_b32 s{self.S_X+3}, 0x20000")
        I(f"s_cmp_lg_u32 s{self.sISV}, 0")
        for s_ in (self.S_A, self.S_B):
            I(f"s_mov_b32 s{s_+2}, {WG_}\ns_cselect_b32 s{s_+2}, {WQ}, s{s_+2}\ns_mov_b32 s{s_+3}, 0x20000")
        I(f"s_mov_b32 s{self.S_C+2}, {WQ}\ns_mov_b32 s{self.S_C+3}, 0x20000")
        b.raw("s_waitcnt lgkmcnt(0)")
        if self.o.ts and not self.o.lite:
            b.raw(f"{'s_memtime' if self.o.cyc else 's_memrealtime'} s[96:97]")
            b.raw("s_waitcnt lgkmcnt(0)")
            I("s_mov_b32 s99, s96")
        I(f"s_mov_b32 s{self.S_X}, s64\ns_mov_b32 s{self.S_X+1}, s65")
        for s_, lo in ((self.S_A, 72), (self.S_B, 74)):
            I(f"s_cselect_b32 s{s_}, s66, s{lo}\ns_cselect_b32 s{s_+1}, s67, s{lo+1}")
        I(f"s_mov_b32 s{self.S_C}, s66\ns_mov_b32 s{self.S_C+1}, s67")
        srd = lambda s_: f"s[{s_}:{s_+3}]"
        def chip_pf():
            if not self.o.coop:
                return
            I("s_add_u32 s91, s91, s3\ns_add_u32 s92, s92, s3\ns_add_u32 s93, s93, s4\ns_mov_b64 exec, 0x3fff")
            self.pf(41, self.S_X, "s6")
            self.pf(self.vPFW, self.S_A, "s91")
            self.pf(self.vPFW, self.S_B, "s92")
            self.pf(self.vPFC, self.S_C, "s93")
            self.srd(self.S_WD, "s76", "s77", 1792 * 896)
            self.srd(self.S_WO, "s68", "s69", 448 * 896)
            self.pf(44, self.S_WD, "s95")
            I("s_mov_b64 exec, 0xf")
            self.pf(44, self.S_WO, "s5")
            I("s_mov_b64 exec, -1")
        if self.o.coop == 1:
            chip_pf()
        self.sts()
        for ins in self.dma_stageA(0):
            ins()
        if self.o.coop == 2:
            chip_pf()
        self.sts()
        I(f"s_mov_b32 s{self.S_WS+2}, {WS_SIZE}\ns_mov_b32 s{self.S_WS+3}, 0x20000")
        I(f"v_mov_b32 v{self.vZ}, 0\ns_mov_b32 s86, {E_OFF}")
        I(f"buffer_load_dword v{self.vPOLL}, v{self.vZ}, s[{self.S_WS}:{self.S_WS+3}], s86 offen sc1", tag="E")
        for st in range(1, self.o.lead):
            for ins in self.dma_stageA(st):
                ins()
        self.sts()
        if self.o.coop == 3:
            chip_pf()
        if not self.o.coop:
            self.srd(self.S_WD, "s76", "s77", 1792 * 896)
            self.srd(self.S_WO, "s68", "s69", 448 * 896)
        self.srd(self.S_OUT, "s80", "s81", 2048 * 896)
        I(f"s_mov_b64 s[{self.pDBG}:{self.pDBG+1}], s[82:83]\ns_mov_b64 s[{self.pGW}:{self.pGW+1}], s[78:79]")
        if self.o.ts:
            I(f"s_lshl_b32 s86, s2, 2\ns_add_u32 s86, s86, s{self.sWV}\ns_lshl_b32 s86, s86, 7\ns_add_u32 s{self.sTS}, s86, {TS_OFF}")
        I(f"s_lshr_b32 s86, s{self.sWV}, 1\ns_and_b32 s87, s{self.sWV}, 1")
        I("v_and_b32 v35, 31, v0\nv_lshrrev_b32 v36, 5, v0")
        I("v_bfe_u32 v37, v0, 1, 3\nv_xor_b32 v37, v37, v36")
        I(f"s_mul_i32 s88, s86, {2*CHUNK}\nv_lshlrev_b32 v38, 7, v35\nv_add_u32 v38, s88, v38")
        for ks in range(4):
            I(f"v_xor_b32 v39, {2*ks}, v37\nv_lshl_add_u32 v{self.vXR+ks}, v39, 4, v38")
        I("v_bfe_u32 v37, v0, 2, 2\nv_lshl_add_u32 v38, v36, 3, v37\nv_lshlrev_b32 v38, 7, v38")
        I("v_and_b32 v39, 1, v0\nv_lshlrev_b32 v39, 4, v39\nv_bfe_u32 v40, v0, 1, 1\nv_lshl_add_u32 v39, v40, 3, v39")
        I("v_add_u32 v38, v38, v39")
        I("v_bfe_u32 v39, v0, 4, 1\nv_and_b32 v40, 2, v37\nv_xor_b32 v40, v40, v39")
        I("s_lshl_b32 s88, s87, 1")
        I("v_xor_b32 v41, s88, v40")
        I(f"v_lshl_add_u32 v42, v41, 5, v38")
        I(f"v_add_u32 v{self.vWR}, 0x1000, v42")
        I(f"v_lshl_add_u32 v{self.vWR+1}, v39, 11, v42")
        I(f"v_xor_b32 v{self.vWR+2}, 32, v{self.vWR+1}")
        for st in (1, 2):
            for i in range(4):
                I(f"v_add_u32 v{self.vXR+4*st+i}, {65536*st}, v{self.vXR+i}")
            for i in range(3):
                I(f"v_add_u32 v{self.vWR+3*st+i}, {65536*st}, v{self.vWR+i}")
        I(f"s_lshl_b32 s88, s{self.sRB}, 2\ns_lshl_b32 s89, s86, 1\ns_add_u32 s88, s88, s89")
        I(f"s_mul_i32 s89, s88, {QKV_MT}\ns_lshl_b32 s90, s87, 11\ns_add_u32 s89, s89, s90")
        I(f"s_lshl_b32 s90, s{self.sJ}, 12\ns_lshl_b32 s91, s{self.sJ}, 14\ns_sub_u32 s91, s91, {40*4096}")
        I(f"s_cmp_lg_u32 s{self.sISV}, 0\ns_cselect_b32 s90, s91, s90\ns_add_u32 s{self.sQ0}, s89, s90")
        I(f"s_add_u32 s{self.sQ1}, s{self.sQ0}, {QKV_MT}")
        I(f"s_mul_i32 s89, s88, {HO_MT}\ns_lshl_b32 s90, s{self.sJ}, 13\ns_lshl_b32 s91, s87, 11\ns_add_u32 s89, s89, s90")
        I(f"s_add_u32 s89, s89, s91\ns_add_u32 s{self.sH0}, s89, {HO_OFF}\ns_add_u32 s{self.sH1}, s{self.sH0}, {HO_MT}")
        I(f"s_mov_b32 s{self.sNL2E}, {f32hex(-LOG2E)}\ns_mov_b32 s{self.sCS}, {f32hex(LOG2E / math.sqrt(28.0))}")
        I(f"s_lshl_b32 s88, s{self.sRB}, 8\ns_lshl_b32 s89, s{self.sJ}, 2\ns_add_u32 s88, s88, s89\ns_add_u32 s88, s88, {FL_OFF}")
        I(f"v_mov_b32 v{self.vFL}, s88")
        self.sts()
        self.setup = self.record(lambda: (self.poll_setup_att(), self.att_setup(), self.final_setup()))

    def record(self, fn):
        L = []
        real = self.I
        self.I = lambda t, tag=None: L.append(lambda: real(t, tag))
        fn()
        del self.I
        return L

    def dma_stageA(self, st):
        I = self.I
        base = (st % 4) * SLOT
        tag = f"st{st}"
        L = []
        L.append(lambda: I(f"s_add_u32 m0, s{self.sM0}, {base}"))
        for bq in range(4):
            L.append(lambda bq=bq: I(f"buffer_load_dwordx4 v{self.vXD+bq}, s[{self.S_X}:{self.S_X+3}], s{self.sX} offen offset:{1024*bq} lds", tag))
        prev = lambda: I(f"s_add_u32 s{self.sX}, s{self.sX}, 0x80")
        for seg, (srd, so, stp) in enumerate(((self.S_A, self.sA, self.sSAB), (self.S_B, self.sB, self.sSAB), (self.S_C, self.sC, None))):
            L.append(lambda seg=seg: I(f"s_add_u32 m0, s{self.sM0}, {base + 4096 + 2048*seg}"))
            L.append(prev)
            for e in range(2):
                L.append(lambda seg=seg, e=e, srd=srd, so=so: I(f"buffer_load_dwordx4 v{self.vWD+2*seg+e}, s[{srd}:{srd+3}], s{so} offen offset:{1024*e} lds", tag))
            prev = lambda so=so, stp=stp: I(f"s_add_u32 s{so}, s{so}, " + (f"s{stp}" if stp else str(64*2688)))
        L.append(prev)
        return L

    def dma_stageB(self, t):
        I = self.I
        base = PB_BASE[t]
        tag = f"st{7+t}"
        L = []
        prev = None
        if t == 0:
            prev = lambda: I(f"s_cmp_lg_u32 s{self.sISV}, 0\ns_cselect_b32 s{self.S_B+2}, 0, s{self.S_B+2}")
        for seg, (srd, so) in enumerate(((self.S_A, self.sA2), (self.S_B, self.sB2))):
            L.append(lambda seg=seg: I(f"s_add_u32 m0, s{self.sM0B}, {base + 2048*seg}"))
            if prev:
                L.append(prev)
            for e in range(2):
                L.append(lambda seg=seg, e=e, srd=srd, so=so: I(f"buffer_load_dwordx4 v{self.vWD+2*seg+e}, s[{srd}:{srd+3}], s{so} offen offset:{1024*e} lds", tag))
            prev = lambda so=so: I(f"s_add_u32 s{so}, s{so}, s{self.sSAB}")
        L.append(prev)
        return L

    def rd_w(self, bufset, slot_t, addr_t, const):
        out = []
        r = self.wf(bufset, slot_t)
        for e in range(2):
            v, imm = self.lds(self.vWR, 3, addr_t, const + 512 * e)
            out.append(lambda r=r, e=e, v=v, imm=imm: self.I(f"ds_read_b64_tr_b16 a[{r+2*e}:{r+2*e+1}], {v} offset:{imm}"))
        return out

    def rd_x(self, M, n):
        st, ks = divmod(n, 4)
        v, imm = self.lds(self.vXR, 4, ks, (st % 4) * SLOT + M * CHUNK)
        return [lambda: self.I(f"ds_read_b128 {self.xf(M, n)}, {v} offset:{imm}")]

    def readsA(self, n):
        st, ks = divmod(n, 4)
        c = (st % 4) * SLOT + ks * CHUNK + 4096
        bs = n % 2
        return [self.rd_w(bs, 0, 0, c), self.rd_x(0, n) + self.rd_x(1, n), self.rd_w(bs, 1, 1, c), self.rd_w(bs, 2, 2, c)]

    def readsB(self, n):
        t, ks = divmod(n, 4)
        c = PB_BASE[t] + ks * 4096
        bs = n % 2
        return [self.rd_w(bs, 1, 1, c), self.rd_w(bs, 2, 2, c)]

    def mfma(self, d, a, bb, first):
        c = "0" if first else f"v[{d}:{d+15}]"
        self.I(f"v_mfma_f32_32x32x16_bf16 v[{d}:{d+15}], {a}, {bb}, {c}")

    def dbg_load(self, tag=None):
        self.I(f"global_load_dword v{self.vPOLL}, v{self.vZ}, s[{self.pDBG}:{self.pDBG+1}] sc1", tag)

    def pf(self, v, srd, so):
        self.I(f"buffer_load_dword v{self.vT+12}, v{v}, s[{srd}:{srd+3}], {so} offen", "pf")
        self.b.vm[-1] = (set(), "pf")

    def passA(self):
        I, b, o = self.I, self.b, self.o
        b.wait_tags(("st0",))
        self.ts()
        if o.thr:
            I(f"s_getreg_b32 s86, hwreg(HW_REG_XCC_ID, 0, 4)\ns_and_b32 s87, s2, 7\ns_cmp_lg_u32 s86, s87\ns_cbranch_scc0 L_xok")
            kv = list(b.vm)
            I(f"v_mov_b32 v34, 1\nglobal_store_dword v{self.vZ}, v34, s[{self.pDBG}:{self.pDBG+1}] offset:128 sc1")
            b.vm = kv
            b.label("L_xok")
        I(f"s_or_b32 s86, s2, s{self.sWV}\ns_cmp_eq_u32 s86, 0\ns_cbranch_scc0 L_notag")
        snap_vm = list(b.vm)
        I(f"v_add_u32 v34, 2, v{self.vPOLL}\nv_or_b32 v34, 1, v34\ns_mov_b32 s86, {E_OFF}")
        if o.thr:
            I(f"v_readfirstlane_b32 s87, v{self.vPOLL}\ns_sub_u32 s88, s98, s87\ns_cmp_lt_u32 s88, 0x8000000\ns_cselect_b32 s88, 1, 0")
            I(f"s_cmp_eq_u32 s87, 0xfbfbfbfb\ns_cselect_b32 s89, {o.thrpat}, {1 - o.thrpat} ^ 1 ^ 1\ns_or_b32 s88, s88, s89\nv_mov_b32 v35, s88".replace(f"{1 - o.thrpat} ^ 1 ^ 1", str(1 - o.thrpat)))
            I(f"global_store_dword v{self.vZ}, v35, s[{self.pDBG}:{self.pDBG+1}] offset:132 sc1")
            I("v_mov_b32 v34, s98\nv_or_b32 v34, 1, v34")
        I(f"s_mov_b64 exec, 1")
        I(f"buffer_store_dword v34, v{self.vZ}, s[{self.S_WS}:{self.S_WS+3}], s86 offen sc1")
        I(f"global_store_dword v{self.vZ}, v34, s[{self.pDBG}:{self.pDBG+1}] sc1")
        I(f"s_mov_b64 exec, -1")
        b.vm = [(set(), t) if t == "E" else (d, t) for d, t in snap_vm]
        b.label("L_notag")
        I("s_barrier")
        for grp in self.readsA(0):
            for f in grp:
                f()
        def stream(v):
            if v <= 6:
                return self.dma_stageA(v)
            if v == 7:
                return self.dma_stageB(0) + self.dma_stageB(1)
            if v == 8:
                return self.dma_stageB(2) + self.dma_stageB(3)
            return []
        pend = []
        nsetup = 0
        for n in range(28):
            st, ks = divmod(n, 4)
            bs = n % 2
            nxt = self.readsA(n + 1) if n < 27 else self.readsB(0)
            gaps = [[] for _ in range(6)]
            if ks == 0:
                pend += stream(st + o.lead)
            if ks == 3:
                def bar(st=st):
                    tags = (f"st{st+1}",) if st < 6 else ("st7", "st8")
                    b.wait_tags(tags, lg_all=True)
                    I("s_barrier")
                gaps[0].append(bar)
            extra = []
            if n == 13:
                extra.append(lambda: self.dbg_load("tagrd"))
            for i, grp in enumerate(nxt):
                gaps[i] += grp
            left = 4 - ks
            quota = -(-len(pend) // left)
            for gi, cap in ((2, 1), (3, 1), (4, 2), (5, 3)):
                for _ in range(cap):
                    if pend and quota > 0:
                        gaps[gi].append(pend.pop(0))
                        quota -= 1
            gaps[5] += extra
            cnt = min(math.ceil(len(self.setup) * (n + 1) / 26), len(self.setup)) - nsetup
            for k in range(cnt):
                gaps[min(5, 2 + (k * 4 + 2) // cnt)].append(self.setup[nsetup])
                nsetup += 1
            i = 0
            for t in range(3):
                for M in range(2):
                    r = self.wf(bs, t)
                    self.mfma(self.acc(self.ACC_A, t, M), f"a[{r}:{r+3}]", self.xf(M, n), n == 0)
                    for f in gaps[i]:
                        f()
                    i += 1
        assert not pend
        rest = []
        for v in range(7 + o.lead, 9):
            rest += stream(v)
        self.pend = rest + self.dma_stageB(4) + self.dma_stageB(5) + self.dma_stageB(6)

    def get_tag(self):
        I, b = self.I, self.b
        u = self.uid()
        I(f"v_readfirstlane_b32 s{self.sTAG}, v{self.vPOLL}")
        I(f"s_cmp_lg_u32 s{self.sTAG}, 0\ns_cbranch_scc1 L_gottag{u}")
        keep_vm, keep_lg = list(b.vm), list(b.lg)
        I(f"s_mov_b32 s{self.sSPIN}, 0")
        b.label(f"L_tagspin{u}")
        self.dbg_load()
        I(f"s_add_u32 s{self.sSPIN}, s{self.sSPIN}, 1\ns_cmp_gt_u32 s{self.sSPIN}, {SPIN_MAX}\ns_cbranch_scc1 L_exit")
        I(f"v_readfirstlane_b32 s{self.sTAG}, v{self.vPOLL}")
        I(f"s_cmp_lg_u32 s{self.sTAG}, 0\ns_cbranch_scc0 L_tagspin{u}")
        b.vm, b.lg = keep_vm, keep_lg
        b.label(f"L_gottag{u}")

    def cvt_store(self, r, so, imm, tag, voff=None):
        L = []
        for i in range(4):
            L.append(lambda i=i: self.I(f"v_cvt_pk_bf16_f32 v{r+i}, v{r+2*i}, v{r+2*i+1}"))
        v = self.vL16 if voff is None else voff
        L.append(lambda: self.I(f"buffer_store_dwordx4 v[{r}:{r+3}], v{v}, s[{self.S_WS}:{self.S_WS+3}], s{so} offen offset:{imm} sc1", tag))
        return L

    def sigmoid_tile(self, r, so, imm, tag, pk):
        I = self.I
        L = []
        if pk:
            for i in range(0, 8, 2):
                L.append(lambda i=i: I(f"v_pk_mul_f32 v[{r+i}:{r+i+1}], v[{r+i}:{r+i+1}], s[{self.sNL2E}:{self.sNL2E+1}] op_sel_hi:[1,0]"))
        else:
            for i in range(8):
                L.append(lambda i=i: I(f"v_mul_f32 v{r+i}, s{self.sNL2E}, v{r+i}"))
        for i in range(8):
            L.append(lambda i=i: I(f"v_exp_f32 v{r+i}, v{r+i}"))
        if pk:
            for i in range(0, 8, 2):
                L.append(lambda i=i: I(f"v_pk_add_f32 v[{r+i}:{r+i+1}], v[{r+i}:{r+i+1}], 1.0 op_sel_hi:[1,0]"))
        else:
            for i in range(8):
                L.append(lambda i=i: I(f"v_add_f32 v{r+i}, 1.0, v{r+i}"))
        for i in range(8):
            L.append(lambda i=i: I(f"v_rcp_f32 v{r+i}, v{r+i}"))
        if pk:
            for i in range(0, 8, 2):
                L.append(lambda i=i: I(f"v_pk_mul_f32 v[{r+i}:{r+i+1}], v[{r+i}:{r+i+1}], v[{r+8+i}:{r+9+i}]"))
        else:
            for i in range(8):
                L.append(lambda i=i: I(f"v_mul_f32 v{r+i}, v{r+i}, v{r+8+i}"))
        return L + self.cvt_store(r, so, imm, tag)

    def flag_store(self, phase):
        I = self.I
        lab = f"L_nofl{self.uid()}"
        I(f"s_cmp_eq_u32 s{self.sWV}, 0\ns_cbranch_scc0 {lab}")
        keep = list(self.b.vm)
        I(f"v_mov_b32 v{self.vT}, s{self.sTAG}\ns_mov_b64 exec, 1")
        I(f"s_movk_i32 s86, {4096*phase}")
        I(f"buffer_store_dword v{self.vT}, v{self.vFL}, s[{self.S_WS}:{self.S_WS+3}], s86 offen sc1")
        I("s_mov_b64 exec, -1")
        self.b.vm = keep
        self.b.label(lab)

    _uid = 0

    def uid(self):
        self._uid += 1
        return self._uid

    @staticmethod
    def weave(main, side, start=0.0, end=1.0):
        out = []
        n = len(main)
        a, e = int(start * n), max(int(end * n), int(start * n) + 1)
        k = 0
        for i, f in enumerate(main):
            out.append(f)
            if i >= a:
                want = min(len(side), math.ceil(len(side) * (i - a + 1) / (e - a)))
                while k < want:
                    out.append(side[k]); k += 1
        out += side[k:]
        return out

    def passB_GU(self):
        I, b, o = self.I, self.b, self.o
        pend = list(self.pend)
        epi = []
        for M, so in ((0, self.sQ0), (1, self.sQ1)):
            r = self.acc(self.ACC_A, 0, M)
            epi += self.cvt_store(r, so, 0, "qk") + self.cvt_store(r + 8, so, 1024, "qk")
        nqk = len(epi)
        for t in (1, 2):
            for M, so in ((0, self.sH0), (1, self.sH1)):
                epi += self.sigmoid_tile(self.acc(self.ACC_A, t, M), so, 1024 * (t - 1), "h", o.pkB)
        epi += self.att_masks()
        total = len(epi)
        first_gap = 3
        ngaps = 4 * 28
        done = 0
        g = 0
        for n in range(28):
            bs = n % 2
            gaps = [[] for _ in range(4)]
            if n in o.bs:
                self.ts()
            if n == 7:
                gaps[0].append(lambda: (b.wait_tags(("st9", "st10")), I("s_barrier")))
            if n == o.fl0 and n != 15:
                gaps[0].append(lambda: (b.wait_tags(("qk",)), I("s_barrier"), self.flag_store(0)))
            if n == 15:
                def bar():
                    b.wait_tags(("st11", "st12", "st13", "qk"), lg_all=True)
                    I("s_barrier")
                    if o.fl0 == 15:
                        self.flag_store(0)
                gaps[0].append(bar)
            if n < 27:
                nx = self.readsB(n + 1)
                gaps[0] += nx[0]
                gaps[1] += nx[1]
            if n == 1:
                gaps[3].append(self.get_tag)
            if o.fl0 + 1 <= n < o.fl0 + 1 + self.NB1:
                pend += self.fin_dma(n - o.fl0 - 1)
            if n == o.kchk:
                pend += [lambda: self.poll_check(self.vAP, self.vPOLL, self.sMSK)] + self.record(self.att_loads_K) + [lambda: self.poll_issue(self.vAP, self.vPOLL)]
            for gi in (2, 3):
                for _ in range(2 if n < o.kchk else 4):
                    if pend:
                        gaps[gi].append(pend.pop(0))
            if n == o.kpoll:
                gaps[3].append(lambda: self.poll_issue(self.vAP, self.vPOLL))
            i = 0
            for t in range(2):
                for M in range(2):
                    r = self.wf(bs, t + 1)
                    self.mfma(self.acc(self.ACC_B, t, M), f"a[{r}:{r+3}]", self.xf(M, n), n == 0)
                    for f in gaps[i]:
                        f()
                    g += 1
                    if g > first_gap:
                        want = min(total, math.ceil(total * (g - first_gap) / (4 * o.epi_end - first_gap)))
                        want = max(want, min(nqk, 3 * (g - first_gap)))
                        while done < want:
                            epi[done]()
                            done += 1
                    i += 1
        assert done == total and not pend
        self.ts()
        I(f"s_add_u32 s{self.sH0}, s{self.sH0}, 0x1000\ns_add_u32 s{self.sH1}, s{self.sH1}, 0x1000")
        T = []
        for t in (0, 1):
            for M, so in ((0, self.sH0), (1, self.sH1)):
                T.append(self.sigmoid_tile(self.acc(self.ACC_B, t, M), so, 1024 * t, "h", o.pk))
        self.postB(T)

    NB1 = 8

    def postB(self, T):
        I, b, o = self.I, self.b, self.o
        KF = self.KF
        rd = [f for s_ in range(self.NB1) for f in self.fin_rdw(s_)]
        for f in self.weave(T[0], rd[:16], 0.1, 1.0):
            f()
        self.poll_check(self.vAP, self.vPOLL, self.sMSK2)
        self.att_loads_V()
        for f in self.weave(T[1], rd[16:], 0.0, 1.0):
            f()
        self.ts()
        b.wait_tags(("K",))
        I(f"ds_write_b64 v{self.vP+6}, v[{self.vP}:{self.vP+1}]")
        I(f"ds_write_b64 v{self.vP+7}, v[{self.vP+2}:{self.vP+3}] offset:4096")
        q = self.vQ
        I(f"v_bfi_b32 v{q}, v{self.vMA}, v{q}, v{self.vP+4}\nv_and_b32 v{q+1}, v{self.vMA}, v{q+1}")
        I(f"v_bfi_b32 v{q+6}, v{self.vMB}, v{q+6}, v{self.vP+4}\nv_and_b32 v{q+7}, v{self.vMB}, v{q+7}")
        b.waitcnt(lg=0)
        I("s_barrier")
        self.ts()
        order = [8, 0, 7, 6, 5, 4, 3, 2, 1]

        def rdk(n):
            for s_ in range(2):
                r = KF + (n % 3) * 8 + 4 * s_
                I(f"ds_read_b128 v[{r}:{r+3}], v{self.vKA} offset:{2048*order[n] + 1024*s_}")
        rdk(0)
        rdk(1)
        m = self.vM
        mx = []

        def maxops(n):
            s0 = self.S(order[n])
            return [(lambda k=k: I(f"v_max_f32 v{m}, v{s0}, v{s0+1}" if (n == 0 and k == 0) else f"v_max3_f32 v{m}, v{m}, v{s0+k}, v{s0+k+1}")) for k in range(0, 16, 2)]
        vs = list(T[2]) + list(T[3][:-1])
        KH = 11
        bg = [f for s_ in range(self.NB1, self.NB1 + o.nbq) for f in self.fin_dma(s_)]
        self.bg_rest = self.NB1 + o.nbq
        for k in range(18):
            n, half = divmod(k, 2)
            d = self.S(order[n])
            r = KF + (n % 3) * 8 + 4 * half
            c = f"v[{d}:{d+15}]" if (half or order[n] in (0, 8)) else "0"
            if order[n] == 1:
                assert not vs
            I(f"v_mfma_f32_32x32x16_bf16 v[{d}:{d+15}], v[{r}:{r+3}], v[{q+4*half}:{q+4*half+3}], {c}")
            if half == 0 and n + 2 < 9:
                rdk(n + 2)
            if half == 1 and n >= 1:
                mx += maxops(n - 1)
            nv = math.ceil(len(vs) / (KH - k + 1)) if k <= KH else 0
            for _ in range(nv):
                vs.pop(0)()
            if k == KH:
                T[3][-1]()
            for _ in range(math.ceil(len(bg) / (18 - k))):
                bg.pop(0)()
            for _ in range(max(0, 5 - nv) if k < 17 else len(mx)):
                if mx:
                    mx.pop(0)()
        self.mx_rest = maxops(8)

    def passB_V(self):
        I, b, o = self.I, self.b, self.o
        for f in list(self.pend):
            f()
        self.srd(self.S_C, f"s{self.pGW}", f"s{self.pGW+1}", 896)
        I(f"s_add_u32 m0, s{self.sM0B}, {PB_BASE[0] + 2048}")
        I(f"buffer_load_dwordx4 v{self.vL16}, s[{self.S_C}:{self.S_C+3}], 0 offen lds", "gw")
        I(f"s_sub_u32 s{self.sT1}, s{self.sQ0}, 0x2000\ns_sub_u32 s{self.sT2}, s{self.sQ1}, 0x2000")
        I(f"v_add_u32 v{self.vT+2}, 0x1000, v{self.vL16}")
        self.get_tag()
        epi = []
        for M, so in ((0, self.sQ0), (1, self.sQ1)):
            r = self.acc(self.ACC_A, 0, M)
            epi += self.cvt_store(r, so, 0, "qk") + self.cvt_store(r + 8, so, 1024, "qk")
        for t in (1, 2):
            for M, so in ((0, self.sT1), (1, self.sT2)):
                r = self.acc(self.ACC_A, t, M)
                epi += self.cvt_store(r, so, 1024 * (t - 1), "qk") + self.cvt_store(r + 8, so, 1024 * (t - 1), "qk", voff=self.vT + 2)
        I(f"s_and_b32 s88, s{self.sWV}, 1\ns_sub_u32 s89, s{self.sJ}, 14\ns_xor_b32 s88, s88, s89\ns_lshl_b32 s88, s88, 6")
        for st in range(3):
            I(f"v_xor_b32 v{self.vWR+3*st}, s88, v{self.vWR+3*st}\nv_subrev_u32 v{self.vWR+3*st}, 0x1000, v{self.vWR+3*st}")
        I(f"s_lshl_b32 s88, s{self.sRB}, 2\ns_add_u32 s88, s88, s{self.sWV}")
        I(f"s_mul_i32 s88, s88, {QKV_MT}\ns_lshl_b32 s89, s89, 11\ns_add_u32 s88, s88, s89")
        I(f"s_add_u32 s{self.sT3}, s88, {8*17*512}")
        I(f"v_lshrrev_b32 v{self.vT+3}, 5, v0\nv_lshlrev_b32 v{self.vT+3}, 4, v{self.vT+3}")
        I(f"s_add_u32 s88, s{self.sM0B}, {PB_BASE[0] + 2048}\nv_add_u32 v{self.vT+3}, s88, v{self.vT+3}")
        I(f"v_and_b32 v{self.vT+4}, 31, v0\nv_lshlrev_b32 v{self.vT+4}, 2, v{self.vT+4}")
        D = self.ACC_B
        I(f"s_bitcmp1_b32 s{self.sWV}, 0\ns_cbranch_scc1 L_v_wc1")
        snap = b.snapshot()
        for wc in range(2):
            if wc == 1:
                b.label("L_v_wc1")
                b.restore(snap)
            e = list(epi)

            def rdv(n):
                t, ks = divmod(n, 4)
                return self.rd_w(n % 2, 0, 0, PB_BASE[t] + ks * 4096)
            for f in rdv(0):
                f()
            for n in range(28):
                if n == 7:
                    b.wait_tags(("st9", "st10"))
                    I("s_barrier")
                if n == 15:
                    b.wait_tags(("st11", "st12", "st13"))
                    I("s_barrier")
                if n < 27:
                    for f in rdv(n + 1):
                        f()
                r = self.wf(n % 2, 0)
                self.mfma(D, f"a[{r}:{r+3}]", self.xf(wc, n), n == 0)
                for _ in range(3):
                    if e:
                        e.pop(0)()
            assert not e
            for f in self.cvt_store(D, self.sT3, 0, "qk") + self.cvt_store(D + 8, self.sT3, 1024, "qk"):
                f()
            b.wait_tags(("gw",))
            I(f"ds_read_b128 a[{self.WF}:{self.WF+3}], v{self.vT+3}")
            mk = self.att_masks()
            for n in range(28):
                if n < 27:
                    r = self.WF + 4 * ((n + 1) % 3)
                    I(f"ds_read_b128 a[{r}:{r+3}], v{self.vT+3} offset:{32*(n+1)}")
                r = self.WF + 4 * (n % 3)
                self.mfma(D + 16, f"a[{r}:{r+3}]", self.xf(wc, n), n == 0)
                for _ in range(2):
                    if mk:
                        mk.pop(0)()
            I(f"v_mov_b32 v{self.vT+5}, v{D+16}")
            if wc == 0:
                I("s_branch L_v_done")
        b.label("L_v_done")
        b.wait_tags(("qk",), lg_all=True)
        I("s_barrier")
        self.flag_store(0)
        for s_ in range(self.NB1):
            for f in self.fin_dma(s_):
                f()
        self.poll_issue(self.vAP, self.vPOLL)
        self.poll_check(self.vAP, self.vPOLL, self.sMSK)
        self.att_loads_K()
        self.poll_issue(self.vAP, self.vPOLL)
        for _ in o.bs:
            self.ts()
        self.ts()
        self.postB([[], [], [], [lambda: I(f"buffer_store_dword v{self.vT+5}, v{self.vT+4}, s[{self.S_WS}:{self.S_WS+3}], s{self.sZO} offen sc1", "h")]])

    def poll_setup_att(self):
        I = self.I
        v, t = self.vAP, self.vT
        I(f"v_lshrrev_b32 v{v}, 4, v0\nv_add_u32 v{v}, s{self.sRB}, v{v}\nv_subrev_u32 v{v}, 2, v{v}\nv_max_i32 v{v}, 0, v{v}")
        I(f"v_min_u32 v{v}, 15, v{v}\nv_lshlrev_b32 v{v}, 8, v{v}\nv_and_b32 v{t}, 15, v0\nv_lshl_add_u32 v{v}, v{t}, 2, v{v}")
        I(f"v_add_u32 v{v}, {FL_OFF}, v{v}")
        I(f"s_mul_i32 s86, s{self.sJ}, 28\ns_add_u32 s87, s86, 27\ns_lshr_b32 s86, s86, 6\ns_lshr_b32 s87, s87, 6")
        I("s_lshl_b32 s88, 1, s86\ns_lshl_b32 s89, 1, s87\ns_or_b32 s88, s88, s89")
        I("s_lshl_b32 s89, s88, 7")
        I(f"s_mul_i32 s{self.sMSK}, s89, 0x10001\ns_or_b32 s{self.sMSK+1}, s88, s89")
        I("s_cmp_le_u32 s86, 3\ns_cselect_b32 s90, 0x4000, 0\ns_cmp_ge_u32 s87, 3\ns_cselect_b32 s91, 0x8000, 0\ns_or_b32 s90, s90, s91")
        I(f"s_mul_i32 s{self.sMSK2}, s90, 0x10001\ns_mov_b32 s{self.sMSK2+1}, s90")

    def poll_issue(self, vaddr, vdst, soff="0"):
        self.I(f"buffer_load_dword v{vdst}, v{vaddr}, s[{self.S_WS}:{self.S_WS+3}], {soff} offen sc1", "poll")

    def poll_check(self, vaddr, vdst, smask, soff="0"):
        I, b = self.I, self.b
        u = self.uid()
        I(f"v_cmp_ne_u32 vcc, s{self.sTAG}, v{vdst}")
        I(f"s_and_b64 vcc, vcc, s[{smask}:{smask+1}]\ns_cbranch_scc0 L_pok{u}")
        keep_vm, keep_lg = list(b.vm), list(b.lg)
        I(f"s_mov_b32 s{self.sSPIN}, 0")
        b.label(f"L_psp{u}")
        I(f"buffer_load_dword v{vdst}, v{vaddr}, s[{self.S_WS}:{self.S_WS+3}], {soff} offen sc1")
        I(f"s_add_u32 s{self.sSPIN}, s{self.sSPIN}, 1\ns_cmp_gt_u32 s{self.sSPIN}, {SPIN_MAX}\ns_cbranch_scc1 L_exit")
        I(f"v_cmp_ne_u32 vcc, s{self.sTAG}, v{vdst}")
        I(f"s_and_b64 vcc, vcc, s[{smask}:{smask+1}]\ns_cbranch_scc1 L_psp{u}")
        b.vm, b.lg = keep_vm, keep_lg
        b.label(f"L_pok{u}")

    def S(self, i):
        return self.SREG[i]

    def att_setup(self):
        I = self.I
        h = self.sJ
        I(f"s_and_b32 s86, s{h}, 1\ns_sub_u32 s{self.sPAR}, 0, s86\ns_mov_b32 s{self.sPAR+1}, s{self.sPAR}")
        I(f"s_mul_i32 s87, s{h}, 7\ns_lshr_b32 s87, s87, 1\ns_lshl_b32 s87, s87, 9")
        I(f"s_lshl_b32 s88, s{self.sRB}, 2\ns_mul_i32 s89, s{self.sWV}, 3\ns_add_u32 s89, s89, s88\ns_sub_u32 s89, s89, 8")
        for i in range(3):
            I(f"s_add_u32 s90, s89, {i}\ns_max_i32 s90, s90, 0\ns_mul_i32 s90, s90, {QKV_MT}\ns_add_u32 s90, s90, s87")
            I(f"s_add_u32 s{self.sKT+i}, s90, {56*512}")
        v = self.vT
        I(f"v_lshrrev_b32 v{v}, 5, v0\nv_add_u32 v{v+1}, s89, v{v}\nv_mov_b32 v{v+2}, 0xf149")
        I(f"v_cmp_gt_i32 vcc, 0, v{v+1}\nv_cndmask_b32 v{self.vP}, 0, v{v+2}, vcc\nv_mov_b32 v{self.vP+1}, 0")
        I(f"s_add_u32 s90, s89, 2\ns_cmp_lt_i32 s90, 0\ns_cselect_b32 s90, 0xf149, 0\nv_mov_b32 v{self.vP+2}, s90\nv_mov_b32 v{self.vP+3}, 0")
        I(f"v_mov_b32 v{self.vP+4}, 0x3f80\nv_mov_b32 v{self.vP+5}, 0")
        I(f"s_cmp_eq_u32 s86, 0\ns_cselect_b32 s90, {1536+8}, 0\ns_mul_i32 s91, s{self.sWV}, {3*2048}\ns_add_u32 s90, s90, s91\ns_add_u32 s90, s90, {KV_K}")
        I(f"v_and_b32 v{v+1}, 31, v0\nv_lshlrev_b32 v{v+1}, 4, v{v+1}\nv_add_u32 v{self.vP+7}, s90, v{v+1}\nv_lshl_add_u32 v{self.vP+6}, v{v}, 11, v{self.vP+7}")
        I(f"v_and_b32 v{v+1}, 31, v0\nv_lshlrev_b32 v{v+2}, 2, v{v}\nv_xor_b32 v{v+1}, v{v+1}, v{v+2}\nv_lshlrev_b32 v{v+1}, 4, v{v+1}")
        I(f"v_lshl_add_u32 v{self.vP+8}, v{v}, 9, v{v+1}\nv_xor_b32 v{self.vP+9}, 0x80, v{self.vP+8}")
        I(f"s_lshl_b32 s90, s{self.sWV}, 11\ns_add_u32 s91, s90, {KV_K}\nv_add_u32 v{self.vKA}, s91, v{self.vL16}")
        I(f"v_bfe_u32 v{v+1}, v0, 4, 1\nv_bfe_u32 v{v+2}, v0, 1, 1\nv_lshl_add_u32 v{v+1}, v{v+1}, 1, v{v+2}")
        I(f"v_xor_b32 v{v+2}, v{v}, v{v+1}\nv_lshlrev_b32 v{v+2}, 2, v{v+2}\nv_bfe_u32 v{v+3}, v0, 2, 2\nv_add_u32 v{v+2}, v{v+2}, v{v+3}")
        I(f"v_lshlrev_b32 v{v+2}, 4, v{v+2}\nv_lshl_add_u32 v{v+2}, v{v+1}, 9, v{v+2}\nv_and_b32 v{v+3}, 1, v0\nv_lshl_add_u32 v{v+2}, v{v+3}, 3, v{v+2}")
        I(f"s_add_u32 s91, s90, {KV_V}\nv_add_u32 v{self.vVA}, s91, v{v+2}\nv_xor_b32 v{self.vVA+1}, 0x80, v{self.vVA}")
        I(f"v_subrev_u32 v{v+1}, 1, v{v}\nv_and_b32 v{v+1}, s{self.sPAR}, v{v+1}\nv_not_b32 v{self.vMA}, v{v+1}")
        I(f"v_sub_u32 v{v+1}, 0, v{v}\ns_not_b32 s91, s{self.sPAR}\nv_and_b32 v{v+1}, s91, v{v+1}\nv_not_b32 v{self.vMB}, v{v+1}")
        I(f"s_add_u32 s88, s88, s{self.sWV}\ns_mul_i32 s90, s88, {QKV_MT}\ns_add_u32 s{self.sQO}, s90, s87")
        I(f"s_mul_i32 s90, s88, {HO_MT}\ns_lshl_b32 s91, s{h}, 11\ns_add_u32 s90, s90, s91\ns_add_u32 s{self.sOO}, s90, {HO_OFF + 112*1024}")
        I(f"s_lshl_b32 s90, s88, 7\ns_add_u32 s{self.sZO}, s90, {Z_OFF}")
        m = self.vM
        I(f"v_lshlrev_b32 v{m}, 2, v{v}\nv_and_b32 v{m+1}, 31, v0\nv_sub_u32 v{m}, v{m+1}, v{m}\nv_mov_b32 v{m+1}, {NEG}")

    def att_masks(self):
        L = []
        v = self.vM
        pair = lambda r: f"s[{88+2*(r&1)}:{89+2*(r&1)}]"
        def cmp_(r):
            key = 8 * (r >> 2) + (r & 3)
            return lambda: self.I(f"v_cmp_gt_i32 {pair(r)}, {key}, v{v}")
        L.append(cmp_(0))
        for r in range(16):
            if r < 15:
                L.append(cmp_(r + 1))
            if r > 0:
                L.append(lambda r=r: self.I(f"v_sub_f32 v{self.S(0)+r-1}, v{v+1}, v{self.S(8)+r-1}"))
            L.append(lambda r=r: self.I(f"v_cndmask_b32 v{self.S(8)+r}, 0, v{v+1}, {pair(r)}"))
        L.append(lambda: self.I(f"v_sub_f32 v{self.S(0)+15}, v{v+1}, v{self.S(8)+15}"))
        return L

    def att_loads_K(self):
        I = self.I
        ws = f"s[{self.S_WS}:{self.S_WS+3}]"
        I(f"s_mul_i32 s86, s{self.sWV}, {3*2048}")
        for i in range(3):
            I(f"s_add_u32 m0, s86, {KV_K + 2048*i}")
            if i < 2:
                I(f"buffer_load_dwordx4 v[{self.vQ+4*i}:{self.vQ+4*i+3}], v{self.vL16}, {ws}, s{self.sQO} offen offset:{1024*i} sc1", "K")
            for e in range(2):
                I(f"buffer_load_dwordx4 v{self.vL16}, {ws}, s{self.sKT+i} offen offset:{1024*e} sc1 lds", "K")

    def att_loads_V(self):
        I = self.I
        ws = f"s[{self.S_WS}:{self.S_WS+3}]"
        I(f"s_mul_i32 s86, s{self.sWV}, {3*2048}")
        for i in range(3):
            I(f"s_add_u32 m0, s86, {KV_V + 2048*i}\ns_add_u32 s87, s{self.sKT+i}, {56*512}")
            for e in range(2):
                I(f"buffer_load_dwordx4 v{self.vP+8+e}, {ws}, s87 offen offset:{1024*e} sc1 lds", "V")

    def attention(self):
        I, b, o = self.I, self.b, self.o
        KF = self.KF
        m = self.vM
        order = [8, 7, 6, 5, 4, 3, 2, 1, 0]
        b.wait_tags(("V",))
        I(f"ds_write_b64 v{self.vP+6}, v[{self.vP+4}:{self.vP+5}] offset:{KV_V - KV_K}")
        I(f"ds_write_b64 v{self.vP+7}, v[{self.vP+4}:{self.vP+5}] offset:{KV_V - KV_K + 4096}")
        for f in self.mx_rest:
            f()
        b.waitcnt(lg=0)
        I("s_barrier")

        def rdv(i, bs):
            L = []
            for s in range(2):
                for e in range(2):
                    r = KF + bs * 8 + 4 * s + 2 * e
                    L.append(f"ds_read_b64_tr_b16 v[{r}:{r+1}], v{self.vVA+e} offset:{2048*i + 256*s}")
            return L
        for t in rdv(order[0], 0):
            I(t)
        I(f"v_mov_b32 v{m+1}, v{m}")
        I(f"v_permlane32_swap_b32 v{m}, v{m+1}")
        I(f"v_max_f32 v{m}, v{m}, v{m+1}")
        I(f"v_mul_f32 v{m}, s{self.sCS}, v{m}")
        I(f"s_mov_b32 s{self.sMSK}, 0x1ffff\ns_mov_b32 s{self.sMSK+1}, 0")
        self.ts()
        sched = {n: [] for n in range(9)}
        rd = lambda a, e: [f for s in range(a, e) for f in self.fin_rdw(s)]
        dm = lambda a, e: [f for s in range(a, e) for f in self.fin_dma(s)]
        pub = lambda: (b.wait_tags(("h",)), I("s_barrier"), self.flag_store(1))
        mid = (self.bg_rest + 22) // 2
        sched[0] = dm(self.bg_rest, mid)
        sched[1] = dm(mid, 22) + rd(8, 10)
        sched[2] = rd(10, 14) + dm(22, 25)
        sched[3] = dm(25, 28) + rd(14, 18)
        sched[4] = rd(18, 22) + dm(28, 31)
        sched[5] = dm(31, 36)
        sched[6] = rd(22, 28)
        hl = [f for s in range(o.nh0) for f in self.fin_hload(s)]
        sched[7] = hl[:len(hl) // 2]
        sched[8] = hl[len(hl) // 2:]
        sched[o.hpub] = sched[o.hpub] + [pub]
        sched[o.hpoll] = sched[o.hpoll] + [lambda: self.poll_issue(self.vFA, self.vPOLL)]
        sched[7] = [self.hook_poll_check] + sched[7]
        O = self.vO
        prev = None
        for n, i in enumerate(order):
            if n in o.ss:
                self.ts()
            d = self.S(i)
            p = self.vP + 8 * (n % 2)
            L = []
            if o.pk:
                for k in range(0, 16, 2):
                    L.append(f"v_pk_fma_f32 v[{d+k}:{d+k+1}], v[{d+k}:{d+k+1}], s[{self.sNL2E}:{self.sCS}], v[{m}:{m+1}] op_sel:[0,1,0] op_sel_hi:[1,1,0] neg_lo:[0,0,1] neg_hi:[0,0,1]")
            else:
                for k in range(16):
                    L.append(f"v_fma_f32 v{d+k}, v{d+k}, s{self.sCS}, -v{m}")
            ex = [f"v_exp_f32 v{d+k}, v{d+k}" for k in range(16)]
            cv = [f"v_cvt_pk_bf16_f32 v{p+k}, v{d+2*k}, v{d+2*k+1}" for k in range(8)]
            seq = L + ex + cv
            vr = rdv(order[n + 1], (n + 1) % 2) if n + 1 < 9 else []
            main = []
            for k, t in enumerate(seq):
                main.append(lambda t=t: I(t))
                if prev is not None and k == 1:
                    main.append(lambda t=prev[0]: I(t))
                if prev is not None and k == 7:
                    main.append(lambda t=prev[1]: I(t))
                if k >= 10 and vr:
                    main.append(lambda t=vr.pop(0): I(t))
            for f in self.weave(main, sched[n], 0.0, 1.0):
                f()
            r = KF + (n % 2) * 8
            prev = (f"v_mfma_f32_32x32x16_bf16 v[{O}:{O+15}], v[{r}:{r+3}], v[{p}:{p+3}], " + ("0" if n == 0 else f"v[{O}:{O+15}]"),
                    f"v_mfma_f32_32x32x16_bf16 v[{O}:{O+15}], v[{r+4}:{r+7}], v[{p+4}:{p+7}], v[{O}:{O+15}]")
        I(prev[0])
        I(prev[1])
        t = self.vQ
        I(f"v_mul_f32 v{t}, s{self.sNL2E}, v{self.vZZ}\nv_exp_f32 v{t}, v{t}")
        z = self.vZZ + 1
        for a in range(2):
            I(f"v_mul_f32 v{z+a}, s{self.sNL2E}, v{z+a}\nv_exp_f32 v{z+a}, -v{z+a}")
        I(f"v_add_f32 v{t}, 1.0, v{t}")
        for a in range(2):
            I(f"v_add_f32 v{z+a}, 1.0, v{z+a}\nv_rcp_f32 v{z+a}, v{z+a}")
        I(f"v_cndmask_b32 v{t+1}, v{O+12}, v{O}, s[{self.sPAR}:{self.sPAR+1}]\nv_mov_b32 v{t+2}, v{t+1}")
        I(f"v_permlane32_swap_b32 v{t+1}, v{t+2}")
        I(f"v_cndmask_b32 v{t+1}, v{t+2}, v{t+1}, s[{self.sPAR}:{self.sPAR+1}]")
        I(f"v_mul_f32 v{t}, v{t}, v{t+1}\nv_rcp_f32 v{t}, v{t}")
        I(f"v_and_b32 v{t+1}, v{self.vMA}, v{t}\nv_and_b32 v{t+2}, v{self.vMB}, v{t}")
        for k in range(16):
            sc = t + 1 if k == 0 else (t + 2 if k == 12 else t)
            I(f"v_mul_f32 v{O+k}, v{O+k}, v{sc}")
        for f in self.cvt_store(O, self.sOO, 0, "o") + self.cvt_store(O + 8, self.sOO, 1024, "o"):
            f()

    def hook_poll_check(self):
        I = self.I
        self.poll_check(self.vFA, self.vPOLL, self.sMSK)
        v = self.vT
        I(f"v_and_b32 v{v}, 31, v0\nv_lshlrev_b32 v{v}, 2, v{v}")
        ws = f"s[{self.S_WS}:{self.S_WS+3}]"
        I(f"buffer_load_dword v{self.vZZ}, v{v}, {ws}, s{self.sZO} offen sc1", "z")
        I(f"buffer_load_dword v{self.vZZ+1}, v{v}, {ws}, s{self.sZF} offen sc1", "z")
        I(f"s_xor_b32 s{self.sZF}, s{self.sZF}, 0x80")
        I(f"buffer_load_dword v{self.vZZ+2}, v{v}, {ws}, s{self.sZF} offen sc1", "z")

    RING = 14

    def ring_addr(self, e):
        return (1, 2048 * e) if e < 8 else (0, 2048 * (e - 8))

    def final_setup(self):
        I = self.I
        v = self.vT
        I("s_lshr_b32 s86, s2, 3\ns_and_b32 s87, s2, 7\ns_mul_i32 s88, s86, 37\ns_lshr_b32 s88, s88, 8")
        I(f"s_mul_i32 s89, s88, 7\ns_sub_u32 s89, s86, s89\ns_cmp_lt_u32 s86, 28\ns_cselect_b32 s{self.sFIN}, 1, 0")
        I("s_min_u32 s88, s88, 3\ns_lshl_b32 s87, s87, 2\ns_add_u32 s87, s87, s88")
        I(f"s_lshr_b32 s90, s{self.sWV}, 1\ns_and_b32 s91, s{self.sWV}, 1")
        I(f"s_lshl_b32 s92, s88, 1\ns_add_u32 s92, s92, s89\ns_cmp_ge_u32 s92, 7\ns_cselect_b32 s93, 7, 0\ns_sub_u32 s94, s92, s93")
        if self.o.rot != 1:
            I({0: "s_mov_b32 s94, 0", 2: "s_mov_b32 s94, s89", 3: "s_lshl_b32 s94, s88, 1"}[self.o.rot])
        I(f"s_sub_u32 s{self.sWRAP}, 7, s94\ns_and_b32 s86, s89, {1 if self.o.rot in (1, 2) else 0}")
        I(f"s_mul_i32 s92, s{self.sWV}, {448*896}\ns_lshl_b32 s89, s89, 7\ns_add_u32 s{self.sFW}, s92, s89")
        I(f"s_mul_i32 s92, s94, {64*896}\ns_add_u32 s{self.sFW}, s{self.sFW}, s92")
        I(f"s_mul_i32 s92, s{self.sWV}, {112*896}\ns_add_u32 s{self.sFWO}, s92, s89\ns_mul_i32 s92, s86, {56*896}\ns_add_u32 s{self.sFWO}, s{self.sFWO}, s92")
        I(f"s_cmp_lg_u32 s86, 0\ns_mov_b32 s{self.sDWO}, {16*896}\ns_cselect_b32 s{self.sDWO}, {(-96*896) & 0xFFFFFFFF}, s{self.sDWO}")
        I(f"s_cmp_lg_u32 s86, 0\ns_movk_i32 s{self.sDHO}, 0x1000\ns_cselect_b32 s{self.sDHO}, 0xfffff000, s{self.sDHO}")
        I(f"s_cmp_lg_u32 s{self.sFIN}, 0\ns_cselect_b32 s{self.S_WD+2}, s{self.S_WD+2}, 0\ns_cselect_b32 s{self.S_WO+2}, s{self.S_WO+2}, 0")
        I(f"s_mul_i32 s{self.sFM0}, s{self.sWV}, {12*K}\ns_add_u32 s{self.sFM0}, s{self.sFM0}, {RING_LO}")
        I(f"s_lshl_b32 s{self.sFM1}, s{self.sWV}, 14\ns_add_u32 s{self.sFM1}, s{self.sFM1}, {RING_HI}")
        I(f"v_lshrrev_b32 v{v}, 3, v0\nv_and_b32 v{v+1}, 2, v{v}\nv_lshlrev_b32 v{v+1}, 1, v{v+1}\nv_and_b32 v{v+2}, 7, v0\nv_xor_b32 v{v+1}, v{v+1}, v{v+2}")
        I(f"v_mul_u32_u24 v{v}, 0x380, v{v}\nv_lshl_add_u32 v{self.vFD}, v{v+1}, 4, v{v}\nv_add_u32 v{self.vFD+1}, {8*896-1024}, v{self.vFD}")
        I(f"v_bfe_u32 v{v}, v0, 2, 2\nv_lshrrev_b32 v{v+1}, 5, v0")
        I(f"v_and_b32 v{v+2}, 1, v0\nv_lshlrev_b32 v{v+2}, 4, v{v+2}\nv_bfe_u32 v{v+3}, v0, 1, 1\nv_lshl_add_u32 v{v+2}, v{v+3}, 3, v{v+2}")
        I(f"v_bfe_u32 v{v+3}, v0, 4, 1\nv_and_b32 v{v+4}, 2, v{v}\nv_xor_b32 v{v+3}, v{v+3}, v{v+4}\ns_lshl_b32 s92, s90, 1\nv_xor_b32 v{v+3}, s92, v{v+3}")
        I(f"v_lshl_add_u32 v{v+2}, v{v+3}, 5, v{v+2}\nv_lshl_add_u32 v{v+2}, v{v}, 7, v{v+2}")
        R = self.vFR
        I(f"v_lshl_add_u32 v{v+3}, v{v+1}, 10, v{v+2}\nv_add_u32 v{R}, s{self.sFM0}, v{v+3}\nv_xor_b32 v{R+1}, 64, v{R}")
        I(f"v_add_u32 v{R+2}, s{self.sFM1}, v{v+3}\nv_xor_b32 v{R+3}, 64, v{R+2}")
        I(f"v_lshlrev_b32 v{R+4}, 9, v{v+1}")
        I(f"s_lshl_b32 s93, s87, 1\ns_add_u32 s93, s93, s91\ns_mul_i32 s92, s93, {HO_MT}\ns_mul_i32 s88, s{self.sWV}, {28*1024}")
        I(f"s_add_u32 s92, s92, {HO_OFF - HO_MT}\ns_add_u32 s88, s88, s92\ns_lshl_b32 s94, s94, 12\ns_add_u32 s{self.sFH}, s88, s94")
        I(f"s_lshl_b32 s88, s{self.sWV}, 1\ns_add_u32 s88, s88, s86\ns_lshl_b32 s88, s88, 12\ns_add_u32 s88, s88, s92\ns_add_u32 s{self.sFHO}, s88, {112*1024}")
        I(f"s_cmp_eq_u32 s91, 0\ns_cselect_b32 s92, {2*HO_MT}, 0")
        I(f"v_add_u32 v{R+5}, {HO_MT}, v{self.vL16}\nv_add_u32 v{R+6}, s92, v{self.vL16}")
        I(f"s_mul_i32 s92, s93, {32*896}\ns_add_u32 s92, s92, s89\ns_lshl_b32 s88, s90, 6\ns_add_u32 s{self.sFO}, s92, s88")
        I(f"s_lshl_b32 s92, s93, 7\ns_add_u32 s{self.sZF}, s92, {Z_OFF}")
        I(f"s_lshr_b32 s87, s87, 1\ns_lshl_b32 s87, s87, 8\ns_add_u32 s87, s87, {FL_OFF + 4096}")
        I(f"s_lshl_b32 s88, s{self.sRB}, 8\ns_add_u32 s88, s88, {FL_OFF + 4096 + 56}")
        I(f"v_lshlrev_b32 v{v}, 2, v0\nv_add_u32 v{v}, s87, v{v}\nv_mov_b32 v{v+1}, s88\nv_cmp_gt_u32 vcc, 16, v0\nv_cndmask_b32 v{self.vFA}, v{v+1}, v{v}, vcc")

    def fin_dma(self, step):
        I, b = self.I, self.b
        hi, c = self.ring_addr(step % self.RING)
        sm = self.sFM1 if hi else self.sFM0

        def first():
            if step >= self.RING:
                need = None
                for i, (_d, t) in enumerate(b.lg):
                    if t == f"rw{step - self.RING}":
                        need = len(b.lg) - 1 - i
                assert f"rw{step - self.RING}" in self.rw_done, step
                b.waitcnt(lg=need)
            I(f"s_add_u32 m0, s{sm}, {c}")
        L = [first]
        if step < 28:
            srd, so = self.S_WD, self.sFW
        else:
            srd, so = self.S_WO, self.sFWO
        if 0 < step < 28 and step % 4 == 0:
            L.append(lambda: I(f"s_cmp_eq_u32 s{self.sWRAP}, {step//4}\ns_cselect_b32 s86, {(-448*896) & 0xFFFFFFFF}, 0\ns_add_u32 s{so}, s{so}, s86\ns_add_u32 s{so}, s{so}, {16*896}"))
        elif 0 < step < 28:
            L.append(lambda: I(f"s_add_u32 s{so}, s{so}, {16*896}"))
        elif step == 32:
            L.append(lambda: I(f"s_add_u32 s{so}, s{so}, s{self.sDWO}"))
        elif step > 28:
            rows = [0, 16, 24, 40]
            d = rows[step % 4] - rows[step % 4 - 1]
            L.append(lambda: I(f"s_add_u32 s{so}, s{so}, {d*896}"))
        for e in range(2):
            L.append(lambda e=e: I(f"buffer_load_dwordx4 v{self.vFD+e}, s[{srd}:{srd+3}], s{so} offen offset:{1024*e} lds", f"w{step}"))
        return L

    rw_done = set()

    def fw(self, step, t):
        return (step * 8 if step < 28 else 224 + (step % 2) * 8) + 4 * t

    def fin_rdw(self, step):
        hi, c = self.ring_addr(step % self.RING)
        L = []
        for t in range(2):
            for e in range(2):
                r = self.fw(step, t) + 2 * e
                imm = c + (512 if step < 28 else 1024) * e

                def f(r=r, t=t, e=e, imm=imm):
                    if t == 0 and e == 0:
                        self.b.wait_tags((f"w{step}",))
                    self.I(f"ds_read_b64_tr_b16 a[{r}:{r+1}], v{self.vFR + 2*hi + t} offset:{imm}", f"rw{step}")
                    if t == 1 and e == 1:
                        self.rw_done.add(f"rw{step}")
                L.append(f)
        return L

    def fin_hload(self, step):
        I = self.I
        L = []
        R = self.vFR
        imm = 1024 * ((step if step < 28 else step - 28) % 4)
        if step == 28:
            L.append(lambda: I(f"s_mov_b32 s{self.sFH}, s{self.sFHO}"))
        elif step == 32:
            L.append(lambda: I(f"s_add_u32 s{self.sFH}, s{self.sFH}, s{self.sDHO}"))
        elif step % 4 == 0 and step > 0:
            L.append(lambda: I(f"s_cmp_eq_u32 s{self.sWRAP}, {step//4}\ns_cselect_b32 s86, {(-28*1024) & 0xFFFFFFFF}, 0\ns_add_u32 s{self.sFH}, s{self.sFH}, s86\ns_add_u32 s{self.sFH}, s{self.sFH}, 0x1000"))
        for a in range(2):
            r = self.FH + (step % self.NH) * 8 + 4 * a
            L.append(lambda r=r, a=a: I(f"buffer_load_dwordx4 v[{r}:{r+3}], v{R+5+a}, s[{self.S_WS}:{self.S_WS+3}], s{self.sFH} offen offset:{imm} sc1", f"h{step}"))
        return L

    def final(self):
        I, b, o = self.I, self.b, self.o
        R = self.vFR
        z = self.vZZ + 1
        nh = o.nh0
        A = self.FACC
        I("\n".join(f"v_sub_u32 v{R+i}, v{R+i}, v{R+4}" for i in range(4)))
        I(f"s_mov_b32 s{self.sMSK}, 0xffff\ns_movk_i32 s{self.sT0}, 0x1000")
        for n in range(36):
            gaps = [[] for _ in range(4)]
            if n in o.fs:
                self.ts()
            if 28 <= n + 1 < 36:
                rd = self.fin_rdw(n + 1)
                gaps[0] += rd[:2]
                gaps[1] += rd[2:]
            if n == o.opub:
                gaps[0].append(lambda: (b.wait_tags(("o",)), I("s_barrier"), self.flag_store(2)))
            if n == o.opoll_issue:
                gaps[1].append(lambda: self.poll_issue(self.vFA, self.vPOLL, soff=f"s{self.sT0}"))
            lim = 28 if n < o.opoll_check else 36
            if n == o.opoll_check:
                gaps[0].append(lambda: self.poll_check(self.vFA, self.vPOLL, self.sMSK, soff=f"s{self.sT0}"))
            cnt = 0
            while nh < lim and nh - self.NH < n and cnt < o.hrate:
                hl = self.fin_hload(nh)
                gaps[(2 * cnt + 1) % 4] += hl[:-1]
                gaps[(2 * cnt + 2) % 4 if cnt == 0 else 3] += hl[-1:]
                nh += 1
                cnt += 1
            if n == 28:
                for s in range(4):
                    for k in range(0, 16, 2):
                        I(f"v_pk_mul_f32 v[{A[s]+k}:{A[s]+k+1}], v[{A[s]+k}:{A[s]+k+1}], v[{z}:{z+1}] op_sel:[0,{s&1}] op_sel_hi:[1,{s&1}]")
            i = 0
            tiles = [(0, 0), (0, 1), (1, 0), (1, 1)] if n < 35 else [(0, 1), (1, 0), (1, 1), (0, 0)]
            for t, a in tiles:
                rw = self.fw(n, t)
                rh = self.FH + (n % self.NH) * 8 + 4 * a
                self.mfma(A[2 * t + a], f"a[{rw}:{rw+3}]", f"v[{rh}:{rh+3}]", n == 0)
                for f in gaps[i]:
                    f()
                i += 1
        self.ts()
        v = self.vT
        I(f"v_add_u32 v{v}, s{self.sFM0}, v{self.vL16}")
        for sg in range(1, 4):
            I(f"s_xor_b32 s86, s{self.sWV}, {sg}\ns_mul_i32 s86, s86, {12*K}\ns_add_u32 s86, s86, {RING_LO}\nv_add_u32 v{v+sg}, s86, v{self.vL16}")
        for sg in range(1, 4):
            for q in range(4):
                r = A[sg] + 4 * q
                I(f"ds_write_b128 v{v}, v[{r}:{r+3}] offset:{(sg-1)*4096 + q*1024}")
        I(f"v_and_b32 v{v+4}, 31, v0\nv_mul_u32_u24 v{v+4}, 0x380, v{v+4}\nv_lshrrev_b32 v{v+5}, 5, v0\nv_lshl_add_u32 v{v+4}, v{v+5}, 4, v{v+4}")
        b.waitcnt(lg=0)
        I("s_barrier")
        T = self.FH
        for q in range(4):
            for sg in range(1, 4):
                r = T + 16 * (sg - 1) + 4 * q
                I(f"ds_read_b128 v[{r}:{r+3}], v{v+sg} offset:{(sg-1)*4096 + q*1024}")
        a0 = A[0]
        for h in range(2):
            for k in range(8 * h, 8 * h + 8, 2):
                for sg in range(1, 4):
                    r = T + 16 * (sg - 1) + k
                    I(f"v_pk_add_f32 v[{a0+k}:{a0+k+1}], v[{a0+k}:{a0+k+1}], v[{r}:{r+1}]")
            r = a0 + 8 * h
            for i in range(4):
                I(f"v_cvt_pk_bf16_f32 v{r+i}, v{r+2*i}, v{r+2*i+1}")
            if o.thr and h == 0:
                b.raw("s_memrealtime s[100:101]")
                b.raw("s_waitcnt lgkmcnt(0)")
                I(f"global_load_dwordx2 v[46:47], v{self.vZ}, s[{self.pDBG}:{self.pDBG+1}] offset:128 sc1\nv_or_b32 v46, v46, v47\nv_readfirstlane_b32 s101, v46")
                I(f"s_sub_u32 s100, s100, s{self.sTAG}\ns_cmp_gt_i32 s100, {o.thr}\ns_cselect_b32 s100, 0x7fc07fc0, 0")
                I(f"s_cmp_lg_u32 s101, 0\ns_cselect_b32 s100, 0, s100\nv_or_b32 v{r}, s100, v{r}")
            I(f"buffer_store_dwordx4 v[{r}:{r+3}], v{v+4}, s[{self.S_OUT}:{self.S_OUT+3}], s{self.sFO} offen offset:{32*h}")

    def build(self):
        I, b, o = self.I, self.b, self.o
        b.label(KNAME)
        self.prologue()
        self.ts(98)
        self.ts(99)
        self.sts_flush()
        self.ts()
        self.passA()
        self.ts()
        I(f"s_cmp_lg_u32 s{self.sISV}, 0\ns_cbranch_scc1 L_vpath")
        snap = b.snapshot()
        nts0 = self.nts
        self.passB_GU()
        gu_vm = list(b.vm)
        gu_lg = [t for _d, t in b.lg]
        I("s_branch L_join")
        b.label("L_vpath")
        b.restore(snap)
        self.nts = nts0
        self.passB_V()
        b.label("L_join")
        vt = [t for _d, t in b.vm]
        gt = [t for _d, t in gu_vm]
        after = lambda L, t: L[::-1].index(t) if t in L else 10 ** 6
        for t in set(vt) | set(gt):
            if t is not None:
                assert after(vt, t) <= after(gt, t), (t, vt, gt)
        assert [t for _d, t in b.lg] == gu_lg
        self.ts()
        self.attention()
        self.ts()
        I(f"s_cmp_lg_u32 s{self.sFIN}, 0\ns_cbranch_scc0 L_nofinal")
        snap2 = b.snapshot()
        self.final()
        if o.ts:
            b.wait_all()
            self.ts(last=True)
        I("s_endpgm")
        b.label("L_nofinal")
        b.restore(snap2)
        b.wait_tags(("o",))
        I("s_barrier")
        self.flag_store(2)
        b.label("L_exit")
        b.raw("s_endpgm")

    def text(self):
        hdr = open("gated_mix__sliding_block__glu_gated_glu__prompt.s.ref").read().split("; Override launch")[0]
        s = hdr
        s += "; Generated by my own generator script (hand-designed schedule; no compiler output).\n"
        s += "; @launch grid=(256,1,1) block=(256,1,1) lds=163840\n"
        s += '.amdgcn_target "amdgcn-amd-amdhsa--gfx950"\n.text\n'
        s += f".globl {KNAME}\n.p2align 8\n.type {KNAME},@function\n"
        s += self.b.text()
        s += f""".section .rodata,"a"
.p2align 6
.amdhsa_kernel {KNAME}
  .amdhsa_next_free_vgpr 512
  .amdhsa_next_free_sgpr 102
  .amdhsa_accum_offset 256
  .amdhsa_group_segment_fixed_size 0
  .amdhsa_kernarg_size 88
  .amdhsa_user_sgpr_count 2
  .amdhsa_user_sgpr_kernarg_segment_ptr 1
  .amdhsa_system_sgpr_workgroup_id_x 1
.end_amdhsa_kernel
"""
        return s


def main():
    ap = argparse.ArgumentParser()
    ap.add_argument("-o", default="k.s")
    ap.add_argument("--ts", action="store_true")
    ap.add_argument("--cyc", action="store_true")
    ap.add_argument("--thrpat", type=int, default=1)
    ap.add_argument("--badmap", type=int, default=0)
    ap.add_argument("--thr", type=int, default=0)
    ap.add_argument("--lite", action="store_true")
    ap.add_argument("--dbgts", type=int, default=0)
    ap.add_argument("--sts", action="store_true")
    ap.add_argument("--pk", type=int, default=1)
    ap.add_argument("--pkB", type=int, default=0)
    ap.add_argument("--align", type=int, default=1)
    ap.add_argument("--coop", type=int, default=0)
    ap.add_argument("--lead", type=int, default=2)
    ap.add_argument("--rot", type=int, default=0)
    ap.add_argument("--fl0", type=int, default=11)
    ap.add_argument("--kpoll", type=int, default=21)
    ap.add_argument("--kchk", type=int, default=25)
    ap.add_argument("--epi_end", type=int, default=28)
    ap.add_argument("--nbq", type=int, default=6)
    ap.add_argument("--hpub", type=int, default=1)
    ap.add_argument("--hpoll", type=int, default=5)
    ap.add_argument("--nh0", type=int, default=8)
    ap.add_argument("--hrate", type=int, default=2)
    ap.add_argument("--opub", type=int, default=6)
    ap.add_argument("--opoll_issue", type=int, default=14)
    ap.add_argument("--opoll_check", type=int, default=18)
    for k in ("fs", "bs", "ss"):
        ap.add_argument("--" + k, default="", type=lambda t: [int(x) for x in t.split(",") if x])
    o = ap.parse_args()
    g = G(o)
    g.build()
    open(o.o, "w").write(g.text())
    print(f"code bytes {g.b.off}, hazard nops {g.b.nops_added}, stamps {g.nts}", file=sys.stderr)


if __name__ == "__main__":
    main()
```

```python
import re

_RANGE = re.compile(r"^([vas])\[(\d+):(\d+)\]$")
_SINGLE = re.compile(r"^([vas])(\d+)$")


def regs_of(op):
    op = op.strip()
    if op.startswith("-"):
        op = op[1:]
    if op.startswith("abs(") or op.startswith("|"):
        op = op.strip("|").replace("abs(", "").rstrip(")")
    m = _RANGE.match(op)
    if m:
        return [f"{m.group(1)}{i}" for i in range(int(m.group(2)), int(m.group(3)) + 1)]
    m = _SINGLE.match(op)
    if m:
        return [op]
    if op in ("vcc", "exec", "m0", "scc"):
        return [op]
    if op in ("vcc_lo", "vcc_hi"):
        return ["vcc"]
    if op in ("exec_lo", "exec_hi"):
        return ["exec"]
    return []


def is_literal(op):
    op = op.strip()
    if regs_of(op) or op in ("off", "null"):
        return False
    try:
        if op.startswith("0x") or op.startswith("-0x"):
            v = int(op, 16)
        elif re.match(r"^-?\d+$", op):
            v = int(op)
        else:
            f = float(op)
            return f not in (0.5, -0.5, 1.0, -1.0, 2.0, -2.0, 4.0, -4.0, 0.0)
        return not (-16 <= v <= 64)
    except ValueError:
        return True


TRANS = ("v_exp_f32", "v_log_f32", "v_rcp_f32", "v_rsq_f32", "v_sqrt_f32", "v_sin_f32", "v_cos_f32")
DUAL = ("v_mov_b32", "v_add_f32", "v_sub_f32", "v_subrev_f32", "v_mul_f32", "v_max_f32", "v_min_f32", "v_and_b32",
        "v_or_b32", "v_xor_b32", "v_add_u32", "v_sub_u32", "v_subrev_u32", "v_lshlrev_b32", "v_lshrrev_b32",
        "v_mul_u32_u24", "v_exp_f32", "v_rcp_f32", "v_max_u32", "v_min_u32", "v_max_i32", "v_ashrrev_i32",
        "v_cvt_f32_u32", "v_cvt_u32_f32", "v_fmac_f32", "v_not_b32")


class Ins:
    __slots__ = ("text", "op", "kind", "rd", "wr", "size", "tag", "srcc", "wide_store", "dual", "comment")

    def __init__(self, text, tag=None):
        self.tag = tag
        self.srcc = []
        self.wide_store = []
        self.dual = False
        t = text.strip()
        self.text = t
        if t.endswith(":") or t.startswith("."):
            self.op = "label" if t.endswith(":") else "directive"
            self.kind = self.op
            self.rd, self.wr, self.size = [], [], 0
            return
        parts = t.split(None, 1)
        op = parts[0]
        base = re.sub(r"_e(32|64)$", "", op)
        self.op = base
        rest = parts[1] if len(parts) > 1 else ""
        ops = []
        depth = 0
        cur = ""
        for ch in rest:
            if ch in "[(":
                depth += 1
            if ch in "])":
                depth -= 1
            if ch == "," and depth == 0:
                ops.append(cur.strip())
                cur = ""
            else:
                cur += ch
        mods = ""
        if cur.strip():
            last = cur.strip().split(None, 1)
            ops.append(last[0])
            mods = last[1] if len(last) > 1 else ""
        R = lambda lst: [r for o in lst for r in regs_of(o)]
        rd, wr = [], []
        size = 4
        if base.startswith("v_mfma"):
            kind = "mfma"
            wr = R(ops[:1]); rd = R(ops[1:4]); self.srcc = R(ops[3:4]); size = 8
        elif base.startswith("ds_read"):
            kind = "ds"; wr = R(ops[:1]); rd = R(ops[1:]); size = 8
        elif base.startswith("ds_write"):
            kind = "ds"; rd = R(ops); size = 8
        elif base.startswith("buffer_load") or base.startswith("global_load"):
            size = 8
            if " lds" in (" " + mods) or "lds" in base:
                kind = "vmem"; rd = R(ops) + ["m0"]
            else:
                kind = "vmem"; wr = R(ops[:1]); rd = R(ops[1:])
        elif base.startswith("buffer_store") or base.startswith("global_store") or base.startswith("buffer_atomic") or base.startswith("global_atomic"):
            kind = "vmem"; rd = R(ops); size = 8
            if base.endswith("x4") or base.endswith("x3"):
                self.wide_store = R(ops[:1]) if base.startswith("buffer") else R(ops[1:2])
        elif base.startswith("s_load") or base.startswith("s_memtime") or base.startswith("s_memrealtime"):
            kind = "smem"; wr = R(ops[:1]); rd = R(ops[1:]); size = 8
        elif base in ("s_waitcnt", "s_nop", "s_barrier", "s_endpgm", "s_setprio", "s_sleep", "s_branch"):
            kind = "sopp"
        elif base.startswith("s_cbranch"):
            kind = "sopp"
            rd = ["scc"] if "scc" in base else (["vcc"] if "vcc" in base else ["exec"])
        elif base.startswith("s_cmp") or base.startswith("s_bitcmp"):
            kind = "salu"; wr = ["scc"]; rd = R(ops)
            size = 8 if any(is_literal(o) for o in ops) else 4
        elif base.startswith("s_"):
            kind = "salu"; wr = R(ops[:1]); rd = R(ops[1:])
            if base in ("s_cselect_b32", "s_cselect_b64", "s_addc_u32", "s_subb_u32"):
                rd = rd + ["scc"]
            if base not in ("s_mov_b32", "s_mov_b64", "s_movk_i32", "s_cselect_b32", "s_cselect_b64", "s_mul_i32",
                            "s_mul_hi_u32", "s_getpc_b64", "s_getreg_b32"):
                wr = wr + ["scc"]
            if "saveexec" in base:
                wr = wr + ["exec"]; rd = rd + ["exec"]
            if base in ("s_movk_i32", "s_getreg_b32", "s_addk_i32"):
                size = 4
            else:
                size = 8 if any(is_literal(o) for o in ops[1:]) else 4
        elif base.startswith("v_"):
            kind = "trans" if base in TRANS else "valu"
            wr = R(ops[:1]); rd = R(ops[1:])
            if base in ("v_fmac_f32", "v_dot2c_f32_bf16"):
                rd = rd + wr
            if base in ("v_add_co_u32", "v_addc_co_u32"):
                wr = R(ops[:2]); rd = R(ops[2:])
            if base == "v_writelane_b32":
                rd = rd + wr
            if base.startswith("v_permlane"):
                wr = R(ops[:2]); rd = R(ops[:2])
            if base == "v_cndmask_b32" and len(ops) == 3:
                rd = rd + ["vcc"]
            lit = any(is_literal(o) for o in ops[1:])
            if op.endswith("_e64"):
                size = 8
            elif op.endswith("_e32"):
                size = 8 if lit else 4
            elif base in DUAL:
                can32 = not mods and not any(o.startswith("-") and regs_of(o) for o in ops[1:])
                if can32 and len(ops) == 3 and not (regs_of(ops[2]) and regs_of(ops[2])[0][0] == "v"):
                    can32 = False
                if lit:
                    size = 8
                elif can32:
                    self.dual = True
                    size = 8
                else:
                    size = 8
            elif base.startswith("v_cmp"):
                size = 4 if (ops[0] == "vcc" and not lit and regs_of(ops[2]) and regs_of(ops[2])[0][0] == "v") else 8
            elif base == "v_cndmask_b32":
                size = 4 if (ops[-1] == "vcc" and not lit and regs_of(ops[2]) and regs_of(ops[2])[0][0] == "v") else 8
            elif base in ("v_add_co_u32", "v_addc_co_u32"):
                size = 4
            elif base in ("v_readfirstlane_b32", "v_permlane32_swap_b32", "v_permlane16_swap_b32", "v_accvgpr_mov_b32", "v_nop"):
                size = 4
            else:
                size = 8
        else:
            raise ValueError("unknown instr " + t)
        self.kind, self.rd, self.wr, self.size = kind, rd, wr, size


class Builder:
    def __init__(self, align_opt=True):
        self.out = []
        self.lg = []
        self.vm = []
        self.off = 0
        self.align_opt = align_opt
        self.nops_added = 0

    def snapshot(self):
        return (list(self.lg), list(self.vm), list(self.out[-40:]))

    def restore(self, snap):
        self.lg, self.vm = list(snap[0]), list(snap[1])
        self.hist_override = list(snap[2])
        self.hist_base = len(self.out)

    hist_override = None
    cld, cst = 8, 12
    gdrop = ()
    drop = ()
    hist_base = 0

    def _history(self):
        if self.hist_override is not None and len(self.out) - self.hist_base < 40:
            return self.hist_override + self.out[self.hist_base:]
        return self.out[-40:]

    def mark(self):
        return (len(self.out), self.off, list(self.vm), list(self.lg), self.nops_added)

    def rollback(self, m):
        del self.out[m[0]:]
        self.off, self.vm, self.lg, self.nops_added = m[1], list(m[2]), list(m[3]), m[4]

    def cost_since(self, idx):
        c = 0
        for i in self.out[idx:]:
            if i.kind in ("label", "directive"):
                continue
            if i.op == "s_nop":
                c += 4 * (int(i.text.split()[1]) + 1)
            elif i.kind in ("mfma", "trans"):
                c += 8
            elif i.kind == "vmem":
                c += self.cst if "store" in i.op else self.cld
            else:
                c += 4
        return c

    def needs_wait(self, text):
        vmn, lgn = self._need_waits(Ins(text))
        return (vmn is not None and vmn < len(self.vm)) or (lgn is not None and lgn < len(self.lg))

    def _emit(self, ins):
        if ins.dual:
            op, _, rest = ins.text.partition(" ")
            if self.align_opt and self.off % 8 == 0:
                ins.text = op + "_e64 " + rest; ins.size = 8
            else:
                ins.text = op + "_e32 " + rest; ins.size = 4
        self.out.append(ins)
        self.off += ins.size

    def label(self, name):
        self._emit(Ins(name + ":"))

    def raw(self, text):
        self._emit(Ins(text))

    def align8(self):
        if self.off % 8:
            self._emit(Ins("s_nop 0"))

    def _need_waits(self, ins):
        touched = set(ins.rd) | set(ins.wr)
        lgn = vmn = None
        for i, (d, _t) in enumerate(self.lg):
            if d & touched:
                lgn = len(self.lg) - 1 - i
        for i, (d, _t) in enumerate(self.vm):
            if d & touched:
                vmn = len(self.vm) - 1 - i
        return vmn, lgn

    def waitcnt(self, vm=None, lg=None):
        parts = []
        if vm is not None and vm < len(self.vm):
            vm_e = min(vm, 63)
            parts.append(f"vmcnt({vm_e})")
            self.vm = self.vm[len(self.vm) - vm_e:] if vm_e else []
        if lg is not None and lg < len(self.lg):
            lg_e = min(lg, 15)
            parts.append(f"lgkmcnt({lg_e})")
            self.lg = self.lg[len(self.lg) - lg_e:] if lg_e else []
        if parts:
            self._emit(Ins("s_waitcnt " + " ".join(parts)))

    def wait_tags(self, vm_tags=(), lg_all=False, force=False):
        vmn = None
        for i, (_d, t) in enumerate(self.vm):
            if t in vm_tags:
                vmn = len(self.vm) - 1 - i
        self.waitcnt(vm=vmn, lg=0 if lg_all else None)

    def wait_all(self):
        self._emit(Ins("s_waitcnt vmcnt(0) lgkmcnt(0)"))
        self.vm, self.lg = [], []

    def _hazard_states(self, ins):
        hist = [h for h in self._history() if h.kind not in ("label", "directive")]
        need = 0
        dist = 0
        rd, wr = set(ins.rd), set(ins.wr)
        isv = ins.kind in ("valu", "trans")
        for h in reversed(hist):
            hw = set(h.wr)
            req = 0
            hv = h.kind in ("valu", "trans")
            if h.kind == "mfma":
                if ins.kind == "mfma":
                    c = set(ins.srcc)
                    ab = rd - c
                    if hw & ab:
                        req = max(req, 12)
                    if hw & c and not (hw == c):
                        req = max(req, 10)
                    if hw & wr and not (hw & c):
                        req = max(req, 12)
                elif (hw & (rd | wr)) and ins.kind in ("valu", "trans", "vmem", "ds"):
                    req = max(req, 12)
                if isv and (set(h.srcc) & wr):
                    req = max(req, 7)
            if hv:
                hvg = {r for r in hw if r[0] in "va" and r != "vcc"}
                hsg = {r for r in hw if r[0] == "s" or r == "vcc"}
                if ins.kind == "mfma" and (hvg & rd):
                    req = max(req, 2)
                if ins.kind == "mfma" and "exec" in hw:
                    req = max(req, 4)
                if ins.op.startswith("v_permlane") and (hvg & rd):
                    req = max(req, 2)
                if ins.op in ("v_readfirstlane_b32", "v_readlane_b32") and (hvg & rd):
                    req = max(req, 1)
                if ins.kind == "vmem" and (hsg & rd):
                    req = max(req, 5)
                if isv and (hsg & rd):
                    req = max(req, 2)
                if ins.kind in ("salu", "sopp") and (hsg & rd):
                    req = max(req, 2)
                if h.kind == "trans" and ins.kind in ("valu", "mfma", "vmem", "ds") and (hvg & rd):
                    req = max(req, 2 if ins.kind == "mfma" else 1)
            if h.kind == "salu" and "m0" in hw and ins.kind == "vmem" and "m0" in rd:
                req = max(req, 1)
            if h.wide_store and (set(h.wide_store) & wr):
                req = max(req, 2)
            if req - dist > need:
                need = req - dist
            if h.op == "s_nop":
                dist += int(h.text.split()[1]) + 1
            else:
                dist += 1
            if dist >= 20:
                break
        return need

    def I(self, text, tag=None):
        for line in text.split("\n"):
            line = line.split(";")[0].strip()
            if not line:
                continue
            ins = Ins(line, tag)
            if (self.drop and any(d(ins) for d in self.drop)) or (self.gdrop and any(d(ins) for d in self.gdrop)):
                continue
            if ins.kind in ("label", "directive"):
                self._emit(ins)
                continue
            vmn, lgn = self._need_waits(ins)
            if vmn is not None or lgn is not None:
                self.waitcnt(vm=vmn, lg=lgn)
            n = self._hazard_states(ins)
            while n > 0:
                k = min(n, 16)
                self._emit(Ins(f"s_nop {k-1}"))
                self.nops_added += k
                n -= k
            self._emit(ins)
            if ins.kind == "ds":
                self.lg.append((set(ins.wr), tag))
                if len(self.lg) > 15:
                    pass
            elif ins.kind == "vmem":
                self.vm.append((set(ins.wr), tag))
                assert len(self.vm) <= 63, "too many VMEM ops outstanding"
            elif ins.op == "s_waitcnt":
                m = re.search(r"vmcnt\((\d+)\)", line)
                if m:
                    n = int(m.group(1)); self.vm = self.vm[len(self.vm) - n:] if n and n < len(self.vm) else ([] if n == 0 else self.vm)
                m = re.search(r"lgkmcnt\((\d+)\)", line)
                if m:
                    n = int(m.group(1)); self.lg = self.lg[len(self.lg) - n:] if n and n < len(self.lg) else ([] if n == 0 else self.lg)

    def text(self):
        lines = []
        for i in self.out:
            lines.append(i.text if i.kind in ("label", "directive") else "    " + i.text)
        return "\n".join(lines) + "\n"
```

```python
import sys, math, argparse
from asmb import Builder

KNAME = "gated_mix__sliding_block__glu_gated_glu__prompt_kernel"
K = 1024
QKV_OFF = 0
QKV_MT = 168 * 512
HO_OFF = 0x600000
HO_MT = 144 * 1024
Z_OFF = 0xF00000
FL_OFF = 0xF10000
E_OFF = 0xF20000
TS_OFF = 0xF30000
WS_SIZE = 0x1000000
SLOT = 40 * K
CHUNK = 10 * K
PB_BASE = [120 * K, 136 * K, 0, 16 * K, 48 * K, 64 * K, 80 * K]
KV_K = 0
KV_V = 24 * K
RING_LO = 48 * K
RING_HI = 96 * K
GW_LDS = 32 * K
NEG = 0xF149F2CA
LOG2E = 1.4426950408889634
SPIN_MAX = 1 << 18


def f32hex(x):
    import struct
    return "0x%08x" % struct.unpack("<I", struct.pack("<f", x))[0]


class NotReady(Exception):
    pass


class Stream:
    def __init__(self, items, t0, t1, ahead=0.0, maxlag=3.0, early=None, prio=0, starve=99):
        self.items, self.t0, self.t1, self.ahead, self.maxlag = list(items), t0, t1, ahead, maxlag
        self.early = early or {}
        self.idx = 0
        self.prio, self.starve, self.waiting = prio, starve, 0

    def lag(self, g):
        tgt = len(self.items) * min(1.0, (g - self.t0 + 1) / max(1, self.t1 - self.t0 + 1))
        return tgt - self.idx

    def ready(self, g):
        return self.idx < len(self.items) and g >= self.t0 and g >= self.early.get(self.idx, 0)


class G:
    def sched(self, mf, fixed, streams, cap=24, pre=None):
        b = self.b
        for g, m in enumerate(mf):
            if pre and g in pre:
                for f in pre[g]:
                    f()
            self.I(m)
            start = len(b.out)
            for f in fixed.get(g, []):
                f()
            while True:
                took = False
                for s_ in sorted((x for x in streams if x.ready(g)), key=lambda x: (-x.prio, -x.lag(g) / max(1.0, x.maxlag))):
                    lag = s_.lag(g)
                    if lag <= -s_.ahead:
                        continue
                    mk, rw, uid = b.mark(), set(self.rw_done), self._uid
                    try:
                        s_.items[s_.idx]()
                    except NotReady:
                        b.rollback(mk)
                        continue
                    res = 4 if (g + 1 < len(mf) and (b.needs_wait(mf[g + 1]) or (pre and g + 1 in pre))) else 0
                    nvm = sum(1 for i_ in b.out[start:] if i_.kind == "vmem")
                    fits = b.cost_since(start) + res <= cap and nvm <= 1
                    if fits or lag >= s_.maxlag or g >= s_.t1 or s_.waiting >= s_.starve:
                        s_.idx += 1
                        s_.waiting = -1
                        took = True
                        break
                    b.rollback(mk)
                    self.rw_done = rw
                if not took:
                    break
            for s_ in streams:
                s_.waiting = s_.waiting + 1 if s_.ready(g) else 0
        for s_ in streams:
            assert s_.idx == len(s_.items), (s_.idx, len(s_.items))

    def ablate(self, ph):
        d = []
        for a in self.o.abl.split(","):
            if not a.startswith(ph):
                continue
            k = a[1:]
            d.append({"dma": lambda i: i.kind == "vmem" and " lds" in i.text and "sc1" not in i.text,
                      "st": lambda i: i.kind == "vmem" and "x4" in i.op and "store" in i.op,
                      "valu": lambda i: i.op in ("v_mul_f32", "v_exp_f32", "v_add_f32", "v_rcp_f32", "v_cvt_pk_bf16_f32", "v_pk_mul_f32", "v_pk_add_f32", "v_sub_f32", "v_cndmask_b32", "v_cmp_gt_i32"),
                      "rw": lambda i: i.kind == "ds" and i.tag is not None,
                      "ds": lambda i: i.kind == "ds",
                      "bar": lambda i: i.op == "s_barrier"}[k])
        self.b.drop = tuple(d)

    def mtext(self, d, a, bb, first):
        c = "0" if first else f"v[{d}:{d+15}]"
        return f"v_mfma_f32_32x32x16_bf16 v[{d}:{d+15}], {a}, {bb}, {c}"

    def __init__(self, opt):
        self.o = opt
        self.b = Builder(align_opt=opt.align)
        self.b.cld, self.b.cst = opt.cld, opt.cst
        self.nts = 0

    S_X, S_A, S_B, S_C, S_WS, S_WD, S_WO, S_OUT = 8, 12, 16, 20, 24, 28, 32, 36
    pDBG, pGW = 40, 42
    sWV, sRB, sJ, sISV = 44, 45, 46, 47
    sX, sA, sB, sC = 48, 49, 50, 51
    sSAB, sM0, sM0B, sA2, sB2 = 52, 53, 54, 55, 56
    sTAG = 57
    sQ0, sQ1, sH0, sH1 = 58, 59, 60, 61
    sNL2E, sCS = 62, 63
    sMSK, sMSK2, sPAR = 64, 66, 68
    sKT = 70
    sQO, sZO, sOO = 73, 74, 75
    sFIN, sFW, sFH, sFWO, sFM0, sFM1, sFO, sZF = 76, 77, 78, 79, 80, 81, 82, 83
    sSPIN, sT0 = 84, 85
    sT1, sT2, sT3 = 3, 4, 5
    sWRAP, sFHO, sDWO, sDHO = 0, 1, 6, 7
    sTS, sEX, sTM = 95, 96, 100
    vL16 = 1
    vXD = 2
    vWD = 6
    vXR = 12
    vWR = 24
    vT = 33
    vPFW, vPFC = 46, 47
    vPOLL = 48
    vZ = 49
    vFL = 50
    vAP = 51
    ACC_A = 52
    ACC_B = 148
    WF = 224
    KF = 4
    vO = 196
    vQ = 212
    vP = 220
    vKA = 236
    vVA = 237
    vM = 240
    vMA, vMB = 242, 239
    vZZ = 243
    vFA = 246
    vFD = 247
    vFR = 249
    FH = 84
    NH = 16
    FACC = [52, 68, 212, 228]
    SREG = {8: 52, 0: 68, 7: 84, 6: 100, 5: 116, 4: 132, 3: 148, 2: 164, 1: 180}

    def I(self, t, tag=None):
        self.b.I(t, tag)

    def srd(self, s, lo, hi, size):
        self.I(f"s_mov_b32 s{s}, {lo}\ns_mov_b32 s{s+1}, {hi}\ns_mov_b32 s{s+2}, {size}\ns_mov_b32 s{s+3}, 0x20000")

    def ts(self, sreg=None, last=False):
        if not self.o.ts or (self.o.lite and not last and sreg != 98):
            return
        n = self.nts
        self.nts += 1
        if sreg is None:
            self.b.raw(f"{'s_memtime' if self.o.cyc else 's_memrealtime'} s[{self.sTM}:{self.sTM+1}]")
            self.b.raw("s_waitcnt lgkmcnt(0)")
            self.b.lg = []
            sreg = self.sTM
        self.I(f"v_mov_b32 v{self.vT}, s{sreg}\nv_mov_b32 v{self.vT+1}, 0")
        self.I(f"s_mov_b64 s[{self.sEX}:{self.sEX+1}], exec\ns_mov_b64 exec, 1")
        if self.o.dbgts:
            u = self.uid()
            keep = list(self.b.vm)
            self.I(f"s_lshl_b32 s86, s2, 2\ns_add_u32 s86, s86, s{self.sWV}\ns_cmp_eq_u32 s86, {self.o.dbgts}\ns_cbranch_scc0 L_dts{u}")
            self.I(f"global_store_dword v{self.vT+1}, v{self.vT}, s[{self.pDBG}:{self.pDBG+1}] offset:{4*(n+1)} sc1")
            self.b.label(f"L_dts{u}")
            if n == 0 or last:
                self.I(f"s_cmp_eq_u32 s{self.sWV}, 0\ns_cbranch_scc0 L_dtt{u}")
                if n == 0:
                    self.I(f"v_not_b32 v{self.vT}, v{self.vT}")
                self.I(f"global_atomic_umax v{self.vT+1}, v{self.vT}, s[{self.pDBG}:{self.pDBG+1}] offset:{56 if n == 0 else 60} sc1")
                self.b.label(f"L_dtt{u}")
            self.b.vm = keep
        else:
            self.I(f"buffer_store_dword v{self.vT}, v{self.vT+1}, s[{self.S_WS}:{self.S_WS+3}], s{self.sTS} offen offset:{4*n}")
        self.I(f"s_mov_b64 exec, s[{self.sEX}:{self.sEX+1}]")

    soft = 0

    def sts(self):
        if not self.o.sts:
            return
        self.b.raw(f"{'s_memtime' if self.o.cyc else 's_memrealtime'} s[{self.sTM}:{self.sTM+1}]")
        self.b.raw("s_waitcnt lgkmcnt(0)")
        self.I(f"v_mov_b32 v{196+self.soft}, s{self.sTM}")
        self.soft += 1

    def sts_flush(self):
        for k in range(self.soft):
            self.I(f"v_readfirstlane_b32 s{self.sTM}, v{196+k}")
            self.ts(self.sTM)

    def lds(self, base, n, idx, const):
        return f"v{base + (const >> 16) * n + idx}", const & 0xFFFF

    def xf(self, M, n):
        r = (M * 28 + n) * 4
        return f"a[{r}:{r+3}]"

    def wf(self, bufset, t):
        r = self.WF + bufset * 12 + t * 4
        return r

    def acc(self, base, t, M):
        r = base + (t * 2 + M) * 16
        return r

    def prologue(self):
        I = self.I
        b = self.b
        if self.o.ts or self.o.thr:
            b.raw(f"{'s_memtime' if self.o.cyc else 's_memrealtime'} s[98:99]")
        I("s_cmp_ge_u32 s2, 0x100\ns_cbranch_scc1 L_exit")
        if self.o.badmap:
            I("s_and_b32 s3, s2, 31\ns_lshl_b32 s3, s3, 3\ns_lshr_b32 s2, s2, 5\ns_or_b32 s2, s2, s3")
        b.raw("s_load_dwordx16 s[64:79], s[0:1], 0")
        b.raw("s_load_dwordx4 s[80:83], s[0:1], 64")
        b.raw(f"s_load_dwordx2 s[{self.S_WS}:{self.S_WS+1}], s[0:1], 80")
        I("s_getpc_b64 s[4:5]")
        b.label("L_pc")
        I("s_and_b32 s3, s2, 0xf8\nv_and_b32 v33, 7, v0\nv_add_lshl_u32 v33, v33, s3, 7\nv_min_u32 v33, L_exit-L_pc, v33")
        I("global_load_dword v45, v33, s[4:5]", tag="pf")
        b.vm[-1] = (set(), "pf")
        I("v_lshrrev_b32 v35, 6, v0\nv_and_b32 v0, 63, v0")
        I(f"v_readfirstlane_b32 s{self.sWV}, v35")
        I("s_and_b32 s3, s2, 7\ns_lshr_b32 s6, s2, 3")
        I(f"s_and_b32 s7, s3, 1\ns_lshl_b32 s7, s7, 3\ns_and_b32 s4, s6, 7\ns_add_u32 s{self.sRB}, s4, s7")
        I(f"s_lshr_b32 s7, s3, 1\ns_lshl_b32 s7, s7, 2\ns_lshr_b32 s5, s6, 3\ns_add_u32 s{self.sJ}, s5, s7")
        I(f"v_lshlrev_b32 v{self.vL16}, 4, v0")
        I("v_lshrrev_b32 v35, 3, v0\nv_and_b32 v36, 7, v0\nv_lshrrev_b32 v37, 4, v0")
        I("v_mul_u32_u24 v38, 0x380, v35")
        I("v_xor_b32 v39, v36, v37\nv_lshl_add_u32 v2, v39, 4, v38")
        I(f"v_xor_b32 v3, 64, v2\nv_add_u32 v3, {8*896-1024}, v3")
        I(f"v_add_u32 v4, {16*896-2048}, v2\nv_add_u32 v5, {16*896-2048}, v3")
        I("v_and_b32 v39, 2, v35\nv_lshlrev_b32 v39, 1, v39\nv_xor_b32 v39, v36, v39\nv_lshlrev_b32 v39, 4, v39")
        I(f"s_cmp_ge_u32 s{self.sJ}, 14\ns_cselect_b32 s{self.sISV}, 1, 0")
        I("s_movk_i32 s7, 0xe00\ns_movk_i32 s86, 0xa80\ns_cselect_b32 s7, s86, s7")
        I("v_mul_u32_u24 v40, 0xa80, v35\nv_add_u32 v10, v40, v39")
        I(f"v_add_u32 v11, {8*2688-1024}, v10")
        I("v_mul_u32_u24 v40, s7, v35\nv_add_u32 v6, v40, v39")
        I("s_lshl_b32 s86, s7, 3\ns_sub_u32 s86, s86, 0x400\nv_add_u32 v7, s86, v6")
        I("v_xor_b32 v8, 32, v6\nv_xor_b32 v9, 32, v7")
        I(f"s_lshl_b32 s{self.sSAB}, s7, 6")
        if self.o.coop == 1:
            I("v_lshrrev_b32 v42, 1, v0\nv_and_b32 v43, 1, v0\nv_lshlrev_b32 v44, 7, v43")
            I("v_mul_u32_u24 v41, 0x380, v43\nv_lshl_add_u32 v41, v42, 7, v41")
            I(f"v_mul_u32_u24 v{self.vPFW}, s{self.sSAB}, v42\nv_add_u32 v{self.vPFW}, v{self.vPFW}, v44")
            I(f"v_mul_u32_u24 v{self.vPFC}, {64*2688}, v42\nv_add_u32 v{self.vPFC}, v{self.vPFC}, v44\nv_lshlrev_b32 v44, 7, v0")
        I(f"s_lshl_b32 s86, s{self.sRB}, 2\ns_add_u32 s87, s86, s{self.sWV}\ns_mul_i32 s{self.sX}, s87, {32*896}")
        if self.o.coop == 1:
            I(f"s_mul_i32 s3, s87, s7\ns_mul_i32 s4, s87, 0xa80")
            I(f"s_lshl_b32 s86, s{self.sRB}, 4\ns_add_u32 s86, s86, s{self.sJ}\ns_lshl_b32 s86, s86, 2\ns_add_u32 s86, s86, s{self.sWV}")
            I(f"s_mul_i32 s6, s86, {2*896}\ns_mul_i32 s86, s86, 49\ns_lshr_b32 s5, s86, 4\ns_lshl_b32 s5, s5, 7\ns_lshr_b32 s86, s86, 2\ns_lshl_b32 s95, s86, 7")
        I(f"s_lshl_b32 s86, s{self.sWV}, 4\ns_mul_i32 s87, s86, s7\ns_mul_i32 s88, s86, 0xa80")
        I(f"s_lshl_b32 s89, s{self.sJ}, 8\ns_lshl_b32 s90, s{self.sJ}, 7")
        I(f"s_lshl_b32 s91, s{self.sJ}, 9\ns_sub_u32 s91, s91, {42*128}")
        I(f"s_add_u32 s92, s91, 0x80\ns_add_u32 s93, s91, 0x100\ns_add_u32 s94, s89, 0x80")
        I(f"s_cmp_lg_u32 s{self.sISV}, 0")
        I(f"s_cselect_b32 s91, s91, s89\ns_cselect_b32 s92, s92, s89\ns_cselect_b32 s93, s93, s90")
        I(f"s_cselect_b32 s90, {17*128}, s94")
        I(f"s_add_u32 s{self.sA}, s91, s87\ns_add_u32 s{self.sB}, s92, s87\ns_add_u32 s{self.sC}, s93, s88")
        I(f"s_add_u32 s{self.sA2}, s90, s87\ns_add_u32 s{self.sB2}, s94, s87")
        I(f"s_mul_i32 s{self.sM0}, s{self.sWV}, {CHUNK}\ns_lshl_b32 s{self.sM0B}, s{self.sWV}, 12")
        if self.o.coop == 1:
            P = self.vPF
            I(f"s_add_u32 s86, s91, s3\ns_add_u32 s87, s92, s3\ns_add_u32 s88, s93, s4")
            I(f"v_add_u32 v{P}, s6, v41\nv_add_u32 v{P+1}, s86, v{self.vPFW}\nv_add_u32 v{P+2}, s87, v{self.vPFW}")
            I(f"v_add_u32 v{P+3}, s88, v{self.vPFC}\nv_add_u32 v{P+4}, s95, v44\nv_add_u32 v{P+5}, s5, v44")
        WQ, WG_ = 448 * 2688, 448 * 3584
        I(f"s_mov_b32 s{self.S_X+2}, {2048*896}\ns_mov_b32 s{self.S_X+3}, 0x20000")
        I(f"s_cmp_lg_u32 s{self.sISV}, 0")
        for s_ in (self.S_A, self.S_B):
            I(f"s_mov_b32 s{s_+2}, {WG_}\ns_cselect_b32 s{s_+2}, {WQ}, s{s_+2}\ns_mov_b32 s{s_+3}, 0x20000")
        I(f"s_mov_b32 s{self.S_C+2}, {WQ}\ns_mov_b32 s{self.S_C+3}, 0x20000")
        b.raw("s_waitcnt lgkmcnt(0)")
        if self.o.ts and not self.o.lite:
            b.raw(f"{'s_memtime' if self.o.cyc else 's_memrealtime'} s[96:97]")
            b.raw("s_waitcnt lgkmcnt(0)")
            I("s_mov_b32 s99, s96")
        I(f"s_mov_b32 s{self.S_X}, s64\ns_mov_b32 s{self.S_X+1}, s65")
        for s_, lo in ((self.S_A, 72), (self.S_B, 74)):
            I(f"s_cselect_b32 s{s_}, s66, s{lo}\ns_cselect_b32 s{s_+1}, s67, s{lo+1}")
        I(f"s_mov_b32 s{self.S_C}, s66\ns_mov_b32 s{self.S_C+1}, s67")
        srd = lambda s_: f"s[{s_}:{s_+3}]"
        if self.o.coop == 1:
            self.srd(self.S_WD, "s76", "s77", 1792 * 896)
            self.srd(self.S_WO, "s68", "s69", 448 * 896)
        self.pf_batch(0)
        self.sts()
        for ins in self.dma_stageA(0):
            ins()
        self.pf_batch(1)
        self.sts()
        I(f"s_mov_b32 s{self.S_WS+2}, {WS_SIZE}\ns_mov_b32 s{self.S_WS+3}, 0x20000")
        I(f"v_mov_b32 v{self.vZ}, 0\ns_mov_b32 s86, {E_OFF}")
        I(f"buffer_load_dword v{self.vPOLL}, v{self.vZ}, s[{self.S_WS}:{self.S_WS+3}], s86 offen sc1", tag="E")
        for st in range(1, self.o.lead):
            for ins in self.dma_stageA(st):
                ins()
        self.sts()
        self.pf_batch(2)
        if self.o.coop != 1:
            self.srd(self.S_WD, "s76", "s77", 1792 * 896)
            self.srd(self.S_WO, "s68", "s69", 448 * 896)
        if self.o.coop == 2:
            self.pf2_setup()
            for k in range(self.o.pfn0):
                self.pf2(k)
        self.srd(self.S_OUT, "s80", "s81", 2048 * 896)
        I(f"s_mov_b64 s[{self.pDBG}:{self.pDBG+1}], s[82:83]\ns_mov_b64 s[{self.pGW}:{self.pGW+1}], s[78:79]")
        if self.o.ts:
            I(f"s_lshl_b32 s86, s2, 2\ns_add_u32 s86, s86, s{self.sWV}\ns_lshl_b32 s86, s86, 7\ns_add_u32 s{self.sTS}, s86, {TS_OFF}")
        I(f"s_lshr_b32 s86, s{self.sWV}, 1\ns_and_b32 s87, s{self.sWV}, 1")
        I("v_and_b32 v35, 31, v0\nv_lshrrev_b32 v36, 5, v0")
        I("v_bfe_u32 v37, v0, 1, 3\nv_xor_b32 v37, v37, v36")
        I(f"s_mul_i32 s88, s86, {2*CHUNK}\nv_lshlrev_b32 v38, 7, v35\nv_add_u32 v38, s88, v38")
        for ks in range(4):
            I(f"v_xor_b32 v39, {2*ks}, v37\nv_lshl_add_u32 v{self.vXR+ks}, v39, 4, v38")
        I("v_bfe_u32 v37, v0, 2, 2\nv_lshl_add_u32 v38, v36, 3, v37\nv_lshlrev_b32 v38, 7, v38")
        I("v_and_b32 v39, 1, v0\nv_lshlrev_b32 v39, 4, v39\nv_bfe_u32 v40, v0, 1, 1\nv_lshl_add_u32 v39, v40, 3, v39")
        I("v_add_u32 v38, v38, v39")
        I("v_bfe_u32 v39, v0, 4, 1\nv_and_b32 v40, 2, v37\nv_xor_b32 v40, v40, v39")
        I("s_lshl_b32 s88, s87, 1")
        I("v_xor_b32 v41, s88, v40")
        I(f"v_lshl_add_u32 v42, v41, 5, v38")
        I(f"v_add_u32 v{self.vWR}, 0x1000, v42")
        I(f"v_lshl_add_u32 v{self.vWR+1}, v39, 11, v42")
        I(f"v_xor_b32 v{self.vWR+2}, 32, v{self.vWR+1}")
        for st in (1, 2):
            for i in range(4):
                I(f"v_add_u32 v{self.vXR+4*st+i}, {65536*st}, v{self.vXR+i}")
            for i in range(3):
                I(f"v_add_u32 v{self.vWR+3*st+i}, {65536*st}, v{self.vWR+i}")
        I(f"s_lshl_b32 s88, s{self.sRB}, 2\ns_lshl_b32 s89, s86, 1\ns_add_u32 s88, s88, s89")
        I(f"s_mul_i32 s89, s88, {QKV_MT}\ns_lshl_b32 s90, s87, 11\ns_add_u32 s89, s89, s90")
        I(f"s_lshl_b32 s90, s{self.sJ}, 12\ns_lshl_b32 s91, s{self.sJ}, 14\ns_sub_u32 s91, s91, {40*4096}")
        I(f"s_cmp_lg_u32 s{self.sISV}, 0\ns_cselect_b32 s90, s91, s90\ns_add_u32 s{self.sQ0}, s89, s90")
        I(f"s_add_u32 s{self.sQ1}, s{self.sQ0}, {QKV_MT}")
        I(f"s_mul_i32 s89, s88, {HO_MT}\ns_lshl_b32 s90, s{self.sJ}, 13\ns_lshl_b32 s91, s87, 11\ns_add_u32 s89, s89, s90")
        I(f"s_add_u32 s89, s89, s91\ns_add_u32 s{self.sH0}, s89, {HO_OFF}\ns_add_u32 s{self.sH1}, s{self.sH0}, {HO_MT}")
        I(f"s_mov_b32 s{self.sNL2E}, {f32hex(-LOG2E)}\ns_mov_b32 s{self.sCS}, {f32hex(LOG2E / math.sqrt(28.0))}")
        I(f"s_lshl_b32 s88, s{self.sRB}, 8\ns_lshl_b32 s89, s{self.sJ}, 2\ns_add_u32 s88, s88, s89\ns_add_u32 s88, s88, {FL_OFF}")
        I(f"v_mov_b32 v{self.vFL}, s88")
        self.sts()
        self.setup = self.record(lambda: (self.poll_setup_att(), self.att_setup(), self.final_setup()))

    vPF = 200

    def pf2_setup(self):
        I = self.I
        P = self.vPF
        I(f"v_mov_b32 v{P}, s{self.S_X}\nv_mov_b32 v{P+1}, s{self.S_X+1}\nv_mov_b32 v{P+2}, 0x80")
        f0 = self.o.pf0
        I(f"s_lshl_b32 s86, s{self.sRB}, 2\ns_add_u32 s86, s86, s{self.sWV}\ns_mul_i32 s3, s86, s7\ns_mul_i32 s4, s86, 0xa80")
        I(f"s_lshl_b32 s86, s{self.sRB}, 4\ns_add_u32 s86, s86, s{self.sJ}\ns_lshl_b32 s86, s86, 2\ns_add_u32 s5, s86, s{self.sWV}")
        I(f"s_mul_i32 s6, s{self.sSAB}, {f0}")

        def lane(l, base, off, stride):
            I(f"s_add_u32 s88, s{base}, {off}\ns_addc_u32 s89, s{base+1}, 0")
            I(f"v_writelane_b32 v{P}, s88, {l}\nv_writelane_b32 v{P+1}, s89, {l}")
            if stride:
                I(f"v_writelane_b32 v{P+2}, {stride}, {l}")
        I(f"s_mul_i32 s86, s5, {2*896}\ns_add_u32 s86, s86, {128*f0}")
        lane(0, self.S_X, "s86", None)
        I("s_add_u32 s86, s86, 0x380")
        lane(1, self.S_X, "s86", None)
        for l, srd, col in ((2, self.S_A, 91), (3, self.S_B, 92)):
            I(f"s_add_u32 s86, s{col}, s3\ns_add_u32 s86, s86, s6")
            lane(l, srd, "s86", f"s{self.sSAB}")
        I(f"s_add_u32 s86, s93, s4\ns_add_u32 s86, s86, {64*2688*f0}\ns_mov_b32 s87, {64*2688}")
        lane(4, self.S_C, "s86", "s87")
        I("s_add_u32 s86, s90, s3")
        lane(5, self.S_A, "s86", f"s{self.sSAB}")
        I(f"s_cmp_lg_u32 s{self.sISV}, 0\ns_cselect_b32 s86, s90, s94\ns_add_u32 s86, s86, s3")
        lane(6, self.S_B, "s86", f"s{self.sSAB}")
        I(f"s_mul_i32 s86, s5, 49\ns_lshr_b32 s6, s86, 4\ns_lshr_b32 s86, s86, 2\ns_min_u32 s86, s86, {12544-14}\ns_lshl_b32 s86, s86, 7\ns_movk_i32 s87, 0x100")
        lane(7, self.S_WD, "s86", "s87")
        I("s_add_u32 s86, s86, 0x80")
        lane(8, self.S_WD, "s86", "s87")
        I(f"s_min_u32 s86, s6, {3136-7}\ns_lshl_b32 s86, s86, 7")
        lane(9, self.S_WO, "s86", None)

    def pf2(self, k):
        I = self.I
        P = self.vPF
        mask = (0x1f if self.o.pf0 + k <= 6 else 0) | (0x3e0 if k <= 6 else 0)
        I(f"s_mov_b64 exec, {hex(mask)}")
        I(f"global_load_dword v{self.vT+12}, v[{P}:{P+1}], off", "pf")
        self.b.vm[-1] = (set(), "pf")
        I(f"s_mov_b64 exec, -1")
        if k < 6:
            I(f"v_add_co_u32 v{P}, vcc, v{P+2}, v{P}\nv_addc_co_u32 v{P+1}, vcc, 0, v{P+1}, vcc")

    def pf_batch(self, when):
        for w, s0, s1, pb, fin in self.o.pfs:
            if w != when or self.o.coop != 1:
                continue
            mx = sum(3 << (2 * s_) for s_ in range(s0, s1))
            mw = sum(1 << (2 * s_) for s_ in range(s0, s1)) | sum(2 << (2 * s_) for s_ in range(7 if pb == 1 else pb))
            P = self.vPF
            if mx:
                self.I(f"s_mov_b64 exec, {hex(mx)}")
                self.pf(P, self.S_X, "0")
            if mw:
                self.I(f"s_mov_b64 exec, {hex(mw)}")
                self.pf(P + 1, self.S_A, "0")
                self.pf(P + 2, self.S_B, "0")
                self.pf(P + 3, self.S_C, "0")
            if fin:
                self.I("s_mov_b64 exec, 0x1fff")
                self.pf(P + 4, self.S_WD, "0")
                self.I("s_mov_b64 exec, 0xf")
                self.pf(P + 5, self.S_WO, "0")
            self.I("s_mov_b64 exec, -1")

    def record(self, fn):
        L = []
        real = self.I
        self.I = lambda t, tag=None: L.append(lambda: real(t, tag))
        fn()
        del self.I
        return L

    def dma_stageA(self, st):
        I = self.I
        base = (st % 4) * SLOT
        tag = f"st{st}"
        L = []
        L.append(lambda: I(f"s_add_u32 m0, s{self.sM0}, {base}"))
        for bq in range(4):
            L.append(lambda bq=bq: I(f"buffer_load_dwordx4 v{self.vXD+bq}, s[{self.S_X}:{self.S_X+3}], s{self.sX} offen offset:{1024*bq} lds", tag))
        prev = lambda: I(f"s_add_u32 s{self.sX}, s{self.sX}, 0x80")
        for seg, (srd, so, stp) in enumerate(((self.S_A, self.sA, self.sSAB), (self.S_B, self.sB, self.sSAB), (self.S_C, self.sC, None))):
            L.append(lambda seg=seg: I(f"s_add_u32 m0, s{self.sM0}, {base + 4096 + 2048*seg}"))
            L.append(prev)
            for e in range(2):
                L.append(lambda seg=seg, e=e, srd=srd, so=so: I(f"buffer_load_dwordx4 v{self.vWD+2*seg+e}, s[{srd}:{srd+3}], s{so} offen offset:{1024*e} lds", tag))
            prev = lambda so=so, stp=stp: I(f"s_add_u32 s{so}, s{so}, " + (f"s{stp}" if stp else str(64*2688)))
        L.append(prev)
        return L

    def dma_stageB(self, t):
        I = self.I
        base = PB_BASE[t]
        tag = f"st{7+t}"
        L = []
        prev = None
        if t == 0:
            prev = lambda: I(f"s_cmp_lg_u32 s{self.sISV}, 0\ns_cselect_b32 s{self.S_B+2}, 0, s{self.S_B+2}")
        for seg, (srd, so) in enumerate(((self.S_A, self.sA2), (self.S_B, self.sB2))):
            L.append(lambda seg=seg: I(f"s_add_u32 m0, s{self.sM0B}, {base + 2048*seg}"))
            if prev:
                L.append(prev)
            for e in range(2):
                L.append(lambda seg=seg, e=e, srd=srd, so=so: I(f"buffer_load_dwordx4 v{self.vWD+2*seg+e}, s[{srd}:{srd+3}], s{so} offen offset:{1024*e} lds", tag))
            prev = lambda so=so: I(f"s_add_u32 s{so}, s{so}, s{self.sSAB}")
        L.append(prev)
        return L

    def rd_w(self, bufset, slot_t, addr_t, const):
        out = []
        r = self.wf(bufset, slot_t)
        for e in range(2):
            v, imm = self.lds(self.vWR, 3, addr_t, const + 512 * e)
            out.append(lambda r=r, e=e, v=v, imm=imm: self.I(f"ds_read_b64_tr_b16 a[{r+2*e}:{r+2*e+1}], {v} offset:{imm}"))
        return out

    def rd_x(self, M, n):
        st, ks = divmod(n, 4)
        v, imm = self.lds(self.vXR, 4, ks, (st % 4) * SLOT + M * CHUNK)
        return [lambda: self.I(f"ds_read_b128 {self.xf(M, n)}, {v} offset:{imm}")]

    def readsA(self, n):
        st, ks = divmod(n, 4)
        c = (st % 4) * SLOT + ks * CHUNK + 4096
        bs = n % 2
        return [self.rd_w(bs, 0, 0, c), self.rd_x(0, n) + self.rd_x(1, n), self.rd_w(bs, 1, 1, c), self.rd_w(bs, 2, 2, c)]

    def readsB(self, n):
        t, ks = divmod(n, 4)
        c = PB_BASE[t] + ks * 4096
        bs = n % 2
        return [self.rd_w(bs, 1, 1, c), self.rd_w(bs, 2, 2, c)]

    def mfma(self, d, a, bb, first):
        c = "0" if first else f"v[{d}:{d+15}]"
        self.I(f"v_mfma_f32_32x32x16_bf16 v[{d}:{d+15}], {a}, {bb}, {c}")

    def dbg_load(self, tag=None):
        self.I(f"global_load_dword v{self.vPOLL}, v{self.vZ}, s[{self.pDBG}:{self.pDBG+1}] sc1", tag)

    def pf(self, v, srd, so):
        self.I(f"buffer_load_dword v{self.vT+12}, v{v}, s[{srd}:{srd+3}], {so} offen", "pf")
        self.b.vm[-1] = (set(), "pf")

    def passA(self):
        I, b, o = self.I, self.b, self.o
        b.wait_tags(("st0",))
        self.ts()
        if o.thr:
            I(f"s_getreg_b32 s86, hwreg(HW_REG_XCC_ID, 0, 4)\ns_and_b32 s87, s2, 7\ns_cmp_lg_u32 s86, s87\ns_cbranch_scc0 L_xok")
            kv = list(b.vm)
            I(f"v_mov_b32 v34, 1\nglobal_store_dword v{self.vZ}, v34, s[{self.pDBG}:{self.pDBG+1}] offset:128 sc1")
            b.vm = kv
            b.label("L_xok")
        I(f"s_or_b32 s86, s2, s{self.sWV}\ns_cmp_eq_u32 s86, 0\ns_cbranch_scc0 L_notag")
        snap_vm = list(b.vm)
        I(f"v_add_u32 v34, 2, v{self.vPOLL}\nv_or_b32 v34, 1, v34\ns_mov_b32 s86, {E_OFF}")
        if o.thr:
            I(f"v_readfirstlane_b32 s87, v{self.vPOLL}\ns_sub_u32 s88, s98, s87\ns_cmp_lt_u32 s88, 0x8000000\ns_cselect_b32 s88, 1, 0")
            I(f"s_cmp_eq_u32 s87, 0xfbfbfbfb\ns_cselect_b32 s89, {o.thrpat}, {1 - o.thrpat} ^ 1 ^ 1\ns_or_b32 s88, s88, s89\nv_mov_b32 v35, s88".replace(f"{1 - o.thrpat} ^ 1 ^ 1", str(1 - o.thrpat)))
            I(f"global_store_dword v{self.vZ}, v35, s[{self.pDBG}:{self.pDBG+1}] offset:132 sc1")
            I("v_mov_b32 v34, s98\nv_or_b32 v34, 1, v34")
        I(f"s_mov_b64 exec, 1")
        I(f"buffer_store_dword v34, v{self.vZ}, s[{self.S_WS}:{self.S_WS+3}], s86 offen sc1")
        I(f"global_store_dword v{self.vZ}, v34, s[{self.pDBG}:{self.pDBG+1}] sc1")
        I(f"s_mov_b64 exec, -1")
        b.vm = [(set(), t) if t == "E" else (d, t) for d, t in snap_vm]
        b.label("L_notag")
        I("s_barrier")
        for grp in self.readsA(0):
            for f in grp:
                f()
        def stream(v):
            if v <= 6:
                return self.dma_stageA(v)
            if v == 7:
                return self.dma_stageB(0) + self.dma_stageB(1)
            if v == 8:
                return self.dma_stageB(2) + self.dma_stageB(3)
            return []
        mf, fixed, pre = [], {}, {}
        vm_items, early = [], {}
        for n in range(28):
            st, ks = divmod(n, 4)
            g0 = 6 * n
            for t in range(3):
                for M in range(2):
                    r = self.wf(n % 2, t)
                    mf.append(self.mtext(self.acc(self.ACC_A, t, M), f"a[{r}:{r+3}]", self.xf(M, n), n == 0))
            if ks == 3:
                def bar(st=st):
                    tags = (f"st{st+1}",) if st < 6 else ("st7", "st8")
                    b.wait_tags(tags, lg_all=True)
                    I("s_barrier")
                fixed.setdefault(g0, []).append(bar)
            for i, grp in enumerate(self.readsA(n + 1) if n < 27 else self.readsB(0)):
                fixed.setdefault(g0 + i, []).extend(grp)
            if o.wA and n > 0:
                pre[g0] = [lambda: b.waitcnt(lg=4)]
                pre[g0 + 2] = [lambda: b.waitcnt(lg=4)]
            if n in o.As:
                pre.setdefault(g0, []).insert(0, self.ts)
            if ks == 0:
                early[len(vm_items)] = g0
                vm_items += stream(st + o.lead)
            if any(p[0] == 10 + n for p in o.pfs):
                fixed.setdefault(g0 + 4, []).append(lambda n=n: self.pf_batch(10 + n))
            if o.coop == 2 and n >= o.pft0 and (n - o.pft0) % o.pfdt == 0 and o.pfn0 + (n - o.pft0) // o.pfdt <= 6:
                fixed.setdefault(g0 + 4, []).append(lambda k=o.pfn0 + (n - o.pft0) // o.pfdt: self.pf2(k))
            if n == o.tagn:
                fixed.setdefault(g0 + 5, []).append(lambda: self.dbg_load("tagrd"))
        self.ablate("A")
        self.sched(mf, fixed, [Stream(vm_items, 0, 164, ahead=2, maxlag=3, early=early, prio=1),
                               Stream(self.setup, 0, 160, ahead=3, maxlag=4)], pre=pre)
        b.drop = ()
        I(f"s_cmp_lg_u32 s{self.sFIN}, 0\ns_cselect_b32 s{self.S_WD+2}, s{self.S_WD+2}, 0\ns_cselect_b32 s{self.S_WO+2}, s{self.S_WO+2}, 0")
        rest = []
        for v in range(7 + o.lead, 9):
            rest += stream(v)
        self.pend = rest + self.dma_stageB(4) + self.dma_stageB(5) + self.dma_stageB(6)

    def get_tag(self):
        I, b = self.I, self.b
        u = self.uid()
        I(f"v_readfirstlane_b32 s{self.sTAG}, v{self.vPOLL}")
        I(f"s_cmp_lg_u32 s{self.sTAG}, 0\ns_cbranch_scc1 L_gottag{u}")
        keep_vm, keep_lg = list(b.vm), list(b.lg)
        I(f"s_mov_b32 s{self.sSPIN}, 0")
        b.label(f"L_tagspin{u}")
        self.dbg_load()
        I(f"s_add_u32 s{self.sSPIN}, s{self.sSPIN}, 1\ns_cmp_gt_u32 s{self.sSPIN}, {SPIN_MAX}\ns_cbranch_scc1 L_exit")
        I(f"v_readfirstlane_b32 s{self.sTAG}, v{self.vPOLL}")
        I(f"s_cmp_lg_u32 s{self.sTAG}, 0\ns_cbranch_scc0 L_tagspin{u}")
        b.vm, b.lg = keep_vm, keep_lg
        b.label(f"L_gottag{u}")

    def cvt_store(self, r, so, imm, tag, voff=None):
        L = []
        for i in range(4):
            L.append(lambda i=i: self.I(f"v_cvt_pk_bf16_f32 v{r+i}, v{r+2*i}, v{r+2*i+1}"))
        v = self.vL16 if voff is None else voff
        L.append(lambda: self.I(f"buffer_store_dwordx4 v[{r}:{r+3}], v{v}, s[{self.S_WS}:{self.S_WS+3}], s{so} offen offset:{imm} sc1", tag))
        return L

    def sigmoid_tile(self, r, so, imm, tag, pk):
        I = self.I
        L = []
        if pk:
            for i in range(0, 8, 2):
                L.append(lambda i=i: I(f"v_pk_mul_f32 v[{r+i}:{r+i+1}], v[{r+i}:{r+i+1}], s[{self.sNL2E}:{self.sNL2E+1}] op_sel_hi:[1,0]"))
        else:
            for i in range(8):
                L.append(lambda i=i: I(f"v_mul_f32 v{r+i}, s{self.sNL2E}, v{r+i}"))
        for i in range(8):
            L.append(lambda i=i: I(f"v_exp_f32 v{r+i}, v{r+i}"))
        if pk:
            for i in range(0, 8, 2):
                L.append(lambda i=i: I(f"v_pk_add_f32 v[{r+i}:{r+i+1}], v[{r+i}:{r+i+1}], 1.0 op_sel_hi:[1,0]"))
        else:
            for i in range(8):
                L.append(lambda i=i: I(f"v_add_f32 v{r+i}, 1.0, v{r+i}"))
        for i in range(8):
            L.append(lambda i=i: I(f"v_rcp_f32 v{r+i}, v{r+i}"))
        if pk:
            for i in range(0, 8, 2):
                L.append(lambda i=i: I(f"v_pk_mul_f32 v[{r+i}:{r+i+1}], v[{r+i}:{r+i+1}], v[{r+8+i}:{r+9+i}]"))
        else:
            for i in range(8):
                L.append(lambda i=i: I(f"v_mul_f32 v{r+i}, v{r+i}, v{r+8+i}"))
        return L + self.cvt_store(r, so, imm, tag)

    def flag_store(self, phase):
        I = self.I
        lab = f"L_nofl{self.uid()}"
        I(f"s_cmp_eq_u32 s{self.sWV}, 0\ns_cbranch_scc0 {lab}")
        keep = list(self.b.vm)
        I(f"v_mov_b32 v{self.vT}, s{self.sTAG}\ns_mov_b64 exec, 1")
        I(f"s_movk_i32 s86, {4096*phase}")
        I(f"buffer_store_dword v{self.vT}, v{self.vFL}, s[{self.S_WS}:{self.S_WS+3}], s86 offen sc1")
        I("s_mov_b64 exec, -1")
        self.b.vm = keep
        self.b.label(lab)

    _uid = 0

    def uid(self):
        self._uid += 1
        return self._uid

    @staticmethod
    def weave(main, side, start=0.0, end=1.0):
        out = []
        n = len(main)
        a, e = int(start * n), max(int(end * n), int(start * n) + 1)
        k = 0
        for i, f in enumerate(main):
            out.append(f)
            if i >= a:
                want = min(len(side), math.ceil(len(side) * (i - a + 1) / (e - a)))
                while k < want:
                    out.append(side[k]); k += 1
        out += side[k:]
        return out

    def passB_GU(self):
        I, b, o = self.I, self.b, self.o
        qk, epi = [], []
        for M, so in ((0, self.sQ0), (1, self.sQ1)):
            r = self.acc(self.ACC_A, 0, M)
            qk += self.cvt_store(r, so, 0, "qk") + self.cvt_store(r + 8, so, 1024, "qk")
        hst = []
        for t in (1, 2):
            for M, so in ((0, self.sH0), (1, self.sH1)):
                tl = self.sigmoid_tile(self.acc(self.ACC_A, t, M), so, 1024 * (t - 1), "h", o.pkB)
                epi += tl[:-1]
                hst.append(tl[-1])
        epi = qk + epi + self.att_masks()
        mf, fixed, pre = [], {}, {}
        vm, early = list(self.pend), {}
        for k in range(len(vm)):
            early[k] = int(o.p0 + k * o.ppace)

        def add(items, gap):
            early[len(vm)] = gap
            vm.extend(items)
        for s_ in range(8):
            add(self.fin_dma(s_), int(4 * (o.w0 + s_ * o.wpace) + 1))
        late = []
        for s_ in range(8, 8 + o.nB2):
            late.append((int(4 * (o.w0 + (s_ - 8) * o.wpace + o.wlat + 1.5)), self.fin_dma(s_)))
        rds, rearly = [], {}
        for s_ in range(8):
            rearly[len(rds)] = int(4 * (o.w0 + s_ * o.wpace + o.wlat))
            rds += self.fin_rdw(s_)
        late.append((4 * o.kpoll + 2, [lambda: self.poll_issue(self.vAP, self.vPOLL)]))
        late.append((4 * o.kchk, [lambda: self.poll_check(self.vAP, self.vPOLL, self.sMSK)] + self.record(self.att_loads_K)
                     + [lambda: self.poll_issue(self.vAP, self.vPOLL)]))
        for gap, items in sorted(late, key=lambda x: x[0]):
            add(items, gap)
        for n in range(28):
            g0 = 4 * n
            for t in range(2):
                for M in range(2):
                    r = self.wf(n % 2, t + 1)
                    mf.append(self.mtext(self.acc(self.ACC_B, t, M), f"a[{r}:{r+3}]", self.xf(M, n), n == 0))
            fx = fixed.setdefault(g0, [])
            if n in o.bs:
                pre.setdefault(g0, []).append(self.ts)
            if n == 7:
                fx.append(lambda: (b.wait_tags(("st9", "st10"), lg_all=True), I("s_barrier")))
            if n == o.fl0 and n != 15:
                fx.append(lambda: (b.wait_tags(("qk",)), I("s_barrier"), self.flag_store(0)))
            if n == 15:
                def bar():
                    b.wait_tags(("st11", "st12", "st13", "qk"), lg_all=True)
                    I("s_barrier")
                    if o.fl0 == 15:
                        self.flag_store(0)
                fx.append(bar)
            if n < 27:
                nx = self.readsB(n + 1)
                fx += nx[0]
                fixed.setdefault(g0 + o.rB, []).extend(nx[1])
            if n == 3:
                fixed.setdefault(g0 + 3, []).append(self.get_tag)
        self.ablate("B")
        self.sched(mf, fixed, [Stream(vm, 0, 110, ahead=100, maxlag=100, early=early, prio=1, starve=2),
                               Stream(rds, 4 * (o.w0 + o.wlat), 110, ahead=4, maxlag=4, early=rearly),
                               Stream(epi, 3, 4 * o.epi_end - 1, ahead=o.epi_ahead, maxlag=4)], pre=pre)
        b.drop = ()
        self.ts()
        T = []
        for t in (0, 1):
            for M, so in ((0, self.sH0), (1, self.sH1)):
                T.append(self.sigmoid_tile(self.acc(self.ACC_B, t, M), so, 1024 * t, "h", o.pk))
        bump = lambda: I(f"s_add_u32 s{self.sH0}, s{self.sH0}, 0x1000\ns_add_u32 s{self.sH1}, s{self.sH1}, 0x1000")
        self.postB([T[0][:-1], T[1][:-1], T[2], T[3]], hst[:3] + [lambda: (hst[3](), bump())] + [T[0][-1], T[1][-1]])

    NRD = 8

    def postB(self, T, hst):
        I, b, o = self.I, self.b, self.o
        KF = self.KF
        rd = lambda a, e: [f for s_ in range(a, e) for f in self.fin_rdw(s_)]
        dm = lambda a, e: [f for s_ in range(a, e) for f in self.fin_dma(s_)]
        d0 = 8 + o.nB2
        for f in self.weave(T[0] + T[1], dm(d0, d0 + o.nb0), 0.05, 0.9):
            f()
        self.poll_check(self.vAP, self.vPOLL, self.sMSK2)
        self.att_loads_V()
        self.ts()
        b.wait_tags(("K",))
        I(f"ds_write_b64 v{self.vP+6}, v[{self.vP}:{self.vP+1}]")
        I(f"ds_write_b64 v{self.vP+7}, v[{self.vP+2}:{self.vP+3}] offset:4096")
        q = self.vQ
        I(f"v_bfi_b32 v{q}, v{self.vMA}, v{q}, v{self.vP+4}\nv_and_b32 v{q+1}, v{self.vMA}, v{q+1}")
        I(f"v_bfi_b32 v{q+6}, v{self.vMB}, v{q+6}, v{self.vP+4}\nv_and_b32 v{q+7}, v{self.vMB}, v{q+7}")
        b.waitcnt(lg=0)
        I("s_barrier")
        self.ts()
        order = [8, 0, 7, 6, 5, 4, 3, 2, 1]

        def rdk(n):
            for s_ in range(2):
                r = KF + (n % 3) * 8 + 4 * s_
                I(f"ds_read_b128 v[{r}:{r+3}], v{self.vKA} offset:{2048*order[n] + 1024*s_}")
        rdk(0)
        rdk(1)
        m = self.vM
        mx = []

        def maxops(n):
            s0 = self.S(order[n])
            return [(lambda k=k: I(f"v_max_f32 v{m}, v{s0}, v{s0+1}" if (n == 0 and k == 0) else f"v_max3_f32 v{m}, v{m}, v{s0+k}, v{s0+k+1}")) for k in range(0, 16, 2)]
        vs = list(T[2][:-1]) + list(T[3][:-1])
        KH = 13
        bg = dm(d0 + o.nb0, d0 + o.nb0 + o.nbq)
        self.bg_rest = d0 + o.nb0 + o.nbq
        self.nold = d0 + o.nb0
        for k in range(18):
            n, half = divmod(k, 2)
            d = self.S(order[n])
            r = KF + (n % 3) * 8 + 4 * half
            c = f"v[{d}:{d+15}]" if (half or order[n] in (0, 8)) else "0"
            if order[n] == 1:
                assert not vs
            if half == 0 and 1 <= n <= 6 and hst:
                hst[n - 1]()
            I(f"v_mfma_f32_32x32x16_bf16 v[{d}:{d+15}], v[{r}:{r+3}], v[{q+4*half}:{q+4*half+3}], {c}")
            if half == 0 and n + 2 < 9:
                rdk(n + 2)
            if half == 1 and n >= 1:
                mx += maxops(n - 1)
            nv = math.ceil(len(vs) / (KH - k + 1)) if k <= KH else 0
            for _ in range(nv):
                vs.pop(0)()
            if k == KH and T[2]:
                T[2][-1]()
            if k == KH + 2:
                T[3][-1]()
            for _ in range(math.ceil(len(bg) / (18 - k))):
                bg.pop(0)()
            for _ in range(max(0, 5 - nv) if k < 17 else len(mx)):
                if mx:
                    mx.pop(0)()
        self.mx_rest = maxops(8)

    def passB_V(self):
        I, b, o = self.I, self.b, self.o
        b.drop = (lambda i: i.kind == "vmem" and f"s[{self.S_B}:{self.S_B+3}]" in i.text,)
        for f in list(self.pend):
            f()
        b.drop = ()
        self.srd(self.S_C, f"s{self.pGW}", f"s{self.pGW+1}", 896)
        I(f"s_add_u32 m0, s{self.sM0B}, {GW_LDS}")
        I(f"buffer_load_dwordx4 v{self.vL16}, s[{self.S_C}:{self.S_C+3}], 0 offen lds", "gw")
        I(f"s_sub_u32 s{self.sT1}, s{self.sQ0}, 0x2000\ns_sub_u32 s{self.sT2}, s{self.sQ1}, 0x2000")
        I(f"v_add_u32 v{self.vT+2}, 0x1000, v{self.vL16}")
        self.get_tag()
        epi = []
        for M, so in ((0, self.sQ0), (1, self.sQ1)):
            r = self.acc(self.ACC_A, 0, M)
            epi += self.cvt_store(r, so, 0, "qk") + self.cvt_store(r + 8, so, 1024, "qk")
        for t in (1, 2):
            for M, so in ((0, self.sT1), (1, self.sT2)):
                r = self.acc(self.ACC_A, t, M)
                epi += self.cvt_store(r, so, 1024 * (t - 1), "qk") + self.cvt_store(r + 8, so, 1024 * (t - 1), "qk", voff=self.vT + 2)
        I(f"s_and_b32 s88, s{self.sWV}, 1\ns_sub_u32 s89, s{self.sJ}, 14\ns_xor_b32 s88, s88, s89\ns_lshl_b32 s88, s88, 6")
        for st in range(3):
            I(f"v_xor_b32 v{self.vWR+3*st}, s88, v{self.vWR+3*st}\nv_subrev_u32 v{self.vWR+3*st}, 0x1000, v{self.vWR+3*st}")
        I(f"s_lshl_b32 s88, s{self.sRB}, 2\ns_add_u32 s88, s88, s{self.sWV}")
        I(f"s_mul_i32 s88, s88, {QKV_MT}\ns_lshl_b32 s89, s89, 11\ns_add_u32 s88, s88, s89")
        I(f"s_add_u32 s{self.sT3}, s88, {8*17*512}")
        I(f"v_lshrrev_b32 v{self.vT+3}, 5, v0\nv_lshlrev_b32 v{self.vT+3}, 4, v{self.vT+3}")
        I(f"s_add_u32 s88, s{self.sM0B}, {GW_LDS}\nv_add_u32 v{self.vT+3}, s88, v{self.vT+3}")
        I(f"v_and_b32 v{self.vT+4}, 31, v0\nv_lshlrev_b32 v{self.vT+4}, 2, v{self.vT+4}")
        D = self.ACC_B
        I(f"s_bitcmp1_b32 s{self.sWV}, 0\ns_cbranch_scc1 L_v_wc1")
        snap = b.snapshot()
        for wc in range(2):
            if wc == 1:
                b.label("L_v_wc1")
                b.restore(snap)
            e = list(epi)

            def rdv(n):
                t, ks = divmod(n, 4)
                r = self.WF + 4 * (n % 8)
                for e_ in range(2):
                    v, imm = self.lds(self.vWR, 3, 0, PB_BASE[t] + ks * 4096 + 512 * e_)
                    I(f"ds_read_b64_tr_b16 a[{r+2*e_}:{r+2*e_+1}], {v} offset:{imm}")
            PD = 5
            b.waitcnt(lg=0)
            for n in range(PD):
                rdv(n)
            for n in range(28):
                if n + PD == 8:
                    b.wait_tags(("st9", "st10"), lg_all=True)
                    I("s_barrier")
                if n + PD == 16:
                    b.wait_tags(("st11", "st12", "st13"))
                    I("s_barrier")
                if n + PD < 28:
                    rdv(n + PD)
                r = self.WF + 4 * (n % 8)
                self.mfma(D, f"a[{r}:{r+3}]", self.xf(wc, n), n == 0)
                for _ in range(3):
                    if e:
                        e.pop(0)()
            assert not e
            for f in self.cvt_store(D, self.sT3, 0, "qk") + self.cvt_store(D + 8, self.sT3, 1024, "qk"):
                f()
            if o.vs:
                nts_keep = self.nts
                self.ts()
                self.nts = nts_keep + (1 if wc == 1 else 0)
            b.wait_tags(("gw",))
            rdg = lambda n: I(f"ds_read_b128 a[{self.WF+4*(n%8)}:{self.WF+4*(n%8)+3}], v{self.vT+3} offset:{32*n}")
            for n in range(PD):
                rdg(n)
            mk = self.att_masks()
            for n in range(28):
                if n + PD < 28:
                    rdg(n + PD)
                r = self.WF + 4 * (n % 8)
                self.mfma(D + 16, f"a[{r}:{r+3}]", self.xf(wc, n), n == 0)
                for _ in range(3):
                    if mk:
                        mk.pop(0)()
            assert not mk
            I(f"v_mov_b32 v{self.vT+5}, v{D+16}")
            if wc == 0:
                I("s_branch L_v_done")
        b.label("L_v_done")
        b.wait_tags(("qk",), lg_all=True)
        I("s_barrier")
        self.flag_store(0)
        if o.vs:
            self.ts()
        for s_ in range(8):
            for f in self.fin_dma(s_):
                f()
        self.poll_issue(self.vAP, self.vPOLL)
        for s_ in range(8):
            for f in self.fin_rdw(s_):
                f()
        for s_ in range(8, 8 + o.nB2):
            for f in self.fin_dma(s_):
                f()
        self.poll_check(self.vAP, self.vPOLL, self.sMSK)
        self.att_loads_K()
        self.poll_issue(self.vAP, self.vPOLL)
        for _ in o.bs[(2 if o.vs else 0):]:
            self.ts()
        self.ts()
        self.postB([[], [], [], [lambda: I(f"buffer_store_dword v{self.vT+5}, v{self.vT+4}, s[{self.S_WS}:{self.S_WS+3}], s{self.sZO} offen sc1", "h")]], [])

    def poll_setup_att(self):
        I = self.I
        v, t = self.vAP, self.vT
        I(f"v_lshrrev_b32 v{v}, 4, v0\nv_add_u32 v{v}, s{self.sRB}, v{v}\nv_subrev_u32 v{v}, 2, v{v}\nv_max_i32 v{v}, 0, v{v}")
        I(f"v_min_u32 v{v}, 15, v{v}\nv_lshlrev_b32 v{v}, 8, v{v}\nv_and_b32 v{t}, 15, v0\nv_lshl_add_u32 v{v}, v{t}, 2, v{v}")
        I(f"v_add_u32 v{v}, {FL_OFF}, v{v}")
        I(f"s_mul_i32 s86, s{self.sJ}, 28\ns_add_u32 s87, s86, 27\ns_lshr_b32 s86, s86, 6\ns_lshr_b32 s87, s87, 6")
        I("s_lshl_b32 s88, 1, s86\ns_lshl_b32 s89, 1, s87\ns_or_b32 s88, s88, s89")
        I("s_lshl_b32 s89, s88, 7")
        I(f"s_mul_i32 s{self.sMSK}, s89, 0x10001\ns_or_b32 s{self.sMSK+1}, s88, s89")
        I("s_cmp_le_u32 s86, 3\ns_cselect_b32 s90, 0x4000, 0\ns_cmp_ge_u32 s87, 3\ns_cselect_b32 s91, 0x8000, 0\ns_or_b32 s90, s90, s91")
        I(f"s_mul_i32 s{self.sMSK2}, s90, 0x10001\ns_mov_b32 s{self.sMSK2+1}, s90")

    def poll_issue(self, vaddr, vdst, soff="0"):
        self.I(f"buffer_load_dword v{vdst}, v{vaddr}, s[{self.S_WS}:{self.S_WS+3}], {soff} offen sc1", "poll")

    def poll_check(self, vaddr, vdst, smask, soff="0"):
        I, b = self.I, self.b
        u = self.uid()
        I(f"v_cmp_ne_u32 vcc, s{self.sTAG}, v{vdst}")
        I(f"s_and_b64 vcc, vcc, s[{smask}:{smask+1}]\ns_cbranch_scc0 L_pok{u}")
        keep_vm, keep_lg = list(b.vm), list(b.lg)
        I(f"s_mov_b32 s{self.sSPIN}, 0")
        b.label(f"L_psp{u}")
        I(f"buffer_load_dword v{vdst}, v{vaddr}, s[{self.S_WS}:{self.S_WS+3}], {soff} offen sc1")
        I(f"s_add_u32 s{self.sSPIN}, s{self.sSPIN}, 1\ns_cmp_gt_u32 s{self.sSPIN}, {SPIN_MAX}\ns_cbranch_scc1 L_exit")
        I(f"v_cmp_ne_u32 vcc, s{self.sTAG}, v{vdst}")
        I(f"s_and_b64 vcc, vcc, s[{smask}:{smask+1}]\ns_cbranch_scc1 L_psp{u}")
        b.vm, b.lg = keep_vm, keep_lg
        b.label(f"L_pok{u}")

    def S(self, i):
        return self.SREG[i]

    def att_setup(self):
        I = self.I
        h = self.sJ
        I(f"s_and_b32 s86, s{h}, 1\ns_sub_u32 s{self.sPAR}, 0, s86\ns_mov_b32 s{self.sPAR+1}, s{self.sPAR}")
        I(f"s_mul_i32 s87, s{h}, 7\ns_lshr_b32 s87, s87, 1\ns_lshl_b32 s87, s87, 9")
        I(f"s_lshl_b32 s88, s{self.sRB}, 2\ns_mul_i32 s89, s{self.sWV}, 3\ns_add_u32 s89, s89, s88\ns_sub_u32 s89, s89, 8")
        for i in range(3):
            I(f"s_add_u32 s90, s89, {i}\ns_max_i32 s90, s90, 0\ns_mul_i32 s90, s90, {QKV_MT}\ns_add_u32 s90, s90, s87")
            I(f"s_add_u32 s{self.sKT+i}, s90, {56*512}")
        v = self.vT
        I(f"v_lshrrev_b32 v{v}, 5, v0\nv_add_u32 v{v+1}, s89, v{v}\nv_mov_b32 v{v+2}, 0xf149")
        I(f"v_cmp_gt_i32 vcc, 0, v{v+1}\nv_cndmask_b32 v{self.vP}, 0, v{v+2}, vcc\nv_mov_b32 v{self.vP+1}, 0")
        I(f"s_add_u32 s90, s89, 2\ns_cmp_lt_i32 s90, 0\ns_cselect_b32 s90, 0xf149, 0\nv_mov_b32 v{self.vP+2}, s90\nv_mov_b32 v{self.vP+3}, 0")
        I(f"v_mov_b32 v{self.vP+4}, 0x3f80\nv_mov_b32 v{self.vP+5}, 0")
        I(f"s_cmp_eq_u32 s86, 0\ns_cselect_b32 s90, {1536+8}, 0\ns_mul_i32 s91, s{self.sWV}, {3*2048}\ns_add_u32 s90, s90, s91\ns_add_u32 s90, s90, {KV_K}")
        I(f"v_and_b32 v{v+1}, 31, v0\nv_lshlrev_b32 v{v+1}, 4, v{v+1}\nv_add_u32 v{self.vP+7}, s90, v{v+1}\nv_lshl_add_u32 v{self.vP+6}, v{v}, 11, v{self.vP+7}")
        I(f"v_and_b32 v{v+1}, 31, v0\nv_lshlrev_b32 v{v+2}, 2, v{v}\nv_xor_b32 v{v+1}, v{v+1}, v{v+2}\nv_lshlrev_b32 v{v+1}, 4, v{v+1}")
        I(f"v_lshl_add_u32 v{self.vP+8}, v{v}, 9, v{v+1}\nv_xor_b32 v{self.vP+9}, 0x80, v{self.vP+8}")
        I(f"s_lshl_b32 s90, s{self.sWV}, 11\ns_add_u32 s91, s90, {KV_K}\nv_add_u32 v{self.vKA}, s91, v{self.vL16}")
        I(f"v_bfe_u32 v{v+1}, v0, 4, 1\nv_bfe_u32 v{v+2}, v0, 1, 1\nv_lshl_add_u32 v{v+1}, v{v+1}, 1, v{v+2}")
        I(f"v_xor_b32 v{v+2}, v{v}, v{v+1}\nv_lshlrev_b32 v{v+2}, 2, v{v+2}\nv_bfe_u32 v{v+3}, v0, 2, 2\nv_add_u32 v{v+2}, v{v+2}, v{v+3}")
        I(f"v_lshlrev_b32 v{v+2}, 4, v{v+2}\nv_lshl_add_u32 v{v+2}, v{v+1}, 9, v{v+2}\nv_and_b32 v{v+3}, 1, v0\nv_lshl_add_u32 v{v+2}, v{v+3}, 3, v{v+2}")
        I(f"s_add_u32 s91, s90, {KV_V}\nv_add_u32 v{self.vVA}, s91, v{v+2}\nv_xor_b32 v{self.vVA+1}, 0x80, v{self.vVA}")
        I(f"v_subrev_u32 v{v+1}, 1, v{v}\nv_and_b32 v{v+1}, s{self.sPAR}, v{v+1}\nv_not_b32 v{self.vMA}, v{v+1}")
        I(f"v_sub_u32 v{v+1}, 0, v{v}\ns_not_b32 s91, s{self.sPAR}\nv_and_b32 v{v+1}, s91, v{v+1}\nv_not_b32 v{self.vMB}, v{v+1}")
        I(f"s_add_u32 s88, s88, s{self.sWV}\ns_mul_i32 s90, s88, {QKV_MT}\ns_add_u32 s{self.sQO}, s90, s87")
        I(f"s_mul_i32 s90, s88, {HO_MT}\ns_lshl_b32 s91, s{h}, 11\ns_add_u32 s90, s90, s91\ns_add_u32 s{self.sOO}, s90, {HO_OFF + 112*1024}")
        I(f"s_lshl_b32 s90, s88, 7\ns_add_u32 s{self.sZO}, s90, {Z_OFF}")
        m = self.vM
        I(f"v_lshlrev_b32 v{m}, 2, v{v}\nv_and_b32 v{m+1}, 31, v0\nv_sub_u32 v{m}, v{m+1}, v{m}\nv_mov_b32 v{m+1}, {NEG}")

    def att_masks(self):
        L = []
        v = self.vM
        pair = lambda r: f"s[{88+2*(r&1)}:{89+2*(r&1)}]"
        def cmp_(r):
            key = 8 * (r >> 2) + (r & 3)
            return lambda: self.I(f"v_cmp_gt_i32 {pair(r)}, {key}, v{v}")
        L.append(cmp_(0))
        for r in range(16):
            if r < 15:
                L.append(cmp_(r + 1))
            if r > 0:
                L.append(lambda r=r: self.I(f"v_sub_f32 v{self.S(0)+r-1}, v{v+1}, v{self.S(8)+r-1}"))
            L.append(lambda r=r: self.I(f"v_cndmask_b32 v{self.S(8)+r}, 0, v{v+1}, {pair(r)}"))
        L.append(lambda: self.I(f"v_sub_f32 v{self.S(0)+15}, v{v+1}, v{self.S(8)+15}"))
        return L

    def att_loads_K(self):
        I = self.I
        ws = f"s[{self.S_WS}:{self.S_WS+3}]"
        I(f"s_mul_i32 s86, s{self.sWV}, {3*2048}")
        for i in range(3):
            I(f"s_add_u32 m0, s86, {KV_K + 2048*i}")
            if i < 2:
                I(f"buffer_load_dwordx4 v[{self.vQ+4*i}:{self.vQ+4*i+3}], v{self.vL16}, {ws}, s{self.sQO} offen offset:{1024*i} sc1", "K")
            for e in range(2):
                I(f"buffer_load_dwordx4 v{self.vL16}, {ws}, s{self.sKT+i} offen offset:{1024*e} sc1 lds", "K")

    def att_loads_V(self):
        I = self.I
        ws = f"s[{self.S_WS}:{self.S_WS+3}]"
        I(f"s_mul_i32 s86, s{self.sWV}, {3*2048}")
        for i in range(3):
            I(f"s_add_u32 m0, s86, {KV_V + 2048*i}\ns_add_u32 s87, s{self.sKT+i}, {56*512}")
            for e in range(2):
                I(f"buffer_load_dwordx4 v{self.vP+8+e}, {ws}, s87 offen offset:{1024*e} sc1 lds", "V")

    def attention(self):
        I, b, o = self.I, self.b, self.o
        KF = self.KF
        m = self.vM
        order = [8, 7, 6, 5, 4, 3, 2, 1, 0]
        b.wait_tags(("V",))
        I(f"ds_write_b64 v{self.vP+6}, v[{self.vP+4}:{self.vP+5}] offset:{KV_V - KV_K}")
        I(f"ds_write_b64 v{self.vP+7}, v[{self.vP+4}:{self.vP+5}] offset:{KV_V - KV_K + 4096}")
        for f in self.mx_rest:
            f()
        b.waitcnt(lg=0)
        I("s_barrier")

        def rdv(i, bs):
            L = []
            for s in range(2):
                for e in range(2):
                    r = KF + bs * 8 + 4 * s + 2 * e
                    L.append(f"ds_read_b64_tr_b16 v[{r}:{r+1}], v{self.vVA+e} offset:{2048*i + 256*s}")
            return L
        for t in rdv(order[0], 0):
            I(t)
        I(f"v_mov_b32 v{m+1}, v{m}")
        I(f"v_permlane32_swap_b32 v{m}, v{m+1}")
        I(f"v_max_f32 v{m}, v{m}, v{m+1}")
        I(f"v_mul_f32 v{m}, s{self.sCS}, v{m}")
        I(f"s_mov_b32 s{self.sMSK}, 0x1ffff\ns_mov_b32 s{self.sMSK+1}, 0")
        self.ts()
        sched = {n: [] for n in range(9)}
        rd = lambda a, e: [f for s in range(a, e) for f in self.fin_rdw(s)]
        dm = lambda a, e: [f for s in range(a, e) for f in self.fin_dma(s)]
        pub = lambda: (b.wait_tags(("h",)), I("s_barrier"), self.flag_store(1))
        nd = self.bg_rest
        nr = 8
        per = math.ceil((28 - nd) / o.dtiles)
        issued = {s_: (-3 if s_ < self.nold else o.rd0 - 2) for s_ in range(nd)}
        for n in range(9):
            k = 0
            while nr < 28 and issued.get(nr, 99) + 2 <= n and (k < o.rdper or n >= 7):
                sched[n] += rd(nr, nr + 1)
                nr += 1
                k += 1
            k = 0
            while nd < 28 and k < per and (self.ring_prev(nd) is None or self.ring_prev(nd) < nr):
                sched[n] += dm(nd, nd + 1)
                issued[nd] = max(n, o.rd0 - 2)
                nd += 1
                k += 1
        assert nd == 28 and nr == 28, (nd, nr)
        hl = [f for s in range(o.nh0) for f in self.fin_hload(s)]
        sched[7] += hl[:len(hl) // 2]
        sched[8] += hl[len(hl) // 2:]
        sched[o.hpub] = sched[o.hpub] + [pub]
        sched[o.hpoll] = sched[o.hpoll] + [lambda: self.poll_issue(self.vFA, self.vPOLL)]
        sched[7] = [self.hook_poll_check] + sched[7]
        O = self.vO
        prev = None
        for n, i in enumerate(order):
            if n in o.ss:
                self.ts()
            d = self.S(i)
            p = self.vP + 8 * (n % 2)
            L = []
            if o.pk:
                for k in range(0, 16, 2):
                    L.append(f"v_pk_fma_f32 v[{d+k}:{d+k+1}], v[{d+k}:{d+k+1}], s[{self.sNL2E}:{self.sCS}], v[{m}:{m+1}] op_sel:[0,1,0] op_sel_hi:[1,1,0] neg_lo:[0,0,1] neg_hi:[0,0,1]")
            else:
                for k in range(16):
                    L.append(f"v_fma_f32 v{d+k}, v{d+k}, s{self.sCS}, -v{m}")
            ex = [f"v_exp_f32 v{d+k}, v{d+k}" for k in range(16)]
            cv = [f"v_cvt_pk_bf16_f32 v{p+k}, v{d+2*k}, v{d+2*k+1}" for k in range(8)]
            seq = L + ex + cv
            vr = rdv(order[n + 1], (n + 1) % 2) if n + 1 < 9 else []
            main = []
            for k, t in enumerate(seq):
                main.append(lambda t=t: I(t))
                if prev is not None and k == 1:
                    main.append(lambda t=prev[0]: I(t))
                if prev is not None and k == 7:
                    main.append(lambda t=prev[1]: I(t))
                if k >= 10 and vr:
                    main.append(lambda t=vr.pop(0): I(t))
            for f in self.weave(main, sched[n], 0.0, 1.0):
                f()
            r = KF + (n % 2) * 8
            prev = (f"v_mfma_f32_32x32x16_bf16 v[{O}:{O+15}], v[{r}:{r+3}], v[{p}:{p+3}], " + ("0" if n == 0 else f"v[{O}:{O+15}]"),
                    f"v_mfma_f32_32x32x16_bf16 v[{O}:{O+15}], v[{r+4}:{r+7}], v[{p+4}:{p+7}], v[{O}:{O+15}]")
        I(prev[0])
        I(prev[1])
        t = self.vQ
        I(f"v_mul_f32 v{t}, s{self.sNL2E}, v{self.vZZ}\nv_exp_f32 v{t}, v{t}")
        z = self.vZZ + 1
        for a in range(2):
            I(f"v_mul_f32 v{z+a}, s{self.sNL2E}, v{z+a}\nv_exp_f32 v{z+a}, -v{z+a}")
        I(f"v_add_f32 v{t}, 1.0, v{t}")
        for a in range(2):
            I(f"v_add_f32 v{z+a}, 1.0, v{z+a}\nv_rcp_f32 v{z+a}, v{z+a}")
        I(f"v_cndmask_b32 v{t+1}, v{O+12}, v{O}, s[{self.sPAR}:{self.sPAR+1}]\nv_mov_b32 v{t+2}, v{t+1}")
        I(f"v_permlane32_swap_b32 v{t+1}, v{t+2}")
        I(f"v_cndmask_b32 v{t+1}, v{t+2}, v{t+1}, s[{self.sPAR}:{self.sPAR+1}]")
        I(f"v_mul_f32 v{t}, v{t}, v{t+1}\nv_rcp_f32 v{t}, v{t}")
        I(f"v_and_b32 v{t+1}, v{self.vMA}, v{t}\nv_and_b32 v{t+2}, v{self.vMB}, v{t}")
        for k in range(16):
            sc = t + 1 if k == 0 else (t + 2 if k == 12 else t)
            I(f"v_mul_f32 v{O+k}, v{O+k}, v{sc}")
        for f in self.cvt_store(O, self.sOO, 0, "o") + self.cvt_store(O + 8, self.sOO, 1024, "o"):
            f()

    def hook_poll_check(self):
        I = self.I
        self.poll_check(self.vFA, self.vPOLL, self.sMSK)
        v = self.vT
        I(f"v_and_b32 v{v}, 31, v0\nv_lshlrev_b32 v{v}, 2, v{v}")
        ws = f"s[{self.S_WS}:{self.S_WS+3}]"
        I(f"buffer_load_dword v{self.vZZ}, v{v}, {ws}, s{self.sZO} offen sc1", "z")
        I(f"buffer_load_dword v{self.vZZ+1}, v{v}, {ws}, s{self.sZF} offen sc1", "z")
        I(f"s_xor_b32 s{self.sZF}, s{self.sZF}, 0x80")
        I(f"buffer_load_dword v{self.vZZ+2}, v{v}, {ws}, s{self.sZF} offen sc1", "z")

    ENTRY = [(1, i) for i in range(8)] * 2 + [(0, i) for i in range(6)] + [(1, i) for i in range(6)] + [(0, i) for i in range(6)] + [(1, 6), (1, 7)]

    def ring_addr(self, step):
        hi, i = self.ENTRY[step]
        return hi, 2048 * i

    def ring_prev(self, step):
        for p in range(step - 1, -1, -1):
            if self.ENTRY[p] == self.ENTRY[step]:
                return p
        return None

    def final_setup(self):
        I = self.I
        v = self.vT
        I("s_lshr_b32 s86, s2, 3\ns_and_b32 s87, s2, 7\ns_mul_i32 s88, s86, 37\ns_lshr_b32 s88, s88, 8")
        I(f"s_mul_i32 s89, s88, 7\ns_sub_u32 s89, s86, s89\ns_cmp_lt_u32 s86, 28\ns_cselect_b32 s{self.sFIN}, 1, 0")
        I("s_min_u32 s88, s88, 3\ns_lshl_b32 s87, s87, 2\ns_add_u32 s87, s87, s88")
        I(f"s_lshr_b32 s90, s{self.sWV}, 1\ns_and_b32 s91, s{self.sWV}, 1")
        I(f"s_lshl_b32 s92, s88, 1\ns_add_u32 s92, s92, s89\ns_cmp_ge_u32 s92, 7\ns_cselect_b32 s93, 7, 0\ns_sub_u32 s94, s92, s93")
        if self.o.rot != 1:
            I({0: "s_mov_b32 s94, 0", 2: "s_mov_b32 s94, s89", 3: "s_lshl_b32 s94, s88, 1"}[self.o.rot])
        I(f"s_sub_u32 s{self.sWRAP}, 7, s94\ns_and_b32 s86, s89, {1 if self.o.rot in (1, 2) else 0}")
        I(f"s_mul_i32 s92, s{self.sWV}, {448*896}\ns_lshl_b32 s89, s89, 7\ns_add_u32 s{self.sFW}, s92, s89")
        I(f"s_mul_i32 s92, s94, {64*896}\ns_add_u32 s{self.sFW}, s{self.sFW}, s92")
        I(f"s_mul_i32 s92, s{self.sWV}, {112*896}\ns_add_u32 s{self.sFWO}, s92, s89\ns_mul_i32 s92, s86, {56*896}\ns_add_u32 s{self.sFWO}, s{self.sFWO}, s92")
        I(f"s_cmp_lg_u32 s86, 0\ns_mov_b32 s{self.sDWO}, {16*896}\ns_cselect_b32 s{self.sDWO}, {(-96*896) & 0xFFFFFFFF}, s{self.sDWO}")
        I(f"s_cmp_lg_u32 s86, 0\ns_movk_i32 s{self.sDHO}, 0x1000\ns_cselect_b32 s{self.sDHO}, 0xfffff000, s{self.sDHO}")
        I(f"s_mul_i32 s{self.sFM0}, s{self.sWV}, {12*K}\ns_add_u32 s{self.sFM0}, s{self.sFM0}, {RING_LO}")
        I(f"s_lshl_b32 s{self.sFM1}, s{self.sWV}, 14\ns_add_u32 s{self.sFM1}, s{self.sFM1}, {RING_HI}")
        I(f"v_lshrrev_b32 v{v}, 3, v0\nv_and_b32 v{v+1}, 2, v{v}\nv_lshlrev_b32 v{v+1}, 1, v{v+1}\nv_and_b32 v{v+2}, 7, v0\nv_xor_b32 v{v+1}, v{v+1}, v{v+2}")
        I(f"v_mul_u32_u24 v{v}, 0x380, v{v}\nv_lshl_add_u32 v{self.vFD}, v{v+1}, 4, v{v}\nv_add_u32 v{self.vFD+1}, {8*896-1024}, v{self.vFD}")
        I(f"v_bfe_u32 v{v}, v0, 2, 2\nv_lshrrev_b32 v{v+1}, 5, v0")
        I(f"v_and_b32 v{v+2}, 1, v0\nv_lshlrev_b32 v{v+2}, 4, v{v+2}\nv_bfe_u32 v{v+3}, v0, 1, 1\nv_lshl_add_u32 v{v+2}, v{v+3}, 3, v{v+2}")
        I(f"v_bfe_u32 v{v+3}, v0, 4, 1\nv_and_b32 v{v+4}, 2, v{v}\nv_xor_b32 v{v+3}, v{v+3}, v{v+4}\ns_lshl_b32 s92, s90, 1\nv_xor_b32 v{v+3}, s92, v{v+3}")
        I(f"v_lshl_add_u32 v{v+2}, v{v+3}, 5, v{v+2}\nv_lshl_add_u32 v{v+2}, v{v}, 7, v{v+2}")
        R = self.vFR
        I(f"v_lshl_add_u32 v{v+3}, v{v+1}, 10, v{v+2}\nv_add_u32 v{R}, s{self.sFM0}, v{v+3}\nv_xor_b32 v{R+1}, 64, v{R}")
        I(f"v_add_u32 v{R+2}, s{self.sFM1}, v{v+3}\nv_xor_b32 v{R+3}, 64, v{R+2}")
        I(f"v_lshlrev_b32 v{R+4}, 9, v{v+1}")
        I(f"s_lshl_b32 s93, s87, 1\ns_add_u32 s93, s93, s91\ns_mul_i32 s92, s93, {HO_MT}\ns_mul_i32 s88, s{self.sWV}, {28*1024}")
        I(f"s_add_u32 s92, s92, {HO_OFF - HO_MT}\ns_add_u32 s88, s88, s92\ns_lshl_b32 s94, s94, 12\ns_add_u32 s{self.sFH}, s88, s94")
        I(f"s_lshl_b32 s88, s{self.sWV}, 1\ns_add_u32 s88, s88, s86\ns_lshl_b32 s88, s88, 12\ns_add_u32 s88, s88, s92\ns_add_u32 s{self.sFHO}, s88, {112*1024}")
        I(f"s_cmp_eq_u32 s91, 0\ns_cselect_b32 s92, {2*HO_MT}, 0")
        I(f"v_add_u32 v{R+5}, {HO_MT}, v{self.vL16}\nv_add_u32 v{R+6}, s92, v{self.vL16}")
        I(f"s_mul_i32 s92, s93, {32*896}\ns_add_u32 s92, s92, s89\ns_lshl_b32 s88, s90, 6\ns_add_u32 s{self.sFO}, s92, s88")
        I(f"s_lshl_b32 s92, s93, 7\ns_add_u32 s{self.sZF}, s92, {Z_OFF}")
        I(f"s_lshr_b32 s87, s87, 1\ns_lshl_b32 s87, s87, 8\ns_add_u32 s87, s87, {FL_OFF + 4096}")
        I(f"s_lshl_b32 s88, s{self.sRB}, 8\ns_add_u32 s88, s88, {FL_OFF + 4096 + 56}")
        I(f"v_lshlrev_b32 v{v}, 2, v0\nv_add_u32 v{v}, s87, v{v}\nv_mov_b32 v{v+1}, s88\nv_cmp_gt_u32 vcc, 16, v0\nv_cndmask_b32 v{self.vFA}, v{v+1}, v{v}, vcc")

    def fin_dma(self, step):
        I, b = self.I, self.b
        hi, c = self.ring_addr(step)
        sm = self.sFM1 if hi else self.sFM0

        def first():
            p = self.ring_prev(step)
            if p is not None:
                need = None
                for i, (_d, t) in enumerate(b.lg):
                    if t == f"rw{p}":
                        need = len(b.lg) - 1 - i
                if f"rw{p}" not in self.rw_done:
                    raise NotReady(step)
                b.waitcnt(lg=need)
            I(f"s_add_u32 m0, s{sm}, {c}")
        L = [first]
        if step < 28:
            srd, so = self.S_WD, self.sFW
        else:
            srd, so = self.S_WO, self.sFWO
        if 0 < step < 28 and step % 4 == 0:
            L.append(lambda: I(f"s_cmp_eq_u32 s{self.sWRAP}, {step//4}\ns_cselect_b32 s86, {(-448*896) & 0xFFFFFFFF}, 0\ns_add_u32 s{so}, s{so}, s86\ns_add_u32 s{so}, s{so}, {16*896}"))
        elif 0 < step < 28:
            L.append(lambda: I(f"s_add_u32 s{so}, s{so}, {16*896}"))
        elif step == 32:
            L.append(lambda: I(f"s_add_u32 s{so}, s{so}, s{self.sDWO}"))
        elif step > 28:
            rows = [0, 16, 24, 40]
            d = rows[step % 4] - rows[step % 4 - 1]
            L.append(lambda: I(f"s_add_u32 s{so}, s{so}, {d*896}"))
        for e in range(2):
            L.append(lambda e=e: I(f"buffer_load_dwordx4 v{self.vFD+e}, s[{srd}:{srd+3}], s{so} offen offset:{1024*e} lds", f"w{step}"))
        return L

    rw_done = set()

    def fw(self, step, t):
        return (t * 28 + step) * 4 if step < 28 else 224 + (step % 2) * 8 + 4 * t

    def fin_rdw(self, step):
        hi, c = self.ring_addr(step)
        L = []
        for t in range(2):
            for e in range(2):
                r = self.fw(step, t) + 2 * e
                imm = c + (512 if step < 28 else 1024) * e

                def f(r=r, t=t, e=e, imm=imm):
                    if t == 0 and e == 0:
                        self.b.wait_tags((f"w{step}",))
                    self.I(f"ds_read_b64_tr_b16 a[{r}:{r+1}], v{self.vFR + 2*hi + t} offset:{imm}", f"rw{step}")
                    if t == 1 and e == 1:
                        self.rw_done.add(f"rw{step}")
                L.append(f)
        return L

    def fin_hload(self, step):
        I = self.I
        L = []
        R = self.vFR
        imm = 1024 * ((step if step < 28 else step - 28) % 4)
        if step == 28:
            L.append(lambda: I(f"s_mov_b32 s{self.sFH}, s{self.sFHO}"))
        elif step == 32:
            L.append(lambda: I(f"s_add_u32 s{self.sFH}, s{self.sFH}, s{self.sDHO}"))
        elif step % 4 == 0 and step > 0:
            L.append(lambda: I(f"s_cmp_eq_u32 s{self.sWRAP}, {step//4}\ns_cselect_b32 s86, {(-28*1024) & 0xFFFFFFFF}, 0\ns_add_u32 s{self.sFH}, s{self.sFH}, s86\ns_add_u32 s{self.sFH}, s{self.sFH}, 0x1000"))
        for a in range(2):
            r = self.FH + (step % self.NH) * 8 + 4 * a
            L.append(lambda r=r, a=a: I(f"buffer_load_dwordx4 v[{r}:{r+3}], v{R+5+a}, s[{self.S_WS}:{self.S_WS+3}], s{self.sFH} offen offset:{imm} sc1", f"h{step}"))
        return L

    def final(self):
        I, b, o = self.I, self.b, self.o
        R = self.vFR
        z = self.vZZ + 1
        nh = o.nh0
        A = self.FACC
        I("\n".join(f"v_sub_u32 v{R+i}, v{R+i}, v{R+4}" for i in range(4)))
        I(f"s_mov_b32 s{self.sMSK}, 0xffff\ns_movk_i32 s{self.sT0}, 0x1000")
        for n in range(36):
            gaps = [[] for _ in range(4)]
            if n in o.fs:
                self.ts()
            if 28 <= n + 1 < 36:
                rd = self.fin_rdw(n + 1)
                gaps[0] += rd[:2]
                gaps[1] += rd[2:]
            if n % 2 == 1 and 28 + n // 2 < 36 and n >= o.wo0:
                pass
            if o.wo0 <= n < o.wo0 + 16 and (n - o.wo0) % 2 == 0:
                dd = self.fin_dma(28 + (n - o.wo0) // 2)
                gaps[0] += dd[:-1]
                gaps[3] += dd[-1:]
            if n == o.opub:
                gaps[0].append(lambda: (b.wait_tags(("o",)), I("s_barrier"), self.flag_store(2)))
            if n == o.opoll_issue:
                gaps[1].append(lambda: self.poll_issue(self.vFA, self.vPOLL, soff=f"s{self.sT0}"))
            lim = 28 if n < o.opoll_check else 36
            if n == o.opoll_check:
                gaps[0].append(lambda: self.poll_check(self.vFA, self.vPOLL, self.sMSK, soff=f"s{self.sT0}"))
            cnt = 0
            while nh < lim and nh - self.NH < n and cnt < o.hrate:
                hl = self.fin_hload(nh)
                gaps[(2 * cnt + 1) % 4] += hl[:-1]
                gaps[(2 * cnt + 2) % 4 if cnt == 0 else 3] += hl[-1:]
                nh += 1
                cnt += 1
            if n == 28:
                for s in range(4):
                    for k in range(0, 16, 2):
                        I(f"v_pk_mul_f32 v[{A[s]+k}:{A[s]+k+1}], v[{A[s]+k}:{A[s]+k+1}], v[{z}:{z+1}] op_sel:[0,{s&1}] op_sel_hi:[1,{s&1}]")
            i = 0
            tiles = [(0, 0), (0, 1), (1, 0), (1, 1)] if n < 35 else [(0, 1), (1, 0), (1, 1), (0, 0)]
            for t, a in tiles:
                rw = self.fw(n, t)
                rh = self.FH + (n % self.NH) * 8 + 4 * a
                self.mfma(A[2 * t + a], f"a[{rw}:{rw+3}]", f"v[{rh}:{rh+3}]", n == 0)
                for f in gaps[i]:
                    f()
                i += 1
        self.ts()
        v = self.vT
        I(f"v_add_u32 v{v}, s{self.sFM0}, v{self.vL16}")
        for sg in range(1, 4):
            I(f"s_xor_b32 s86, s{self.sWV}, {sg}\ns_mul_i32 s86, s86, {12*K}\ns_add_u32 s86, s86, {RING_LO}\nv_add_u32 v{v+sg}, s86, v{self.vL16}")
        for sg in range(1, 4):
            for q in range(4):
                r = A[sg] + 4 * q
                I(f"ds_write_b128 v{v}, v[{r}:{r+3}] offset:{(sg-1)*4096 + q*1024}")
        I(f"v_and_b32 v{v+4}, 31, v0\nv_mul_u32_u24 v{v+4}, 0x380, v{v+4}\nv_lshrrev_b32 v{v+5}, 5, v0\nv_lshl_add_u32 v{v+4}, v{v+5}, 4, v{v+4}")
        b.waitcnt(lg=0)
        I("s_barrier")
        T = self.FH
        for q in range(4):
            for sg in range(1, 4):
                r = T + 16 * (sg - 1) + 4 * q
                I(f"ds_read_b128 v[{r}:{r+3}], v{v+sg} offset:{(sg-1)*4096 + q*1024}")
        a0 = A[0]
        for h in range(2):
            for k in range(8 * h, 8 * h + 8, 2):
                for sg in range(1, 4):
                    r = T + 16 * (sg - 1) + k
                    I(f"v_pk_add_f32 v[{a0+k}:{a0+k+1}], v[{a0+k}:{a0+k+1}], v[{r}:{r+1}]")
            r = a0 + 8 * h
            for i in range(4):
                I(f"v_cvt_pk_bf16_f32 v{r+i}, v{r+2*i}, v{r+2*i+1}")
            if o.thr and h == 0:
                b.raw("s_memrealtime s[100:101]")
                b.raw("s_waitcnt lgkmcnt(0)")
                I(f"global_load_dwordx2 v[46:47], v{self.vZ}, s[{self.pDBG}:{self.pDBG+1}] offset:128 sc1\nv_or_b32 v46, v46, v47\nv_readfirstlane_b32 s101, v46")
                I(f"s_sub_u32 s100, s100, s{self.sTAG}\ns_cmp_gt_i32 s100, {o.thr}\ns_cselect_b32 s100, 0x7fc07fc0, 0")
                I(f"s_cmp_lg_u32 s101, 0\ns_cselect_b32 s100, 0, s100\nv_or_b32 v{r}, s100, v{r}")
            I(f"buffer_store_dwordx4 v[{r}:{r+3}], v{v+4}, s[{self.S_OUT}:{self.S_OUT+3}], s{self.sFO} offen offset:{32*h}")

    def build(self):
        I, b, o = self.I, self.b, self.o
        b.label(KNAME)
        self.prologue()
        self.ts(98)
        self.ts(99)
        self.sts_flush()
        self.ts()
        self.passA()
        self.ts()
        I(f"s_cmp_lg_u32 s{self.sISV}, 0\ns_cbranch_scc1 L_vpath")
        snap = b.snapshot()
        nts0 = self.nts
        self.passB_GU()
        gu_vm = list(b.vm)
        gu_lg = [t for _d, t in b.lg]
        I("s_branch L_join")
        b.label("L_vpath")
        b.restore(snap)
        self.rw_done = set()
        self.nts = nts0
        self.passB_V()
        b.label("L_join")
        vt = [t for _d, t in b.vm]
        gt = [t for _d, t in gu_vm]
        after = lambda L, t: L[::-1].index(t) if t in L else 10 ** 6
        for t in set(vt) | set(gt):
            if t is not None:
                assert after(vt, t) <= after(gt, t), (t, vt, gt)
        assert [t for _d, t in b.lg] == gu_lg
        self.ts()
        self.attention()
        self.ts()
        I(f"s_cmp_lg_u32 s{self.sFIN}, 0\ns_cbranch_scc0 L_nofinal")
        snap2 = b.snapshot()
        self.final()
        if o.ts:
            b.wait_all()
            self.ts(last=True)
        I("s_endpgm")
        b.label("L_nofinal")
        b.restore(snap2)
        b.wait_tags(("o",))
        I("s_barrier")
        self.flag_store(2)
        b.label("L_exit")
        b.raw("s_endpgm")

    def text(self):
        hdr = open("gated_mix__sliding_block__glu_gated_glu__prompt.s.ref").read().split("; Override launch")[0]
        s = hdr
        s += "; Generated by my own generator script (hand-designed schedule; no compiler output).\n"
        s += "; @launch grid=(256,1,1) block=(256,1,1) lds=163840\n"
        s += '.amdgcn_target "amdgcn-amd-amdhsa--gfx950"\n.text\n'
        s += f".globl {KNAME}\n.p2align 8\n.type {KNAME},@function\n"
        s += self.b.text()
        s += f""".section .rodata,"a"
.p2align 6
.amdhsa_kernel {KNAME}
  .amdhsa_next_free_vgpr 512
  .amdhsa_next_free_sgpr 102
  .amdhsa_accum_offset 256
  .amdhsa_group_segment_fixed_size 0
  .amdhsa_kernarg_size 88
  .amdhsa_user_sgpr_count 2
  .amdhsa_user_sgpr_kernarg_segment_ptr 1
  .amdhsa_system_sgpr_workgroup_id_x 1
.end_amdhsa_kernel
"""
        return s


def main():
    ap = argparse.ArgumentParser()
    ap.add_argument("-o", default="k.s")
    ap.add_argument("--ts", action="store_true")
    ap.add_argument("--cyc", action="store_true")
    ap.add_argument("--thrpat", type=int, default=1)
    ap.add_argument("--badmap", type=int, default=0)
    ap.add_argument("--thr", type=int, default=0)
    ap.add_argument("--lite", action="store_true")
    ap.add_argument("--dbgts", type=int, default=0)
    ap.add_argument("--sts", action="store_true")
    ap.add_argument("--pk", type=int, default=1)
    ap.add_argument("--pkB", type=int, default=0)
    ap.add_argument("--align", type=int, default=1)
    ap.add_argument("--coop", type=int, default=1)
    ap.add_argument("--lead", type=int, default=2)
    ap.add_argument("--rot", type=int, default=0)
    ap.add_argument("--fl0", type=int, default=11)
    ap.add_argument("--kpoll", type=int, default=21)
    ap.add_argument("--kchk", type=int, default=25)
    ap.add_argument("--epi_end", type=int, default=28)
    ap.add_argument("--nbq", type=int, default=4)
    ap.add_argument("--wA", type=int, default=1)
    ap.add_argument("--tagn", type=int, default=13)
    ap.add_argument("--pf0", type=int, default=2)
    ap.add_argument("--pfn0", type=int, default=1)
    ap.add_argument("--pft0", type=int, default=0)
    ap.add_argument("--pfdt", type=int, default=4)
    ap.add_argument("--nB2", type=int, default=3)
    ap.add_argument("--rd0", type=int, default=3)
    ap.add_argument("--p0", type=int, default=4)
    ap.add_argument("--ppace", type=float, default=1.25)
    ap.add_argument("--w0", type=int, default=9)
    ap.add_argument("--wpace", type=float, default=1.25)
    ap.add_argument("--epi_ahead", type=int, default=4)
    ap.add_argument("--nb0", type=int, default=3)
    ap.add_argument("--dtiles", type=int, default=5)
    ap.add_argument("--rdper", type=int, default=4)
    ap.add_argument("--wo0", type=int, default=1)
    ap.add_argument("--cld", type=int, default=8)
    ap.add_argument("--cst", type=int, default=12)
    ap.add_argument("--abl", default="")
    ap.add_argument("--vs", type=int, default=0)
    ap.add_argument("--rB", type=int, default=1)
    ap.add_argument("--wlat", type=int, default=7)
    ap.add_argument("--hpub", type=int, default=1)
    ap.add_argument("--hpoll", type=int, default=5)
    ap.add_argument("--nh0", type=int, default=8)
    ap.add_argument("--hrate", type=int, default=1)
    ap.add_argument("--opub", type=int, default=6)
    ap.add_argument("--opoll_issue", type=int, default=14)
    ap.add_argument("--opoll_check", type=int, default=18)
    ap.add_argument("--pfs", default="0:0:3:0:0,10:3:7:0:0,14:0:0:1:0,20:0:0:0:1", type=lambda t: [tuple(int(y) for y in x.split(":")) for x in t.split(",") if x])
    for k in ("fs", "bs", "ss", "As"):
        ap.add_argument("--" + k, default="", type=lambda t: [int(x) for x in t.split(",") if x])
    o = ap.parse_args()
    g = G(o)
    g.build()
    open(o.o, "w").write(g.text())
    print(f"code bytes {g.b.off}, hazard nops {g.b.nops_added}, stamps {g.nts}", file=sys.stderr)


if __name__ == "__main__":
    main()
```

```python
import sys, math, argparse
from asmb import Builder

KNAME = "gated_mix__sliding_block__glu_gated_glu__prompt_kernel"
K = 1024
QKV_OFF = 0
QKV_MT = 168 * 512
HO_OFF = 0x600000
HO_MT = 144 * 1024
Z_OFF = 0xF00000
FL_OFF = 0xF10000
E_OFF = 0xF20000
TS_OFF = 0xF30000
WS_SIZE = 0x1000000
SLOT = 40 * K
CHUNK = 10 * K
PB_BASE = [120 * K, 136 * K, 0, 16 * K, 48 * K, 64 * K, 80 * K]
KV_K = 0
KV_V = 24 * K
RING_LO = 48 * K
RING_HI = 96 * K
GW_LDS = 32 * K
NEG = 0xF149F2CA
LOG2E = 1.4426950408889634
SPIN_MAX = 1 << 18


def f32hex(x):
    import struct
    return "0x%08x" % struct.unpack("<I", struct.pack("<f", x))[0]


class NotReady(Exception):
    pass


class Stream:
    def __init__(self, items, t0, t1, ahead=0.0, maxlag=3.0, early=None, prio=0, starve=99):
        self.items, self.t0, self.t1, self.ahead, self.maxlag = list(items), t0, t1, ahead, maxlag
        self.early = early or {}
        self.idx = 0
        self.prio, self.starve, self.waiting = prio, starve, 0

    def lag(self, g):
        tgt = len(self.items) * min(1.0, (g - self.t0 + 1) / max(1, self.t1 - self.t0 + 1))
        return tgt - self.idx

    def ready(self, g):
        return self.idx < len(self.items) and g >= self.t0 and g >= self.early.get(self.idx, 0)


class G:
    def sched(self, mf, fixed, streams, cap=24, pre=None):
        b = self.b
        for g, m in enumerate(mf):
            if pre and g in pre:
                for f in pre[g]:
                    f()
            self.I(m)
            start = len(b.out)
            for f in fixed.get(g, []):
                f()
            while True:
                took = False
                for s_ in sorted((x for x in streams if x.ready(g)), key=lambda x: (-x.prio, -x.lag(g) / max(1.0, x.maxlag))):
                    lag = s_.lag(g)
                    if lag <= -s_.ahead:
                        continue
                    mk, rw, uid = b.mark(), set(self.rw_done), self._uid
                    try:
                        s_.items[s_.idx]()
                    except NotReady:
                        b.rollback(mk)
                        continue
                    res = 4 if (g + 1 < len(mf) and (b.needs_wait(mf[g + 1]) or (pre and g + 1 in pre))) else 0
                    nvm = sum(1 for i_ in b.out[start:] if i_.kind == "vmem")
                    fits = b.cost_since(start) + res <= cap and nvm <= 1
                    if fits or lag >= s_.maxlag or g >= s_.t1 or s_.waiting >= s_.starve:
                        s_.idx += 1
                        s_.waiting = -1
                        took = True
                        break
                    b.rollback(mk)
                    self.rw_done = rw
                if not took:
                    break
            for s_ in streams:
                s_.waiting = s_.waiting + 1 if s_.ready(g) else 0
        for s_ in streams:
            assert s_.idx == len(s_.items), (s_.idx, len(s_.items))

    def ablate(self, ph):
        d = []
        for a in self.o.abl.split(","):
            if not a.startswith(ph):
                continue
            k = a[1:]
            d.append({"dma": lambda i: i.kind == "vmem" and " lds" in i.text and "sc1" not in i.text,
                      "st": lambda i: i.kind == "vmem" and "x4" in i.op and "store" in i.op,
                      "valu": lambda i: i.op in ("v_mul_f32", "v_exp_f32", "v_add_f32", "v_rcp_f32", "v_cvt_pk_bf16_f32", "v_pk_mul_f32", "v_pk_add_f32", "v_sub_f32", "v_cndmask_b32", "v_cmp_gt_i32"),
                      "rw": lambda i: i.kind == "ds" and i.tag is not None,
                      "ds": lambda i: i.kind == "ds",
                      "bar": lambda i: i.op == "s_barrier"}[k])
        self.b.drop = tuple(d)

    def mtext(self, d, a, bb, first):
        c = "0" if first else f"v[{d}:{d+15}]"
        return f"v_mfma_f32_32x32x16_bf16 v[{d}:{d+15}], {a}, {bb}, {c}"

    def __init__(self, opt):
        self.o = opt
        self.b = Builder(align_opt=opt.align)
        self.b.cld, self.b.cst = opt.cld, opt.cst
        self.nts = 0

    S_X, S_A, S_B, S_C, S_WS, S_WD, S_WO, S_OUT = 8, 12, 16, 20, 24, 28, 32, 36
    pDBG, pGW = 40, 42
    sWV, sRB, sJ, sISV = 44, 45, 46, 47
    sX, sA, sB, sC = 48, 49, 50, 51
    sSAB, sM0, sM0B, sA2, sB2 = 52, 53, 54, 55, 56
    sTAG = 57
    sQ0, sQ1, sH0, sH1 = 58, 59, 60, 61
    sNL2E, sCS = 62, 63
    sMSK, sMSK2, sPAR = 64, 66, 68
    sKT = 70
    sQO, sZO, sOO = 73, 74, 75
    sFIN, sFW, sFH, sFWO, sFM0, sFM1, sFO, sZF = 76, 77, 78, 79, 80, 81, 82, 83
    sSPIN, sT0 = 84, 85
    sT1, sT2, sT3 = 3, 4, 5
    sWRAP, sFHO, sDWO, sDHO = 0, 1, 6, 7
    sTS, sEX, sTM = 95, 96, 100
    vL16 = 1
    vXD = 2
    vWD = 6
    vXR = 12
    vWR = 24
    vT = 33
    vPFW, vPFC = 46, 47
    vPOLL = 48
    vZ = 49
    vFL = 50
    vAP = 51
    ACC_A = 52
    ACC_B = 148
    WF = 224
    KF = 4
    vO = 196
    vQ = 212
    vP = 220
    vKA = 236
    vVA = 237
    vM = 240
    vMA, vMB = 242, 239
    vZZ = 243
    vFA = 246
    vFD = 247
    vFR = 249
    FH = 84
    NH = 16
    FACC = [52, 68, 212, 228]
    SREG = {8: 52, 0: 68, 7: 84, 6: 100, 5: 116, 4: 132, 3: 148, 2: 164, 1: 180}

    def I(self, t, tag=None):
        self.b.I(t, tag)

    def srd(self, s, lo, hi, size):
        self.I(f"s_mov_b32 s{s}, {lo}\ns_mov_b32 s{s+1}, {hi}\ns_mov_b32 s{s+2}, {size}\ns_mov_b32 s{s+3}, 0x20000")

    def ts(self, sreg=None, last=False):
        if not self.o.ts or (self.o.lite and not last and sreg != 98):
            return
        n = self.nts
        self.nts += 1
        if sreg is None:
            self.b.raw(f"{'s_memtime' if self.o.cyc else 's_memrealtime'} s[{self.sTM}:{self.sTM+1}]")
            self.b.raw("s_waitcnt lgkmcnt(0)")
            self.b.lg = []
            sreg = self.sTM
        self.I(f"v_mov_b32 v{self.vT}, s{sreg}\nv_mov_b32 v{self.vT+1}, 0")
        self.I(f"s_mov_b64 s[{self.sEX}:{self.sEX+1}], exec\ns_mov_b64 exec, 1")
        if self.o.dbgts:
            u = self.uid()
            keep = list(self.b.vm)
            self.I(f"s_lshl_b32 s86, s2, 2\ns_add_u32 s86, s86, s{self.sWV}\ns_cmp_eq_u32 s86, {self.o.dbgts}\ns_cbranch_scc0 L_dts{u}")
            self.I(f"global_store_dword v{self.vT+1}, v{self.vT}, s[{self.pDBG}:{self.pDBG+1}] offset:{4*(n+1)} sc1")
            self.b.label(f"L_dts{u}")
            if n == 0 or last:
                self.I(f"s_cmp_eq_u32 s{self.sWV}, 0\ns_cbranch_scc0 L_dtt{u}")
                if n == 0:
                    self.I(f"v_not_b32 v{self.vT}, v{self.vT}")
                self.I(f"global_atomic_umax v{self.vT+1}, v{self.vT}, s[{self.pDBG}:{self.pDBG+1}] offset:{56 if n == 0 else 60} sc1")
                self.b.label(f"L_dtt{u}")
            self.b.vm = keep
        else:
            self.I(f"buffer_store_dword v{self.vT}, v{self.vT+1}, s[{self.S_WS}:{self.S_WS+3}], s{self.sTS} offen offset:{4*n}")
        self.I(f"s_mov_b64 exec, s[{self.sEX}:{self.sEX+1}]")

    soft = 0

    def sts(self):
        if not self.o.sts:
            return
        self.b.raw(f"{'s_memtime' if self.o.cyc else 's_memrealtime'} s[{self.sTM}:{self.sTM+1}]")
        self.b.raw("s_waitcnt lgkmcnt(0)")
        self.I(f"v_mov_b32 v{196+self.soft}, s{self.sTM}")
        self.soft += 1

    def sts_flush(self):
        for k in range(self.soft):
            self.I(f"v_readfirstlane_b32 s{self.sTM}, v{196+k}")
            self.ts(self.sTM)

    def lds(self, base, n, idx, const):
        return f"v{base + (const >> 16) * n + idx}", const & 0xFFFF

    def xf(self, M, n):
        r = (M * 28 + n) * 4
        return f"a[{r}:{r+3}]"

    def wf(self, bufset, t):
        r = self.WF + bufset * 12 + t * 4
        return r

    def acc(self, base, t, M):
        r = base + (t * 2 + M) * 16
        return r

    def prologue(self):
        I = self.I
        b = self.b
        if self.o.ts or self.o.thr:
            b.raw(f"{'s_memtime' if self.o.cyc else 's_memrealtime'} s[98:99]")
        I("s_cmp_ge_u32 s2, 0x100\ns_cbranch_scc1 L_exit")
        if self.o.badmap:
            I("s_and_b32 s3, s2, 31\ns_lshl_b32 s3, s3, 3\ns_lshr_b32 s2, s2, 5\ns_or_b32 s2, s2, s3")
        b.raw("s_load_dwordx16 s[64:79], s[0:1], 0")
        b.raw("s_load_dwordx4 s[80:83], s[0:1], 64")
        b.raw(f"s_load_dwordx2 s[{self.S_WS}:{self.S_WS+1}], s[0:1], 80")
        I("s_getpc_b64 s[4:5]")
        b.label("L_pc")
        I("s_and_b32 s3, s2, 0xf8\nv_and_b32 v33, 7, v0\nv_add_lshl_u32 v33, v33, s3, 7\nv_min_u32 v33, L_exit-L_pc, v33")
        I("global_load_dword v45, v33, s[4:5]", tag="pf")
        b.vm[-1] = (set(), "pf")
        I("v_lshrrev_b32 v35, 6, v0\nv_and_b32 v0, 63, v0")
        I(f"v_readfirstlane_b32 s{self.sWV}, v35")
        I("s_and_b32 s3, s2, 7\ns_lshr_b32 s6, s2, 3")
        I(f"s_and_b32 s7, s3, 1\ns_lshl_b32 s7, s7, 3\ns_and_b32 s4, s6, 7\ns_add_u32 s{self.sRB}, s4, s7")
        I(f"s_lshr_b32 s7, s3, 1\ns_lshl_b32 s7, s7, 2\ns_lshr_b32 s5, s6, 3\ns_add_u32 s{self.sJ}, s5, s7")
        I(f"v_lshlrev_b32 v{self.vL16}, 4, v0")
        I("v_lshrrev_b32 v35, 3, v0\nv_and_b32 v36, 7, v0\nv_lshrrev_b32 v37, 4, v0")
        I("v_mul_u32_u24 v38, 0x380, v35")
        I("v_xor_b32 v39, v36, v37\nv_lshl_add_u32 v2, v39, 4, v38")
        I(f"v_xor_b32 v3, 64, v2\nv_add_u32 v3, {8*896-1024}, v3")
        I(f"v_add_u32 v4, {16*896-2048}, v2\nv_add_u32 v5, {16*896-2048}, v3")
        I("v_and_b32 v39, 2, v35\nv_lshlrev_b32 v39, 1, v39\nv_xor_b32 v39, v36, v39\nv_lshlrev_b32 v39, 4, v39")
        I(f"s_cmp_ge_u32 s{self.sJ}, 14\ns_cselect_b32 s{self.sISV}, 1, 0")
        I("s_movk_i32 s7, 0xe00\ns_movk_i32 s86, 0xa80\ns_cselect_b32 s7, s86, s7")
        I("v_mul_u32_u24 v40, 0xa80, v35\nv_add_u32 v10, v40, v39")
        I(f"v_add_u32 v11, {8*2688-1024}, v10")
        I("v_mul_u32_u24 v40, s7, v35\nv_add_u32 v6, v40, v39")
        I("s_lshl_b32 s86, s7, 3\ns_sub_u32 s86, s86, 0x400\nv_add_u32 v7, s86, v6")
        I("v_xor_b32 v8, 32, v6\nv_xor_b32 v9, 32, v7")
        I(f"s_lshl_b32 s{self.sSAB}, s7, 6")
        if self.o.coop == 1:
            I("v_lshrrev_b32 v42, 1, v0\nv_and_b32 v43, 1, v0\nv_lshlrev_b32 v44, 7, v43")
            I("v_mul_u32_u24 v41, 0x380, v43\nv_lshl_add_u32 v41, v42, 7, v41")
            I(f"v_mul_u32_u24 v{self.vPFW}, s{self.sSAB}, v42\nv_add_u32 v{self.vPFW}, v{self.vPFW}, v44")
            I(f"v_mul_u32_u24 v{self.vPFC}, {64*2688}, v42\nv_add_u32 v{self.vPFC}, v{self.vPFC}, v44\nv_lshlrev_b32 v44, 7, v0")
        I(f"s_lshl_b32 s86, s{self.sRB}, 2\ns_add_u32 s87, s86, s{self.sWV}\ns_mul_i32 s{self.sX}, s87, {32*896}")
        if self.o.coop == 1:
            I(f"s_mul_i32 s3, s87, s7\ns_mul_i32 s4, s87, 0xa80")
            I(f"s_lshl_b32 s86, s{self.sRB}, 4\ns_add_u32 s86, s86, s{self.sJ}\ns_lshl_b32 s86, s86, 2\ns_add_u32 s86, s86, s{self.sWV}")
            I(f"s_mul_i32 s6, s86, {2*896}\ns_mul_i32 s86, s86, 49\ns_lshr_b32 s5, s86, 4\ns_lshl_b32 s5, s5, 7\ns_lshr_b32 s86, s86, 2\ns_lshl_b32 s95, s86, 7")
        I(f"s_lshl_b32 s86, s{self.sWV}, 4\ns_mul_i32 s87, s86, s7\ns_mul_i32 s88, s86, 0xa80")
        I(f"s_lshl_b32 s89, s{self.sJ}, 8\ns_lshl_b32 s90, s{self.sJ}, 7")
        I(f"s_lshl_b32 s91, s{self.sJ}, 9\ns_sub_u32 s91, s91, {42*128}")
        I(f"s_add_u32 s92, s91, 0x80\ns_add_u32 s93, s91, 0x100\ns_add_u32 s94, s89, 0x80")
        I(f"s_cmp_lg_u32 s{self.sISV}, 0")
        I(f"s_cselect_b32 s91, s91, s89\ns_cselect_b32 s92, s92, s89\ns_cselect_b32 s93, s93, s90")
        I(f"s_cselect_b32 s90, {17*128}, s94")
        I(f"s_add_u32 s{self.sA}, s91, s87\ns_add_u32 s{self.sB}, s92, s87\ns_add_u32 s{self.sC}, s93, s88")
        I(f"s_add_u32 s{self.sA2}, s90, s87\ns_add_u32 s{self.sB2}, s94, s87")
        I(f"s_mul_i32 s{self.sM0}, s{self.sWV}, {CHUNK}\ns_lshl_b32 s{self.sM0B}, s{self.sWV}, 12")
        if self.o.coop == 1:
            P = self.vPF
            I(f"s_add_u32 s86, s91, s3\ns_add_u32 s87, s92, s3\ns_add_u32 s88, s93, s4")
            I(f"v_add_u32 v{P}, s6, v41\nv_add_u32 v{P+1}, s86, v{self.vPFW}\nv_add_u32 v{P+2}, s87, v{self.vPFW}")
            I(f"v_add_u32 v{P+3}, s88, v{self.vPFC}\nv_add_u32 v{P+4}, s95, v44\nv_add_u32 v{P+5}, s5, v44")
        WQ, WG_ = 448 * 2688, 448 * 3584
        I(f"s_mov_b32 s{self.S_X+2}, {2048*896}\ns_mov_b32 s{self.S_X+3}, 0x20000")
        I(f"s_cmp_lg_u32 s{self.sISV}, 0")
        for s_ in (self.S_A, self.S_B):
            I(f"s_mov_b32 s{s_+2}, {WG_}\ns_cselect_b32 s{s_+2}, {WQ}, s{s_+2}\ns_mov_b32 s{s_+3}, 0x20000")
        I(f"s_mov_b32 s{self.S_C+2}, {WQ}\ns_mov_b32 s{self.S_C+3}, 0x20000")
        b.raw("s_waitcnt lgkmcnt(0)")
        if self.o.ts and not self.o.lite:
            b.raw(f"{'s_memtime' if self.o.cyc else 's_memrealtime'} s[96:97]")
            b.raw("s_waitcnt lgkmcnt(0)")
            I("s_mov_b32 s99, s96")
        I(f"s_mov_b32 s{self.S_X}, s64\ns_mov_b32 s{self.S_X+1}, s65")
        for s_, lo in ((self.S_A, 72), (self.S_B, 74)):
            I(f"s_cselect_b32 s{s_}, s66, s{lo}\ns_cselect_b32 s{s_+1}, s67, s{lo+1}")
        I(f"s_mov_b32 s{self.S_C}, s66\ns_mov_b32 s{self.S_C+1}, s67")
        srd = lambda s_: f"s[{s_}:{s_+3}]"
        if self.o.coop == 1:
            self.srd(self.S_WD, "s76", "s77", 1792 * 896)
            self.srd(self.S_WO, "s68", "s69", 448 * 896)
        self.pf_batch(0)
        self.sts()
        for ins in self.dma_stageA(0):
            ins()
        self.pf_batch(1)
        self.sts()
        I(f"s_mov_b32 s{self.S_WS+2}, {WS_SIZE}\ns_mov_b32 s{self.S_WS+3}, 0x20000")
        if self.o.wsoff:
            I(f"s_add_u32 s{self.S_WS}, s{self.S_WS}, {self.o.wsoff << 20}\ns_addc_u32 s{self.S_WS+1}, s{self.S_WS+1}, 0")
        I(f"v_mov_b32 v{self.vZ}, 0\ns_mov_b32 s86, {E_OFF}")
        I(f"buffer_load_dword v{self.vPOLL}, v{self.vZ}, s[{self.S_WS}:{self.S_WS+3}], s86 offen sc1", tag="E")
        if not self.o.late1:
            for st in range(1, self.o.lead):
                for ins in self.dma_stageA(st):
                    ins()
        self.sts()
        if not self.o.late1:
            self.pf_batch(2)
        if self.o.coop != 1:
            self.srd(self.S_WD, "s76", "s77", 1792 * 896)
            self.srd(self.S_WO, "s68", "s69", 448 * 896)
        if self.o.coop == 2:
            self.pf2_setup()
            for k in range(self.o.pfn0):
                self.pf2(k)
        if self.o.xpf:
            P = self.vPF + 6
            I(f"s_lshr_b32 s86, s2, 3\ns_lshl_b32 s86, s86, 2\ns_add_u32 s86, s86, s{self.sWV}\ns_lshr_b32 s87, s86, 5\ns_and_b32 s88, s86, 31")
            I(f"s_mul_i32 s87, s87, {3136*128}\ns_mul_i32 s88, s88, {49*128}\ns_add_u32 s87, s87, s88\ns_mul_i32 s86, s86, {25*128}")
            I(f"v_lshlrev_b32 v{P+2}, 7, v0\nv_add_u32 v{P}, s87, v{P+2}\nv_add_u32 v{P+1}, {1568*128}, v{P}\nv_add_u32 v{P+2}, s86, v{P+2}")
        self.srd(self.S_OUT, "s80", "s81", 2048 * 896)
        I(f"s_mov_b64 s[{self.pDBG}:{self.pDBG+1}], s[82:83]\ns_mov_b64 s[{self.pGW}:{self.pGW+1}], s[78:79]")
        if self.o.ts:
            I(f"s_lshl_b32 s86, s2, 2\ns_add_u32 s86, s86, s{self.sWV}\ns_lshl_b32 s86, s86, 7\ns_add_u32 s{self.sTS}, s86, {TS_OFF}")
        I(f"s_lshr_b32 s86, s{self.sWV}, 1\ns_and_b32 s87, s{self.sWV}, 1")
        I("v_and_b32 v35, 31, v0\nv_lshrrev_b32 v36, 5, v0")
        I("v_bfe_u32 v37, v0, 1, 3\nv_xor_b32 v37, v37, v36")
        I(f"s_mul_i32 s88, s86, {2*CHUNK}\nv_lshlrev_b32 v38, 7, v35\nv_add_u32 v38, s88, v38")
        for ks in range(4):
            I(f"v_xor_b32 v39, {2*ks}, v37\nv_lshl_add_u32 v{self.vXR+ks}, v39, 4, v38")
        I("v_bfe_u32 v37, v0, 2, 2\nv_lshl_add_u32 v38, v36, 3, v37\nv_lshlrev_b32 v38, 7, v38")
        I("v_and_b32 v39, 1, v0\nv_lshlrev_b32 v39, 4, v39\nv_bfe_u32 v40, v0, 1, 1\nv_lshl_add_u32 v39, v40, 3, v39")
        I("v_add_u32 v38, v38, v39")
        I("v_bfe_u32 v39, v0, 4, 1\nv_and_b32 v40, 2, v37\nv_xor_b32 v40, v40, v39")
        I("s_lshl_b32 s88, s87, 1")
        I("v_xor_b32 v41, s88, v40")
        I(f"v_lshl_add_u32 v42, v41, 5, v38")
        I(f"v_add_u32 v{self.vWR}, 0x1000, v42")
        I(f"v_lshl_add_u32 v{self.vWR+1}, v39, 11, v42")
        I(f"v_xor_b32 v{self.vWR+2}, 32, v{self.vWR+1}")
        for st in (1, 2):
            for i in range(4):
                I(f"v_add_u32 v{self.vXR+4*st+i}, {65536*st}, v{self.vXR+i}")
            for i in range(3):
                I(f"v_add_u32 v{self.vWR+3*st+i}, {65536*st}, v{self.vWR+i}")
        I(f"s_lshl_b32 s88, s{self.sRB}, 2\ns_lshl_b32 s89, s86, 1\ns_add_u32 s88, s88, s89")
        I(f"s_mul_i32 s89, s88, {QKV_MT}\ns_lshl_b32 s90, s87, 11\ns_add_u32 s89, s89, s90")
        I(f"s_lshl_b32 s90, s{self.sJ}, 12\ns_lshl_b32 s91, s{self.sJ}, 14\ns_sub_u32 s91, s91, {40*4096}")
        I(f"s_cmp_lg_u32 s{self.sISV}, 0\ns_cselect_b32 s90, s91, s90\ns_add_u32 s{self.sQ0}, s89, s90")
        I(f"s_add_u32 s{self.sQ1}, s{self.sQ0}, {QKV_MT}")
        I(f"s_mul_i32 s89, s88, {HO_MT}\ns_lshl_b32 s90, s{self.sJ}, 13\ns_lshl_b32 s91, s87, 11\ns_add_u32 s89, s89, s90")
        I(f"s_add_u32 s89, s89, s91\ns_add_u32 s{self.sH0}, s89, {HO_OFF}\ns_add_u32 s{self.sH1}, s{self.sH0}, {HO_MT}")
        I(f"s_mov_b32 s{self.sNL2E}, {f32hex(-LOG2E)}\ns_mov_b32 s{self.sCS}, {f32hex(LOG2E / math.sqrt(28.0))}")
        I(f"s_lshl_b32 s88, s{self.sRB}, 8\ns_lshl_b32 s89, s{self.sJ}, 2\ns_add_u32 s88, s88, s89\ns_add_u32 s88, s88, {FL_OFF}")
        I(f"v_mov_b32 v{self.vFL}, s88")
        if self.o.late1:
            for st in range(1, self.o.lead):
                for ins in self.dma_stageA(st):
                    ins()
            self.pf_batch(2)
        self.sts()
        self.setup = self.record(lambda: (self.poll_setup_att(), self.att_setup(), self.final_setup()))

    vPF = 200

    def pf2_setup(self):
        I = self.I
        P = self.vPF
        I(f"v_mov_b32 v{P}, s{self.S_X}\nv_mov_b32 v{P+1}, s{self.S_X+1}\nv_mov_b32 v{P+2}, 0x80")
        f0 = self.o.pf0
        I(f"s_lshl_b32 s86, s{self.sRB}, 2\ns_add_u32 s86, s86, s{self.sWV}\ns_mul_i32 s3, s86, s7\ns_mul_i32 s4, s86, 0xa80")
        I(f"s_lshl_b32 s86, s{self.sRB}, 4\ns_add_u32 s86, s86, s{self.sJ}\ns_lshl_b32 s86, s86, 2\ns_add_u32 s5, s86, s{self.sWV}")
        I(f"s_mul_i32 s6, s{self.sSAB}, {f0}")

        def lane(l, base, off, stride):
            I(f"s_add_u32 s88, s{base}, {off}\ns_addc_u32 s89, s{base+1}, 0")
            I(f"v_writelane_b32 v{P}, s88, {l}\nv_writelane_b32 v{P+1}, s89, {l}")
            if stride:
                I(f"v_writelane_b32 v{P+2}, {stride}, {l}")
        I(f"s_mul_i32 s86, s5, {2*896}\ns_add_u32 s86, s86, {128*f0}")
        lane(0, self.S_X, "s86", None)
        I("s_add_u32 s86, s86, 0x380")
        lane(1, self.S_X, "s86", None)
        for l, srd, col in ((2, self.S_A, 91), (3, self.S_B, 92)):
            I(f"s_add_u32 s86, s{col}, s3\ns_add_u32 s86, s86, s6")
            lane(l, srd, "s86", f"s{self.sSAB}")
        I(f"s_add_u32 s86, s93, s4\ns_add_u32 s86, s86, {64*2688*f0}\ns_mov_b32 s87, {64*2688}")
        lane(4, self.S_C, "s86", "s87")
        I("s_add_u32 s86, s90, s3")
        lane(5, self.S_A, "s86", f"s{self.sSAB}")
        I(f"s_cmp_lg_u32 s{self.sISV}, 0\ns_cselect_b32 s86, s90, s94\ns_add_u32 s86, s86, s3")
        lane(6, self.S_B, "s86", f"s{self.sSAB}")
        I(f"s_mul_i32 s86, s5, 49\ns_lshr_b32 s6, s86, 4\ns_lshr_b32 s86, s86, 2\ns_min_u32 s86, s86, {12544-14}\ns_lshl_b32 s86, s86, 7\ns_movk_i32 s87, 0x100")
        lane(7, self.S_WD, "s86", "s87")
        I("s_add_u32 s86, s86, 0x80")
        lane(8, self.S_WD, "s86", "s87")
        I(f"s_min_u32 s86, s6, {3136-7}\ns_lshl_b32 s86, s86, 7")
        lane(9, self.S_WO, "s86", None)

    def pf2(self, k):
        I = self.I
        P = self.vPF
        mask = (0x1f if self.o.pf0 + k <= 6 else 0) | (0x3e0 if k <= 6 else 0)
        I(f"s_mov_b64 exec, {hex(mask)}")
        I(f"global_load_dword v{self.vT+12}, v[{P}:{P+1}], off", "pf")
        self.b.vm[-1] = (set(), "pf")
        I(f"s_mov_b64 exec, -1")
        if k < 6:
            I(f"v_add_co_u32 v{P}, vcc, v{P+2}, v{P}\nv_addc_co_u32 v{P+1}, vcc, 0, v{P+1}, vcc")

    def pf_batch(self, when):
        for spec in self.o.pfs:
            if len(spec) == 5:
                w, s0, s1, pb, fin = spec
                p0, p1, d0, d1 = 0, (7 if pb == 1 else pb), 0, (13 if fin else 0)
            else:
                w, s0, s1, p0, p1, d0, d1 = spec
            if w != when or self.o.coop != 1:
                continue
            mx = sum(3 << (2 * s_) for s_ in range(s0, s1))
            mc = sum(1 << (2 * s_) for s_ in range(s0, s1))
            mw = mc | sum(2 << (2 * s_) for s_ in range(p0, p1))
            P = self.vPF
            if mx:
                self.I(f"s_mov_b64 exec, {hex(mx)}")
                self.pf(P, self.S_X, "0")
            if mw:
                self.I(f"s_mov_b64 exec, {hex(mw)}")
                self.pf(P + 1, self.S_A, "0")
                self.pf(P + 2, self.S_B, "0")
                if mc:
                    self.pf(P + 3, self.S_C, "0")
            if d1 > d0:
                self.I(f"s_mov_b64 exec, {hex(sum(1 << l for l in range(d0, d1)))}")
                self.pf(P + 4, self.S_WD, "0")
                if d1 == 13:
                    self.I("s_mov_b64 exec, 0xf")
                    self.pf(P + 5, self.S_WO, "0")
            self.I("s_mov_b64 exec, -1")

    def xpf(self, h, l0=0, l1=None):
        nl = 25 if h == 2 else 49
        l1 = nl if l1 is None else min(l1, nl)
        m = sum(1 << l for l in range(l0, l1))
        self.I(f"s_mov_b32 exec_lo, {hex(m & 0xffffffff)}\ns_mov_b32 exec_hi, {hex(m >> 32)}")
        self.pf(self.vPF + 6 + h, self.S_WO if h == 2 else self.S_WD, "0")
        self.I("s_mov_b64 exec, -1")

    def record(self, fn):
        L = []
        real = self.I
        self.I = lambda t, tag=None: L.append(lambda: real(t, tag))
        fn()
        del self.I
        return L

    def dma_stageA(self, st):
        I = self.I
        base = (st % 4) * SLOT
        tag = f"st{st}"
        L = []
        L.append(lambda: I(f"s_add_u32 m0, s{self.sM0}, {base}"))
        for bq in range(4):
            L.append(lambda bq=bq: I(f"buffer_load_dwordx4 v{self.vXD+bq}, s[{self.S_X}:{self.S_X+3}], s{self.sX} offen offset:{1024*bq}{' nt' if 'x' in self.o.nt else ''} lds", tag))
        prev = lambda: I(f"s_add_u32 s{self.sX}, s{self.sX}, 0x80")
        for seg, (srd, so, stp) in enumerate(((self.S_A, self.sA, self.sSAB), (self.S_B, self.sB, self.sSAB), (self.S_C, self.sC, None))):
            L.append(lambda seg=seg: I(f"s_add_u32 m0, s{self.sM0}, {base + 4096 + 2048*seg}"))
            L.append(prev)
            for e in range(2):
                L.append(lambda seg=seg, e=e, srd=srd, so=so: I(f"buffer_load_dwordx4 v{self.vWD+2*seg+e}, s[{srd}:{srd+3}], s{so} offen offset:{1024*e}{' nt' if 'w' in self.o.nt else ''} lds", tag))
            prev = lambda so=so, stp=stp: I(f"s_add_u32 s{so}, s{so}, " + (f"s{stp}" if stp else str(64*2688)))
        L.append(prev)
        return L

    def dma_stageB(self, t):
        I = self.I
        base = PB_BASE[t]
        tag = f"st{7+t}"
        L = []
        prev = None
        if t == 0:
            prev = lambda: I(f"s_cmp_lg_u32 s{self.sISV}, 0\ns_cselect_b32 s{self.S_B+2}, 0, s{self.S_B+2}")
        for seg, (srd, so) in enumerate(((self.S_A, self.sA2), (self.S_B, self.sB2))):
            L.append(lambda seg=seg: I(f"s_add_u32 m0, s{self.sM0B}, {base + 2048*seg}"))
            if prev:
                L.append(prev)
            for e in range(2):
                L.append(lambda seg=seg, e=e, srd=srd, so=so: I(f"buffer_load_dwordx4 v{self.vWD+2*seg+e}, s[{srd}:{srd+3}], s{so} offen offset:{1024*e}{' nt' if 'w' in self.o.nt else ''} lds", tag))
            prev = lambda so=so: I(f"s_add_u32 s{so}, s{so}, s{self.sSAB}")
        L.append(prev)
        return L

    def rd_w(self, bufset, slot_t, addr_t, const):
        out = []
        r = self.wf(bufset, slot_t)
        for e in range(2):
            v, imm = self.lds(self.vWR, 3, addr_t, const + 512 * e)
            out.append(lambda r=r, e=e, v=v, imm=imm: self.I(f"ds_read_b64_tr_b16 a[{r+2*e}:{r+2*e+1}], {v} offset:{imm}"))
        return out

    def rd_x(self, M, n):
        st, ks = divmod(n, 4)
        v, imm = self.lds(self.vXR, 4, ks, (st % 4) * SLOT + M * CHUNK)
        return [lambda: self.I(f"ds_read_b128 {self.xf(M, n)}, {v} offset:{imm}")]

    def readsA(self, n):
        st, ks = divmod(n, 4)
        c = (st % 4) * SLOT + ks * CHUNK + 4096
        bs = n % 2
        return [self.rd_w(bs, 0, 0, c), self.rd_x(0, n) + self.rd_x(1, n), self.rd_w(bs, 1, 1, c), self.rd_w(bs, 2, 2, c)]

    def readsB(self, n):
        t, ks = divmod(n, 4)
        c = PB_BASE[t] + ks * 4096
        bs = n % 2
        return [self.rd_w(bs, 1, 1, c), self.rd_w(bs, 2, 2, c)]

    def mfma(self, d, a, bb, first):
        c = "0" if first else f"v[{d}:{d+15}]"
        self.I(f"v_mfma_f32_32x32x16_bf16 v[{d}:{d+15}], {a}, {bb}, {c}")

    def dbg_load(self, tag=None):
        self.I(f"global_load_dword v{self.vPOLL}, v{self.vZ}, s[{self.pDBG}:{self.pDBG+1}] sc1", tag)

    def pf(self, v, srd, so):
        self.I(f"buffer_load_dword v{self.vT+12}, v{v}, s[{srd}:{srd+3}], {so} offen{' nt' if 'p' in self.o.nt else ''}", "pf")
        self.b.vm[-1] = (set(), "pf")

    def passA(self):
        I, b, o = self.I, self.b, self.o
        b.wait_tags(("st0",))
        self.ts()
        if o.thr:
            I(f"s_getreg_b32 s86, hwreg(HW_REG_XCC_ID, 0, 4)\ns_and_b32 s87, s2, 7\ns_cmp_lg_u32 s86, s87\ns_cbranch_scc0 L_xok")
            kv = list(b.vm)
            I(f"v_mov_b32 v34, 1\nglobal_store_dword v{self.vZ}, v34, s[{self.pDBG}:{self.pDBG+1}] offset:128 sc1")
            b.vm = kv
            b.label("L_xok")
        I(f"s_or_b32 s86, s2, s{self.sWV}\ns_cmp_eq_u32 s86, 0\ns_cbranch_scc0 L_notag")
        snap_vm = list(b.vm)
        I(f"v_add_u32 v34, 2, v{self.vPOLL}\nv_or_b32 v34, 1, v34\ns_mov_b32 s86, {E_OFF}")
        if o.thr:
            I(f"v_readfirstlane_b32 s87, v{self.vPOLL}\ns_sub_u32 s88, s98, s87\ns_cmp_lt_u32 s88, 0x8000000\ns_cselect_b32 s88, 1, 0")
            I(f"s_cmp_eq_u32 s87, 0xfbfbfbfb\ns_cselect_b32 s89, {o.thrpat}, {1 - o.thrpat} ^ 1 ^ 1\ns_or_b32 s88, s88, s89\nv_mov_b32 v35, s88".replace(f"{1 - o.thrpat} ^ 1 ^ 1", str(1 - o.thrpat)))
            I(f"global_store_dword v{self.vZ}, v35, s[{self.pDBG}:{self.pDBG+1}] offset:132 sc1")
            I("v_mov_b32 v34, s98\nv_or_b32 v34, 1, v34")
        I(f"s_mov_b64 exec, 1")
        I(f"buffer_store_dword v34, v{self.vZ}, s[{self.S_WS}:{self.S_WS+3}], s86 offen sc1")
        I(f"global_store_dword v{self.vZ}, v34, s[{self.pDBG}:{self.pDBG+1}] sc1")
        I(f"s_mov_b64 exec, -1")
        b.vm = [(set(), t) if t == "E" else (d, t) for d, t in snap_vm]
        b.label("L_notag")
        I("s_barrier")
        for grp in self.readsA(0):
            for f in grp:
                f()
        def stream(v):
            if v <= 6:
                return self.dma_stageA(v)
            if v == 7:
                return self.dma_stageB(0) + self.dma_stageB(1)
            if v == 8:
                return self.dma_stageB(2) + self.dma_stageB(3)
            return []
        mf, fixed, pre = [], {}, {}
        vm_items, early = [], {}
        for n in range(28):
            st, ks = divmod(n, 4)
            g0 = 6 * n
            for t in range(3):
                for M in range(2):
                    r = self.wf(n % 2, t)
                    mf.append(self.mtext(self.acc(self.ACC_A, t, M), f"a[{r}:{r+3}]", self.xf(M, n), n == 0))
            if ks == 3:
                def bar(st=st):
                    tags = (f"st{st+1}",) if st < 6 else ("st7", "st8")
                    b.wait_tags(tags, lg_all=True)
                    I("s_barrier")
                fixed.setdefault(g0, []).append(bar)
            for i, grp in enumerate(self.readsA(n + 1) if n < 27 else self.readsB(0)):
                fixed.setdefault(g0 + i, []).extend(grp)
            if o.wA and n > 0:
                pre[g0] = [lambda: b.waitcnt(lg=4)]
                pre[g0 + 2] = [lambda: b.waitcnt(lg=4)]
            if n in o.As:
                pre.setdefault(g0, []).insert(0, self.ts)
            if ks == 0:
                v = st + o.lead
                early[len(vm_items)] = g0 if not o.ramp else max(0, 6 * (4 * (v - 4) + 3) + 1)
                vm_items += stream(v)
            if any(p[0] == 10 + n for p in o.pfs):
                fixed.setdefault(g0 + o.pfgap, []).append(lambda n=n: self.pf_batch(10 + n))
            if o.coop == 2 and n >= o.pft0 and (n - o.pft0) % o.pfdt == 0 and o.pfn0 + (n - o.pft0) // o.pfdt <= 6:
                fixed.setdefault(g0 + 4, []).append(lambda k=o.pfn0 + (n - o.pft0) // o.pfdt: self.pf2(k))
            for sp in o.xpf:
                if sp[0] == n:
                    fixed.setdefault(g0 + 5, []).append(lambda sp=sp: self.xpf(*sp[1:]))
            if n == o.tagn:
                fixed.setdefault(g0 + 5, []).append(lambda: self.dbg_load("tagrd"))
        self.ablate("A")
        self.sched(mf, fixed, [Stream(vm_items, 0, 164 - o.ramp, ahead=2, maxlag=3, early=early, prio=1),
                               Stream(self.setup, 0, 160, ahead=3, maxlag=4)], pre=pre)
        b.drop = ()
        I(f"s_cmp_lg_u32 s{self.sFIN}, 0\ns_cselect_b32 s{self.S_WD+2}, s{self.S_WD+2}, 0\ns_cselect_b32 s{self.S_WO+2}, s{self.S_WO+2}, 0")
        rest = []
        for v in range(7 + o.lead, 9):
            rest += stream(v)
        self.pend = rest + self.dma_stageB(4) + self.dma_stageB(5) + self.dma_stageB(6)

    def get_tag(self):
        I, b = self.I, self.b
        u = self.uid()
        I(f"v_readfirstlane_b32 s{self.sTAG}, v{self.vPOLL}")
        I(f"s_cmp_lg_u32 s{self.sTAG}, 0\ns_cbranch_scc1 L_gottag{u}")
        keep_vm, keep_lg = list(b.vm), list(b.lg)
        I(f"s_mov_b32 s{self.sSPIN}, 0")
        b.label(f"L_tagspin{u}")
        self.dbg_load()
        I(f"s_add_u32 s{self.sSPIN}, s{self.sSPIN}, 1\ns_cmp_gt_u32 s{self.sSPIN}, {SPIN_MAX}\ns_cbranch_scc1 L_exit")
        I(f"v_readfirstlane_b32 s{self.sTAG}, v{self.vPOLL}")
        I(f"s_cmp_lg_u32 s{self.sTAG}, 0\ns_cbranch_scc0 L_tagspin{u}")
        b.vm, b.lg = keep_vm, keep_lg
        b.label(f"L_gottag{u}")

    def cvt_store(self, r, so, imm, tag, voff=None):
        L = []
        for i in range(4):
            L.append(lambda i=i: self.I(f"v_cvt_pk_bf16_f32 v{r+i}, v{r+2*i}, v{r+2*i+1}"))
        v = self.vL16 if voff is None else voff
        L.append(lambda: self.I(f"buffer_store_dwordx4 v[{r}:{r+3}], v{v}, s[{self.S_WS}:{self.S_WS+3}], s{so} offen offset:{imm} sc1", tag))
        return L

    def sigmoid_tile(self, r, so, imm, tag, pk):
        I = self.I
        L = []
        if pk:
            for i in range(0, 8, 2):
                L.append(lambda i=i: I(f"v_pk_mul_f32 v[{r+i}:{r+i+1}], v[{r+i}:{r+i+1}], s[{self.sNL2E}:{self.sNL2E+1}] op_sel_hi:[1,0]"))
        else:
            for i in range(8):
                L.append(lambda i=i: I(f"v_mul_f32 v{r+i}, s{self.sNL2E}, v{r+i}"))
        for i in range(8):
            L.append(lambda i=i: I(f"v_exp_f32 v{r+i}, v{r+i}"))
        if pk:
            for i in range(0, 8, 2):
                L.append(lambda i=i: I(f"v_pk_add_f32 v[{r+i}:{r+i+1}], v[{r+i}:{r+i+1}], 1.0 op_sel_hi:[1,0]"))
        else:
            for i in range(8):
                L.append(lambda i=i: I(f"v_add_f32 v{r+i}, 1.0, v{r+i}"))
        for i in range(8):
            L.append(lambda i=i: I(f"v_rcp_f32 v{r+i}, v{r+i}"))
        if pk:
            for i in range(0, 8, 2):
                L.append(lambda i=i: I(f"v_pk_mul_f32 v[{r+i}:{r+i+1}], v[{r+i}:{r+i+1}], v[{r+8+i}:{r+9+i}]"))
        else:
            for i in range(8):
                L.append(lambda i=i: I(f"v_mul_f32 v{r+i}, v{r+i}, v{r+8+i}"))
        return L + self.cvt_store(r, so, imm, tag)

    def flag_store(self, phase):
        I = self.I
        lab = f"L_nofl{self.uid()}"
        I(f"s_cmp_eq_u32 s{self.sWV}, 0\ns_cbranch_scc0 {lab}")
        keep = list(self.b.vm)
        I(f"v_mov_b32 v{self.vT}, s{self.sTAG}\ns_mov_b64 exec, 1")
        I(f"s_movk_i32 s86, {4096*phase}")
        I(f"buffer_store_dword v{self.vT}, v{self.vFL}, s[{self.S_WS}:{self.S_WS+3}], s86 offen sc1")
        I("s_mov_b64 exec, -1")
        self.b.vm = keep
        self.b.label(lab)

    _uid = 0

    def uid(self):
        self._uid += 1
        return self._uid

    @staticmethod
    def weave(main, side, start=0.0, end=1.0):
        out = []
        n = len(main)
        a, e = int(start * n), max(int(end * n), int(start * n) + 1)
        k = 0
        for i, f in enumerate(main):
            out.append(f)
            if i >= a:
                want = min(len(side), math.ceil(len(side) * (i - a + 1) / (e - a)))
                while k < want:
                    out.append(side[k]); k += 1
        out += side[k:]
        return out

    def passB_GU(self):
        I, b, o = self.I, self.b, self.o
        qk, epi = [], []
        for M, so in ((0, self.sQ0), (1, self.sQ1)):
            r = self.acc(self.ACC_A, 0, M)
            qk += self.cvt_store(r, so, 0, "qk") + self.cvt_store(r + 8, so, 1024, "qk")
        hst = []
        for t in (1, 2):
            for M, so in ((0, self.sH0), (1, self.sH1)):
                tl = self.sigmoid_tile(self.acc(self.ACC_A, t, M), so, 1024 * (t - 1), "h", o.pkB)
                epi += tl[:-1]
                hst.append(tl[-1])
        epi = qk + epi + self.att_masks()
        mf, fixed, pre = [], {}, {}
        vm, early = list(self.pend), {}
        for k in range(len(vm)):
            early[k] = int(o.p0 + k * o.ppace)

        def add(items, gap):
            early[len(vm)] = gap
            vm.extend(items)
        for s_ in range(8):
            add(self.fin_dma(s_), int(4 * (o.w0 + s_ * o.wpace) + 1))
        late = []
        for s_ in range(8, 8 + o.nB2):
            late.append((int(4 * (o.w0 + (s_ - 8) * o.wpace + o.wlat + 1.5)), self.fin_dma(s_)))
        rds, rearly = [], {}
        for s_ in range(8):
            rearly[len(rds)] = int(4 * (o.w0 + s_ * o.wpace + o.wlat))
            rds += self.fin_rdw(s_)
        late.append((4 * o.kpoll + 2, [lambda: self.poll_issue(self.vAP, self.vPOLL)]))
        late.append((4 * o.kchk, [lambda: self.poll_check(self.vAP, self.vPOLL, self.sMSK)] + self.record(self.att_loads_K)
                     + [lambda: self.poll_issue(self.vAP, self.vPOLL)]))
        for gap, items in sorted(late, key=lambda x: x[0]):
            add(items, gap)
        for n in range(28):
            g0 = 4 * n
            for t in range(2):
                for M in range(2):
                    r = self.wf(n % 2, t + 1)
                    mf.append(self.mtext(self.acc(self.ACC_B, t, M), f"a[{r}:{r+3}]", self.xf(M, n), n == 0))
            fx = fixed.setdefault(g0, [])
            if n in o.bs:
                pre.setdefault(g0, []).append(self.ts)
            if n == 7:
                fx.append(lambda: (b.wait_tags(("st9", "st10"), lg_all=True), I("s_barrier")))
            if n == o.fl0 and n != 15:
                fx.append(lambda: (b.wait_tags(("qk",)), I("s_barrier"), self.flag_store(0)))
            if n == 15:
                def bar():
                    b.wait_tags(("st11", "st12", "st13", "qk"), lg_all=True)
                    I("s_barrier")
                    if o.fl0 == 15:
                        self.flag_store(0)
                fx.append(bar)
            if n < 27:
                nx = self.readsB(n + 1)
                fx += nx[0]
                fixed.setdefault(g0 + o.rB, []).extend(nx[1])
            if n == 3:
                fixed.setdefault(g0 + 3, []).append(self.get_tag)
        self.ablate("B")
        self.sched(mf, fixed, [Stream(vm, 0, 110, ahead=100, maxlag=100, early=early, prio=1, starve=2),
                               Stream(rds, 4 * (o.w0 + o.wlat), 110, ahead=4, maxlag=4, early=rearly),
                               Stream(epi, 3, 4 * o.epi_end - 1, ahead=o.epi_ahead, maxlag=4)], pre=pre)
        b.drop = ()
        self.ts()
        T = []
        for t in (0, 1):
            for M, so in ((0, self.sH0), (1, self.sH1)):
                T.append(self.sigmoid_tile(self.acc(self.ACC_B, t, M), so, 1024 * t, "h", o.pk))
        bump = lambda: I(f"s_add_u32 s{self.sH0}, s{self.sH0}, 0x1000\ns_add_u32 s{self.sH1}, s{self.sH1}, 0x1000")
        self.postB([T[0][:-1], T[1][:-1], T[2], T[3]], hst[:3] + [lambda: (hst[3](), bump())] + [T[0][-1], T[1][-1]])

    NRD = 8

    def postB(self, T, hst):
        I, b, o = self.I, self.b, self.o
        KF = self.KF
        rd = lambda a, e: [f for s_ in range(a, e) for f in self.fin_rdw(s_)]
        dm = lambda a, e: [f for s_ in range(a, e) for f in self.fin_dma(s_)]
        d0 = 8 + o.nB2
        for f in self.weave(T[0] + T[1], dm(d0, d0 + o.nb0), 0.05, 0.9):
            f()
        self.poll_check(self.vAP, self.vPOLL, self.sMSK2)
        self.att_loads_V()
        self.ts()
        b.wait_tags(("K",))
        I(f"ds_write_b64 v{self.vP+6}, v[{self.vP}:{self.vP+1}]")
        I(f"ds_write_b64 v{self.vP+7}, v[{self.vP+2}:{self.vP+3}] offset:4096")
        q = self.vQ
        I(f"v_bfi_b32 v{q}, v{self.vMA}, v{q}, v{self.vP+4}\nv_and_b32 v{q+1}, v{self.vMA}, v{q+1}")
        I(f"v_bfi_b32 v{q+6}, v{self.vMB}, v{q+6}, v{self.vP+4}\nv_and_b32 v{q+7}, v{self.vMB}, v{q+7}")
        b.waitcnt(lg=0)
        I("s_barrier")
        self.ts()
        order = [8, 0, 7, 6, 5, 4, 3, 2, 1]

        def rdk(n):
            for s_ in range(2):
                r = KF + (n % 3) * 8 + 4 * s_
                I(f"ds_read_b128 v[{r}:{r+3}], v{self.vKA} offset:{2048*order[n] + 1024*s_}")
        rdk(0)
        rdk(1)
        m = self.vM
        mx = []

        def maxops(n):
            s0 = self.S(order[n])
            return [(lambda k=k: I(f"v_max_f32 v{m}, v{s0}, v{s0+1}" if (n == 0 and k == 0) else f"v_max3_f32 v{m}, v{m}, v{s0+k}, v{s0+k+1}")) for k in range(0, 16, 2)]
        vs = list(T[2][:-1]) + list(T[3][:-1])
        KH = 13
        bg = dm(d0 + o.nb0, d0 + o.nb0 + o.nbq)
        self.bg_rest = d0 + o.nb0 + o.nbq
        self.nold = d0 + o.nb0
        for k in range(18):
            n, half = divmod(k, 2)
            d = self.S(order[n])
            r = KF + (n % 3) * 8 + 4 * half
            c = f"v[{d}:{d+15}]" if (half or order[n] in (0, 8)) else "0"
            if order[n] == 1:
                assert not vs
            if half == 0 and 1 <= n <= 6 and hst:
                hst[n - 1]()
            I(f"v_mfma_f32_32x32x16_bf16 v[{d}:{d+15}], v[{r}:{r+3}], v[{q+4*half}:{q+4*half+3}], {c}")
            if half == 0 and n + 2 < 9:
                rdk(n + 2)
            if half == 1 and n >= 1:
                mx += maxops(n - 1)
            nv = math.ceil(len(vs) / (KH - k + 1)) if k <= KH else 0
            for _ in range(nv):
                vs.pop(0)()
            if k == KH and T[2]:
                T[2][-1]()
            if k == KH + 2:
                T[3][-1]()
            for _ in range(math.ceil(len(bg) / (18 - k))):
                bg.pop(0)()
            for _ in range(max(0, 5 - nv) if k < 17 else len(mx)):
                if mx:
                    mx.pop(0)()
        self.mx_rest = maxops(8)

    def passB_V(self):
        I, b, o = self.I, self.b, self.o
        b.drop = (lambda i: i.kind == "vmem" and f"s[{self.S_B}:{self.S_B+3}]" in i.text,)
        for f in list(self.pend):
            f()
        b.drop = ()
        self.srd(self.S_C, f"s{self.pGW}", f"s{self.pGW+1}", 896)
        I(f"s_add_u32 m0, s{self.sM0B}, {GW_LDS}")
        I(f"buffer_load_dwordx4 v{self.vL16}, s[{self.S_C}:{self.S_C+3}], 0 offen lds", "gw")
        I(f"s_sub_u32 s{self.sT1}, s{self.sQ0}, 0x2000\ns_sub_u32 s{self.sT2}, s{self.sQ1}, 0x2000")
        I(f"v_add_u32 v{self.vT+2}, 0x1000, v{self.vL16}")
        self.get_tag()
        epi = []
        for M, so in ((0, self.sQ0), (1, self.sQ1)):
            r = self.acc(self.ACC_A, 0, M)
            epi += self.cvt_store(r, so, 0, "qk") + self.cvt_store(r + 8, so, 1024, "qk")
        for t in (1, 2):
            for M, so in ((0, self.sT1), (1, self.sT2)):
                r = self.acc(self.ACC_A, t, M)
                epi += self.cvt_store(r, so, 1024 * (t - 1), "qk") + self.cvt_store(r + 8, so, 1024 * (t - 1), "qk", voff=self.vT + 2)
        I(f"s_and_b32 s88, s{self.sWV}, 1\ns_sub_u32 s89, s{self.sJ}, 14\ns_xor_b32 s88, s88, s89\ns_lshl_b32 s88, s88, 6")
        for st in range(3):
            I(f"v_xor_b32 v{self.vWR+3*st}, s88, v{self.vWR+3*st}\nv_subrev_u32 v{self.vWR+3*st}, 0x1000, v{self.vWR+3*st}")
        I(f"s_lshl_b32 s88, s{self.sRB}, 2\ns_add_u32 s88, s88, s{self.sWV}")
        I(f"s_mul_i32 s88, s88, {QKV_MT}\ns_lshl_b32 s89, s89, 11\ns_add_u32 s88, s88, s89")
        I(f"s_add_u32 s{self.sT3}, s88, {8*17*512}")
        I(f"v_lshrrev_b32 v{self.vT+3}, 5, v0\nv_lshlrev_b32 v{self.vT+3}, 4, v{self.vT+3}")
        I(f"s_add_u32 s88, s{self.sM0B}, {GW_LDS}\nv_add_u32 v{self.vT+3}, s88, v{self.vT+3}")
        I(f"v_and_b32 v{self.vT+4}, 31, v0\nv_lshlrev_b32 v{self.vT+4}, 2, v{self.vT+4}")
        D = self.ACC_B
        I(f"s_bitcmp1_b32 s{self.sWV}, 0\ns_cbranch_scc1 L_v_wc1")
        snap = b.snapshot()
        for wc in range(2):
            if wc == 1:
                b.label("L_v_wc1")
                b.restore(snap)
            e = list(epi)

            def rdv(n):
                t, ks = divmod(n, 4)
                r = self.WF + 4 * (n % 8)
                for e_ in range(2):
                    v, imm = self.lds(self.vWR, 3, 0, PB_BASE[t] + ks * 4096 + 512 * e_)
                    I(f"ds_read_b64_tr_b16 a[{r+2*e_}:{r+2*e_+1}], {v} offset:{imm}")
            PD = 5
            b.waitcnt(lg=0)
            for n in range(PD):
                rdv(n)
            for n in range(28):
                if n + PD == 8:
                    b.wait_tags(("st9", "st10"), lg_all=True)
                    I("s_barrier")
                if n + PD == 16:
                    b.wait_tags(("st11", "st12", "st13"))
                    I("s_barrier")
                if n + PD < 28:
                    rdv(n + PD)
                r = self.WF + 4 * (n % 8)
                self.mfma(D, f"a[{r}:{r+3}]", self.xf(wc, n), n == 0)
                for _ in range(3):
                    if e:
                        e.pop(0)()
            assert not e
            for f in self.cvt_store(D, self.sT3, 0, "qk") + self.cvt_store(D + 8, self.sT3, 1024, "qk"):
                f()
            if o.vs:
                nts_keep = self.nts
                self.ts()
                self.nts = nts_keep + (1 if wc == 1 else 0)
            b.wait_tags(("gw",))
            rdg = lambda n: I(f"ds_read_b128 a[{self.WF+4*(n%8)}:{self.WF+4*(n%8)+3}], v{self.vT+3} offset:{32*n}")
            for n in range(PD):
                rdg(n)
            mk = self.att_masks()
            for n in range(28):
                if n + PD < 28:
                    rdg(n + PD)
                r = self.WF + 4 * (n % 8)
                self.mfma(D + 16, f"a[{r}:{r+3}]", self.xf(wc, n), n == 0)
                for _ in range(3):
                    if mk:
                        mk.pop(0)()
            assert not mk
            I(f"v_mov_b32 v{self.vT+5}, v{D+16}")
            if wc == 0:
                I("s_branch L_v_done")
        b.label("L_v_done")
        b.wait_tags(("qk",), lg_all=True)
        I("s_barrier")
        self.flag_store(0)
        if o.vs:
            self.ts()
        for s_ in range(8):
            for f in self.fin_dma(s_):
                f()
        self.poll_issue(self.vAP, self.vPOLL)
        for s_ in range(8):
            for f in self.fin_rdw(s_):
                f()
        for s_ in range(8, 8 + o.nB2):
            for f in self.fin_dma(s_):
                f()
        self.poll_check(self.vAP, self.vPOLL, self.sMSK)
        self.att_loads_K()
        self.poll_issue(self.vAP, self.vPOLL)
        for _ in o.bs[(2 if o.vs else 0):]:
            self.ts()
        self.ts()
        self.postB([[], [], [], [lambda: I(f"buffer_store_dword v{self.vT+5}, v{self.vT+4}, s[{self.S_WS}:{self.S_WS+3}], s{self.sZO} offen sc1", "h")]], [])

    def poll_setup_att(self):
        I = self.I
        v, t = self.vAP, self.vT
        I(f"v_lshrrev_b32 v{v}, 4, v0\nv_add_u32 v{v}, s{self.sRB}, v{v}\nv_subrev_u32 v{v}, 2, v{v}\nv_max_i32 v{v}, 0, v{v}")
        I(f"v_min_u32 v{v}, 15, v{v}\nv_lshlrev_b32 v{v}, 8, v{v}\nv_and_b32 v{t}, 15, v0\nv_lshl_add_u32 v{v}, v{t}, 2, v{v}")
        I(f"v_add_u32 v{v}, {FL_OFF}, v{v}")
        I(f"s_mul_i32 s86, s{self.sJ}, 28\ns_add_u32 s87, s86, 27\ns_lshr_b32 s86, s86, 6\ns_lshr_b32 s87, s87, 6")
        I("s_lshl_b32 s88, 1, s86\ns_lshl_b32 s89, 1, s87\ns_or_b32 s88, s88, s89")
        I("s_lshl_b32 s89, s88, 7")
        I(f"s_mul_i32 s{self.sMSK}, s89, 0x10001\ns_or_b32 s{self.sMSK+1}, s88, s89")
        I("s_cmp_le_u32 s86, 3\ns_cselect_b32 s90, 0x4000, 0\ns_cmp_ge_u32 s87, 3\ns_cselect_b32 s91, 0x8000, 0\ns_or_b32 s90, s90, s91")
        I(f"s_mul_i32 s{self.sMSK2}, s90, 0x10001\ns_mov_b32 s{self.sMSK2+1}, s90")

    def poll_issue(self, vaddr, vdst, soff="0"):
        self.I(f"buffer_load_dword v{vdst}, v{vaddr}, s[{self.S_WS}:{self.S_WS+3}], {soff} offen sc1", "poll")

    def poll_check(self, vaddr, vdst, smask, soff="0"):
        I, b = self.I, self.b
        u = self.uid()
        self.nchk = getattr(self, "nchk", 0)
        kind = {self.sMSK2: "V"}.get(smask, "K" if vaddr == self.vAP else ("H" if soff == "0" else "O"))
        if "Gno" + kind in self.o.abl.split(","):
            return
        I(f"v_cmp_ne_u32 vcc, s{self.sTAG}, v{vdst}")
        I(f"s_and_b64 vcc, vcc, s[{smask}:{smask+1}]\ns_cbranch_scc0 L_pok{u}")
        keep_vm, keep_lg = list(b.vm), list(b.lg)
        I(f"s_mov_b32 s{self.sSPIN}, 0")
        b.label(f"L_psp{u}")
        if self.o.slp:
            I(f"s_sleep {self.o.slp}")
        I(f"buffer_load_dword v{vdst}, v{vaddr}, s[{self.S_WS}:{self.S_WS+3}], {soff} offen sc1")
        I(f"s_add_u32 s{self.sSPIN}, s{self.sSPIN}, 1\ns_cmp_gt_u32 s{self.sSPIN}, {SPIN_MAX}\ns_cbranch_scc1 L_exit")
        I(f"v_cmp_ne_u32 vcc, s{self.sTAG}, v{vdst}")
        I(f"s_and_b64 vcc, vcc, s[{smask}:{smask+1}]\ns_cbranch_scc1 L_psp{u}")
        b.vm, b.lg = keep_vm, keep_lg
        b.label(f"L_pok{u}")

    def S(self, i):
        return self.SREG[i]

    def att_setup(self):
        I = self.I
        h = self.sJ
        I(f"s_and_b32 s86, s{h}, 1\ns_sub_u32 s{self.sPAR}, 0, s86\ns_mov_b32 s{self.sPAR+1}, s{self.sPAR}")
        I(f"s_mul_i32 s87, s{h}, 7\ns_lshr_b32 s87, s87, 1\ns_lshl_b32 s87, s87, 9")
        I(f"s_lshl_b32 s88, s{self.sRB}, 2\ns_mul_i32 s89, s{self.sWV}, 3\ns_add_u32 s89, s89, s88\ns_sub_u32 s89, s89, 8")
        for i in range(3):
            I(f"s_add_u32 s90, s89, {i}\ns_max_i32 s90, s90, 0\ns_mul_i32 s90, s90, {QKV_MT}\ns_add_u32 s90, s90, s87")
            I(f"s_add_u32 s{self.sKT+i}, s90, {56*512}")
        v = self.vT
        I(f"v_lshrrev_b32 v{v}, 5, v0\nv_add_u32 v{v+1}, s89, v{v}\nv_mov_b32 v{v+2}, 0xf149")
        I(f"v_cmp_gt_i32 vcc, 0, v{v+1}\nv_cndmask_b32 v{self.vP}, 0, v{v+2}, vcc\nv_mov_b32 v{self.vP+1}, 0")
        I(f"s_add_u32 s90, s89, 2\ns_cmp_lt_i32 s90, 0\ns_cselect_b32 s90, 0xf149, 0\nv_mov_b32 v{self.vP+2}, s90\nv_mov_b32 v{self.vP+3}, 0")
        I(f"v_mov_b32 v{self.vP+4}, 0x3f80\nv_mov_b32 v{self.vP+5}, 0")
        I(f"s_cmp_eq_u32 s86, 0\ns_cselect_b32 s90, {1536+8}, 0\ns_mul_i32 s91, s{self.sWV}, {3*2048}\ns_add_u32 s90, s90, s91\ns_add_u32 s90, s90, {KV_K}")
        I(f"v_and_b32 v{v+1}, 31, v0\nv_lshlrev_b32 v{v+1}, 4, v{v+1}\nv_add_u32 v{self.vP+7}, s90, v{v+1}\nv_lshl_add_u32 v{self.vP+6}, v{v}, 11, v{self.vP+7}")
        I(f"v_and_b32 v{v+1}, 31, v0\nv_lshlrev_b32 v{v+2}, 2, v{v}\nv_xor_b32 v{v+1}, v{v+1}, v{v+2}\nv_lshlrev_b32 v{v+1}, 4, v{v+1}")
        I(f"v_lshl_add_u32 v{self.vP+8}, v{v}, 9, v{v+1}\nv_xor_b32 v{self.vP+9}, 0x80, v{self.vP+8}")
        I(f"s_lshl_b32 s90, s{self.sWV}, 11\ns_add_u32 s91, s90, {KV_K}\nv_add_u32 v{self.vKA}, s91, v{self.vL16}")
        I(f"v_bfe_u32 v{v+1}, v0, 4, 1\nv_bfe_u32 v{v+2}, v0, 1, 1\nv_lshl_add_u32 v{v+1}, v{v+1}, 1, v{v+2}")
        I(f"v_xor_b32 v{v+2}, v{v}, v{v+1}\nv_lshlrev_b32 v{v+2}, 2, v{v+2}\nv_bfe_u32 v{v+3}, v0, 2, 2\nv_add_u32 v{v+2}, v{v+2}, v{v+3}")
        I(f"v_lshlrev_b32 v{v+2}, 4, v{v+2}\nv_lshl_add_u32 v{v+2}, v{v+1}, 9, v{v+2}\nv_and_b32 v{v+3}, 1, v0\nv_lshl_add_u32 v{v+2}, v{v+3}, 3, v{v+2}")
        I(f"s_add_u32 s91, s90, {KV_V}\nv_add_u32 v{self.vVA}, s91, v{v+2}\nv_xor_b32 v{self.vVA+1}, 0x80, v{self.vVA}")
        I(f"v_subrev_u32 v{v+1}, 1, v{v}\nv_and_b32 v{v+1}, s{self.sPAR}, v{v+1}\nv_not_b32 v{self.vMA}, v{v+1}")
        I(f"v_sub_u32 v{v+1}, 0, v{v}\ns_not_b32 s91, s{self.sPAR}\nv_and_b32 v{v+1}, s91, v{v+1}\nv_not_b32 v{self.vMB}, v{v+1}")
        I(f"s_add_u32 s88, s88, s{self.sWV}\ns_mul_i32 s90, s88, {QKV_MT}\ns_add_u32 s{self.sQO}, s90, s87")
        I(f"s_mul_i32 s90, s88, {HO_MT}\ns_lshl_b32 s91, s{h}, 11\ns_add_u32 s90, s90, s91\ns_add_u32 s{self.sOO}, s90, {HO_OFF + 112*1024}")
        I(f"s_lshl_b32 s90, s88, 7\ns_add_u32 s{self.sZO}, s90, {Z_OFF}")
        m = self.vM
        I(f"v_lshlrev_b32 v{m}, 2, v{v}\nv_and_b32 v{m+1}, 31, v0\nv_sub_u32 v{m}, v{m+1}, v{m}\nv_mov_b32 v{m+1}, {NEG}")

    def att_masks(self):
        L = []
        v = self.vM
        pair = lambda r: f"s[{88+2*(r&1)}:{89+2*(r&1)}]"
        def cmp_(r):
            key = 8 * (r >> 2) + (r & 3)
            return lambda: self.I(f"v_cmp_gt_i32 {pair(r)}, {key}, v{v}")
        L.append(cmp_(0))
        for r in range(16):
            if r < 15:
                L.append(cmp_(r + 1))
            if r > 0:
                L.append(lambda r=r: self.I(f"v_sub_f32 v{self.S(0)+r-1}, v{v+1}, v{self.S(8)+r-1}"))
            L.append(lambda r=r: self.I(f"v_cndmask_b32 v{self.S(8)+r}, 0, v{v+1}, {pair(r)}"))
        L.append(lambda: self.I(f"v_sub_f32 v{self.S(0)+15}, v{v+1}, v{self.S(8)+15}"))
        return L

    def att_loads_K(self):
        I = self.I
        ws = f"s[{self.S_WS}:{self.S_WS+3}]"
        I(f"s_mul_i32 s86, s{self.sWV}, {3*2048}")
        for i in range(3):
            I(f"s_add_u32 m0, s86, {KV_K + 2048*i}")
            if i < 2:
                I(f"buffer_load_dwordx4 v[{self.vQ+4*i}:{self.vQ+4*i+3}], v{self.vL16}, {ws}, s{self.sQO} offen offset:{1024*i} sc1", "K")
            for e in range(2):
                I(f"buffer_load_dwordx4 v{self.vL16}, {ws}, s{self.sKT+i} offen offset:{1024*e} sc1 lds", "K")

    def att_loads_V(self):
        I = self.I
        ws = f"s[{self.S_WS}:{self.S_WS+3}]"
        I(f"s_mul_i32 s86, s{self.sWV}, {3*2048}")
        for i in range(3):
            I(f"s_add_u32 m0, s86, {KV_V + 2048*i}\ns_add_u32 s87, s{self.sKT+i}, {56*512}")
            for e in range(2):
                I(f"buffer_load_dwordx4 v{self.vP+8+e}, {ws}, s87 offen offset:{1024*e} sc1 lds", "V")

    def attention(self):
        I, b, o = self.I, self.b, self.o
        KF = self.KF
        m = self.vM
        order = [8, 7, 6, 5, 4, 3, 2, 1, 0]
        b.wait_tags(("V",))
        I(f"ds_write_b64 v{self.vP+6}, v[{self.vP+4}:{self.vP+5}] offset:{KV_V - KV_K}")
        I(f"ds_write_b64 v{self.vP+7}, v[{self.vP+4}:{self.vP+5}] offset:{KV_V - KV_K + 4096}")
        for f in self.mx_rest:
            f()
        b.waitcnt(lg=0)
        I("s_barrier")

        def rdv(i, bs):
            L = []
            for s in range(2):
                for e in range(2):
                    r = KF + bs * 8 + 4 * s + 2 * e
                    L.append(f"ds_read_b64_tr_b16 v[{r}:{r+1}], v{self.vVA+e} offset:{2048*i + 256*s}")
            return L
        for t in rdv(order[0], 0):
            I(t)
        I(f"v_mov_b32 v{m+1}, v{m}")
        I(f"v_permlane32_swap_b32 v{m}, v{m+1}")
        I(f"v_max_f32 v{m}, v{m}, v{m+1}")
        I(f"v_mul_f32 v{m}, s{self.sCS}, v{m}")
        I(f"s_mov_b32 s{self.sMSK}, 0x1ffff\ns_mov_b32 s{self.sMSK+1}, 0")
        self.ts()
        sched = {n: [] for n in range(9)}
        rd = lambda a, e: [f for s in range(a, e) for f in self.fin_rdw(s)]
        dm = lambda a, e: [f for s in range(a, e) for f in self.fin_dma(s)]
        pub = lambda: (b.wait_tags(("h",)), I("s_barrier"), self.flag_store(1))
        nd = self.bg_rest
        nr = 8
        per = math.ceil((28 - nd) / o.dtiles)
        issued = {s_: (-3 if s_ < self.nold else o.rd0 - 2) for s_ in range(nd)}
        for n in range(9):
            k = 0
            while nr < 28 and issued.get(nr, 99) + 2 <= n and (k < o.rdper or n >= 7):
                sched[n] += rd(nr, nr + 1)
                nr += 1
                k += 1
            k = 0
            while nd < 28 and k < per and (self.ring_prev(nd) is None or self.ring_prev(nd) < nr):
                sched[n] += dm(nd, nd + 1)
                issued[nd] = max(n, o.rd0 - 2)
                nd += 1
                k += 1
        assert nd == 28 and nr == 28, (nd, nr)
        self.wo_next = 28 + o.nwo
        for k in range(o.nwo):
            sched[o.wot + k * (7 - o.wot) // max(1, o.nwo)] += dm(28 + k, 29 + k)
        hl = [f for s in range(o.nh0) for f in self.fin_hload(s)]
        sched[7] += hl[:len(hl) // 2]
        sched[8] += hl[len(hl) // 2:]
        sched[o.hpub] = sched[o.hpub] + [pub]
        sched[o.hpoll] = sched[o.hpoll] + [lambda: self.poll_issue(self.vFA, self.vPOLL)]
        sched[7] = [self.hook_poll_check] + sched[7]
        O = self.vO
        prev = None
        for n, i in enumerate(order):
            if n in o.ss:
                self.ts()
            d = self.S(i)
            p = self.vP + 8 * (n % 2)
            L = []
            if o.pk:
                for k in range(0, 16, 2):
                    L.append(f"v_pk_fma_f32 v[{d+k}:{d+k+1}], v[{d+k}:{d+k+1}], s[{self.sNL2E}:{self.sCS}], v[{m}:{m+1}] op_sel:[0,1,0] op_sel_hi:[1,1,0] neg_lo:[0,0,1] neg_hi:[0,0,1]")
            else:
                for k in range(16):
                    L.append(f"v_fma_f32 v{d+k}, v{d+k}, s{self.sCS}, -v{m}")
            ex = [f"v_exp_f32 v{d+k}, v{d+k}" for k in range(16)]
            cv = [f"v_cvt_pk_bf16_f32 v{p+k}, v{d+2*k}, v{d+2*k+1}" for k in range(8)]
            seq = L + ex + cv
            vr = rdv(order[n + 1], (n + 1) % 2) if n + 1 < 9 else []
            main = []
            for k, t in enumerate(seq):
                main.append(lambda t=t: I(t))
                if prev is not None and k == 1:
                    main.append(lambda t=prev[0]: I(t))
                if prev is not None and k == 7:
                    main.append(lambda t=prev[1]: I(t))
                if k >= 10 and vr:
                    main.append(lambda t=vr.pop(0): I(t))
            for f in self.weave(main, sched[n], 0.0, 1.0):
                f()
            r = KF + (n % 2) * 8
            prev = (f"v_mfma_f32_32x32x16_bf16 v[{O}:{O+15}], v[{r}:{r+3}], v[{p}:{p+3}], " + ("0" if n == 0 else f"v[{O}:{O+15}]"),
                    f"v_mfma_f32_32x32x16_bf16 v[{O}:{O+15}], v[{r+4}:{r+7}], v[{p+4}:{p+7}], v[{O}:{O+15}]")
        I(prev[0])
        I(prev[1])
        t = self.vQ
        I(f"v_mul_f32 v{t}, s{self.sNL2E}, v{self.vZZ}\nv_exp_f32 v{t}, v{t}")
        z = self.vZZ + 1
        for a in range(2):
            I(f"v_mul_f32 v{z+a}, s{self.sNL2E}, v{z+a}\nv_exp_f32 v{z+a}, -v{z+a}")
        I(f"v_add_f32 v{t}, 1.0, v{t}")
        for a in range(2):
            I(f"v_add_f32 v{z+a}, 1.0, v{z+a}\nv_rcp_f32 v{z+a}, v{z+a}")
        I(f"v_cndmask_b32 v{t+1}, v{O+12}, v{O}, s[{self.sPAR}:{self.sPAR+1}]\nv_mov_b32 v{t+2}, v{t+1}")
        I(f"v_permlane32_swap_b32 v{t+1}, v{t+2}")
        I(f"v_cndmask_b32 v{t+1}, v{t+2}, v{t+1}, s[{self.sPAR}:{self.sPAR+1}]")
        I(f"v_mul_f32 v{t}, v{t}, v{t+1}\nv_rcp_f32 v{t}, v{t}")
        I(f"v_and_b32 v{t+1}, v{self.vMA}, v{t}\nv_and_b32 v{t+2}, v{self.vMB}, v{t}")
        for k in range(16):
            sc = t + 1 if k == 0 else (t + 2 if k == 12 else t)
            I(f"v_mul_f32 v{O+k}, v{O+k}, v{sc}")
        for f in self.cvt_store(O, self.sOO, 0, "o") + self.cvt_store(O + 8, self.sOO, 1024, "o"):
            f()

    def hook_poll_check(self):
        I = self.I
        self.poll_check(self.vFA, self.vPOLL, self.sMSK)
        v = self.vT
        I(f"v_and_b32 v{v}, 31, v0\nv_lshlrev_b32 v{v}, 2, v{v}")
        ws = f"s[{self.S_WS}:{self.S_WS+3}]"
        I(f"buffer_load_dword v{self.vZZ}, v{v}, {ws}, s{self.sZO} offen sc1", "z")
        I(f"buffer_load_dword v{self.vZZ+1}, v{v}, {ws}, s{self.sZF} offen sc1", "z")
        I(f"s_xor_b32 s{self.sZF}, s{self.sZF}, 0x80")
        I(f"buffer_load_dword v{self.vZZ+2}, v{v}, {ws}, s{self.sZF} offen sc1", "z")

    ENTRY = [(1, i) for i in range(8)] * 2 + [(0, i) for i in range(6)] + [(1, i) for i in range(6)] + [(0, i) for i in range(6)] + [(1, 6), (1, 7)]

    def ring_addr(self, step):
        hi, i = self.ENTRY[step]
        return hi, 2048 * i

    def ring_prev(self, step):
        for p in range(step - 1, -1, -1):
            if self.ENTRY[p] == self.ENTRY[step]:
                return p
        return None

    def final_setup(self):
        I = self.I
        v = self.vT
        I("s_lshr_b32 s86, s2, 3\ns_and_b32 s87, s2, 7\ns_mul_i32 s88, s86, 37\ns_lshr_b32 s88, s88, 8")
        I(f"s_mul_i32 s89, s88, 7\ns_sub_u32 s89, s86, s89\ns_cmp_lt_u32 s86, 28\ns_cselect_b32 s{self.sFIN}, 1, 0")
        I("s_min_u32 s88, s88, 3\ns_lshl_b32 s87, s87, 2\ns_add_u32 s87, s87, s88")
        I(f"s_lshr_b32 s90, s{self.sWV}, 1\ns_and_b32 s91, s{self.sWV}, 1")
        I(f"s_lshl_b32 s92, s88, 1\ns_add_u32 s92, s92, s89\ns_cmp_ge_u32 s92, 7\ns_cselect_b32 s93, 7, 0\ns_sub_u32 s94, s92, s93")
        if self.o.rot != 1:
            I({0: "s_mov_b32 s94, 0", 2: "s_mov_b32 s94, s89", 3: "s_lshl_b32 s94, s88, 1"}[self.o.rot])
        I(f"s_sub_u32 s{self.sWRAP}, 7, s94\ns_and_b32 s86, s89, {1 if self.o.rot in (1, 2) else 0}")
        I(f"s_mul_i32 s92, s{self.sWV}, {448*896}\ns_lshl_b32 s89, s89, 7\ns_add_u32 s{self.sFW}, s92, s89")
        I(f"s_mul_i32 s92, s94, {64*896}\ns_add_u32 s{self.sFW}, s{self.sFW}, s92")
        I(f"s_mul_i32 s92, s{self.sWV}, {112*896}\ns_add_u32 s{self.sFWO}, s92, s89\ns_mul_i32 s92, s86, {56*896}\ns_add_u32 s{self.sFWO}, s{self.sFWO}, s92")
        I(f"s_cmp_lg_u32 s86, 0\ns_mov_b32 s{self.sDWO}, {16*896}\ns_cselect_b32 s{self.sDWO}, {(-96*896) & 0xFFFFFFFF}, s{self.sDWO}")
        I(f"s_cmp_lg_u32 s86, 0\ns_movk_i32 s{self.sDHO}, 0x1000\ns_cselect_b32 s{self.sDHO}, 0xfffff000, s{self.sDHO}")
        I(f"s_mul_i32 s{self.sFM0}, s{self.sWV}, {12*K}\ns_add_u32 s{self.sFM0}, s{self.sFM0}, {RING_LO}")
        I(f"s_lshl_b32 s{self.sFM1}, s{self.sWV}, 14\ns_add_u32 s{self.sFM1}, s{self.sFM1}, {RING_HI}")
        I(f"v_lshrrev_b32 v{v}, 3, v0\nv_and_b32 v{v+1}, 2, v{v}\nv_lshlrev_b32 v{v+1}, 1, v{v+1}\nv_and_b32 v{v+2}, 7, v0\nv_xor_b32 v{v+1}, v{v+1}, v{v+2}")
        I(f"v_mul_u32_u24 v{v}, 0x380, v{v}\nv_lshl_add_u32 v{self.vFD}, v{v+1}, 4, v{v}\nv_add_u32 v{self.vFD+1}, {8*896-1024}, v{self.vFD}")
        I(f"v_bfe_u32 v{v}, v0, 2, 2\nv_lshrrev_b32 v{v+1}, 5, v0")
        I(f"v_and_b32 v{v+2}, 1, v0\nv_lshlrev_b32 v{v+2}, 4, v{v+2}\nv_bfe_u32 v{v+3}, v0, 1, 1\nv_lshl_add_u32 v{v+2}, v{v+3}, 3, v{v+2}")
        I(f"v_bfe_u32 v{v+3}, v0, 4, 1\nv_and_b32 v{v+4}, 2, v{v}\nv_xor_b32 v{v+3}, v{v+3}, v{v+4}\ns_lshl_b32 s92, s90, 1\nv_xor_b32 v{v+3}, s92, v{v+3}")
        I(f"v_lshl_add_u32 v{v+2}, v{v+3}, 5, v{v+2}\nv_lshl_add_u32 v{v+2}, v{v}, 7, v{v+2}")
        R = self.vFR
        I(f"v_lshl_add_u32 v{v+3}, v{v+1}, 10, v{v+2}\nv_add_u32 v{R}, s{self.sFM0}, v{v+3}\nv_xor_b32 v{R+1}, 64, v{R}")
        I(f"v_add_u32 v{R+2}, s{self.sFM1}, v{v+3}\nv_xor_b32 v{R+3}, 64, v{R+2}")
        I(f"v_lshlrev_b32 v{R+4}, 9, v{v+1}")
        I(f"s_lshl_b32 s93, s87, 1\ns_add_u32 s93, s93, s91\ns_mul_i32 s92, s93, {HO_MT}\ns_mul_i32 s88, s{self.sWV}, {28*1024}")
        I(f"s_add_u32 s92, s92, {HO_OFF - HO_MT}\ns_add_u32 s88, s88, s92\ns_lshl_b32 s94, s94, 12\ns_add_u32 s{self.sFH}, s88, s94")
        I(f"s_lshl_b32 s88, s{self.sWV}, 1\ns_add_u32 s88, s88, s86\ns_lshl_b32 s88, s88, 12\ns_add_u32 s88, s88, s92\ns_add_u32 s{self.sFHO}, s88, {112*1024}")
        I(f"s_cmp_eq_u32 s91, 0\ns_cselect_b32 s92, {2*HO_MT}, 0")
        I(f"v_add_u32 v{R+5}, {HO_MT}, v{self.vL16}\nv_add_u32 v{R+6}, s92, v{self.vL16}")
        I(f"s_mul_i32 s92, s93, {32*896}\ns_add_u32 s92, s92, s89\ns_lshl_b32 s88, s90, 6\ns_add_u32 s{self.sFO}, s92, s88")
        I(f"s_lshl_b32 s92, s93, 7\ns_add_u32 s{self.sZF}, s92, {Z_OFF}")
        I(f"s_lshr_b32 s87, s87, 1\ns_lshl_b32 s87, s87, 8\ns_add_u32 s87, s87, {FL_OFF + 4096}")
        I(f"s_lshl_b32 s88, s{self.sRB}, 8\ns_add_u32 s88, s88, {FL_OFF + 4096 + 56}")
        I(f"v_lshlrev_b32 v{v}, 2, v0\nv_add_u32 v{v}, s87, v{v}\nv_mov_b32 v{v+1}, s88\nv_cmp_gt_u32 vcc, 16, v0\nv_cndmask_b32 v{self.vFA}, v{v+1}, v{v}, vcc")

    def fin_dma(self, step):
        I, b = self.I, self.b
        hi, c = self.ring_addr(step)
        sm = self.sFM1 if hi else self.sFM0

        def first():
            p = self.ring_prev(step)
            if p is not None:
                need = None
                for i, (_d, t) in enumerate(b.lg):
                    if t == f"rw{p}":
                        need = len(b.lg) - 1 - i
                if f"rw{p}" not in self.rw_done:
                    raise NotReady(step)
                b.waitcnt(lg=need)
            I(f"s_add_u32 m0, s{sm}, {c}")
        L = [first]
        if step < 28:
            srd, so = self.S_WD, self.sFW
        else:
            srd, so = self.S_WO, self.sFWO
        if 0 < step < 28 and step % 4 == 0:
            L.append(lambda: I(f"s_cmp_eq_u32 s{self.sWRAP}, {step//4}\ns_cselect_b32 s86, {(-448*896) & 0xFFFFFFFF}, 0\ns_add_u32 s{so}, s{so}, s86\ns_add_u32 s{so}, s{so}, {16*896}"))
        elif 0 < step < 28:
            L.append(lambda: I(f"s_add_u32 s{so}, s{so}, {16*896}"))
        elif step == 32:
            L.append(lambda: I(f"s_add_u32 s{so}, s{so}, s{self.sDWO}"))
        elif step > 28:
            rows = [0, 16, 24, 40]
            d = rows[step % 4] - rows[step % 4 - 1]
            L.append(lambda: I(f"s_add_u32 s{so}, s{so}, {d*896}"))
        for e in range(2):
            L.append(lambda e=e: I(f"buffer_load_dwordx4 v{self.vFD+e}, s[{srd}:{srd+3}], s{so} offen offset:{1024*e}{' nt' if 'f' in self.o.nt else ''} lds", f"w{step}"))
        return L

    rw_done = set()

    def fw(self, step, t):
        return (t * 28 + step) * 4 if step < 28 else 224 + (step % 2) * 8 + 4 * t

    def fin_rdw(self, step):
        hi, c = self.ring_addr(step)
        L = []
        for t in range(2):
            for e in range(2):
                r = self.fw(step, t) + 2 * e
                imm = c + (512 if step < 28 else 1024) * e

                def f(r=r, t=t, e=e, imm=imm):
                    if t == 0 and e == 0:
                        self.b.wait_tags((f"w{step}",))
                    self.I(f"ds_read_b64_tr_b16 a[{r}:{r+1}], v{self.vFR + 2*hi + t} offset:{imm}", f"rw{step}")
                    if t == 1 and e == 1:
                        self.rw_done.add(f"rw{step}")
                L.append(f)
        return L

    def fin_hload(self, step):
        I = self.I
        L = []
        R = self.vFR
        imm = 1024 * ((step if step < 28 else step - 28) % 4)
        if step == 28:
            L.append(lambda: I(f"s_mov_b32 s{self.sFH}, s{self.sFHO}"))
        elif step == 32:
            L.append(lambda: I(f"s_add_u32 s{self.sFH}, s{self.sFH}, s{self.sDHO}"))
        elif step % 4 == 0 and step > 0:
            L.append(lambda: I(f"s_cmp_eq_u32 s{self.sWRAP}, {step//4}\ns_cselect_b32 s86, {(-28*1024) & 0xFFFFFFFF}, 0\ns_add_u32 s{self.sFH}, s{self.sFH}, s86\ns_add_u32 s{self.sFH}, s{self.sFH}, 0x1000"))
        for a in range(2):
            r = self.FH + (step % self.NH) * 8 + 4 * a
            L.append(lambda r=r, a=a: I(f"buffer_load_dwordx4 v[{r}:{r+3}], v{R+5+a}, s[{self.S_WS}:{self.S_WS+3}], s{self.sFH} offen offset:{imm} sc1", f"h{step}"))
        return L

    def final(self):
        I, b, o = self.I, self.b, self.o
        R = self.vFR
        z = self.vZZ + 1
        nh = o.nh0
        A = self.FACC
        I("\n".join(f"v_sub_u32 v{R+i}, v{R+i}, v{R+4}" for i in range(4)))
        I(f"s_mov_b32 s{self.sMSK}, 0xffff\ns_movk_i32 s{self.sT0}, 0x1000")
        for n in range(36):
            gaps = [[] for _ in range(4)]
            if n in o.fs:
                self.ts()
            if 28 <= n + 1 < 36:
                rd = self.fin_rdw(n + 1)
                gaps[0] += rd[:2]
                gaps[1] += rd[2:]
            if n >= o.wo0 and (n - o.wo0) % o.wodt == 0 and self.wo_next < 36:
                dd = self.fin_dma(self.wo_next)
                self.wo_next += 1
                gaps[0] += dd[:-1]
                gaps[3] += dd[-1:]
            if n == o.opub:
                gaps[0].append(lambda: (b.wait_tags(("o",)), I("s_barrier"), self.flag_store(2)))
            if n == o.opoll_issue:
                gaps[1].append(lambda: self.poll_issue(self.vFA, self.vPOLL, soff=f"s{self.sT0}"))
            lim = 28 if n < o.opoll_check else 36
            if n == o.opoll_check:
                gaps[0].append(lambda: self.poll_check(self.vFA, self.vPOLL, self.sMSK, soff=f"s{self.sT0}"))
            cnt = 0
            while nh < lim and nh - self.NH < n and cnt < o.hrate:
                hl = self.fin_hload(nh)
                gaps[(2 * cnt + 1) % 4] += hl[:-1]
                gaps[(2 * cnt + 2) % 4 if cnt == 0 else 3] += hl[-1:]
                nh += 1
                cnt += 1
            if n == 28:
                for s in range(4):
                    for k in range(0, 16, 2):
                        I(f"v_pk_mul_f32 v[{A[s]+k}:{A[s]+k+1}], v[{A[s]+k}:{A[s]+k+1}], v[{z}:{z+1}] op_sel:[0,{s&1}] op_sel_hi:[1,{s&1}]")
            i = 0
            tiles = [(0, 0), (0, 1), (1, 0), (1, 1)] if n < 35 else [(0, 1), (1, 0), (1, 1), (0, 0)]
            for t, a in tiles:
                rw = self.fw(n, t)
                rh = self.FH + (n % self.NH) * 8 + 4 * a
                self.mfma(A[2 * t + a], f"a[{rw}:{rw+3}]", f"v[{rh}:{rh+3}]", n == 0)
                for f in gaps[i]:
                    f()
                i += 1
        self.ts()
        v = self.vT
        I(f"v_add_u32 v{v}, s{self.sFM0}, v{self.vL16}")
        for sg in range(1, 4):
            I(f"s_xor_b32 s86, s{self.sWV}, {sg}\ns_mul_i32 s86, s86, {12*K}\ns_add_u32 s86, s86, {RING_LO}\nv_add_u32 v{v+sg}, s86, v{self.vL16}")
        for sg in range(1, 4):
            for q in range(4):
                r = A[sg] + 4 * q
                I(f"ds_write_b128 v{v}, v[{r}:{r+3}] offset:{(sg-1)*4096 + q*1024}")
        I(f"v_and_b32 v{v+4}, 31, v0\nv_mul_u32_u24 v{v+4}, 0x380, v{v+4}\nv_lshrrev_b32 v{v+5}, 5, v0\nv_lshl_add_u32 v{v+4}, v{v+5}, 4, v{v+4}")
        b.waitcnt(lg=0)
        I("s_barrier")
        T = self.FH
        for q in range(4):
            for sg in range(1, 4):
                r = T + 16 * (sg - 1) + 4 * q
                I(f"ds_read_b128 v[{r}:{r+3}], v{v+sg} offset:{(sg-1)*4096 + q*1024}")
        a0 = A[0]
        for h in range(2):
            for k in range(8 * h, 8 * h + 8, 2):
                for sg in range(1, 4):
                    r = T + 16 * (sg - 1) + k
                    I(f"v_pk_add_f32 v[{a0+k}:{a0+k+1}], v[{a0+k}:{a0+k+1}], v[{r}:{r+1}]")
            r = a0 + 8 * h
            for i in range(4):
                I(f"v_cvt_pk_bf16_f32 v{r+i}, v{r+2*i}, v{r+2*i+1}")
            if o.thr and h == 0:
                b.raw("s_memrealtime s[100:101]")
                b.raw("s_waitcnt lgkmcnt(0)")
                I(f"global_load_dwordx2 v[46:47], v{self.vZ}, s[{self.pDBG}:{self.pDBG+1}] offset:128 sc1\nv_or_b32 v46, v46, v47\nv_readfirstlane_b32 s101, v46")
                I(f"s_sub_u32 s100, s100, s{self.sTAG}\ns_cmp_gt_i32 s100, {o.thr}\ns_cselect_b32 s100, 0x7fc07fc0, 0")
                I(f"s_cmp_lg_u32 s101, 0\ns_cselect_b32 s100, 0, s100\nv_or_b32 v{r}, s100, v{r}")
            I(f"buffer_store_dwordx4 v[{r}:{r+3}], v{v+4}, s[{self.S_OUT}:{self.S_OUT+3}], s{self.sFO} offen offset:{32*h}{' nt' if 'o' in self.o.nt else ''}{' sc1' if 'O' in self.o.nt else ''}")

    def build(self):
        I, b, o = self.I, self.b, self.o
        b.label(KNAME)
        import re as _re
        self.phase = "p1"
        rules = {"Gwdma": lambda i: i.kind == "vmem" and i.tag and _re.match(r"w\d", i.tag),
                 "Gst": lambda i: i.kind == "vmem" and i.op == "buffer_store_dwordx4" and "sc1" in i.text,
                 "Ghld": lambda i: i.kind == "vmem" and i.tag and _re.match(r"h\d", i.tag),
                 "Gmf": lambda i: i.kind == "mfma" and self.phase == "fin",
                 "Gmp": lambda i: i.kind == "mfma" and self.phase == "p1",
                 "Gexp": lambda i: i.op in ("v_exp_f32", "v_pk_fma_f32") and self.phase == "att",
                 "Gkv": lambda i: i.kind == "vmem" and i.tag in ("K", "V"),
                 "Grw": lambda i: i.kind == "ds" and i.tag is not None}
        b.gdrop = tuple(rules[a] for a in o.abl.split(",") if a in rules)
        self.prologue()
        self.ts(98)
        self.ts(99)
        self.sts_flush()
        self.ts()
        self.passA()
        self.ts()
        I(f"s_cmp_lg_u32 s{self.sISV}, 0\ns_cbranch_scc1 L_vpath")
        snap = b.snapshot()
        nts0 = self.nts
        self.passB_GU()
        gu_vm = list(b.vm)
        gu_lg = [t for _d, t in b.lg]
        I("s_branch L_join")
        b.label("L_vpath")
        b.restore(snap)
        self.rw_done = set()
        self.nts = nts0
        self.passB_V()
        b.label("L_join")
        vt = [t for _d, t in b.vm]
        gt = [t for _d, t in gu_vm]
        after = lambda L, t: L[::-1].index(t) if t in L else 10 ** 6
        for t in set(vt) | set(gt):
            if t is not None:
                assert o.abl or after(vt, t) <= after(gt, t), (t, vt, gt)
        assert [t for _d, t in b.lg] == gu_lg
        self.ts()
        self.phase = "att"
        self.attention()
        self.phase = "fin"
        self.ts()
        I(f"s_cmp_lg_u32 s{self.sFIN}, 0\ns_cbranch_scc0 L_nofinal")
        snap2 = b.snapshot()
        self.final()
        if o.ts:
            b.wait_all()
            self.ts(last=True)
        I("s_endpgm")
        b.label("L_nofinal")
        b.restore(snap2)
        b.wait_tags(("o",))
        I("s_barrier")
        self.flag_store(2)
        b.label("L_exit")
        b.raw("s_endpgm")

    def text(self):
        hdr = open("gated_mix__sliding_block__glu_gated_glu__prompt.s.ref").read().split("; Override launch")[0]
        s = hdr
        s += "; Generated by my own generator script (hand-designed schedule; no compiler output).\n"
        s += "; @launch grid=(256,1,1) block=(256,1,1) lds=163840\n"
        s += '.amdgcn_target "amdgcn-amd-amdhsa--gfx950"\n.text\n'
        s += f".globl {KNAME}\n.p2align 8\n.type {KNAME},@function\n"
        s += self.b.text()
        s += f""".section .rodata,"a"
.p2align 6
.amdhsa_kernel {KNAME}
  .amdhsa_next_free_vgpr 512
  .amdhsa_next_free_sgpr 102
  .amdhsa_accum_offset 256
  .amdhsa_group_segment_fixed_size 0
  .amdhsa_kernarg_size 88
  .amdhsa_user_sgpr_count 2
  .amdhsa_user_sgpr_kernarg_segment_ptr 1
  .amdhsa_system_sgpr_workgroup_id_x 1
.end_amdhsa_kernel
"""
        return s


def main():
    ap = argparse.ArgumentParser()
    ap.add_argument("-o", default="k.s")
    ap.add_argument("--ts", action="store_true")
    ap.add_argument("--cyc", action="store_true")
    ap.add_argument("--thrpat", type=int, default=1)
    ap.add_argument("--badmap", type=int, default=0)
    ap.add_argument("--thr", type=int, default=0)
    ap.add_argument("--lite", action="store_true")
    ap.add_argument("--dbgts", type=int, default=0)
    ap.add_argument("--sts", action="store_true")
    ap.add_argument("--pk", type=int, default=1)
    ap.add_argument("--pkB", type=int, default=0)
    ap.add_argument("--align", type=int, default=1)
    ap.add_argument("--coop", type=int, default=1)
    ap.add_argument("--lead", type=int, default=2)
    ap.add_argument("--rot", type=int, default=0)
    ap.add_argument("--fl0", type=int, default=11)
    ap.add_argument("--kpoll", type=int, default=21)
    ap.add_argument("--kchk", type=int, default=25)
    ap.add_argument("--epi_end", type=int, default=28)
    ap.add_argument("--nbq", type=int, default=4)
    ap.add_argument("--wA", type=int, default=1)
    ap.add_argument("--slp", type=int, default=0)
    ap.add_argument("--wsoff", type=int, default=0)
    ap.add_argument("--nt", default="")
    ap.add_argument("--wodt", type=int, default=2)
    ap.add_argument("--nwo", type=int, default=0)
    ap.add_argument("--wot", type=int, default=5)
    ap.add_argument("--ramp", type=int, default=0)
    ap.add_argument("--late1", type=int, default=1)
    ap.add_argument("--pfgap", type=int, default=4)
    ap.add_argument("--tagn", type=int, default=13)
    ap.add_argument("--pf0", type=int, default=2)
    ap.add_argument("--pfn0", type=int, default=1)
    ap.add_argument("--pft0", type=int, default=0)
    ap.add_argument("--pfdt", type=int, default=4)
    ap.add_argument("--nB2", type=int, default=3)
    ap.add_argument("--rd0", type=int, default=3)
    ap.add_argument("--p0", type=int, default=4)
    ap.add_argument("--ppace", type=float, default=1.25)
    ap.add_argument("--w0", type=int, default=9)
    ap.add_argument("--wpace", type=float, default=1.25)
    ap.add_argument("--epi_ahead", type=int, default=4)
    ap.add_argument("--nb0", type=int, default=3)
    ap.add_argument("--dtiles", type=int, default=5)
    ap.add_argument("--rdper", type=int, default=4)
    ap.add_argument("--wo0", type=int, default=1)
    ap.add_argument("--cld", type=int, default=8)
    ap.add_argument("--cst", type=int, default=12)
    ap.add_argument("--abl", default="")
    ap.add_argument("--vs", type=int, default=0)
    ap.add_argument("--rB", type=int, default=1)
    ap.add_argument("--wlat", type=int, default=7)
    ap.add_argument("--hpub", type=int, default=1)
    ap.add_argument("--hpoll", type=int, default=5)
    ap.add_argument("--nh0", type=int, default=8)
    ap.add_argument("--hrate", type=int, default=1)
    ap.add_argument("--opub", type=int, default=6)
    ap.add_argument("--opoll_issue", type=int, default=14)
    ap.add_argument("--opoll_check", type=int, default=18)
    ap.add_argument("--pfs", default="0:0:3:0:0,10:3:7:0:0,14:0:0:1:0,20:0:0:0:1", type=lambda t: [tuple(int(y) for y in x.split(":")) for x in t.split(",") if x])
    ap.add_argument("--xpf", default="", type=lambda t: [tuple(int(y) for y in x.split(":")) for x in t.split(",") if x])
    for k in ("fs", "bs", "ss", "As"):
        ap.add_argument("--" + k, default="", type=lambda t: [int(x) for x in t.split(",") if x])
    o = ap.parse_args()
    g = G(o)
    g.build()
    open(o.o, "w").write(g.text())
    print(f"code bytes {g.b.off}, hazard nops {g.b.nops_added}, stamps {g.nts}", file=sys.stderr)


if __name__ == "__main__":
    main()
```

```python
import sys, math, argparse
from asmb import Builder

KNAME = "gated_mix__sliding_block__glu_gated_glu__prompt_kernel"
K = 1024
QKV_OFF = 0
QKV_MT = 168 * 512
HO_OFF = 0x600000
HO_MT = 144 * 1024
Z_OFF = 0xF00000
FL_OFF = 0xF10000
E_OFF = 0xF20000
TS_OFF = 0xF30000
WS_SIZE = 0x1000000
SLOT = 40 * K
CHUNK = 10 * K
PB_BASE = [120 * K, 136 * K, 0, 16 * K, 48 * K, 64 * K, 80 * K]
KV_K = 0
KV_V = 24 * K
RING_LO = 48 * K
RING_HI = 96 * K
GW_LDS = 32 * K
NEG = 0xF149F2CA
LOG2E = 1.4426950408889634
SPIN_MAX = 1 << 18


def f32hex(x):
    import struct
    return "0x%08x" % struct.unpack("<I", struct.pack("<f", x))[0]


class NotReady(Exception):
    pass


class Stream:
    def __init__(self, items, t0, t1, ahead=0.0, maxlag=3.0, early=None, prio=0, starve=99):
        self.items, self.t0, self.t1, self.ahead, self.maxlag = list(items), t0, t1, ahead, maxlag
        self.early = early or {}
        self.idx = 0
        self.prio, self.starve, self.waiting = prio, starve, 0

    def lag(self, g):
        tgt = len(self.items) * min(1.0, (g - self.t0 + 1) / max(1, self.t1 - self.t0 + 1))
        return tgt - self.idx

    def ready(self, g):
        return self.idx < len(self.items) and g >= self.t0 and g >= self.early.get(self.idx, 0)


class G:
    def sched(self, mf, fixed, streams, cap=24, pre=None):
        b = self.b
        for g, m in enumerate(mf):
            if pre and g in pre:
                for f in pre[g]:
                    f()
            self.I(m)
            start = len(b.out)
            for f in fixed.get(g, []):
                f()
            while True:
                took = False
                for s_ in sorted((x for x in streams if x.ready(g)), key=lambda x: (-x.prio, -x.lag(g) / max(1.0, x.maxlag))):
                    lag = s_.lag(g)
                    if lag <= -s_.ahead:
                        continue
                    mk, rw, uid = b.mark(), set(self.rw_done), self._uid
                    try:
                        s_.items[s_.idx]()
                    except NotReady:
                        b.rollback(mk)
                        continue
                    res = 4 if (g + 1 < len(mf) and (b.needs_wait(mf[g + 1]) or (pre and g + 1 in pre))) else 0
                    nvm = sum(1 for i_ in b.out[start:] if i_.kind == "vmem")
                    fits = b.cost_since(start) + res <= cap and nvm <= 1
                    if fits or lag >= s_.maxlag or g >= s_.t1 or s_.waiting >= s_.starve:
                        s_.idx += 1
                        s_.waiting = -1
                        took = True
                        break
                    b.rollback(mk)
                    self.rw_done = rw
                if not took:
                    break
            for s_ in streams:
                s_.waiting = s_.waiting + 1 if s_.ready(g) else 0
        for s_ in streams:
            assert s_.idx == len(s_.items), (s_.idx, len(s_.items))

    def ablate(self, ph):
        d = []
        for a in self.o.abl.split(","):
            if not a.startswith(ph):
                continue
            k = a[1:]
            d.append({"dma": lambda i: i.kind == "vmem" and " lds" in i.text and "sc1" not in i.text,
                      "st": lambda i: i.kind == "vmem" and "x4" in i.op and "store" in i.op,
                      "valu": lambda i: i.op in ("v_mul_f32", "v_exp_f32", "v_add_f32", "v_rcp_f32", "v_cvt_pk_bf16_f32", "v_pk_mul_f32", "v_pk_add_f32", "v_sub_f32", "v_cndmask_b32", "v_cmp_gt_i32"),
                      "rw": lambda i: i.kind == "ds" and i.tag is not None,
                      "ds": lambda i: i.kind == "ds",
                      "bar": lambda i: i.op == "s_barrier"}[k])
        self.b.drop = tuple(d)

    def mtext(self, d, a, bb, first):
        c = "0" if first else f"v[{d}:{d+15}]"
        return f"v_mfma_f32_32x32x16_bf16 v[{d}:{d+15}], {a}, {bb}, {c}"

    def __init__(self, opt):
        self.o = opt
        self.b = Builder(align_opt=opt.align)
        self.b.cld, self.b.cst = opt.cld, opt.cst
        self.nts = 0

    S_X, S_A, S_B, S_C, S_WS, S_WD, S_WO, S_OUT = 8, 12, 16, 20, 24, 28, 32, 36
    pDBG, pGW = 40, 42
    sWV, sRB, sJ, sISV = 44, 45, 46, 47
    sX, sA, sB, sC = 48, 49, 50, 51
    sSAB, sM0, sM0B, sA2, sB2 = 52, 53, 54, 55, 56
    sTAG = 57
    sQ0, sQ1, sH0, sH1 = 58, 59, 60, 61
    sNL2E, sCS = 62, 63
    sMSK, sMSK2, sPAR = 64, 66, 68
    sKT = 70
    sQO, sZO, sOO = 73, 74, 75
    sFIN, sFW, sFH, sFWO, sFM0, sFM1, sFO, sZF = 76, 77, 78, 79, 80, 81, 82, 83
    sSPIN, sT0 = 84, 85
    sT1, sT2, sT3 = 3, 4, 5
    sWRAP, sFHO, sDWO, sDHO = 0, 1, 6, 7
    sTS, sEX, sTM = 95, 96, 100
    vL16 = 1
    vXD = 2
    vWD = 6
    vXR = 12
    vWR = 24
    vT = 33
    vPFW, vPFC = 46, 47
    vPOLL = 48
    vZ = 49
    vFL = 50
    vAP = 51
    ACC_A = 52
    ACC_B = 148
    WF = 224
    KF = 4
    vO = 196
    vQ = 212
    vP = 220
    vKA = 236
    vVA = 237
    vM = 240
    vMA, vMB = 242, 239
    vZZ = 243
    vFA = 246
    vFD = 247
    vFR = 249
    FH = 84
    NH = 16
    FACC = [52, 68, 212, 228]
    SREG = {8: 52, 0: 68, 7: 84, 6: 100, 5: 116, 4: 132, 3: 148, 2: 164, 1: 180}

    def I(self, t, tag=None):
        self.b.I(t, tag)

    def srd(self, s, lo, hi, size):
        self.I(f"s_mov_b32 s{s}, {lo}\ns_mov_b32 s{s+1}, {hi}\ns_mov_b32 s{s+2}, {size}\ns_mov_b32 s{s+3}, 0x20000")

    def ts(self, sreg=None, last=False):
        if not self.o.ts or (self.o.lite and not last and sreg != 98):
            return
        n = self.nts
        self.nts += 1
        if sreg is None:
            self.b.raw(f"{'s_memtime' if self.o.cyc else 's_memrealtime'} s[{self.sTM}:{self.sTM+1}]")
            self.b.raw("s_waitcnt lgkmcnt(0)")
            self.b.lg = []
            sreg = self.sTM
        self.I(f"v_mov_b32 v{self.vT}, s{sreg}\nv_mov_b32 v{self.vT+1}, 0")
        self.I(f"s_mov_b64 s[{self.sEX}:{self.sEX+1}], exec\ns_mov_b64 exec, 1")
        if self.o.dbgts:
            u = self.uid()
            keep = list(self.b.vm)
            self.I(f"s_lshl_b32 s86, s2, 2\ns_add_u32 s86, s86, s{self.sWV}\ns_cmp_eq_u32 s86, {self.o.dbgts}\ns_cbranch_scc0 L_dts{u}")
            self.I(f"global_store_dword v{self.vT+1}, v{self.vT}, s[{self.pDBG}:{self.pDBG+1}] offset:{4*(n+1)} sc1")
            self.b.label(f"L_dts{u}")
            if n == 0 or last:
                self.I(f"s_cmp_eq_u32 s{self.sWV}, 0\ns_cbranch_scc0 L_dtt{u}")
                if n == 0:
                    self.I(f"v_not_b32 v{self.vT}, v{self.vT}")
                self.I(f"global_atomic_umax v{self.vT+1}, v{self.vT}, s[{self.pDBG}:{self.pDBG+1}] offset:{56 if n == 0 else 60} sc1")
                self.b.label(f"L_dtt{u}")
            self.b.vm = keep
        else:
            self.I(f"buffer_store_dword v{self.vT}, v{self.vT+1}, s[{self.S_WS}:{self.S_WS+3}], s{self.sTS} offen offset:{4*n}")
        self.I(f"s_mov_b64 exec, s[{self.sEX}:{self.sEX+1}]")

    soft = 0

    def sts(self):
        if not self.o.sts:
            return
        self.b.raw(f"{'s_memtime' if self.o.cyc else 's_memrealtime'} s[{self.sTM}:{self.sTM+1}]")
        self.b.raw("s_waitcnt lgkmcnt(0)")
        self.I(f"v_mov_b32 v{196+self.soft}, s{self.sTM}")
        self.soft += 1

    def sts_flush(self):
        for k in range(self.soft):
            self.I(f"v_readfirstlane_b32 s{self.sTM}, v{196+k}")
            self.ts(self.sTM)

    def lds(self, base, n, idx, const):
        return f"v{base + (const >> 16) * n + idx}", const & 0xFFFF

    def xf(self, M, n):
        r = (M * 28 + n) * 4
        return f"a[{r}:{r+3}]"

    def wf(self, bufset, t):
        r = self.WF + bufset * 12 + t * 4
        return r

    def acc(self, base, t, M):
        r = base + (t * 2 + M) * 16
        return r

    def prologue(self):
        I = self.I
        b = self.b
        b.align_opt = False
        if self.o.ts or self.o.thr:
            b.raw(f"{'s_memtime' if self.o.cyc else 's_memrealtime'} s[98:99]")
        I("s_cmp_ge_u32 s2, 0x100\ns_cbranch_scc1 L_exit")
        if self.o.badmap:
            I("s_and_b32 s3, s2, 31\ns_lshl_b32 s3, s3, 3\ns_lshr_b32 s2, s2, 5\ns_or_b32 s2, s2, s3")
        b.raw("s_load_dwordx16 s[64:79], s[0:1], 0")
        b.raw("s_load_dwordx4 s[80:83], s[0:1], 64")
        b.raw(f"s_load_dwordx2 s[{self.S_WS}:{self.S_WS+1}], s[0:1], 80")
        I("s_getpc_b64 s[4:5]")
        b.label("L_pc")
        I("s_and_b32 s3, s2, 0xf8\nv_and_b32 v33, 7, v0\nv_add_lshl_u32 v33, v33, s3, 7\nv_min_u32 v33, L_exit-L_pc, v33")
        I("global_load_dword v45, v33, s[4:5]", tag="pf")
        b.vm[-1] = (set(), "pf")
        I("v_lshrrev_b32 v35, 6, v0\nv_and_b32 v0, 63, v0")
        I(f"v_readfirstlane_b32 s{self.sWV}, v35")
        I("s_and_b32 s3, s2, 7\ns_lshr_b32 s6, s2, 3")
        I(f"s_and_b32 s7, s3, 1\ns_lshl_b32 s7, s7, 3\ns_and_b32 s4, s6, 7\ns_add_u32 s{self.sRB}, s4, s7")
        I(f"s_lshr_b32 s7, s3, 1\ns_lshl_b32 s7, s7, 2\ns_lshr_b32 s5, s6, 3\ns_add_u32 s{self.sJ}, s5, s7")
        I(f"v_lshlrev_b32 v{self.vL16}, 4, v0")
        I("v_lshrrev_b32 v35, 3, v0\nv_and_b32 v36, 7, v0\nv_lshrrev_b32 v37, 4, v0")
        I("v_mul_u32_u24 v38, 0x380, v35")
        I("v_xor_b32 v39, v36, v37\nv_lshl_add_u32 v2, v39, 4, v38")
        I(f"v_xor_b32 v3, 64, v2\nv_add_u32 v3, {8*896-1024}, v3")
        I(f"v_add_u32 v4, {16*896-2048}, v2\nv_add_u32 v5, {16*896-2048}, v3")
        I("v_and_b32 v39, 2, v35\nv_lshlrev_b32 v39, 1, v39\nv_xor_b32 v39, v36, v39\nv_lshlrev_b32 v39, 4, v39")
        I(f"s_cmp_ge_u32 s{self.sJ}, 14\ns_cselect_b32 s{self.sISV}, 1, 0")
        I("s_movk_i32 s7, 0xe00\ns_movk_i32 s86, 0xa80\ns_cselect_b32 s7, s86, s7")
        I("v_mul_u32_u24 v40, 0xa80, v35\nv_add_u32 v10, v40, v39")
        I(f"v_add_u32 v11, {8*2688-1024}, v10")
        I("v_mul_u32_u24 v40, s7, v35\nv_add_u32 v6, v40, v39")
        I("s_lshl_b32 s86, s7, 3\ns_sub_u32 s86, s86, 0x400\nv_add_u32 v7, s86, v6")
        I("v_xor_b32 v8, 32, v6\nv_xor_b32 v9, 32, v7")
        I(f"s_lshl_b32 s{self.sSAB}, s7, 6")
        if self.o.coop == 1:
            I("v_lshrrev_b32 v42, 1, v0\nv_and_b32 v43, 1, v0\nv_lshlrev_b32 v44, 7, v43")
            I("v_mul_u32_u24 v41, 0x380, v43\nv_lshl_add_u32 v41, v42, 7, v41")
            I(f"v_mul_u32_u24 v{self.vPFW}, s{self.sSAB}, v42\nv_add_u32 v{self.vPFW}, v{self.vPFW}, v44")
            I(f"v_mul_u32_u24 v{self.vPFC}, {64*2688}, v42\nv_add_u32 v{self.vPFC}, v{self.vPFC}, v44")
        I(f"s_lshl_b32 s86, s{self.sRB}, 2\ns_add_u32 s87, s86, s{self.sWV}\ns_mul_i32 s{self.sX}, s87, {32*896}")
        if self.o.coop == 1:
            I(f"s_mul_i32 s3, s87, s7\ns_mul_i32 s4, s87, 0xa80")
            I(f"s_lshl_b32 s86, s{self.sRB}, 4\ns_add_u32 s86, s86, s{self.sJ}\ns_lshl_b32 s86, s86, 2\ns_add_u32 s86, s86, s{self.sWV}")
            I(f"s_mul_i32 s6, s86, {2*896}\ns_mul_i32 s5, s86, 49")
        I(f"s_lshl_b32 s86, s{self.sWV}, 4\ns_mul_i32 s87, s86, s7\ns_mul_i32 s88, s86, 0xa80")
        I(f"s_lshl_b32 s89, s{self.sJ}, 8\ns_lshl_b32 s90, s{self.sJ}, 7")
        I(f"s_lshl_b32 s91, s{self.sJ}, 9\ns_sub_u32 s91, s91, {42*128}")
        I(f"s_add_u32 s92, s91, 0x80\ns_add_u32 s93, s91, 0x100\ns_add_u32 s94, s89, 0x80")
        I(f"s_cmp_lg_u32 s{self.sISV}, 0")
        I(f"s_cselect_b32 s91, s91, s89\ns_cselect_b32 s92, s92, s89\ns_cselect_b32 s93, s93, s90")
        I(f"s_cselect_b32 s90, {17*128}, s94")
        I(f"s_add_u32 s{self.sA}, s91, s87\ns_add_u32 s{self.sB}, s92, s87\ns_add_u32 s{self.sC}, s93, s88")
        I(f"s_add_u32 s{self.sA2}, s90, s87\ns_add_u32 s{self.sB2}, s94, s87")
        I(f"s_mul_i32 s{self.sM0}, s{self.sWV}, {CHUNK}")
        if self.o.coop == 1:
            P = self.vPF
            I(f"s_add_u32 s86, s91, s3\ns_add_u32 s87, s92, s3\ns_add_u32 s88, s93, s4")
            I(f"v_add_u32 v{P}, s6, v41\nv_add_u32 v{P+1}, s86, v{self.vPFW}\nv_add_u32 v{P+2}, s87, v{self.vPFW}")
            I(f"v_add_u32 v{P+3}, s88, v{self.vPFC}")
        WQ, WG_ = 448 * 2688, 448 * 3584
        I(f"s_mov_b32 s{self.S_X+2}, {2048*896}\ns_mov_b32 s{self.S_X+3}, 0x20000\ns_mov_b32 s{self.S_C+2}, {WQ}")
        I(f"s_cmp_lg_u32 s{self.sISV}, 0")
        I(f"s_cselect_b32 s{self.S_A+2}, s{self.S_C+2}, {WG_}\ns_mov_b32 s{self.S_B+2}, s{self.S_A+2}")
        for s_ in (self.S_A, self.S_B, self.S_C):
            I(f"s_mov_b32 s{s_+3}, s{self.S_X+3}")
        b.raw("s_waitcnt lgkmcnt(0)")
        if self.o.ts and not self.o.lite:
            b.raw(f"{'s_memtime' if self.o.cyc else 's_memrealtime'} s[96:97]")
            b.raw("s_waitcnt lgkmcnt(0)")
            I("s_mov_b32 s99, s96")
        I(f"s_mov_b32 s{self.S_X}, s64\ns_mov_b32 s{self.S_X+1}, s65")
        for s_, lo in ((self.S_A, 72), (self.S_B, 74)):
            I(f"s_cselect_b32 s{s_}, s66, s{lo}\ns_cselect_b32 s{s_+1}, s67, s{lo+1}")
        I(f"s_mov_b32 s{self.S_C}, s66\ns_mov_b32 s{self.S_C+1}, s67")
        srd = lambda s_: f"s[{s_}:{s_+3}]"
        self.pf_batch(0)
        self.sts()
        for ins in self.dma_stageA(0):
            ins()
        self.off_st0 = b.off
        self.pf_batch(1)
        b.align_opt = self.o.align
        self.sts()
        I(f"s_lshl_b32 s{self.sM0B}, s{self.sWV}, 12")
        if self.o.coop == 1:
            self.srd(self.S_WD, "s76", "s77", 1792 * 896)
            self.srd(self.S_WO, "s68", "s69", 448 * 896)
            P = self.vPF
            I(f"s_lshr_b32 s86, s5, 2\ns_lshl_b32 s86, s86, 7\ns_lshr_b32 s5, s5, 4\ns_lshl_b32 s5, s5, 7\nv_lshlrev_b32 v44, 7, v0")
            I(f"v_add_u32 v{P+4}, s86, v44\nv_add_u32 v{P+5}, s5, v44")
        I(f"s_mov_b32 s{self.S_WS+2}, {WS_SIZE}\ns_mov_b32 s{self.S_WS+3}, 0x20000")
        if self.o.wsoff:
            I(f"s_add_u32 s{self.S_WS}, s{self.S_WS}, {self.o.wsoff << 20}\ns_addc_u32 s{self.S_WS+1}, s{self.S_WS+1}, 0")
        I(f"v_mov_b32 v{self.vZ}, 0\ns_mov_b32 s86, {E_OFF}")
        I(f"buffer_load_dword v{self.vPOLL}, v{self.vZ}, s[{self.S_WS}:{self.S_WS+3}], s86 offen sc1", tag="E")
        if not self.o.late1:
            for st in range(1, self.o.lead):
                for ins in self.dma_stageA(st):
                    ins()
        self.sts()
        if not self.o.late1:
            self.pf_batch(2)
        if self.o.coop != 1:
            self.srd(self.S_WD, "s76", "s77", 1792 * 896)
            self.srd(self.S_WO, "s68", "s69", 448 * 896)
        if self.o.coop == 2:
            self.pf2_setup()
            for k in range(self.o.pfn0):
                self.pf2(k)
        if self.o.xpf:
            P = self.vPF + 6
            I(f"s_lshr_b32 s86, s2, 3\ns_lshl_b32 s86, s86, 2\ns_add_u32 s86, s86, s{self.sWV}\ns_lshr_b32 s87, s86, 5\ns_and_b32 s88, s86, 31")
            I(f"s_mul_i32 s87, s87, {3136*128}\ns_mul_i32 s88, s88, {49*128}\ns_add_u32 s87, s87, s88\ns_mul_i32 s86, s86, {25*128}")
            I(f"v_lshlrev_b32 v{P+2}, 7, v0\nv_add_u32 v{P}, s87, v{P+2}\nv_add_u32 v{P+1}, {1568*128}, v{P}\nv_add_u32 v{P+2}, s86, v{P+2}")
        self.srd(self.S_OUT, "s80", "s81", 2048 * 896)
        I(f"s_mov_b64 s[{self.pDBG}:{self.pDBG+1}], s[82:83]\ns_mov_b64 s[{self.pGW}:{self.pGW+1}], s[78:79]")
        if self.o.ts:
            I(f"s_lshl_b32 s86, s2, 2\ns_add_u32 s86, s86, s{self.sWV}\ns_lshl_b32 s86, s86, 7\ns_add_u32 s{self.sTS}, s86, {TS_OFF}")
        I(f"s_lshr_b32 s86, s{self.sWV}, 1\ns_and_b32 s87, s{self.sWV}, 1")
        I("v_and_b32 v35, 31, v0\nv_lshrrev_b32 v36, 5, v0")
        I("v_bfe_u32 v37, v0, 1, 3\nv_xor_b32 v37, v37, v36")
        I(f"s_mul_i32 s88, s86, {2*CHUNK}\nv_lshlrev_b32 v38, 7, v35\nv_add_u32 v38, s88, v38")
        for ks in range(4):
            I(f"v_xor_b32 v39, {2*ks}, v37\nv_lshl_add_u32 v{self.vXR+ks}, v39, 4, v38")
        I("v_bfe_u32 v37, v0, 2, 2\nv_lshl_add_u32 v38, v36, 3, v37\nv_lshlrev_b32 v38, 7, v38")
        I("v_and_b32 v39, 1, v0\nv_lshlrev_b32 v39, 4, v39\nv_bfe_u32 v40, v0, 1, 1\nv_lshl_add_u32 v39, v40, 3, v39")
        I("v_add_u32 v38, v38, v39")
        I("v_bfe_u32 v39, v0, 4, 1\nv_and_b32 v40, 2, v37\nv_xor_b32 v40, v40, v39")
        I("s_lshl_b32 s88, s87, 1")
        I("v_xor_b32 v41, s88, v40")
        I(f"v_lshl_add_u32 v42, v41, 5, v38")
        I(f"v_add_u32 v{self.vWR}, 0x1000, v42")
        I(f"v_lshl_add_u32 v{self.vWR+1}, v39, 11, v42")
        I(f"v_xor_b32 v{self.vWR+2}, 32, v{self.vWR+1}")
        for st in (1, 2):
            for i in range(4):
                I(f"v_add_u32 v{self.vXR+4*st+i}, {65536*st}, v{self.vXR+i}")
            for i in range(3):
                I(f"v_add_u32 v{self.vWR+3*st+i}, {65536*st}, v{self.vWR+i}")
        I(f"s_lshl_b32 s88, s{self.sRB}, 2\ns_lshl_b32 s89, s86, 1\ns_add_u32 s88, s88, s89")
        I(f"s_mul_i32 s89, s88, {QKV_MT}\ns_lshl_b32 s90, s87, 11\ns_add_u32 s89, s89, s90")
        I(f"s_lshl_b32 s90, s{self.sJ}, 12\ns_lshl_b32 s91, s{self.sJ}, 14\ns_sub_u32 s91, s91, {40*4096}")
        I(f"s_cmp_lg_u32 s{self.sISV}, 0\ns_cselect_b32 s90, s91, s90\ns_add_u32 s{self.sQ0}, s89, s90")
        I(f"s_add_u32 s{self.sQ1}, s{self.sQ0}, {QKV_MT}")
        I(f"s_mul_i32 s89, s88, {HO_MT}\ns_lshl_b32 s90, s{self.sJ}, 13\ns_lshl_b32 s91, s87, 11\ns_add_u32 s89, s89, s90")
        I(f"s_add_u32 s89, s89, s91\ns_add_u32 s{self.sH0}, s89, {HO_OFF}\ns_add_u32 s{self.sH1}, s{self.sH0}, {HO_MT}")
        I(f"s_mov_b32 s{self.sNL2E}, {f32hex(-LOG2E)}\ns_mov_b32 s{self.sCS}, {f32hex(LOG2E / math.sqrt(28.0))}")
        I(f"s_lshl_b32 s88, s{self.sRB}, 8\ns_lshl_b32 s89, s{self.sJ}, 2\ns_add_u32 s88, s88, s89\ns_add_u32 s88, s88, {FL_OFF}")
        I(f"v_mov_b32 v{self.vFL}, s88")
        if self.o.late1:
            for st in range(1, self.o.lead):
                for ins in self.dma_stageA(st):
                    ins()
            self.pf_batch(2)
        self.sts()
        self.setup = self.record(lambda: (self.poll_setup_att(), self.att_setup(), self.final_setup()))

    vPF = 200

    def pf2_setup(self):
        I = self.I
        P = self.vPF
        I(f"v_mov_b32 v{P}, s{self.S_X}\nv_mov_b32 v{P+1}, s{self.S_X+1}\nv_mov_b32 v{P+2}, 0x80")
        f0 = self.o.pf0
        I(f"s_lshl_b32 s86, s{self.sRB}, 2\ns_add_u32 s86, s86, s{self.sWV}\ns_mul_i32 s3, s86, s7\ns_mul_i32 s4, s86, 0xa80")
        I(f"s_lshl_b32 s86, s{self.sRB}, 4\ns_add_u32 s86, s86, s{self.sJ}\ns_lshl_b32 s86, s86, 2\ns_add_u32 s5, s86, s{self.sWV}")
        I(f"s_mul_i32 s6, s{self.sSAB}, {f0}")

        def lane(l, base, off, stride):
            I(f"s_add_u32 s88, s{base}, {off}\ns_addc_u32 s89, s{base+1}, 0")
            I(f"v_writelane_b32 v{P}, s88, {l}\nv_writelane_b32 v{P+1}, s89, {l}")
            if stride:
                I(f"v_writelane_b32 v{P+2}, {stride}, {l}")
        I(f"s_mul_i32 s86, s5, {2*896}\ns_add_u32 s86, s86, {128*f0}")
        lane(0, self.S_X, "s86", None)
        I("s_add_u32 s86, s86, 0x380")
        lane(1, self.S_X, "s86", None)
        for l, srd, col in ((2, self.S_A, 91), (3, self.S_B, 92)):
            I(f"s_add_u32 s86, s{col}, s3\ns_add_u32 s86, s86, s6")
            lane(l, srd, "s86", f"s{self.sSAB}")
        I(f"s_add_u32 s86, s93, s4\ns_add_u32 s86, s86, {64*2688*f0}\ns_mov_b32 s87, {64*2688}")
        lane(4, self.S_C, "s86", "s87")
        I("s_add_u32 s86, s90, s3")
        lane(5, self.S_A, "s86", f"s{self.sSAB}")
        I(f"s_cmp_lg_u32 s{self.sISV}, 0\ns_cselect_b32 s86, s90, s94\ns_add_u32 s86, s86, s3")
        lane(6, self.S_B, "s86", f"s{self.sSAB}")
        I(f"s_mul_i32 s86, s5, 49\ns_lshr_b32 s6, s86, 4\ns_lshr_b32 s86, s86, 2\ns_min_u32 s86, s86, {12544-14}\ns_lshl_b32 s86, s86, 7\ns_movk_i32 s87, 0x100")
        lane(7, self.S_WD, "s86", "s87")
        I("s_add_u32 s86, s86, 0x80")
        lane(8, self.S_WD, "s86", "s87")
        I(f"s_min_u32 s86, s6, {3136-7}\ns_lshl_b32 s86, s86, 7")
        lane(9, self.S_WO, "s86", None)

    def pf2(self, k):
        I = self.I
        P = self.vPF
        mask = (0x1f if self.o.pf0 + k <= 6 else 0) | (0x3e0 if k <= 6 else 0)
        I(f"s_mov_b64 exec, {hex(mask)}")
        I(f"global_load_dword v{self.vT+12}, v[{P}:{P+1}], off", "pf")
        self.b.vm[-1] = (set(), "pf")
        I(f"s_mov_b64 exec, -1")
        if k < 6:
            I(f"v_add_co_u32 v{P}, vcc, v{P+2}, v{P}\nv_addc_co_u32 v{P+1}, vcc, 0, v{P+1}, vcc")

    def pf_batch(self, when):
        for spec in self.o.pfs:
            if len(spec) == 5:
                w, s0, s1, pb, fin = spec
                p0, p1, d0, d1 = 0, (7 if pb == 1 else pb), 0, (13 if fin else 0)
            else:
                w, s0, s1, p0, p1, d0, d1 = spec
            if w != when or self.o.coop != 1:
                continue
            mx = sum(3 << (2 * s_) for s_ in range(s0, s1))
            mc = sum(1 << (2 * s_) for s_ in range(s0, s1))
            mw = mc | sum(2 << (2 * s_) for s_ in range(p0, p1))
            P = self.vPF
            if mx:
                self.I(f"s_mov_b64 exec, {hex(mx)}")
                self.pf(P, self.S_X, "0")
            if mw:
                self.I(f"s_mov_b64 exec, {hex(mw)}")
                self.pf(P + 1, self.S_A, "0")
                self.pf(P + 2, self.S_B, "0")
                if mc:
                    self.pf(P + 3, self.S_C, "0")
            if d1 > d0:
                self.I(f"s_mov_b64 exec, {hex(sum(1 << l for l in range(d0, d1)))}")
                self.pf(P + 4, self.S_WD, "0")
                if d1 == 13:
                    self.I("s_mov_b64 exec, 0xf")
                    self.pf(P + 5, self.S_WO, "0")
            self.I("s_mov_b64 exec, -1")

    def xpf(self, h, l0=0, l1=None):
        nl = 25 if h == 2 else 49
        l1 = nl if l1 is None else min(l1, nl)
        m = sum(1 << l for l in range(l0, l1))
        self.I(f"s_mov_b32 exec_lo, {hex(m & 0xffffffff)}\ns_mov_b32 exec_hi, {hex(m >> 32)}")
        self.pf(self.vPF + 6 + h, self.S_WO if h == 2 else self.S_WD, "0")
        self.I("s_mov_b64 exec, -1")

    def record(self, fn):
        L = []
        real = self.I
        self.I = lambda t, tag=None: L.append(lambda: real(t, tag))
        fn()
        del self.I
        return L

    def dma_stageA(self, st):
        I = self.I
        base = (st % 4) * SLOT
        tag = f"st{st}"
        L = []
        L.append(lambda: I(f"s_add_u32 m0, s{self.sM0}, {base}"))
        for bq in range(4):
            L.append(lambda bq=bq: I(f"buffer_load_dwordx4 v{self.vXD+bq}, s[{self.S_X}:{self.S_X+3}], s{self.sX} offen offset:{1024*bq}{' nt' if 'x' in self.o.nt else ''} lds", tag))
        prev = lambda: I(f"s_add_u32 s{self.sX}, s{self.sX}, 0x80")
        for seg, (srd, so, stp) in enumerate(((self.S_A, self.sA, self.sSAB), (self.S_B, self.sB, self.sSAB), (self.S_C, self.sC, None))):
            L.append(lambda seg=seg: I(f"s_add_u32 m0, s{self.sM0}, {base + 4096 + 2048*seg}"))
            L.append(prev)
            for e in range(2):
                L.append(lambda seg=seg, e=e, srd=srd, so=so: I(f"buffer_load_dwordx4 v{self.vWD+2*seg+e}, s[{srd}:{srd+3}], s{so} offen offset:{1024*e}{' nt' if 'w' in self.o.nt else ''} lds", tag))
            prev = lambda so=so, stp=stp: I(f"s_add_u32 s{so}, s{so}, " + (f"s{stp}" if stp else str(64*2688)))
        L.append(prev)
        return L

    def dma_stageB(self, t):
        I = self.I
        base = PB_BASE[t]
        tag = f"st{7+t}"
        L = []
        prev = None
        if t == 0:
            prev = lambda: I(f"s_cmp_lg_u32 s{self.sISV}, 0\ns_cselect_b32 s{self.S_B+2}, 0, s{self.S_B+2}")
        for seg, (srd, so) in enumerate(((self.S_A, self.sA2), (self.S_B, self.sB2))):
            L.append(lambda seg=seg: I(f"s_add_u32 m0, s{self.sM0B}, {base + 2048*seg}"))
            if prev:
                L.append(prev)
            for e in range(2):
                L.append(lambda seg=seg, e=e, srd=srd, so=so: I(f"buffer_load_dwordx4 v{self.vWD+2*seg+e}, s[{srd}:{srd+3}], s{so} offen offset:{1024*e}{' nt' if 'w' in self.o.nt else ''} lds", tag))
            prev = lambda so=so: I(f"s_add_u32 s{so}, s{so}, s{self.sSAB}")
        L.append(prev)
        return L

    def rd_w(self, bufset, slot_t, addr_t, const):
        out = []
        r = self.wf(bufset, slot_t)
        for e in range(2):
            v, imm = self.lds(self.vWR, 3, addr_t, const + 512 * e)
            out.append(lambda r=r, e=e, v=v, imm=imm: self.I(f"ds_read_b64_tr_b16 a[{r+2*e}:{r+2*e+1}], {v} offset:{imm}"))
        return out

    def rd_x(self, M, n):
        st, ks = divmod(n, 4)
        v, imm = self.lds(self.vXR, 4, ks, (st % 4) * SLOT + M * CHUNK)
        return [lambda: self.I(f"ds_read_b128 {self.xf(M, n)}, {v} offset:{imm}")]

    def readsA(self, n):
        st, ks = divmod(n, 4)
        c = (st % 4) * SLOT + ks * CHUNK + 4096
        bs = n % 2
        return [self.rd_w(bs, 0, 0, c), self.rd_x(0, n) + self.rd_x(1, n), self.rd_w(bs, 1, 1, c), self.rd_w(bs, 2, 2, c)]

    def readsB(self, n):
        t, ks = divmod(n, 4)
        c = PB_BASE[t] + ks * 4096
        bs = n % 2
        return [self.rd_w(bs, 1, 1, c), self.rd_w(bs, 2, 2, c)]

    def mfma(self, d, a, bb, first):
        c = "0" if first else f"v[{d}:{d+15}]"
        self.I(f"v_mfma_f32_32x32x16_bf16 v[{d}:{d+15}], {a}, {bb}, {c}")

    def dbg_load(self, tag=None):
        self.I(f"global_load_dword v{self.vPOLL}, v{self.vZ}, s[{self.pDBG}:{self.pDBG+1}] sc1", tag)

    def pf(self, v, srd, so):
        self.I(f"buffer_load_dword v{self.vT+12}, v{v}, s[{srd}:{srd+3}], {so} offen{' nt' if 'p' in self.o.nt else ''}", "pf")
        self.b.vm[-1] = (set(), "pf")

    def passA(self):
        I, b, o = self.I, self.b, self.o
        b.wait_tags(("st0",))
        self.ts()
        if o.thr:
            I(f"s_getreg_b32 s86, hwreg(HW_REG_XCC_ID, 0, 4)\ns_and_b32 s87, s2, 7\ns_cmp_lg_u32 s86, s87\ns_cbranch_scc0 L_xok")
            kv = list(b.vm)
            I(f"v_mov_b32 v34, 1\nglobal_store_dword v{self.vZ}, v34, s[{self.pDBG}:{self.pDBG+1}] offset:128 sc1")
            b.vm = kv
            b.label("L_xok")
        I(f"s_or_b32 s86, s2, s{self.sWV}\ns_cmp_eq_u32 s86, 0\ns_cbranch_scc0 L_notag")
        snap_vm = list(b.vm)
        I(f"v_add_u32 v34, 2, v{self.vPOLL}\nv_or_b32 v34, 1, v34\ns_mov_b32 s86, {E_OFF}")
        if o.thr:
            I(f"v_readfirstlane_b32 s87, v{self.vPOLL}\ns_sub_u32 s88, s98, s87\ns_cmp_lt_u32 s88, 0x8000000\ns_cselect_b32 s88, 1, 0")
            I(f"s_cmp_eq_u32 s87, 0xfbfbfbfb\ns_cselect_b32 s89, {o.thrpat}, {1 - o.thrpat} ^ 1 ^ 1\ns_or_b32 s88, s88, s89\nv_mov_b32 v35, s88".replace(f"{1 - o.thrpat} ^ 1 ^ 1", str(1 - o.thrpat)))
            I(f"global_store_dword v{self.vZ}, v35, s[{self.pDBG}:{self.pDBG+1}] offset:132 sc1")
            I("v_mov_b32 v34, s98\nv_or_b32 v34, 1, v34")
        I(f"s_mov_b64 exec, 1")
        I(f"buffer_store_dword v34, v{self.vZ}, s[{self.S_WS}:{self.S_WS+3}], s86 offen sc1")
        I(f"global_store_dword v{self.vZ}, v34, s[{self.pDBG}:{self.pDBG+1}] sc1")
        I(f"s_mov_b64 exec, -1")
        b.vm = [(set(), t) if t == "E" else (d, t) for d, t in snap_vm]
        b.label("L_notag")
        I("s_barrier")
        for grp in self.readsA(0):
            for f in grp:
                f()
        def stream(v):
            if v <= 6:
                return self.dma_stageA(v)
            if v == 7:
                return self.dma_stageB(0) + self.dma_stageB(1)
            if v == 8:
                return self.dma_stageB(2) + self.dma_stageB(3)
            return []
        mf, fixed, pre = [], {}, {}
        vm_items, early = [], {}
        for n in range(28):
            st, ks = divmod(n, 4)
            g0 = 6 * n
            for t in range(3):
                for M in range(2):
                    r = self.wf(n % 2, t)
                    mf.append(self.mtext(self.acc(self.ACC_A, t, M), f"a[{r}:{r+3}]", self.xf(M, n), n == 0))
            if ks == 3:
                def bar(st=st):
                    tags = (f"st{st+1}",) if st < 6 else ("st7", "st8")
                    b.wait_tags(tags, lg_all=True)
                    I("s_barrier")
                fixed.setdefault(g0, []).append(bar)
            for i, grp in enumerate(self.readsA(n + 1) if n < 27 else self.readsB(0)):
                fixed.setdefault(g0 + i, []).extend(grp)
            if o.wA and n > 0:
                pre[g0] = [lambda: b.waitcnt(lg=4)]
                pre[g0 + 2] = [lambda: b.waitcnt(lg=4)]
            if o.pace:
                pre.setdefault(g0, []).insert(0, lambda: [I("s_nop 15") for _ in range(o.pace)])
            if n in o.As:
                pre.setdefault(g0, []).insert(0, self.ts)
            if ks == 0:
                v = st + o.lead
                early[len(vm_items)] = g0 if not o.ramp else max(0, 6 * (4 * (v - 4) + 3) + 1)
                vm_items += stream(v)
            if any(p[0] == 10 + n for p in o.pfs):
                fixed.setdefault(g0 + o.pfgap, []).append(lambda n=n: self.pf_batch(10 + n))
            if o.coop == 2 and n >= o.pft0 and (n - o.pft0) % o.pfdt == 0 and o.pfn0 + (n - o.pft0) // o.pfdt <= 6:
                fixed.setdefault(g0 + 4, []).append(lambda k=o.pfn0 + (n - o.pft0) // o.pfdt: self.pf2(k))
            for sp in o.xpf:
                if sp[0] == n:
                    fixed.setdefault(g0 + 5, []).append(lambda sp=sp: self.xpf(*sp[1:]))
            if n == o.tagn:
                fixed.setdefault(g0 + 5, []).append(lambda: self.dbg_load("tagrd"))
        self.ablate("A")
        self.sched(mf, fixed, [Stream(vm_items, 0, 164 - o.ramp, ahead=2, maxlag=3, early=early, prio=1),
                               Stream(self.setup, 0, 160, ahead=3, maxlag=4)], pre=pre)
        b.drop = ()
        I(f"s_cmp_lg_u32 s{self.sFIN}, 0\ns_cselect_b32 s{self.S_WD+2}, s{self.S_WD+2}, 0\ns_cselect_b32 s{self.S_WO+2}, s{self.S_WO+2}, 0")
        rest = []
        for v in range(7 + o.lead, 9):
            rest += stream(v)
        self.pend = rest + self.dma_stageB(4) + self.dma_stageB(5) + self.dma_stageB(6)

    def get_tag(self):
        I, b = self.I, self.b
        u = self.uid()
        I(f"v_readfirstlane_b32 s{self.sTAG}, v{self.vPOLL}")
        I(f"s_cmp_lg_u32 s{self.sTAG}, 0\ns_cbranch_scc1 L_gottag{u}")
        keep_vm, keep_lg = list(b.vm), list(b.lg)
        I(f"s_mov_b32 s{self.sSPIN}, 0")
        b.label(f"L_tagspin{u}")
        self.dbg_load()
        I(f"s_add_u32 s{self.sSPIN}, s{self.sSPIN}, 1\ns_cmp_gt_u32 s{self.sSPIN}, {SPIN_MAX}\ns_cbranch_scc1 L_exit")
        I(f"v_readfirstlane_b32 s{self.sTAG}, v{self.vPOLL}")
        I(f"s_cmp_lg_u32 s{self.sTAG}, 0\ns_cbranch_scc0 L_tagspin{u}")
        b.vm, b.lg = keep_vm, keep_lg
        b.label(f"L_gottag{u}")

    def cvt_store(self, r, so, imm, tag, voff=None):
        L = []
        for i in range(4):
            L.append(lambda i=i: self.I(f"v_cvt_pk_bf16_f32 v{r+i}, v{r+2*i}, v{r+2*i+1}"))
        v = self.vL16 if voff is None else voff
        L.append(lambda: self.I(f"buffer_store_dwordx4 v[{r}:{r+3}], v{v}, s[{self.S_WS}:{self.S_WS+3}], s{so} offen offset:{imm} sc1", tag))
        return L

    def sigmoid_tile(self, r, so, imm, tag, pk):
        I = self.I
        L = []
        if pk:
            for i in range(0, 8, 2):
                L.append(lambda i=i: I(f"v_pk_mul_f32 v[{r+i}:{r+i+1}], v[{r+i}:{r+i+1}], s[{self.sNL2E}:{self.sNL2E+1}] op_sel_hi:[1,0]"))
        else:
            for i in range(8):
                L.append(lambda i=i: I(f"v_mul_f32 v{r+i}, s{self.sNL2E}, v{r+i}"))
        for i in range(8):
            L.append(lambda i=i: I(f"v_exp_f32 v{r+i}, v{r+i}"))
        if pk:
            for i in range(0, 8, 2):
                L.append(lambda i=i: I(f"v_pk_add_f32 v[{r+i}:{r+i+1}], v[{r+i}:{r+i+1}], 1.0 op_sel_hi:[1,0]"))
        else:
            for i in range(8):
                L.append(lambda i=i: I(f"v_add_f32 v{r+i}, 1.0, v{r+i}"))
        for i in range(8):
            L.append(lambda i=i: I(f"v_rcp_f32 v{r+i}, v{r+i}"))
        if pk:
            for i in range(0, 8, 2):
                L.append(lambda i=i: I(f"v_pk_mul_f32 v[{r+i}:{r+i+1}], v[{r+i}:{r+i+1}], v[{r+8+i}:{r+9+i}]"))
        else:
            for i in range(8):
                L.append(lambda i=i: I(f"v_mul_f32 v{r+i}, v{r+i}, v{r+8+i}"))
        return L + self.cvt_store(r, so, imm, tag)

    def flag_store(self, phase):
        I = self.I
        lab = f"L_nofl{self.uid()}"
        I(f"s_cmp_eq_u32 s{self.sWV}, 0\ns_cbranch_scc0 {lab}")
        keep = list(self.b.vm)
        I(f"v_mov_b32 v{self.vT}, s{self.sTAG}\ns_mov_b64 exec, 1")
        I(f"s_movk_i32 s86, {4096*phase}")
        I(f"buffer_store_dword v{self.vT}, v{self.vFL}, s[{self.S_WS}:{self.S_WS+3}], s86 offen sc1")
        I("s_mov_b64 exec, -1")
        self.b.vm = keep
        self.b.label(lab)

    _uid = 0

    def uid(self):
        self._uid += 1
        return self._uid

    @staticmethod
    def weave(main, side, start=0.0, end=1.0):
        out = []
        n = len(main)
        a, e = int(start * n), max(int(end * n), int(start * n) + 1)
        k = 0
        for i, f in enumerate(main):
            out.append(f)
            if i >= a:
                want = min(len(side), math.ceil(len(side) * (i - a + 1) / (e - a)))
                while k < want:
                    out.append(side[k]); k += 1
        out += side[k:]
        return out

    def passB_GU(self):
        I, b, o = self.I, self.b, self.o
        qk, epi = [], []
        for M, so in ((0, self.sQ0), (1, self.sQ1)):
            r = self.acc(self.ACC_A, 0, M)
            qk += self.cvt_store(r, so, 0, "qk") + self.cvt_store(r + 8, so, 1024, "qk")
        hst = []
        for t in (1, 2):
            for M, so in ((0, self.sH0), (1, self.sH1)):
                tl = self.sigmoid_tile(self.acc(self.ACC_A, t, M), so, 1024 * (t - 1), "h", o.pkB)
                epi += tl[:-1]
                hst.append(tl[-1])
        epi = qk + epi + self.att_masks()
        mf, fixed, pre = [], {}, {}
        vm, early = list(self.pend), {}
        for k in range(len(vm)):
            early[k] = int(o.p0 + k * o.ppace)

        def add(items, gap):
            early[len(vm)] = gap
            vm.extend(items)
        for s_ in range(8):
            add(self.fin_dma(s_), int(4 * (o.w0 + s_ * o.wpace) + 1))
        late = []
        for s_ in range(8, 8 + o.nB2):
            late.append((int(4 * (o.w0 + (s_ - 8) * o.wpace + o.wlat + 1.5)), self.fin_dma(s_)))
        rds, rearly = [], {}
        for s_ in range(8):
            rearly[len(rds)] = int(4 * (o.w0 + s_ * o.wpace + o.wlat))
            rds += self.fin_rdw(s_)
        late.append((4 * o.kpoll + 2, [lambda: self.poll_issue(self.vAP, self.vPOLL)]))
        late.append((4 * o.kchk, [lambda: self.poll_check(self.vAP, self.vPOLL, self.sMSK)] + self.record(self.att_loads_K)
                     + [lambda: self.poll_issue(self.vAP, self.vPOLL)]))
        for gap, items in sorted(late, key=lambda x: x[0]):
            add(items, gap)
        for n in range(28):
            g0 = 4 * n
            for t in range(2):
                for M in range(2):
                    r = self.wf(n % 2, t + 1)
                    mf.append(self.mtext(self.acc(self.ACC_B, t, M), f"a[{r}:{r+3}]", self.xf(M, n), n == 0))
            fx = fixed.setdefault(g0, [])
            if n in o.bs:
                pre.setdefault(g0, []).append(self.ts)
            if n == 7:
                fx.append(lambda: (b.wait_tags(("st9", "st10"), lg_all=True), I("s_barrier")))
            if n == o.fl0 and n != 15:
                fx.append(lambda: (b.wait_tags(("qk",)), I("s_barrier"), self.flag_store(0)))
            if n == 15:
                def bar():
                    b.wait_tags(("st11", "st12", "st13", "qk"), lg_all=True)
                    I("s_barrier")
                    if o.fl0 == 15:
                        self.flag_store(0)
                fx.append(bar)
            if n < 27:
                nx = self.readsB(n + 1)
                fx += nx[0]
                fixed.setdefault(g0 + o.rB, []).extend(nx[1])
            if n == 3:
                fixed.setdefault(g0 + 3, []).append(self.get_tag)
        self.ablate("B")
        self.sched(mf, fixed, [Stream(vm, 0, 110, ahead=100, maxlag=100, early=early, prio=1, starve=2),
                               Stream(rds, 4 * (o.w0 + o.wlat), 110, ahead=4, maxlag=4, early=rearly),
                               Stream(epi, 3, 4 * o.epi_end - 1, ahead=o.epi_ahead, maxlag=4)], pre=pre)
        b.drop = ()
        self.ts()
        T = []
        for t in (0, 1):
            for M, so in ((0, self.sH0), (1, self.sH1)):
                T.append(self.sigmoid_tile(self.acc(self.ACC_B, t, M), so, 1024 * t, "h", o.pk))
        bump = lambda: I(f"s_add_u32 s{self.sH0}, s{self.sH0}, 0x1000\ns_add_u32 s{self.sH1}, s{self.sH1}, 0x1000")
        self.postB([T[0][:-1], T[1][:-1], T[2], T[3]], hst[:3] + [lambda: (hst[3](), bump())] + [T[0][-1], T[1][-1]])

    NRD = 8

    def postB(self, T, hst):
        I, b, o = self.I, self.b, self.o
        KF = self.KF
        rd = lambda a, e: [f for s_ in range(a, e) for f in self.fin_rdw(s_)]
        dm = lambda a, e: [f for s_ in range(a, e) for f in self.fin_dma(s_)]
        d0 = 8 + o.nB2
        for f in self.weave(T[0] + T[1], dm(d0, d0 + o.nb0), 0.05, 0.9):
            f()
        self.poll_check(self.vAP, self.vPOLL, self.sMSK2)
        self.att_loads_V()
        self.ts()
        b.wait_tags(("K",))
        I(f"ds_write_b64 v{self.vP+6}, v[{self.vP}:{self.vP+1}]")
        I(f"ds_write_b64 v{self.vP+7}, v[{self.vP+2}:{self.vP+3}] offset:4096")
        q = self.vQ
        I(f"v_bfi_b32 v{q}, v{self.vMA}, v{q}, v{self.vP+4}\nv_and_b32 v{q+1}, v{self.vMA}, v{q+1}")
        I(f"v_bfi_b32 v{q+6}, v{self.vMB}, v{q+6}, v{self.vP+4}\nv_and_b32 v{q+7}, v{self.vMB}, v{q+7}")
        b.waitcnt(lg=0)
        I("s_barrier")
        self.ts()
        order = [8, 0, 7, 6, 5, 4, 3, 2, 1]

        def rdk(n):
            for s_ in range(2):
                r = KF + (n % 3) * 8 + 4 * s_
                I(f"ds_read_b128 v[{r}:{r+3}], v{self.vKA} offset:{2048*order[n] + 1024*s_}")
        rdk(0)
        rdk(1)
        m = self.vM
        mx = []

        def maxops(n):
            s0 = self.S(order[n])
            return [(lambda k=k: I(f"v_max_f32 v{m}, v{s0}, v{s0+1}" if (n == 0 and k == 0) else f"v_max3_f32 v{m}, v{m}, v{s0+k}, v{s0+k+1}")) for k in range(0, 16, 2)]
        vs = list(T[2][:-1]) + list(T[3][:-1])
        KH = 13
        bg = dm(d0 + o.nb0, d0 + o.nb0 + o.nbq)
        self.bg_rest = d0 + o.nb0 + o.nbq
        self.nold = d0 + o.nb0
        for k in range(18):
            n, half = divmod(k, 2)
            d = self.S(order[n])
            r = KF + (n % 3) * 8 + 4 * half
            c = f"v[{d}:{d+15}]" if (half or order[n] in (0, 8)) else "0"
            if order[n] == 1:
                assert not vs
            if half == 0 and 1 <= n <= 6 and hst:
                hst[n - 1]()
            I(f"v_mfma_f32_32x32x16_bf16 v[{d}:{d+15}], v[{r}:{r+3}], v[{q+4*half}:{q+4*half+3}], {c}")
            if half == 0 and n + 2 < 9:
                rdk(n + 2)
            if half == 1 and n >= 1:
                mx += maxops(n - 1)
            nv = math.ceil(len(vs) / (KH - k + 1)) if k <= KH else 0
            for _ in range(nv):
                vs.pop(0)()
            if k == KH and T[2]:
                T[2][-1]()
            if k == KH + 2:
                T[3][-1]()
            for _ in range(math.ceil(len(bg) / (18 - k))):
                bg.pop(0)()
            for _ in range(max(0, 5 - nv) if k < 17 else len(mx)):
                if mx:
                    mx.pop(0)()
        self.mx_rest = maxops(8)

    def passB_V(self):
        I, b, o = self.I, self.b, self.o
        b.drop = (lambda i: i.kind == "vmem" and f"s[{self.S_B}:{self.S_B+3}]" in i.text,)
        for f in list(self.pend):
            f()
        b.drop = ()
        self.srd(self.S_C, f"s{self.pGW}", f"s{self.pGW+1}", 896)
        I(f"s_add_u32 m0, s{self.sM0B}, {GW_LDS}")
        I(f"buffer_load_dwordx4 v{self.vL16}, s[{self.S_C}:{self.S_C+3}], 0 offen lds", "gw")
        I(f"s_sub_u32 s{self.sT1}, s{self.sQ0}, 0x2000\ns_sub_u32 s{self.sT2}, s{self.sQ1}, 0x2000")
        I(f"v_add_u32 v{self.vT+2}, 0x1000, v{self.vL16}")
        self.get_tag()
        epi = []
        for M, so in ((0, self.sQ0), (1, self.sQ1)):
            r = self.acc(self.ACC_A, 0, M)
            epi += self.cvt_store(r, so, 0, "qk") + self.cvt_store(r + 8, so, 1024, "qk")
        for t in (1, 2):
            for M, so in ((0, self.sT1), (1, self.sT2)):
                r = self.acc(self.ACC_A, t, M)
                epi += self.cvt_store(r, so, 1024 * (t - 1), "qk") + self.cvt_store(r + 8, so, 1024 * (t - 1), "qk", voff=self.vT + 2)
        I(f"s_and_b32 s88, s{self.sWV}, 1\ns_sub_u32 s89, s{self.sJ}, 14\ns_xor_b32 s88, s88, s89\ns_lshl_b32 s88, s88, 6")
        for st in range(3):
            I(f"v_xor_b32 v{self.vWR+3*st}, s88, v{self.vWR+3*st}\nv_subrev_u32 v{self.vWR+3*st}, 0x1000, v{self.vWR+3*st}")
        I(f"s_lshl_b32 s88, s{self.sRB}, 2\ns_add_u32 s88, s88, s{self.sWV}")
        I(f"s_mul_i32 s88, s88, {QKV_MT}\ns_lshl_b32 s89, s89, 11\ns_add_u32 s88, s88, s89")
        I(f"s_add_u32 s{self.sT3}, s88, {8*17*512}")
        I(f"v_lshrrev_b32 v{self.vT+3}, 5, v0\nv_lshlrev_b32 v{self.vT+3}, 4, v{self.vT+3}")
        I(f"s_add_u32 s88, s{self.sM0B}, {GW_LDS}\nv_add_u32 v{self.vT+3}, s88, v{self.vT+3}")
        I(f"v_and_b32 v{self.vT+4}, 31, v0\nv_lshlrev_b32 v{self.vT+4}, 2, v{self.vT+4}")
        D = self.ACC_B
        I(f"s_bitcmp1_b32 s{self.sWV}, 0\ns_cbranch_scc1 L_v_wc1")
        snap = b.snapshot()
        for wc in range(2):
            if wc == 1:
                b.label("L_v_wc1")
                b.restore(snap)
            e = list(epi)

            def rdv(n):
                t, ks = divmod(n, 4)
                r = self.WF + 4 * (n % 8)
                for e_ in range(2):
                    v, imm = self.lds(self.vWR, 3, 0, PB_BASE[t] + ks * 4096 + 512 * e_)
                    I(f"ds_read_b64_tr_b16 a[{r+2*e_}:{r+2*e_+1}], {v} offset:{imm}")
            PD = 5
            b.waitcnt(lg=0)
            for n in range(PD):
                rdv(n)
            for n in range(28):
                if n + PD == 8:
                    b.wait_tags(("st9", "st10"), lg_all=True)
                    I("s_barrier")
                if n + PD == 16:
                    b.wait_tags(("st11", "st12", "st13"))
                    I("s_barrier")
                if n + PD < 28:
                    rdv(n + PD)
                r = self.WF + 4 * (n % 8)
                self.mfma(D, f"a[{r}:{r+3}]", self.xf(wc, n), n == 0)
                for _ in range(3):
                    if e:
                        e.pop(0)()
            assert not e
            for f in self.cvt_store(D, self.sT3, 0, "qk") + self.cvt_store(D + 8, self.sT3, 1024, "qk"):
                f()
            if o.vs:
                nts_keep = self.nts
                self.ts()
                self.nts = nts_keep + (1 if wc == 1 else 0)
            b.wait_tags(("gw",))
            rdg = lambda n: I(f"ds_read_b128 a[{self.WF+4*(n%8)}:{self.WF+4*(n%8)+3}], v{self.vT+3} offset:{32*n}")
            for n in range(PD):
                rdg(n)
            mk = self.att_masks()
            for n in range(28):
                if n + PD < 28:
                    rdg(n + PD)
                r = self.WF + 4 * (n % 8)
                self.mfma(D + 16, f"a[{r}:{r+3}]", self.xf(wc, n), n == 0)
                for _ in range(3):
                    if mk:
                        mk.pop(0)()
            assert not mk
            I(f"v_mov_b32 v{self.vT+5}, v{D+16}")
            if wc == 0:
                I("s_branch L_v_done")
        b.label("L_v_done")
        b.wait_tags(("qk",), lg_all=True)
        I("s_barrier")
        self.flag_store(0)
        if o.vs:
            self.ts()
        for s_ in range(8):
            for f in self.fin_dma(s_):
                f()
        self.poll_issue(self.vAP, self.vPOLL)
        for s_ in range(8):
            for f in self.fin_rdw(s_):
                f()
        for s_ in range(8, 8 + o.nB2):
            for f in self.fin_dma(s_):
                f()
        self.poll_check(self.vAP, self.vPOLL, self.sMSK)
        self.att_loads_K()
        self.poll_issue(self.vAP, self.vPOLL)
        for _ in o.bs[(2 if o.vs else 0):]:
            self.ts()
        self.ts()
        self.postB([[], [], [], [lambda: I(f"buffer_store_dword v{self.vT+5}, v{self.vT+4}, s[{self.S_WS}:{self.S_WS+3}], s{self.sZO} offen sc1", "h")]], [])

    def poll_setup_att(self):
        I = self.I
        v, t = self.vAP, self.vT
        I(f"v_lshrrev_b32 v{v}, 4, v0\nv_add_u32 v{v}, s{self.sRB}, v{v}\nv_subrev_u32 v{v}, 2, v{v}\nv_max_i32 v{v}, 0, v{v}")
        I(f"v_min_u32 v{v}, 15, v{v}\nv_lshlrev_b32 v{v}, 8, v{v}\nv_and_b32 v{t}, 15, v0\nv_lshl_add_u32 v{v}, v{t}, 2, v{v}")
        I(f"v_add_u32 v{v}, {FL_OFF}, v{v}")
        I(f"s_mul_i32 s86, s{self.sJ}, 28\ns_add_u32 s87, s86, 27\ns_lshr_b32 s86, s86, 6\ns_lshr_b32 s87, s87, 6")
        I("s_lshl_b32 s88, 1, s86\ns_lshl_b32 s89, 1, s87\ns_or_b32 s88, s88, s89")
        I("s_lshl_b32 s89, s88, 7")
        I(f"s_mul_i32 s{self.sMSK}, s89, 0x10001\ns_or_b32 s{self.sMSK+1}, s88, s89")
        I("s_cmp_le_u32 s86, 3\ns_cselect_b32 s90, 0x4000, 0\ns_cmp_ge_u32 s87, 3\ns_cselect_b32 s91, 0x8000, 0\ns_or_b32 s90, s90, s91")
        I(f"s_mul_i32 s{self.sMSK2}, s90, 0x10001\ns_mov_b32 s{self.sMSK2+1}, s90")

    def poll_issue(self, vaddr, vdst, soff="0"):
        self.I(f"buffer_load_dword v{vdst}, v{vaddr}, s[{self.S_WS}:{self.S_WS+3}], {soff} offen sc1", "poll")

    def poll_check(self, vaddr, vdst, smask, soff="0"):
        I, b = self.I, self.b
        u = self.uid()
        self.nchk = getattr(self, "nchk", 0)
        kind = {self.sMSK2: "V"}.get(smask, "K" if vaddr == self.vAP else ("H" if soff == "0" else "O"))
        if "Gno" + kind in self.o.abl.split(","):
            return
        I(f"v_cmp_ne_u32 vcc, s{self.sTAG}, v{vdst}")
        I(f"s_and_b64 vcc, vcc, s[{smask}:{smask+1}]\ns_cbranch_scc0 L_pok{u}")
        keep_vm, keep_lg = list(b.vm), list(b.lg)
        I(f"s_mov_b32 s{self.sSPIN}, 0")
        b.label(f"L_psp{u}")
        if self.o.slp:
            I(f"s_sleep {self.o.slp}")
        I(f"buffer_load_dword v{vdst}, v{vaddr}, s[{self.S_WS}:{self.S_WS+3}], {soff} offen sc1")
        I(f"s_add_u32 s{self.sSPIN}, s{self.sSPIN}, 1\ns_cmp_gt_u32 s{self.sSPIN}, {SPIN_MAX}\ns_cbranch_scc1 L_exit")
        I(f"v_cmp_ne_u32 vcc, s{self.sTAG}, v{vdst}")
        I(f"s_and_b64 vcc, vcc, s[{smask}:{smask+1}]\ns_cbranch_scc1 L_psp{u}")
        b.vm, b.lg = keep_vm, keep_lg
        b.label(f"L_pok{u}")

    def S(self, i):
        return self.SREG[i]

    def att_setup(self):
        I = self.I
        h = self.sJ
        I(f"s_and_b32 s86, s{h}, 1\ns_sub_u32 s{self.sPAR}, 0, s86\ns_mov_b32 s{self.sPAR+1}, s{self.sPAR}")
        I(f"s_mul_i32 s87, s{h}, 7\ns_lshr_b32 s87, s87, 1\ns_lshl_b32 s87, s87, 9")
        I(f"s_lshl_b32 s88, s{self.sRB}, 2\ns_mul_i32 s89, s{self.sWV}, 3\ns_add_u32 s89, s89, s88\ns_sub_u32 s89, s89, 8")
        for i in range(3):
            I(f"s_add_u32 s90, s89, {i}\ns_max_i32 s90, s90, 0\ns_mul_i32 s90, s90, {QKV_MT}\ns_add_u32 s90, s90, s87")
            I(f"s_add_u32 s{self.sKT+i}, s90, {56*512}")
        v = self.vT
        I(f"v_lshrrev_b32 v{v}, 5, v0\nv_add_u32 v{v+1}, s89, v{v}\nv_mov_b32 v{v+2}, 0xf149")
        I(f"v_cmp_gt_i32 vcc, 0, v{v+1}\nv_cndmask_b32 v{self.vP}, 0, v{v+2}, vcc\nv_mov_b32 v{self.vP+1}, 0")
        I(f"s_add_u32 s90, s89, 2\ns_cmp_lt_i32 s90, 0\ns_cselect_b32 s90, 0xf149, 0\nv_mov_b32 v{self.vP+2}, s90\nv_mov_b32 v{self.vP+3}, 0")
        I(f"v_mov_b32 v{self.vP+4}, 0x3f80\nv_mov_b32 v{self.vP+5}, 0")
        I(f"s_cmp_eq_u32 s86, 0\ns_cselect_b32 s90, {1536+8}, 0\ns_mul_i32 s91, s{self.sWV}, {3*2048}\ns_add_u32 s90, s90, s91\ns_add_u32 s90, s90, {KV_K}")
        I(f"v_and_b32 v{v+1}, 31, v0\nv_lshlrev_b32 v{v+1}, 4, v{v+1}\nv_add_u32 v{self.vP+7}, s90, v{v+1}\nv_lshl_add_u32 v{self.vP+6}, v{v}, 11, v{self.vP+7}")
        I(f"v_and_b32 v{v+1}, 31, v0\nv_lshlrev_b32 v{v+2}, 2, v{v}\nv_xor_b32 v{v+1}, v{v+1}, v{v+2}\nv_lshlrev_b32 v{v+1}, 4, v{v+1}")
        I(f"v_lshl_add_u32 v{self.vP+8}, v{v}, 9, v{v+1}\nv_xor_b32 v{self.vP+9}, 0x80, v{self.vP+8}")
        I(f"s_lshl_b32 s90, s{self.sWV}, 11\ns_add_u32 s91, s90, {KV_K}\nv_add_u32 v{self.vKA}, s91, v{self.vL16}")
        I(f"v_bfe_u32 v{v+1}, v0, 4, 1\nv_bfe_u32 v{v+2}, v0, 1, 1\nv_lshl_add_u32 v{v+1}, v{v+1}, 1, v{v+2}")
        I(f"v_xor_b32 v{v+2}, v{v}, v{v+1}\nv_lshlrev_b32 v{v+2}, 2, v{v+2}\nv_bfe_u32 v{v+3}, v0, 2, 2\nv_add_u32 v{v+2}, v{v+2}, v{v+3}")
        I(f"v_lshlrev_b32 v{v+2}, 4, v{v+2}\nv_lshl_add_u32 v{v+2}, v{v+1}, 9, v{v+2}\nv_and_b32 v{v+3}, 1, v0\nv_lshl_add_u32 v{v+2}, v{v+3}, 3, v{v+2}")
        I(f"s_add_u32 s91, s90, {KV_V}\nv_add_u32 v{self.vVA}, s91, v{v+2}\nv_xor_b32 v{self.vVA+1}, 0x80, v{self.vVA}")
        I(f"v_subrev_u32 v{v+1}, 1, v{v}\nv_and_b32 v{v+1}, s{self.sPAR}, v{v+1}\nv_not_b32 v{self.vMA}, v{v+1}")
        I(f"v_sub_u32 v{v+1}, 0, v{v}\ns_not_b32 s91, s{self.sPAR}\nv_and_b32 v{v+1}, s91, v{v+1}\nv_not_b32 v{self.vMB}, v{v+1}")
        I(f"s_add_u32 s88, s88, s{self.sWV}\ns_mul_i32 s90, s88, {QKV_MT}\ns_add_u32 s{self.sQO}, s90, s87")
        I(f"s_mul_i32 s90, s88, {HO_MT}\ns_lshl_b32 s91, s{h}, 11\ns_add_u32 s90, s90, s91\ns_add_u32 s{self.sOO}, s90, {HO_OFF + 112*1024}")
        I(f"s_lshl_b32 s90, s88, 7\ns_add_u32 s{self.sZO}, s90, {Z_OFF}")
        m = self.vM
        I(f"v_lshlrev_b32 v{m}, 2, v{v}\nv_and_b32 v{m+1}, 31, v0\nv_sub_u32 v{m}, v{m+1}, v{m}\nv_mov_b32 v{m+1}, {NEG}")

    def att_masks(self):
        L = []
        v = self.vM
        pair = lambda r: f"s[{88+2*(r&1)}:{89+2*(r&1)}]"
        def cmp_(r):
            key = 8 * (r >> 2) + (r & 3)
            return lambda: self.I(f"v_cmp_gt_i32 {pair(r)}, {key}, v{v}")
        L.append(cmp_(0))
        for r in range(16):
            if r < 15:
                L.append(cmp_(r + 1))
            if r > 0:
                L.append(lambda r=r: self.I(f"v_sub_f32 v{self.S(0)+r-1}, v{v+1}, v{self.S(8)+r-1}"))
            L.append(lambda r=r: self.I(f"v_cndmask_b32 v{self.S(8)+r}, 0, v{v+1}, {pair(r)}"))
        L.append(lambda: self.I(f"v_sub_f32 v{self.S(0)+15}, v{v+1}, v{self.S(8)+15}"))
        return L

    def att_loads_K(self):
        I = self.I
        ws = f"s[{self.S_WS}:{self.S_WS+3}]"
        I(f"s_mul_i32 s86, s{self.sWV}, {3*2048}")
        for i in range(3):
            I(f"s_add_u32 m0, s86, {KV_K + 2048*i}")
            if i < 2:
                I(f"buffer_load_dwordx4 v[{self.vQ+4*i}:{self.vQ+4*i+3}], v{self.vL16}, {ws}, s{self.sQO} offen offset:{1024*i} sc1", "K")
            for e in range(2):
                I(f"buffer_load_dwordx4 v{self.vL16}, {ws}, s{self.sKT+i} offen offset:{1024*e} sc1 lds", "K")

    def att_loads_V(self):
        I = self.I
        ws = f"s[{self.S_WS}:{self.S_WS+3}]"
        I(f"s_mul_i32 s86, s{self.sWV}, {3*2048}")
        for i in range(3):
            I(f"s_add_u32 m0, s86, {KV_V + 2048*i}\ns_add_u32 s87, s{self.sKT+i}, {56*512}")
            for e in range(2):
                I(f"buffer_load_dwordx4 v{self.vP+8+e}, {ws}, s87 offen offset:{1024*e} sc1 lds", "V")

    def attention(self):
        I, b, o = self.I, self.b, self.o
        KF = self.KF
        m = self.vM
        order = [8, 7, 6, 5, 4, 3, 2, 1, 0]
        b.wait_tags(("V",))
        I(f"ds_write_b64 v{self.vP+6}, v[{self.vP+4}:{self.vP+5}] offset:{KV_V - KV_K}")
        I(f"ds_write_b64 v{self.vP+7}, v[{self.vP+4}:{self.vP+5}] offset:{KV_V - KV_K + 4096}")
        for f in self.mx_rest:
            f()
        b.waitcnt(lg=0)
        I("s_barrier")

        def rdv(i, bs):
            L = []
            for s in range(2):
                for e in range(2):
                    r = KF + bs * 8 + 4 * s + 2 * e
                    L.append(f"ds_read_b64_tr_b16 v[{r}:{r+1}], v{self.vVA+e} offset:{2048*i + 256*s}")
            return L
        for t in rdv(order[0], 0):
            I(t)
        I(f"v_mov_b32 v{m+1}, v{m}")
        I(f"v_permlane32_swap_b32 v{m}, v{m+1}")
        I(f"v_max_f32 v{m}, v{m}, v{m+1}")
        I(f"v_mul_f32 v{m}, s{self.sCS}, v{m}")
        I(f"s_mov_b32 s{self.sMSK}, 0x1ffff\ns_mov_b32 s{self.sMSK+1}, 0")
        self.ts()
        sched = {n: [] for n in range(9)}
        rd = lambda a, e: [f for s in range(a, e) for f in self.fin_rdw(s)]
        dm = lambda a, e: [f for s in range(a, e) for f in self.fin_dma(s)]
        pub = lambda: (b.wait_tags(("h",)), I("s_barrier"), self.flag_store(1))
        nd = self.bg_rest
        nr = 8
        per = math.ceil((28 - nd) / o.dtiles)
        issued = {s_: (-3 if s_ < self.nold else o.rd0 - 2) for s_ in range(nd)}
        for n in range(9):
            k = 0
            while nr < 28 and issued.get(nr, 99) + 2 <= n and (k < o.rdper or n >= 7):
                sched[n] += rd(nr, nr + 1)
                nr += 1
                k += 1
            k = 0
            while nd < 28 and k < per and (self.ring_prev(nd) is None or self.ring_prev(nd) < nr):
                sched[n] += dm(nd, nd + 1)
                issued[nd] = max(n, o.rd0 - 2)
                nd += 1
                k += 1
        assert nd == 28 and nr == 28, (nd, nr)
        self.wo_next = 28 + o.nwo
        for k in range(o.nwo):
            sched[o.wot + k * (7 - o.wot) // max(1, o.nwo)] += dm(28 + k, 29 + k)
        hl = [f for s in range(o.nh0) for f in self.fin_hload(s)]
        sched[7] += hl[:len(hl) // 2]
        sched[8] += hl[len(hl) // 2:]
        sched[o.hpub] = sched[o.hpub] + [pub]
        sched[o.hpoll] = sched[o.hpoll] + [lambda: self.poll_issue(self.vFA, self.vPOLL)]
        sched[7] = [self.hook_poll_check] + sched[7]
        O = self.vO
        prev = None
        for n, i in enumerate(order):
            if n in o.ss:
                self.ts()
            d = self.S(i)
            p = self.vP + 8 * (n % 2)
            L = []
            if o.pk:
                for k in range(0, 16, 2):
                    L.append(f"v_pk_fma_f32 v[{d+k}:{d+k+1}], v[{d+k}:{d+k+1}], s[{self.sNL2E}:{self.sCS}], v[{m}:{m+1}] op_sel:[0,1,0] op_sel_hi:[1,1,0] neg_lo:[0,0,1] neg_hi:[0,0,1]")
            else:
                for k in range(16):
                    L.append(f"v_fma_f32 v{d+k}, v{d+k}, s{self.sCS}, -v{m}")
            ex = [f"v_exp_f32 v{d+k}, v{d+k}" for k in range(16)]
            cv = [f"v_cvt_pk_bf16_f32 v{p+k}, v{d+2*k}, v{d+2*k+1}" for k in range(8)]
            seq = L + ex + cv
            vr = rdv(order[n + 1], (n + 1) % 2) if n + 1 < 9 else []
            main = []
            for k, t in enumerate(seq):
                main.append(lambda t=t: I(t))
                if prev is not None and k == 1:
                    main.append(lambda t=prev[0]: I(t))
                if prev is not None and k == 7:
                    main.append(lambda t=prev[1]: I(t))
                if k >= 10 and vr:
                    main.append(lambda t=vr.pop(0): I(t))
            for f in self.weave(main, sched[n], 0.0, 1.0):
                f()
            r = KF + (n % 2) * 8
            prev = (f"v_mfma_f32_32x32x16_bf16 v[{O}:{O+15}], v[{r}:{r+3}], v[{p}:{p+3}], " + ("0" if n == 0 else f"v[{O}:{O+15}]"),
                    f"v_mfma_f32_32x32x16_bf16 v[{O}:{O+15}], v[{r+4}:{r+7}], v[{p+4}:{p+7}], v[{O}:{O+15}]")
        I(prev[0])
        I(prev[1])
        t = self.vQ
        I(f"v_mul_f32 v{t}, s{self.sNL2E}, v{self.vZZ}\nv_exp_f32 v{t}, v{t}")
        z = self.vZZ + 1
        for a in range(2):
            I(f"v_mul_f32 v{z+a}, s{self.sNL2E}, v{z+a}\nv_exp_f32 v{z+a}, -v{z+a}")
        I(f"v_add_f32 v{t}, 1.0, v{t}")
        for a in range(2):
            I(f"v_add_f32 v{z+a}, 1.0, v{z+a}\nv_rcp_f32 v{z+a}, v{z+a}")
        I(f"v_cndmask_b32 v{t+1}, v{O+12}, v{O}, s[{self.sPAR}:{self.sPAR+1}]\nv_mov_b32 v{t+2}, v{t+1}")
        I(f"v_permlane32_swap_b32 v{t+1}, v{t+2}")
        I(f"v_cndmask_b32 v{t+1}, v{t+2}, v{t+1}, s[{self.sPAR}:{self.sPAR+1}]")
        I(f"v_mul_f32 v{t}, v{t}, v{t+1}\nv_rcp_f32 v{t}, v{t}")
        I(f"v_and_b32 v{t+1}, v{self.vMA}, v{t}\nv_and_b32 v{t+2}, v{self.vMB}, v{t}")
        for k in range(16):
            sc = t + 1 if k == 0 else (t + 2 if k == 12 else t)
            I(f"v_mul_f32 v{O+k}, v{O+k}, v{sc}")
        for f in self.cvt_store(O, self.sOO, 0, "o") + self.cvt_store(O + 8, self.sOO, 1024, "o"):
            f()

    def hook_poll_check(self):
        I = self.I
        self.poll_check(self.vFA, self.vPOLL, self.sMSK)
        v = self.vT
        I(f"v_and_b32 v{v}, 31, v0\nv_lshlrev_b32 v{v}, 2, v{v}")
        ws = f"s[{self.S_WS}:{self.S_WS+3}]"
        I(f"buffer_load_dword v{self.vZZ}, v{v}, {ws}, s{self.sZO} offen sc1", "z")
        I(f"buffer_load_dword v{self.vZZ+1}, v{v}, {ws}, s{self.sZF} offen sc1", "z")
        I(f"s_xor_b32 s{self.sZF}, s{self.sZF}, 0x80")
        I(f"buffer_load_dword v{self.vZZ+2}, v{v}, {ws}, s{self.sZF} offen sc1", "z")

    ENTRY = [(1, i) for i in range(8)] * 2 + [(0, i) for i in range(6)] + [(1, i) for i in range(6)] + [(0, i) for i in range(6)] + [(1, 6), (1, 7)]

    def ring_addr(self, step):
        hi, i = self.ENTRY[step]
        return hi, 2048 * i

    def ring_prev(self, step):
        for p in range(step - 1, -1, -1):
            if self.ENTRY[p] == self.ENTRY[step]:
                return p
        return None

    def final_setup(self):
        I = self.I
        v = self.vT
        I("s_lshr_b32 s86, s2, 3\ns_and_b32 s87, s2, 7\ns_mul_i32 s88, s86, 37\ns_lshr_b32 s88, s88, 8")
        I(f"s_mul_i32 s89, s88, 7\ns_sub_u32 s89, s86, s89\ns_cmp_lt_u32 s86, 28\ns_cselect_b32 s{self.sFIN}, 1, 0")
        I("s_min_u32 s88, s88, 3\ns_lshl_b32 s87, s87, 2\ns_add_u32 s87, s87, s88")
        I(f"s_lshr_b32 s90, s{self.sWV}, 1\ns_and_b32 s91, s{self.sWV}, 1")
        I(f"s_lshl_b32 s92, s88, 1\ns_add_u32 s92, s92, s89\ns_cmp_ge_u32 s92, 7\ns_cselect_b32 s93, 7, 0\ns_sub_u32 s94, s92, s93")
        if self.o.rot != 1:
            I({0: "s_mov_b32 s94, 0", 2: "s_mov_b32 s94, s89", 3: "s_lshl_b32 s94, s88, 1"}[self.o.rot])
        I(f"s_sub_u32 s{self.sWRAP}, 7, s94\ns_and_b32 s86, s89, {1 if self.o.rot in (1, 2) else 0}")
        I(f"s_mul_i32 s92, s{self.sWV}, {448*896}\ns_lshl_b32 s89, s89, 7\ns_add_u32 s{self.sFW}, s92, s89")
        I(f"s_mul_i32 s92, s94, {64*896}\ns_add_u32 s{self.sFW}, s{self.sFW}, s92")
        I(f"s_mul_i32 s92, s{self.sWV}, {112*896}\ns_add_u32 s{self.sFWO}, s92, s89\ns_mul_i32 s92, s86, {56*896}\ns_add_u32 s{self.sFWO}, s{self.sFWO}, s92")
        I(f"s_cmp_lg_u32 s86, 0\ns_mov_b32 s{self.sDWO}, {16*896}\ns_cselect_b32 s{self.sDWO}, {(-96*896) & 0xFFFFFFFF}, s{self.sDWO}")
        I(f"s_cmp_lg_u32 s86, 0\ns_movk_i32 s{self.sDHO}, 0x1000\ns_cselect_b32 s{self.sDHO}, 0xfffff000, s{self.sDHO}")
        I(f"s_mul_i32 s{self.sFM0}, s{self.sWV}, {12*K}\ns_add_u32 s{self.sFM0}, s{self.sFM0}, {RING_LO}")
        I(f"s_lshl_b32 s{self.sFM1}, s{self.sWV}, 14\ns_add_u32 s{self.sFM1}, s{self.sFM1}, {RING_HI}")
        I(f"v_lshrrev_b32 v{v}, 3, v0\nv_and_b32 v{v+1}, 2, v{v}\nv_lshlrev_b32 v{v+1}, 1, v{v+1}\nv_and_b32 v{v+2}, 7, v0\nv_xor_b32 v{v+1}, v{v+1}, v{v+2}")
        I(f"v_mul_u32_u24 v{v}, 0x380, v{v}\nv_lshl_add_u32 v{self.vFD}, v{v+1}, 4, v{v}\nv_add_u32 v{self.vFD+1}, {8*896-1024}, v{self.vFD}")
        I(f"v_bfe_u32 v{v}, v0, 2, 2\nv_lshrrev_b32 v{v+1}, 5, v0")
        I(f"v_and_b32 v{v+2}, 1, v0\nv_lshlrev_b32 v{v+2}, 4, v{v+2}\nv_bfe_u32 v{v+3}, v0, 1, 1\nv_lshl_add_u32 v{v+2}, v{v+3}, 3, v{v+2}")
        I(f"v_bfe_u32 v{v+3}, v0, 4, 1\nv_and_b32 v{v+4}, 2, v{v}\nv_xor_b32 v{v+3}, v{v+3}, v{v+4}\ns_lshl_b32 s92, s90, 1\nv_xor_b32 v{v+3}, s92, v{v+3}")
        I(f"v_lshl_add_u32 v{v+2}, v{v+3}, 5, v{v+2}\nv_lshl_add_u32 v{v+2}, v{v}, 7, v{v+2}")
        R = self.vFR
        I(f"v_lshl_add_u32 v{v+3}, v{v+1}, 10, v{v+2}\nv_add_u32 v{R}, s{self.sFM0}, v{v+3}\nv_xor_b32 v{R+1}, 64, v{R}")
        I(f"v_add_u32 v{R+2}, s{self.sFM1}, v{v+3}\nv_xor_b32 v{R+3}, 64, v{R+2}")
        I(f"v_lshlrev_b32 v{R+4}, 9, v{v+1}")
        I(f"s_lshl_b32 s93, s87, 1\ns_add_u32 s93, s93, s91\ns_mul_i32 s92, s93, {HO_MT}\ns_mul_i32 s88, s{self.sWV}, {28*1024}")
        I(f"s_add_u32 s92, s92, {HO_OFF - HO_MT}\ns_add_u32 s88, s88, s92\ns_lshl_b32 s94, s94, 12\ns_add_u32 s{self.sFH}, s88, s94")
        I(f"s_lshl_b32 s88, s{self.sWV}, 1\ns_add_u32 s88, s88, s86\ns_lshl_b32 s88, s88, 12\ns_add_u32 s88, s88, s92\ns_add_u32 s{self.sFHO}, s88, {112*1024}")
        I(f"s_cmp_eq_u32 s91, 0\ns_cselect_b32 s92, {2*HO_MT}, 0")
        I(f"v_add_u32 v{R+5}, {HO_MT}, v{self.vL16}\nv_add_u32 v{R+6}, s92, v{self.vL16}")
        I(f"s_lshl_b32 s92, s87, 2\ns_add_u32 s92, s92, s{self.sWV}\ns_mul_i32 s92, s92, {16*896}\ns_add_u32 s{self.sFO}, s92, s89")
        I(f"s_lshl_b32 s92, s93, 7\ns_add_u32 s{self.sZF}, s92, {Z_OFF}")
        I(f"s_lshr_b32 s87, s87, 1\ns_lshl_b32 s87, s87, 8\ns_add_u32 s87, s87, {FL_OFF + 4096}")
        I(f"s_lshl_b32 s88, s{self.sRB}, 8\ns_add_u32 s88, s88, {FL_OFF + 4096 + 56}")
        I(f"v_lshlrev_b32 v{v}, 2, v0\nv_add_u32 v{v}, s87, v{v}\nv_mov_b32 v{v+1}, s88\nv_cmp_gt_u32 vcc, 16, v0\nv_cndmask_b32 v{self.vFA}, v{v+1}, v{v}, vcc")

    def fin_dma(self, step):
        I, b = self.I, self.b
        hi, c = self.ring_addr(step)
        sm = self.sFM1 if hi else self.sFM0

        def first():
            p = self.ring_prev(step)
            if p is not None:
                need = None
                for i, (_d, t) in enumerate(b.lg):
                    if t == f"rw{p}":
                        need = len(b.lg) - 1 - i
                if f"rw{p}" not in self.rw_done:
                    raise NotReady(step)
                b.waitcnt(lg=need)
            I(f"s_add_u32 m0, s{sm}, {c}")
        L = [first]
        if step < 28:
            srd, so = self.S_WD, self.sFW
        else:
            srd, so = self.S_WO, self.sFWO
        if 0 < step < 28 and step % 4 == 0:
            L.append(lambda: I(f"s_cmp_eq_u32 s{self.sWRAP}, {step//4}\ns_cselect_b32 s86, {(-448*896) & 0xFFFFFFFF}, 0\ns_add_u32 s{so}, s{so}, s86\ns_add_u32 s{so}, s{so}, {16*896}"))
        elif 0 < step < 28:
            L.append(lambda: I(f"s_add_u32 s{so}, s{so}, {16*896}"))
        elif step == 32:
            L.append(lambda: I(f"s_add_u32 s{so}, s{so}, s{self.sDWO}"))
        elif step > 28:
            rows = [0, 16, 24, 40]
            d = rows[step % 4] - rows[step % 4 - 1]
            L.append(lambda: I(f"s_add_u32 s{so}, s{so}, {d*896}"))
        for e in range(2):
            L.append(lambda e=e: I(f"buffer_load_dwordx4 v{self.vFD+e}, s[{srd}:{srd+3}], s{so} offen offset:{1024*e}{' nt' if 'f' in self.o.nt else ''} lds", f"w{step}"))
        return L

    rw_done = set()

    def fw(self, step, t):
        return (t * 28 + step) * 4 if step < 28 else 224 + (step % 2) * 8 + 4 * t

    def fin_rdw(self, step):
        hi, c = self.ring_addr(step)
        L = []
        for t in range(2):
            for e in range(2):
                r = self.fw(step, t) + 2 * e
                imm = c + (512 if step < 28 else 1024) * e

                def f(r=r, t=t, e=e, imm=imm):
                    if t == 0 and e == 0:
                        self.b.wait_tags((f"w{step}",))
                    self.I(f"ds_read_b64_tr_b16 a[{r}:{r+1}], v{self.vFR + 2*hi + t} offset:{imm}", f"rw{step}")
                    if t == 1 and e == 1:
                        self.rw_done.add(f"rw{step}")
                L.append(f)
        return L

    def fin_hload(self, step):
        I = self.I
        L = []
        R = self.vFR
        imm = 1024 * ((step if step < 28 else step - 28) % 4)
        if step == 28:
            L.append(lambda: I(f"s_mov_b32 s{self.sFH}, s{self.sFHO}"))
        elif step == 32:
            L.append(lambda: I(f"s_add_u32 s{self.sFH}, s{self.sFH}, s{self.sDHO}"))
        elif step % 4 == 0 and step > 0:
            L.append(lambda: I(f"s_cmp_eq_u32 s{self.sWRAP}, {step//4}\ns_cselect_b32 s86, {(-28*1024) & 0xFFFFFFFF}, 0\ns_add_u32 s{self.sFH}, s{self.sFH}, s86\ns_add_u32 s{self.sFH}, s{self.sFH}, 0x1000"))
        for a in range(2):
            r = self.FH + (step % self.NH) * 8 + 4 * a
            L.append(lambda r=r, a=a: I(f"buffer_load_dwordx4 v[{r}:{r+3}], v{R+5+a}, s[{self.S_WS}:{self.S_WS+3}], s{self.sFH} offen offset:{imm} sc1", f"h{step}"))
        return L

    def final(self):
        I, b, o = self.I, self.b, self.o
        R = self.vFR
        z = self.vZZ + 1
        nh = o.nh0
        A = self.FACC
        I("\n".join(f"v_sub_u32 v{R+i}, v{R+i}, v{R+4}" for i in range(4)))
        I(f"s_mov_b32 s{self.sMSK}, 0xffff\ns_movk_i32 s{self.sT0}, 0x1000")
        rs = self.record(self.red_setup)
        for n in range(36):
            gaps = [[] for _ in range(4)]
            if n in o.fs:
                self.ts()
            if n >= 19 and rs:
                gaps[2].append(rs.pop(0))
            if 28 <= n + 1 < 36:
                rd = self.fin_rdw(n + 1)
                gaps[0] += rd[:2]
                gaps[1] += rd[2:]
            if n >= o.wo0 and (n - o.wo0) % o.wodt == 0 and self.wo_next < 36:
                dd = self.fin_dma(self.wo_next)
                self.wo_next += 1
                gaps[0] += dd[:-1]
                gaps[3] += dd[-1:]
            if n == o.opub:
                gaps[0].append(lambda: (b.wait_tags(("o",)), I("s_barrier"), self.flag_store(2)))
            if n == o.opoll_issue:
                gaps[1].append(lambda: self.poll_issue(self.vFA, self.vPOLL, soff=f"s{self.sT0}"))
            lim = 28 if n < o.opoll_check else 36
            if n == o.opoll_check:
                gaps[0].append(lambda: self.poll_check(self.vFA, self.vPOLL, self.sMSK, soff=f"s{self.sT0}"))
            cnt = 0
            while nh < lim and nh - self.NH < n and cnt < o.hrate:
                hl = self.fin_hload(nh)
                gaps[(2 * cnt + 1) % 4] += hl[:-1]
                gaps[(2 * cnt + 2) % 4 if cnt == 0 else 3] += hl[-1:]
                nh += 1
                cnt += 1
            if n == 28:
                for s in range(4):
                    for k in range(0, 16, 2):
                        I(f"v_pk_mul_f32 v[{A[s]+k}:{A[s]+k+1}], v[{A[s]+k}:{A[s]+k+1}], v[{z}:{z+1}] op_sel:[0,{s&1}] op_sel_hi:[1,{s&1}]")
            i = 0
            tiles = [(0, 0), (0, 1), (1, 0), (1, 1)] if n < 35 else [(0, 1), (1, 0), (1, 1), (0, 0)]
            for t, a in tiles:
                rw = self.fw(n, t)
                rh = self.FH + (n % self.NH) * 8 + 4 * a
                self.mfma(A[2 * t + a], f"a[{rw}:{rw+3}]", f"v[{rh}:{rh+3}]", n == 0)
                for f in gaps[i]:
                    f()
                i += 1
        self.ts()
        W, Rr, vo = self.vRW, self.vRR, self.vRO
        for sg in (1, 2, 3, 0):
            for q in range(4):
                r = A[sg] + 4 * q
                I(f"ds_write_b128 v{W+q}, v[{r}:{r+3}] offset:{(sg & 1) * 8192 + (sg >> 1) * 128}")
        b.waitcnt(lg=0)
        I("s_barrier")
        T = self.FH
        for i in range(2):
            for w_ in range(4):
                for e_ in range(2):
                    r = T + 32 * i + 8 * w_ + 4 * e_
                    I(f"ds_read_b128 v[{r}:{r+3}], v{Rr + 2*w_ + e_} offset:{2048*i}")
        for i in range(2):
            r = T + 32 * i
            for k in range(0, 8, 2):
                I(f"v_pk_add_f32 v[{r+k}:{r+k+1}], v[{r+k}:{r+k+1}], v[{r+8+k}:{r+9+k}]")
            for k in range(0, 8, 2):
                I(f"v_pk_add_f32 v[{r+16+k}:{r+17+k}], v[{r+16+k}:{r+17+k}], v[{r+24+k}:{r+25+k}]")
            for k in range(0, 8, 2):
                I(f"v_pk_add_f32 v[{r+k}:{r+k+1}], v[{r+k}:{r+k+1}], v[{r+16+k}:{r+17+k}]")
            for k in range(4):
                I(f"v_cvt_pk_bf16_f32 v{r+k}, v{r+2*k}, v{r+2*k+1}")
            if o.thr and i == 0:
                b.raw("s_memrealtime s[100:101]")
                b.raw("s_waitcnt lgkmcnt(0)")
                b.lg = []
                I(f"global_load_dwordx2 v[46:47], v{self.vZ}, s[{self.pDBG}:{self.pDBG+1}] offset:128 sc1\nv_or_b32 v46, v46, v47\nv_readfirstlane_b32 s101, v46")
                I(f"s_sub_u32 s100, s100, s{self.sTAG}\ns_cmp_gt_i32 s100, {o.thr}\ns_cselect_b32 s100, 0x7fc07fc0, 0")
                I(f"s_cmp_lg_u32 s101, 0\ns_cselect_b32 s100, 0, s100\nv_or_b32 v{r}, s100, v{r}")
            I(f"buffer_store_dwordx4 v[{r}:{r+3}], v{vo+i}, s[{self.S_OUT}:{self.S_OUT+3}], s{self.sFO} offen{' nt' if 'o' in self.o.nt else ''}{' sc1' if 'O' in self.o.nt else ''}")

    vRW, vRR, vRO = 4, 8, 16

    def red_setup(self):
        I = self.I
        W, Rr, vo, t = self.vRW, self.vRR, self.vRO, 18
        I(f"v_and_b32 v{t}, 31, v0\nv_lshlrev_b32 v{t}, 8, v{t}\nv_add_u32 v{t}, s{self.sFM1}, v{t}")
        I(f"v_lshrrev_b32 v{t+1}, 5, v0\nv_lshlrev_b32 v{t+1}, 1, v{t+1}\nv_and_b32 v{t+2}, 7, v0\nv_xor_b32 v{t+1}, v{t+1}, v{t+2}")
        I(f"v_lshl_add_u32 v{W}, v{t+1}, 4, v{t}\nv_xor_b32 v{W+1}, 16, v{W}\nv_xor_b32 v{W+2}, 64, v{W}\nv_xor_b32 v{W+3}, 0x50, v{W}")
        I(f"v_lshrrev_b32 v{t}, 3, v0\nv_and_b32 v{t+1}, 3, v0\nv_lshlrev_b32 v{t+1}, 1, v{t+1}\nv_xor_b32 v{t+1}, v{t+1}, v{t}")
        I(f"v_lshlrev_b32 v{t+1}, 4, v{t+1}\nv_lshl_add_u32 v{t+1}, v{t}, 8, v{t+1}\nv_bfe_u32 v{t+2}, v0, 2, 1\nv_lshl_add_u32 v{t+1}, v{t+2}, 7, v{t+1}")
        I(f"s_and_b32 s86, s{self.sWV}, 1\ns_lshl_b32 s86, s86, 12\ns_lshr_b32 s87, s{self.sWV}, 1\ns_lshl_b32 s87, s87, 13\ns_add_u32 s86, s86, s87\nv_add_u32 v{t+1}, s86, v{t+1}")
        for w_ in range(4):
            x = ((w_ & 1) << 13) | ((w_ >> 1) << 7)
            I(f"v_xor_b32 v{Rr+2*w_}, {x}, v{t+1}\nv_add_u32 v{Rr+2*w_}, {RING_HI + w_*16*K}, v{Rr+2*w_}\nv_xor_b32 v{Rr+2*w_+1}, 16, v{Rr+2*w_}")
        I(f"v_mul_u32_u24 v{vo}, 0x380, v{t}\nv_and_b32 v{t+2}, 7, v0\nv_lshl_add_u32 v{vo}, v{t+2}, 4, v{vo}\nv_add_u32 v{vo+1}, {8*896}, v{vo}")

    def build(self):
        I, b, o = self.I, self.b, self.o
        b.label(KNAME)
        import re as _re
        self.phase = "p1"
        rules = {"Gwdma": lambda i: i.kind == "vmem" and i.tag and _re.match(r"w\d", i.tag),
                 "Gst": lambda i: i.kind == "vmem" and i.op == "buffer_store_dwordx4" and "sc1" in i.text,
                 "Ghld": lambda i: i.kind == "vmem" and i.tag and _re.match(r"h\d", i.tag),
                 "Gmf": lambda i: i.kind == "mfma" and self.phase == "fin",
                 "Gmp": lambda i: i.kind == "mfma" and self.phase == "p1",
                 "Gexp": lambda i: i.op in ("v_exp_f32", "v_pk_fma_f32") and self.phase == "att",
                 "Gkv": lambda i: i.kind == "vmem" and i.tag in ("K", "V"),
                 "Grw": lambda i: i.kind == "ds" and i.tag is not None}
        b.gdrop = tuple(rules[a] for a in o.abl.split(",") if a in rules)
        self.prologue()
        self.ts(98)
        self.ts(99)
        self.sts_flush()
        self.ts()
        self.passA()
        self.ts()
        I(f"s_cmp_lg_u32 s{self.sISV}, 0\ns_cbranch_scc1 L_vpath")
        snap = b.snapshot()
        nts0 = self.nts
        self.passB_GU()
        gu_vm = list(b.vm)
        gu_lg = [t for _d, t in b.lg]
        I("s_branch L_join")
        b.label("L_vpath")
        b.restore(snap)
        self.rw_done = set()
        self.nts = nts0
        self.passB_V()
        b.label("L_join")
        vt = [t for _d, t in b.vm]
        gt = [t for _d, t in gu_vm]
        after = lambda L, t: L[::-1].index(t) if t in L else 10 ** 6
        for t in set(vt) | set(gt):
            if t is not None:
                assert o.abl or after(vt, t) <= after(gt, t), (t, vt, gt)
        assert [t for _d, t in b.lg] == gu_lg
        self.ts()
        self.phase = "att"
        self.attention()
        self.phase = "fin"
        self.ts()
        I(f"s_cmp_lg_u32 s{self.sFIN}, 0\ns_cbranch_scc0 L_nofinal")
        snap2 = b.snapshot()
        self.final()
        if o.ts:
            b.wait_all()
            self.ts(last=True)
        I("s_endpgm")
        b.label("L_nofinal")
        b.restore(snap2)
        b.wait_tags(("o",))
        I("s_barrier")
        self.flag_store(2)
        b.label("L_exit")
        b.raw("s_endpgm")

    def text(self):
        hdr = open("gated_mix__sliding_block__glu_gated_glu__prompt.s.ref").read().split("; Override launch")[0]
        s = hdr
        s += "; Generated by my own generator script (hand-designed schedule; no compiler output).\n"
        s += "; @launch grid=(256,1,1) block=(256,1,1) lds=163840\n"
        s += '.amdgcn_target "amdgcn-amd-amdhsa--gfx950"\n.text\n'
        s += f".globl {KNAME}\n.p2align 8\n.type {KNAME},@function\n"
        s += self.b.text()
        s += f""".section .rodata,"a"
.p2align 6
.amdhsa_kernel {KNAME}
  .amdhsa_next_free_vgpr 512
  .amdhsa_next_free_sgpr 102
  .amdhsa_accum_offset 256
  .amdhsa_group_segment_fixed_size 0
  .amdhsa_kernarg_size 88
  .amdhsa_user_sgpr_count 2
  .amdhsa_user_sgpr_kernarg_segment_ptr 1
  .amdhsa_system_sgpr_workgroup_id_x 1
.end_amdhsa_kernel
"""
        return s


def main():
    ap = argparse.ArgumentParser()
    ap.add_argument("-o", default="k.s")
    ap.add_argument("--ts", action="store_true")
    ap.add_argument("--cyc", action="store_true")
    ap.add_argument("--thrpat", type=int, default=1)
    ap.add_argument("--badmap", type=int, default=0)
    ap.add_argument("--thr", type=int, default=0)
    ap.add_argument("--lite", action="store_true")
    ap.add_argument("--dbgts", type=int, default=0)
    ap.add_argument("--sts", action="store_true")
    ap.add_argument("--pk", type=int, default=1)
    ap.add_argument("--pkB", type=int, default=0)
    ap.add_argument("--align", type=int, default=1)
    ap.add_argument("--coop", type=int, default=1)
    ap.add_argument("--lead", type=int, default=2)
    ap.add_argument("--rot", type=int, default=0)
    ap.add_argument("--fl0", type=int, default=11)
    ap.add_argument("--kpoll", type=int, default=21)
    ap.add_argument("--kchk", type=int, default=25)
    ap.add_argument("--epi_end", type=int, default=28)
    ap.add_argument("--nbq", type=int, default=4)
    ap.add_argument("--wA", type=int, default=1)
    ap.add_argument("--pace", type=int, default=0)
    ap.add_argument("--slp", type=int, default=0)
    ap.add_argument("--wsoff", type=int, default=0)
    ap.add_argument("--nt", default="")
    ap.add_argument("--wodt", type=int, default=2)
    ap.add_argument("--nwo", type=int, default=0)
    ap.add_argument("--wot", type=int, default=5)
    ap.add_argument("--ramp", type=int, default=0)
    ap.add_argument("--late1", type=int, default=1)
    ap.add_argument("--pfgap", type=int, default=4)
    ap.add_argument("--tagn", type=int, default=13)
    ap.add_argument("--pf0", type=int, default=2)
    ap.add_argument("--pfn0", type=int, default=1)
    ap.add_argument("--pft0", type=int, default=0)
    ap.add_argument("--pfdt", type=int, default=4)
    ap.add_argument("--nB2", type=int, default=3)
    ap.add_argument("--rd0", type=int, default=3)
    ap.add_argument("--p0", type=int, default=4)
    ap.add_argument("--ppace", type=float, default=1.25)
    ap.add_argument("--w0", type=int, default=9)
    ap.add_argument("--wpace", type=float, default=1.25)
    ap.add_argument("--epi_ahead", type=int, default=4)
    ap.add_argument("--nb0", type=int, default=3)
    ap.add_argument("--dtiles", type=int, default=5)
    ap.add_argument("--rdper", type=int, default=4)
    ap.add_argument("--wo0", type=int, default=1)
    ap.add_argument("--cld", type=int, default=8)
    ap.add_argument("--cst", type=int, default=12)
    ap.add_argument("--abl", default="")
    ap.add_argument("--vs", type=int, default=0)
    ap.add_argument("--rB", type=int, default=1)
    ap.add_argument("--wlat", type=int, default=7)
    ap.add_argument("--hpub", type=int, default=1)
    ap.add_argument("--hpoll", type=int, default=5)
    ap.add_argument("--nh0", type=int, default=8)
    ap.add_argument("--hrate", type=int, default=1)
    ap.add_argument("--opub", type=int, default=6)
    ap.add_argument("--opoll_issue", type=int, default=14)
    ap.add_argument("--opoll_check", type=int, default=18)
    ap.add_argument("--pfs", default="0:0:3:0:0,10:3:7:0:0,14:0:0:1:0,20:0:0:0:1", type=lambda t: [tuple(int(y) for y in x.split(":")) for x in t.split(",") if x])
    ap.add_argument("--xpf", default="", type=lambda t: [tuple(int(y) for y in x.split(":")) for x in t.split(",") if x])
    for k in ("fs", "bs", "ss", "As"):
        ap.add_argument("--" + k, default="", type=lambda t: [int(x) for x in t.split(",") if x])
    o = ap.parse_args()
    g = G(o)
    g.build()
    open(o.o, "w").write(g.text())
    print(f"st0 issued at byte {g.off_st0}; code bytes {g.b.off}, hazard nops {g.b.nops_added}, stamps {g.nts}", file=sys.stderr)


if __name__ == "__main__":
    main()
```

```python
import sys, math, argparse
from asmb import Builder

KNAME = "gated_mix__sliding_block__glu_gated_glu__prompt_kernel"
K = 1024
QKV_OFF = 0
QKV_MT = 168 * 512
HO_OFF = 0x600000
HO_MT = 144 * 1024
Z_OFF = 0xF00000
FL_OFF = 0xF10000
E_OFF = 0xF20000
TS_OFF = 0xF30000
WS_SIZE = 0x1000000
SLOT = 40 * K
CHUNK = 10 * K
PB_BASE = [120 * K, 136 * K, 0, 16 * K, 48 * K, 64 * K, 80 * K]
KV_K = 0
KV_V = 24 * K
RING_LO = 48 * K
RING_HI = 96 * K
GW_LDS = 32 * K
NEG = 0xF149F2CA
LOG2E = 1.4426950408889634
SPIN_MAX = 1 << 18


def f32hex(x):
    import struct
    return "0x%08x" % struct.unpack("<I", struct.pack("<f", x))[0]


class NotReady(Exception):
    pass


class Stream:
    def __init__(self, items, t0, t1, ahead=0.0, maxlag=3.0, early=None, prio=0, starve=99):
        self.items, self.t0, self.t1, self.ahead, self.maxlag = list(items), t0, t1, ahead, maxlag
        self.early = early or {}
        self.idx = 0
        self.prio, self.starve, self.waiting = prio, starve, 0

    def lag(self, g):
        tgt = len(self.items) * min(1.0, (g - self.t0 + 1) / max(1, self.t1 - self.t0 + 1))
        return tgt - self.idx

    def ready(self, g):
        return self.idx < len(self.items) and g >= self.t0 and g >= self.early.get(self.idx, 0)


class G:
    def sched(self, mf, fixed, streams, cap=None, pre=None):
        b = self.b
        cap = cap or self.o.cap
        for g, m in enumerate(mf):
            if pre and g in pre:
                for f in pre[g]:
                    f()
            self.I(m)
            start = len(b.out)
            for f in fixed.get(g, []):
                f()
            while True:
                took = False
                for s_ in sorted((x for x in streams if x.ready(g)), key=lambda x: (-x.prio, -x.lag(g) / max(1.0, x.maxlag))):
                    lag = s_.lag(g)
                    if lag <= -s_.ahead:
                        continue
                    mk, rw, uid = b.mark(), set(self.rw_done), self._uid
                    try:
                        s_.items[s_.idx]()
                    except NotReady:
                        b.rollback(mk)
                        continue
                    res = 4 if (g + 1 < len(mf) and (b.needs_wait(mf[g + 1]) or (pre and g + 1 in pre))) else 0
                    nvm = sum(1 for i_ in b.out[start:] if i_.kind == "vmem")
                    fits = b.cost_since(start) + res <= cap and nvm <= 1
                    if fits or lag >= s_.maxlag or g >= s_.t1 or s_.waiting >= s_.starve:
                        s_.idx += 1
                        s_.waiting = -1
                        took = True
                        break
                    b.rollback(mk)
                    self.rw_done = rw
                if not took:
                    break
            for s_ in streams:
                s_.waiting = s_.waiting + 1 if s_.ready(g) else 0
        for s_ in streams:
            assert s_.idx == len(s_.items), (s_.idx, len(s_.items))

    def ablate(self, ph):
        d = []
        for a in self.o.abl.split(","):
            if not a.startswith(ph):
                continue
            k = a[1:]
            d.append({"dma": lambda i: i.kind == "vmem" and " lds" in i.text and "sc1" not in i.text,
                      "st": lambda i: i.kind == "vmem" and "x4" in i.op and "store" in i.op,
                      "valu": lambda i: i.op in ("v_mul_f32", "v_exp_f32", "v_add_f32", "v_rcp_f32", "v_cvt_pk_bf16_f32", "v_pk_mul_f32", "v_pk_add_f32", "v_sub_f32", "v_cndmask_b32", "v_cmp_gt_i32"),
                      "rw": lambda i: i.kind == "ds" and i.tag is not None,
                      "ds": lambda i: i.kind == "ds",
                      "bar": lambda i: i.op == "s_barrier"}[k])
        self.b.drop = tuple(d)

    def mtext(self, d, a, bb, first):
        c = "0" if first else f"v[{d}:{d+15}]"
        return f"v_mfma_f32_32x32x16_bf16 v[{d}:{d+15}], {a}, {bb}, {c}"

    def __init__(self, opt):
        self.o = opt
        self.b = Builder(align_opt=opt.align)
        self.b.cld, self.b.cst = opt.cld, opt.cst
        self.nts = 0

    S_X, S_A, S_B, S_C, S_WS, S_WD, S_WO, S_OUT = 8, 12, 16, 20, 24, 28, 32, 36
    pDBG, pGW = 40, 42
    sWV, sRB, sJ, sISV = 44, 45, 46, 47
    sX, sA, sB, sC = 48, 49, 50, 51
    sSAB, sM0, sM0B, sA2, sB2 = 52, 53, 54, 55, 56
    sTAG = 57
    sQ0, sQ1, sH0, sH1 = 58, 59, 60, 61
    sNL2E, sCS = 62, 63
    sMSK, sMSK2, sPAR = 64, 66, 68
    sKT = 70
    sQO, sZO, sOO = 73, 74, 75
    sFIN, sFW, sFH, sFWO, sFM0, sFM1, sFO, sZF = 76, 77, 78, 79, 80, 81, 82, 83
    sSPIN, sT0 = 84, 85
    sT1, sT2, sT3 = 3, 4, 5
    sWRAP, sFHO, sDWO, sDHO = 0, 1, 6, 7
    sTS, sEX, sTM = 95, 96, 100
    vL16 = 1
    vXD = 2
    vWD = 6
    vXR = 12
    vWR = 24
    vT = 33
    vPFW, vPFC = 46, 47
    vPOLL = 48
    vZ = 49
    vFL = 50
    vAP = 51
    ACC_A = 52
    ACC_B = 148
    WF = 224
    KF = 4
    vO = 196
    vQ = 212
    vP = 220
    vKA = 236
    vVA = 237
    vM = 240
    vMA, vMB = 242, 239
    vZZ = 243
    vFA = 246
    vFD = 247
    vFR = 249
    FH = 84
    NH = 16
    FACC = [52, 68, 212, 228]
    SREG = {8: 52, 0: 68, 7: 84, 6: 100, 5: 116, 4: 132, 3: 148, 2: 164, 1: 180}

    _par = {}

    def I(self, t, tag=None):
        if self.o.fake16 and t.startswith("v_mfma_f32_32x32x16") and getattr(self, "phase", "p1") in self.o.fake16.split(","):
            import re as _re
            m = _re.match(r"v_mfma_f32_32x32x16_bf16 v\[(\d+):\d+\], (\S+), (\S+), (.*)", t)
            d = int(m.group(1)); p = self._par.get(d, 0); self._par[d] = p ^ 1
            if m.group(4) == "0":
                self._par[("z", d)] = 2
            z = self._par.get(("z", d), 0)
            self._par[("z", d)] = max(0, z - 1)
            for q in range(2):
                r = d + 8 * p + 4 * q
                self.b.I(f"v_mfma_f32_16x16x32_bf16 v[{r}:{r+3}], {m.group(2)}, {m.group(3)}, " + ("0" if z else f"v[{r}:{r+3}]"))
            return
        self.b.I(t, tag)

    def srd(self, s, lo, hi, size):
        self.I(f"s_mov_b32 s{s}, {lo}\ns_mov_b32 s{s+1}, {hi}\ns_mov_b32 s{s+2}, {size}\ns_mov_b32 s{s+3}, 0x20000")

    def ts(self, sreg=None, last=False):
        if not self.o.ts or (self.o.lite and not last and sreg != 98):
            return
        n = self.nts
        self.nts += 1
        if sreg is None:
            self.b.raw(f"{'s_memtime' if self.o.cyc else 's_memrealtime'} s[{self.sTM}:{self.sTM+1}]")
            self.b.raw("s_waitcnt lgkmcnt(0)")
            self.b.lg = []
            sreg = self.sTM
        self.I(f"v_mov_b32 v{self.vT}, s{sreg}\nv_mov_b32 v{self.vT+1}, 0")
        self.I(f"s_mov_b64 s[{self.sEX}:{self.sEX+1}], exec\ns_mov_b64 exec, 1")
        if self.o.dbgts:
            u = self.uid()
            keep = list(self.b.vm)
            self.I(f"s_lshl_b32 s86, s2, 2\ns_add_u32 s86, s86, s{self.sWV}\ns_cmp_eq_u32 s86, {self.o.dbgts}\ns_cbranch_scc0 L_dts{u}")
            self.I(f"global_store_dword v{self.vT+1}, v{self.vT}, s[{self.pDBG}:{self.pDBG+1}] offset:{4*(n+1)} sc1")
            self.b.label(f"L_dts{u}")
            if n == 0 or last:
                self.I(f"s_cmp_eq_u32 s{self.sWV}, 0\ns_cbranch_scc0 L_dtt{u}")
                if n == 0:
                    self.I(f"v_not_b32 v{self.vT}, v{self.vT}")
                self.I(f"global_atomic_umax v{self.vT+1}, v{self.vT}, s[{self.pDBG}:{self.pDBG+1}] offset:{56 if n == 0 else 60} sc1")
                self.b.label(f"L_dtt{u}")
            self.b.vm = keep
        else:
            self.I(f"buffer_store_dword v{self.vT}, v{self.vT+1}, s[{self.S_WS}:{self.S_WS+3}], s{self.sTS} offen offset:{4*n}")
        self.I(f"s_mov_b64 exec, s[{self.sEX}:{self.sEX+1}]")

    soft = 0

    def sts(self):
        if not self.o.sts:
            return
        self.b.raw(f"{'s_memtime' if self.o.cyc else 's_memrealtime'} s[{self.sTM}:{self.sTM+1}]")
        self.b.raw("s_waitcnt lgkmcnt(0)")
        self.I(f"v_mov_b32 v{196+self.soft}, s{self.sTM}")
        self.soft += 1

    def sts_flush(self):
        for k in range(self.soft):
            self.I(f"v_readfirstlane_b32 s{self.sTM}, v{196+k}")
            self.ts(self.sTM)

    def lds(self, base, n, idx, const):
        return f"v{base + (const >> 16) * n + idx}", const & 0xFFFF

    def xf(self, M, n):
        r = (M * 28 + n) * 4
        return f"a[{r}:{r+3}]"

    def wf(self, bufset, t):
        r = self.WF + bufset * 12 + t * 4
        return r

    def acc(self, base, t, M):
        r = base + (t * 2 + M) * 16
        return r

    def prologue(self):
        I = self.I
        b = self.b
        b.align_opt = False
        if self.o.ts or self.o.thr:
            b.raw(f"{'s_memtime' if self.o.cyc else 's_memrealtime'} s[98:99]")
        I("s_cmp_ge_u32 s2, 0x100\ns_cbranch_scc1 L_exit")
        if self.o.badmap:
            I("s_and_b32 s3, s2, 31\ns_lshl_b32 s3, s3, 3\ns_lshr_b32 s2, s2, 5\ns_or_b32 s2, s2, s3")
        b.raw("s_load_dwordx16 s[64:79], s[0:1], 0")
        b.raw("s_load_dwordx4 s[80:83], s[0:1], 64")
        b.raw(f"s_load_dwordx2 s[{self.S_WS}:{self.S_WS+1}], s[0:1], 80")
        I("s_getpc_b64 s[4:5]")
        b.label("L_pc")
        I("s_and_b32 s3, s2, 0xf8\nv_and_b32 v33, 7, v0\nv_add_lshl_u32 v33, v33, s3, 7\nv_min_u32 v33, L_exit-L_pc, v33")
        I("global_load_dword v45, v33, s[4:5]", tag="pf")
        b.vm[-1] = (set(), "pf")
        I("v_lshrrev_b32 v35, 6, v0\nv_and_b32 v0, 63, v0")
        I(f"v_readfirstlane_b32 s{self.sWV}, v35")
        I("s_and_b32 s3, s2, 7\ns_lshr_b32 s6, s2, 3")
        I(f"s_and_b32 s7, s3, 1\ns_lshl_b32 s7, s7, 3\ns_and_b32 s4, s6, 7\ns_add_u32 s{self.sRB}, s4, s7")
        I(f"s_lshr_b32 s7, s3, 1\ns_lshl_b32 s7, s7, 2\ns_lshr_b32 s5, s6, 3\ns_add_u32 s{self.sJ}, s5, s7")
        I(f"v_lshlrev_b32 v{self.vL16}, 4, v0")
        I("v_lshrrev_b32 v35, 3, v0\nv_and_b32 v36, 7, v0\nv_lshrrev_b32 v37, 4, v0")
        I("v_mul_u32_u24 v38, 0x380, v35")
        I("v_xor_b32 v39, v36, v37\nv_lshl_add_u32 v2, v39, 4, v38")
        I(f"v_xor_b32 v3, 64, v2\nv_add_u32 v3, {8*896-1024}, v3")
        I(f"v_add_u32 v4, {16*896-2048}, v2\nv_add_u32 v5, {16*896-2048}, v3")
        I("v_and_b32 v39, 2, v35\nv_lshlrev_b32 v39, 1, v39\nv_xor_b32 v39, v36, v39\nv_lshlrev_b32 v39, 4, v39")
        I(f"s_cmp_ge_u32 s{self.sJ}, 14\ns_cselect_b32 s{self.sISV}, 1, 0")
        I("s_movk_i32 s7, 0xe00\ns_movk_i32 s86, 0xa80\ns_cselect_b32 s7, s86, s7")
        I("v_mul_u32_u24 v40, 0xa80, v35\nv_add_u32 v10, v40, v39")
        I(f"v_add_u32 v11, {8*2688-1024}, v10")
        I("v_mul_u32_u24 v40, s7, v35\nv_add_u32 v6, v40, v39")
        I("s_lshl_b32 s86, s7, 3\ns_sub_u32 s86, s86, 0x400\nv_add_u32 v7, s86, v6")
        I("v_xor_b32 v8, 32, v6\nv_xor_b32 v9, 32, v7")
        I(f"s_lshl_b32 s{self.sSAB}, s7, 6")
        if self.o.coop == 1:
            I("v_lshrrev_b32 v42, 1, v0\nv_and_b32 v43, 1, v0\nv_lshlrev_b32 v44, 7, v43")
            I("v_mul_u32_u24 v41, 0x380, v43\nv_lshl_add_u32 v41, v42, 7, v41")
            I(f"v_mul_u32_u24 v{self.vPFW}, s{self.sSAB}, v42\nv_add_u32 v{self.vPFW}, v{self.vPFW}, v44")
            I(f"v_mul_u32_u24 v{self.vPFC}, {64*2688}, v42\nv_add_u32 v{self.vPFC}, v{self.vPFC}, v44")
        I(f"s_lshl_b32 s86, s{self.sRB}, 2\ns_add_u32 s87, s86, s{self.sWV}\ns_mul_i32 s{self.sX}, s87, {32*896}")
        if self.o.coop == 1:
            I(f"s_mul_i32 s3, s87, s7\ns_mul_i32 s4, s87, 0xa80")
            I(f"s_lshl_b32 s86, s{self.sRB}, 4\ns_add_u32 s86, s86, s{self.sJ}\ns_lshl_b32 s86, s86, 2\ns_add_u32 s86, s86, s{self.sWV}")
            I(f"s_mul_i32 s6, s86, {2*896}\ns_mul_i32 s5, s86, 49")
        I(f"s_lshl_b32 s86, s{self.sWV}, 4\ns_mul_i32 s87, s86, s7\ns_mul_i32 s88, s86, 0xa80")
        I(f"s_lshl_b32 s89, s{self.sJ}, 8\ns_lshl_b32 s90, s{self.sJ}, 7")
        I(f"s_lshl_b32 s91, s{self.sJ}, 9\ns_sub_u32 s91, s91, {42*128}")
        I(f"s_add_u32 s92, s91, 0x80\ns_add_u32 s93, s91, 0x100\ns_add_u32 s94, s89, 0x80")
        I(f"s_cmp_lg_u32 s{self.sISV}, 0")
        I(f"s_cselect_b32 s91, s91, s89\ns_cselect_b32 s92, s92, s89\ns_cselect_b32 s93, s93, s90")
        I(f"s_cselect_b32 s90, {17*128}, s94")
        I(f"s_add_u32 s{self.sA}, s91, s87\ns_add_u32 s{self.sB}, s92, s87\ns_add_u32 s{self.sC}, s93, s88")
        I(f"s_add_u32 s{self.sA2}, s90, s87\ns_add_u32 s{self.sB2}, s94, s87")
        I(f"s_mul_i32 s{self.sM0}, s{self.sWV}, {CHUNK}")
        if self.o.coop == 1:
            P = self.vPF
            I(f"s_add_u32 s86, s91, s3\ns_add_u32 s87, s92, s3\ns_add_u32 s88, s93, s4")
            I(f"v_add_u32 v{P}, s6, v41\nv_add_u32 v{P+1}, s86, v{self.vPFW}\nv_add_u32 v{P+2}, s87, v{self.vPFW}")
            I(f"v_add_u32 v{P+3}, s88, v{self.vPFC}")
        WQ, WG_ = 448 * 2688, 448 * 3584
        I(f"s_mov_b32 s{self.S_X+2}, {2048*896}\ns_mov_b32 s{self.S_X+3}, 0x20000\ns_mov_b32 s{self.S_C+2}, {WQ}")
        I(f"s_cmp_lg_u32 s{self.sISV}, 0")
        I(f"s_cselect_b32 s{self.S_A+2}, s{self.S_C+2}, {WG_}\ns_mov_b32 s{self.S_B+2}, s{self.S_A+2}")
        for s_ in (self.S_A, self.S_B, self.S_C):
            I(f"s_mov_b32 s{s_+3}, s{self.S_X+3}")
        b.raw("s_waitcnt lgkmcnt(0)")
        if self.o.ts and not self.o.lite:
            b.raw(f"{'s_memtime' if self.o.cyc else 's_memrealtime'} s[96:97]")
            b.raw("s_waitcnt lgkmcnt(0)")
            I("s_mov_b32 s99, s96")
        I(f"s_mov_b32 s{self.S_X}, s64\ns_mov_b32 s{self.S_X+1}, s65")
        for s_, lo in ((self.S_A, 72), (self.S_B, 74)):
            I(f"s_cselect_b32 s{s_}, s66, s{lo}\ns_cselect_b32 s{s_+1}, s67, s{lo+1}")
        I(f"s_mov_b32 s{self.S_C}, s66\ns_mov_b32 s{self.S_C+1}, s67")
        srd = lambda s_: f"s[{s_}:{s_+3}]"
        self.pf_batch(0)
        self.sts()
        for ins in self.dma_stageA(0):
            ins()
        self.off_st0 = b.off
        self.pf_batch(1)
        b.align_opt = self.o.align
        self.sts()
        I(f"s_lshl_b32 s{self.sM0B}, s{self.sWV}, 12")
        if self.o.coop == 1:
            self.srd(self.S_WD, "s76", "s77", 1792 * 896)
            self.srd(self.S_WO, "s68", "s69", 448 * 896)
            P = self.vPF
            I(f"s_lshr_b32 s86, s5, 2\ns_lshl_b32 s86, s86, 7\ns_lshr_b32 s5, s5, 4\ns_lshl_b32 s5, s5, 7\nv_lshlrev_b32 v44, 7, v0")
            I(f"v_add_u32 v{P+4}, s86, v44\nv_add_u32 v{P+5}, s5, v44")
        I(f"s_mov_b32 s{self.S_WS+2}, {WS_SIZE}\ns_mov_b32 s{self.S_WS+3}, 0x20000")
        if self.o.wsoff:
            I(f"s_add_u32 s{self.S_WS}, s{self.S_WS}, {self.o.wsoff << 20}\ns_addc_u32 s{self.S_WS+1}, s{self.S_WS+1}, 0")
        I(f"v_mov_b32 v{self.vZ}, 0\ns_mov_b32 s86, {E_OFF}")
        I(f"buffer_load_dword v{self.vPOLL}, v{self.vZ}, s[{self.S_WS}:{self.S_WS+3}], s86 offen sc1", tag="E")
        if not self.o.late1:
            for st in range(1, self.o.lead):
                for ins in self.dma_stageA(st):
                    ins()
        self.sts()
        if not self.o.late1:
            self.pf_batch(2)
        if self.o.coop != 1:
            self.srd(self.S_WD, "s76", "s77", 1792 * 896)
            self.srd(self.S_WO, "s68", "s69", 448 * 896)
        if self.o.coop == 2:
            self.pf2_setup()
            for k in range(self.o.pfn0):
                self.pf2(k)
        if self.o.xpf:
            P = self.vPF + 6
            I(f"s_lshr_b32 s86, s2, 3\ns_lshl_b32 s86, s86, 2\ns_add_u32 s86, s86, s{self.sWV}\ns_lshr_b32 s87, s86, 5\ns_and_b32 s88, s86, 31")
            I(f"s_mul_i32 s87, s87, {3136*128}\ns_mul_i32 s88, s88, {49*128}\ns_add_u32 s87, s87, s88\ns_mul_i32 s86, s86, {25*128}")
            I(f"v_lshlrev_b32 v{P+2}, 7, v0\nv_add_u32 v{P}, s87, v{P+2}\nv_add_u32 v{P+1}, {1568*128}, v{P}\nv_add_u32 v{P+2}, s86, v{P+2}")
        self.srd(self.S_OUT, "s80", "s81", 2048 * 896)
        I(f"s_mov_b64 s[{self.pDBG}:{self.pDBG+1}], s[82:83]\ns_mov_b64 s[{self.pGW}:{self.pGW+1}], s[78:79]")
        if self.o.ts:
            I(f"s_lshl_b32 s86, s2, 2\ns_add_u32 s86, s86, s{self.sWV}\ns_lshl_b32 s86, s86, 7\ns_add_u32 s{self.sTS}, s86, {TS_OFF}")
        I(f"s_lshr_b32 s86, s{self.sWV}, 1\ns_and_b32 s87, s{self.sWV}, 1")
        I("v_and_b32 v35, 31, v0\nv_lshrrev_b32 v36, 5, v0")
        I("v_bfe_u32 v37, v0, 1, 3\nv_xor_b32 v37, v37, v36")
        I(f"s_mul_i32 s88, s86, {2*CHUNK}\nv_lshlrev_b32 v38, 7, v35\nv_add_u32 v38, s88, v38")
        for ks in range(4):
            I(f"v_xor_b32 v39, {2*ks}, v37\nv_lshl_add_u32 v{self.vXR+ks}, v39, 4, v38")
        I("v_bfe_u32 v37, v0, 2, 2\nv_lshl_add_u32 v38, v36, 3, v37\nv_lshlrev_b32 v38, 7, v38")
        I("v_and_b32 v39, 1, v0\nv_lshlrev_b32 v39, 4, v39\nv_bfe_u32 v40, v0, 1, 1\nv_lshl_add_u32 v39, v40, 3, v39")
        I("v_add_u32 v38, v38, v39")
        I("v_bfe_u32 v39, v0, 4, 1\nv_and_b32 v40, 2, v37\nv_xor_b32 v40, v40, v39")
        I("s_lshl_b32 s88, s87, 1")
        I("v_xor_b32 v41, s88, v40")
        I(f"v_lshl_add_u32 v42, v41, 5, v38")
        I(f"v_add_u32 v{self.vWR}, 0x1000, v42")
        I(f"v_lshl_add_u32 v{self.vWR+1}, v39, 11, v42")
        I(f"v_xor_b32 v{self.vWR+2}, 32, v{self.vWR+1}")
        for st in (1, 2):
            for i in range(4):
                I(f"v_add_u32 v{self.vXR+4*st+i}, {65536*st}, v{self.vXR+i}")
            for i in range(3):
                I(f"v_add_u32 v{self.vWR+3*st+i}, {65536*st}, v{self.vWR+i}")
        I(f"s_lshl_b32 s88, s{self.sRB}, 2\ns_lshl_b32 s89, s86, 1\ns_add_u32 s88, s88, s89")
        I(f"s_mul_i32 s89, s88, {QKV_MT}\ns_lshl_b32 s90, s87, 11\ns_add_u32 s89, s89, s90")
        I(f"s_lshl_b32 s90, s{self.sJ}, 12\ns_lshl_b32 s91, s{self.sJ}, 14\ns_sub_u32 s91, s91, {40*4096}")
        I(f"s_cmp_lg_u32 s{self.sISV}, 0\ns_cselect_b32 s90, s91, s90\ns_add_u32 s{self.sQ0}, s89, s90")
        I(f"s_add_u32 s{self.sQ1}, s{self.sQ0}, {QKV_MT}")
        I(f"s_mul_i32 s89, s88, {HO_MT}\ns_lshl_b32 s90, s{self.sJ}, 13\ns_lshl_b32 s91, s87, 11\ns_add_u32 s89, s89, s90")
        I(f"s_add_u32 s89, s89, s91\ns_add_u32 s{self.sH0}, s89, {HO_OFF}\ns_add_u32 s{self.sH1}, s{self.sH0}, {HO_MT}")
        I(f"s_mov_b32 s{self.sNL2E}, {f32hex(-LOG2E)}\ns_mov_b32 s{self.sCS}, {f32hex(LOG2E / math.sqrt(28.0))}")
        I(f"s_lshl_b32 s88, s{self.sRB}, 8\ns_lshl_b32 s89, s{self.sJ}, 2\ns_add_u32 s88, s88, s89\ns_add_u32 s88, s88, {FL_OFF}")
        I(f"v_mov_b32 v{self.vFL}, s88")
        self.setup = self.record(lambda: (self.poll_setup_att(), self.att_setup(), self.final_setup()))
        k0 = int(len(self.setup) * self.o.presetup)
        for f in self.setup[:k0]:
            f()
        self.setup = self.setup[k0:]
        if self.o.late1:
            for st in range(1, self.o.lead):
                for ins in self.dma_stageA(st):
                    ins()
            self.pf_batch(2)
        self.sts()

    vPF = 200

    def pf2_setup(self):
        I = self.I
        P = self.vPF
        I(f"v_mov_b32 v{P}, s{self.S_X}\nv_mov_b32 v{P+1}, s{self.S_X+1}\nv_mov_b32 v{P+2}, 0x80")
        f0 = self.o.pf0
        I(f"s_lshl_b32 s86, s{self.sRB}, 2\ns_add_u32 s86, s86, s{self.sWV}\ns_mul_i32 s3, s86, s7\ns_mul_i32 s4, s86, 0xa80")
        I(f"s_lshl_b32 s86, s{self.sRB}, 4\ns_add_u32 s86, s86, s{self.sJ}\ns_lshl_b32 s86, s86, 2\ns_add_u32 s5, s86, s{self.sWV}")
        I(f"s_mul_i32 s6, s{self.sSAB}, {f0}")

        def lane(l, base, off, stride):
            I(f"s_add_u32 s88, s{base}, {off}\ns_addc_u32 s89, s{base+1}, 0")
            I(f"v_writelane_b32 v{P}, s88, {l}\nv_writelane_b32 v{P+1}, s89, {l}")
            if stride:
                I(f"v_writelane_b32 v{P+2}, {stride}, {l}")
        I(f"s_mul_i32 s86, s5, {2*896}\ns_add_u32 s86, s86, {128*f0}")
        lane(0, self.S_X, "s86", None)
        I("s_add_u32 s86, s86, 0x380")
        lane(1, self.S_X, "s86", None)
        for l, srd, col in ((2, self.S_A, 91), (3, self.S_B, 92)):
            I(f"s_add_u32 s86, s{col}, s3\ns_add_u32 s86, s86, s6")
            lane(l, srd, "s86", f"s{self.sSAB}")
        I(f"s_add_u32 s86, s93, s4\ns_add_u32 s86, s86, {64*2688*f0}\ns_mov_b32 s87, {64*2688}")
        lane(4, self.S_C, "s86", "s87")
        I("s_add_u32 s86, s90, s3")
        lane(5, self.S_A, "s86", f"s{self.sSAB}")
        I(f"s_cmp_lg_u32 s{self.sISV}, 0\ns_cselect_b32 s86, s90, s94\ns_add_u32 s86, s86, s3")
        lane(6, self.S_B, "s86", f"s{self.sSAB}")
        I(f"s_mul_i32 s86, s5, 49\ns_lshr_b32 s6, s86, 4\ns_lshr_b32 s86, s86, 2\ns_min_u32 s86, s86, {12544-14}\ns_lshl_b32 s86, s86, 7\ns_movk_i32 s87, 0x100")
        lane(7, self.S_WD, "s86", "s87")
        I("s_add_u32 s86, s86, 0x80")
        lane(8, self.S_WD, "s86", "s87")
        I(f"s_min_u32 s86, s6, {3136-7}\ns_lshl_b32 s86, s86, 7")
        lane(9, self.S_WO, "s86", None)

    def pf2(self, k):
        I = self.I
        P = self.vPF
        mask = (0x1f if self.o.pf0 + k <= 6 else 0) | (0x3e0 if k <= 6 else 0)
        I(f"s_mov_b64 exec, {hex(mask)}")
        I(f"global_load_dword v{self.vT+12}, v[{P}:{P+1}], off", "pf")
        self.b.vm[-1] = (set(), "pf")
        I(f"s_mov_b64 exec, -1")
        if k < 6:
            I(f"v_add_co_u32 v{P}, vcc, v{P+2}, v{P}\nv_addc_co_u32 v{P+1}, vcc, 0, v{P+1}, vcc")

    def pf_batch(self, when):
        for spec in self.o.pfs:
            if len(spec) == 5:
                w, s0, s1, pb, fin = spec
                p0, p1, d0, d1 = 0, (7 if pb == 1 else pb), 0, (13 if fin else 0)
            else:
                w, s0, s1, p0, p1, d0, d1 = spec
            if w != when or self.o.coop != 1:
                continue
            mx = sum(3 << (2 * s_) for s_ in range(s0, s1))
            mc = sum(1 << (2 * s_) for s_ in range(s0, s1))
            mw = mc | sum(2 << (2 * s_) for s_ in range(p0, p1))
            P = self.vPF
            if mx:
                self.I(f"s_mov_b64 exec, {hex(mx)}")
                self.pf(P, self.S_X, "0")
            if mw:
                self.I(f"s_mov_b64 exec, {hex(mw)}")
                self.pf(P + 1, self.S_A, "0")
                self.pf(P + 2, self.S_B, "0")
                if mc:
                    self.pf(P + 3, self.S_C, "0")
            if d1 > d0:
                self.I(f"s_mov_b64 exec, {hex(sum(1 << l for l in range(d0, d1)))}")
                self.pf(P + 4, self.S_WD, "0")
                if d1 == 13:
                    self.I("s_mov_b64 exec, 0xf")
                    self.pf(P + 5, self.S_WO, "0")
            self.I("s_mov_b64 exec, -1")

    def xpf(self, h, l0=0, l1=None):
        nl = 25 if h == 2 else 49
        l1 = nl if l1 is None else min(l1, nl)
        m = sum(1 << l for l in range(l0, l1))
        self.I(f"s_mov_b32 exec_lo, {hex(m & 0xffffffff)}\ns_mov_b32 exec_hi, {hex(m >> 32)}")
        self.pf(self.vPF + 6 + h, self.S_WO if h == 2 else self.S_WD, "0")
        self.I("s_mov_b64 exec, -1")

    def record(self, fn):
        L = []
        real = self.I
        self.I = lambda t, tag=None: L.append(lambda: real(t, tag))
        fn()
        del self.I
        return L

    def dma_stageA(self, st):
        I = self.I
        base = (st % 4) * SLOT
        tag = f"st{st}"
        L = []
        L.append(lambda: I(f"s_add_u32 m0, s{self.sM0}, {base}"))
        for bq in range(4):
            L.append(lambda bq=bq: I(f"buffer_load_dwordx4 v{self.vXD+bq}, s[{self.S_X}:{self.S_X+3}], s{self.sX} offen offset:{1024*bq}{' nt' if 'x' in self.o.nt else ''} lds", tag))
        prev = lambda: I(f"s_add_u32 s{self.sX}, s{self.sX}, 0x80")
        for seg, (srd, so, stp) in enumerate(((self.S_A, self.sA, self.sSAB), (self.S_B, self.sB, self.sSAB), (self.S_C, self.sC, None))):
            L.append(lambda seg=seg: I(f"s_add_u32 m0, s{self.sM0}, {base + 4096 + 2048*seg}"))
            L.append(prev)
            for e in range(2):
                L.append(lambda seg=seg, e=e, srd=srd, so=so: I(f"buffer_load_dwordx4 v{self.vWD+2*seg+e}, s[{srd}:{srd+3}], s{so} offen offset:{1024*e}{' nt' if 'w' in self.o.nt else ''} lds", tag))
            prev = lambda so=so, stp=stp: I(f"s_add_u32 s{so}, s{so}, " + (f"s{stp}" if stp else str(64*2688)))
        L.append(prev)
        return L

    def dma_stageB(self, t):
        I = self.I
        base = PB_BASE[t]
        tag = f"st{7+t}"
        L = []
        prev = None
        if t == 0:
            prev = lambda: I(f"s_cmp_lg_u32 s{self.sISV}, 0\ns_cselect_b32 s{self.S_B+2}, 0, s{self.S_B+2}")
        for seg, (srd, so) in enumerate(((self.S_A, self.sA2), (self.S_B, self.sB2))):
            L.append(lambda seg=seg: I(f"s_add_u32 m0, s{self.sM0B}, {base + 2048*seg}"))
            if prev:
                L.append(prev)
            for e in range(2):
                L.append(lambda seg=seg, e=e, srd=srd, so=so: I(f"buffer_load_dwordx4 v{self.vWD+2*seg+e}, s[{srd}:{srd+3}], s{so} offen offset:{1024*e}{' nt' if 'w' in self.o.nt else ''} lds", tag))
            prev = lambda so=so: I(f"s_add_u32 s{so}, s{so}, s{self.sSAB}")
        L.append(prev)
        return L

    def rd_w(self, bufset, slot_t, addr_t, const):
        out = []
        r = self.wf(bufset, slot_t)
        for e in range(2):
            v, imm = self.lds(self.vWR, 3, addr_t, const + 512 * e)
            out.append(lambda r=r, e=e, v=v, imm=imm: self.I(f"ds_read_b64_tr_b16 a[{r+2*e}:{r+2*e+1}], {v} offset:{imm}"))
        return out

    def rd_x(self, M, n):
        st, ks = divmod(n, 4)
        v, imm = self.lds(self.vXR, 4, ks, (st % 4) * SLOT + M * CHUNK)
        return [lambda: self.I(f"ds_read_b128 {self.xf(M, n)}, {v} offset:{imm}")]

    def readsA(self, n):
        st, ks = divmod(n, 4)
        c = (st % 4) * SLOT + ks * CHUNK + 4096
        bs = n % 2
        return [self.rd_w(bs, 0, 0, c), self.rd_x(0, n) + self.rd_x(1, n), self.rd_w(bs, 1, 1, c), self.rd_w(bs, 2, 2, c)]

    def readsB(self, n):
        t, ks = divmod(n, 4)
        c = PB_BASE[t] + ks * 4096
        bs = n % 2
        return [self.rd_w(bs, 1, 1, c), self.rd_w(bs, 2, 2, c)]

    def mfma(self, d, a, bb, first):
        c = "0" if first else f"v[{d}:{d+15}]"
        self.I(f"v_mfma_f32_32x32x16_bf16 v[{d}:{d+15}], {a}, {bb}, {c}")

    def dbg_load(self, tag=None):
        self.I(f"global_load_dword v{self.vPOLL}, v{self.vZ}, s[{self.pDBG}:{self.pDBG+1}] sc1", tag)

    def pf(self, v, srd, so):
        self.I(f"buffer_load_dword v{self.vT+12}, v{v}, s[{srd}:{srd+3}], {so} offen{' nt' if 'p' in self.o.nt else ''}", "pf")
        self.b.vm[-1] = (set(), "pf")

    def passA(self):
        I, b, o = self.I, self.b, self.o
        b.wait_tags(("st0",))
        self.ts()
        if o.thr:
            I(f"s_getreg_b32 s86, hwreg(HW_REG_XCC_ID, 0, 4)\ns_and_b32 s87, s2, 7\ns_cmp_lg_u32 s86, s87\ns_cbranch_scc0 L_xok")
            kv = list(b.vm)
            I(f"v_mov_b32 v34, 1\nglobal_store_dword v{self.vZ}, v34, s[{self.pDBG}:{self.pDBG+1}] offset:128 sc1")
            b.vm = kv
            b.label("L_xok")
        I(f"s_or_b32 s86, s2, s{self.sWV}\ns_cmp_eq_u32 s86, 0\ns_cbranch_scc0 L_notag")
        snap_vm = list(b.vm)
        I(f"v_add_u32 v34, 2, v{self.vPOLL}\nv_or_b32 v34, 1, v34\ns_mov_b32 s86, {E_OFF}")
        if o.thr:
            I(f"v_readfirstlane_b32 s87, v{self.vPOLL}\ns_sub_u32 s88, s98, s87\ns_cmp_lt_u32 s88, 0x8000000\ns_cselect_b32 s88, 1, 0")
            I(f"s_cmp_eq_u32 s87, 0xfbfbfbfb\ns_cselect_b32 s89, {o.thrpat}, {1 - o.thrpat} ^ 1 ^ 1\ns_or_b32 s88, s88, s89\nv_mov_b32 v35, s88".replace(f"{1 - o.thrpat} ^ 1 ^ 1", str(1 - o.thrpat)))
            I(f"global_store_dword v{self.vZ}, v35, s[{self.pDBG}:{self.pDBG+1}] offset:132 sc1")
            I("v_mov_b32 v34, s98\nv_or_b32 v34, 1, v34")
        I(f"s_mov_b64 exec, 1")
        I(f"buffer_store_dword v34, v{self.vZ}, s[{self.S_WS}:{self.S_WS+3}], s86 offen sc1")
        I(f"global_store_dword v{self.vZ}, v34, s[{self.pDBG}:{self.pDBG+1}] sc1")
        I(f"s_mov_b64 exec, -1")
        b.vm = [(set(), t) if t == "E" else (d, t) for d, t in snap_vm]
        b.label("L_notag")
        I("s_barrier")
        for grp in self.readsA(0):
            for f in grp:
                f()
        def stream(v):
            if v <= 6:
                return self.dma_stageA(v)
            if v == 7:
                return self.dma_stageB(0) + self.dma_stageB(1)
            if v == 8:
                return self.dma_stageB(2) + self.dma_stageB(3)
            return []
        mf, fixed, pre = [], {}, {}
        vm_items, early = [], {}
        for n in range(28):
            st, ks = divmod(n, 4)
            g0 = 6 * n
            for t in range(3):
                for M in range(2):
                    r = self.wf(n % 2, t)
                    mf.append(self.mtext(self.acc(self.ACC_A, t, M), f"a[{r}:{r+3}]", self.xf(M, n), n == 0))
            if ks == 3:
                def bar(st=st):
                    tags = (f"st{st+1}",) if st < 6 else ("st7", "st8")
                    b.wait_tags(tags, lg_all=True)
                    I("s_barrier")
                fixed.setdefault(g0, []).append(bar)
            for i, grp in enumerate(self.readsA(n + 1) if n < 27 else self.readsB(0)):
                fixed.setdefault(g0 + i, []).extend(grp)
            if o.wA and n > 0:
                pre[g0] = [lambda: b.waitcnt(lg=4)]
                pre[g0 + 2] = [lambda: b.waitcnt(lg=4)]
            if o.pace:
                pre.setdefault(g0, []).insert(0, lambda: [I("s_nop 15") for _ in range(o.pace)])
            if n in o.As:
                pre.setdefault(g0, []).insert(0, self.ts)
            if ks == 0:
                v = st + o.lead
                early[len(vm_items)] = g0 if not o.ramp else max(0, 6 * (4 * (v - 4) + 3) + 1)
                vm_items += stream(v)
            if any(p[0] == 10 + n for p in o.pfs):
                fixed.setdefault(g0 + o.pfgap, []).append(lambda n=n: self.pf_batch(10 + n))
            if o.coop == 2 and n >= o.pft0 and (n - o.pft0) % o.pfdt == 0 and o.pfn0 + (n - o.pft0) // o.pfdt <= 6:
                fixed.setdefault(g0 + 4, []).append(lambda k=o.pfn0 + (n - o.pft0) // o.pfdt: self.pf2(k))
            for sp in o.xpf:
                if sp[0] == n:
                    fixed.setdefault(g0 + 5, []).append(lambda sp=sp: self.xpf(*sp[1:]))
            if n == o.tagn:
                fixed.setdefault(g0 + 5, []).append(lambda: self.dbg_load("tagrd"))
        self.ablate("A")
        self.sched(mf, fixed, [Stream(vm_items, 0, 164 - o.ramp, ahead=2, maxlag=3, early=early, prio=1),
                               Stream(self.setup, 0, 160, ahead=3, maxlag=4)], pre=pre)
        b.drop = ()
        I(f"s_cmp_lg_u32 s{self.sFIN}, 0\ns_cselect_b32 s{self.S_WD+2}, s{self.S_WD+2}, 0\ns_cselect_b32 s{self.S_WO+2}, s{self.S_WO+2}, 0")
        rest = []
        for v in range(7 + o.lead, 9):
            rest += stream(v)
        self.pend = rest + self.dma_stageB(4) + self.dma_stageB(5) + self.dma_stageB(6)

    def get_tag(self):
        I, b = self.I, self.b
        u = self.uid()
        I(f"v_readfirstlane_b32 s{self.sTAG}, v{self.vPOLL}")
        I(f"s_cmp_lg_u32 s{self.sTAG}, 0\ns_cbranch_scc1 L_gottag{u}")
        keep_vm, keep_lg = list(b.vm), list(b.lg)
        I(f"s_mov_b32 s{self.sSPIN}, 0")
        b.label(f"L_tagspin{u}")
        self.dbg_load()
        I(f"s_add_u32 s{self.sSPIN}, s{self.sSPIN}, 1\ns_cmp_gt_u32 s{self.sSPIN}, {SPIN_MAX}\ns_cbranch_scc1 L_exit")
        I(f"v_readfirstlane_b32 s{self.sTAG}, v{self.vPOLL}")
        I(f"s_cmp_lg_u32 s{self.sTAG}, 0\ns_cbranch_scc0 L_tagspin{u}")
        b.vm, b.lg = keep_vm, keep_lg
        b.label(f"L_gottag{u}")

    def cvt_store(self, r, so, imm, tag, voff=None):
        L = []
        for i in range(4):
            L.append(lambda i=i: self.I(f"v_cvt_pk_bf16_f32 v{r+i}, v{r+2*i}, v{r+2*i+1}"))
        v = self.vL16 if voff is None else voff
        L.append(lambda: self.I(f"buffer_store_dwordx4 v[{r}:{r+3}], v{v}, s[{self.S_WS}:{self.S_WS+3}], s{so} offen offset:{imm} sc1", tag))
        return L

    def sigmoid_tile(self, r, so, imm, tag, pk):
        I = self.I
        L = []
        if pk:
            for i in range(0, 8, 2):
                L.append(lambda i=i: I(f"v_pk_mul_f32 v[{r+i}:{r+i+1}], v[{r+i}:{r+i+1}], s[{self.sNL2E}:{self.sNL2E+1}] op_sel_hi:[1,0]"))
        else:
            for i in range(8):
                L.append(lambda i=i: I(f"v_mul_f32 v{r+i}, s{self.sNL2E}, v{r+i}"))
        for i in range(8):
            L.append(lambda i=i: I(f"v_exp_f32 v{r+i}, v{r+i}"))
        if pk:
            for i in range(0, 8, 2):
                L.append(lambda i=i: I(f"v_pk_add_f32 v[{r+i}:{r+i+1}], v[{r+i}:{r+i+1}], 1.0 op_sel_hi:[1,0]"))
        else:
            for i in range(8):
                L.append(lambda i=i: I(f"v_add_f32 v{r+i}, 1.0, v{r+i}"))
        for i in range(8):
            L.append(lambda i=i: I(f"v_rcp_f32 v{r+i}, v{r+i}"))
        if pk:
            for i in range(0, 8, 2):
                L.append(lambda i=i: I(f"v_pk_mul_f32 v[{r+i}:{r+i+1}], v[{r+i}:{r+i+1}], v[{r+8+i}:{r+9+i}]"))
        else:
            for i in range(8):
                L.append(lambda i=i: I(f"v_mul_f32 v{r+i}, v{r+i}, v{r+8+i}"))
        return L + self.cvt_store(r, so, imm, tag)

    def flag_store(self, phase):
        I = self.I
        lab = f"L_nofl{self.uid()}"
        I(f"s_cmp_eq_u32 s{self.sWV}, 0\ns_cbranch_scc0 {lab}")
        keep = list(self.b.vm)
        I(f"v_mov_b32 v{self.vT}, s{self.sTAG}\ns_mov_b64 exec, 1")
        I(f"s_movk_i32 s86, {4096*phase}")
        I(f"buffer_store_dword v{self.vT}, v{self.vFL}, s[{self.S_WS}:{self.S_WS+3}], s86 offen sc1")
        I("s_mov_b64 exec, -1")
        self.b.vm = keep
        self.b.label(lab)

    _uid = 0

    def uid(self):
        self._uid += 1
        return self._uid

    @staticmethod
    def weave(main, side, start=0.0, end=1.0):
        out = []
        n = len(main)
        a, e = int(start * n), max(int(end * n), int(start * n) + 1)
        k = 0
        for i, f in enumerate(main):
            out.append(f)
            if i >= a:
                want = min(len(side), math.ceil(len(side) * (i - a + 1) / (e - a)))
                while k < want:
                    out.append(side[k]); k += 1
        out += side[k:]
        return out

    def passB_GU(self):
        I, b, o = self.I, self.b, self.o
        qk, epi = [], []
        for M, so in ((0, self.sQ0), (1, self.sQ1)):
            r = self.acc(self.ACC_A, 0, M)
            qk += self.cvt_store(r, so, 0, "qk") + self.cvt_store(r + 8, so, 1024, "qk")
        hst = []
        for t in (1, 2):
            for M, so in ((0, self.sH0), (1, self.sH1)):
                tl = self.sigmoid_tile(self.acc(self.ACC_A, t, M), so, 1024 * (t - 1), "h", o.pkB)
                epi += tl[:-1]
                hst.append(tl[-1])
        epi = qk + epi + self.att_masks()
        mf, fixed, pre = [], {}, {}
        vm, early = list(self.pend), {}
        for k in range(len(vm)):
            early[k] = int(o.p0 + k * o.ppace)

        def add(items, gap):
            early[len(vm)] = gap
            vm.extend(items)
        for s_ in range(8):
            add(self.fin_dma(s_), int(4 * (o.w0 + s_ * o.wpace) + 1))
        late = []
        for s_ in range(8, 8 + o.nB2):
            late.append((int(4 * (o.w0 + (s_ - 8) * o.wpace + o.wlat + 1.5)), self.fin_dma(s_)))
        rds, rearly = [], {}
        for s_ in range(8):
            rearly[len(rds)] = int(4 * (o.w0 + s_ * o.wpace + o.wlat))
            rds += self.fin_rdw(s_)
        late.append((4 * o.kpoll + 2, [lambda: self.poll_issue(self.vAP, self.vPOLL)]))
        late.append((4 * o.kchk, [lambda: self.poll_check(self.vAP, self.vPOLL, self.sMSK)] + self.record(self.att_loads_K)
                     + [lambda: self.poll_issue(self.vAP, self.vPOLL)]))
        for gap, items in sorted(late, key=lambda x: x[0]):
            add(items, gap)
        for n in range(28):
            g0 = 4 * n
            for t in range(2):
                for M in range(2):
                    r = self.wf(n % 2, t + 1)
                    mf.append(self.mtext(self.acc(self.ACC_B, t, M), f"a[{r}:{r+3}]", self.xf(M, n), n == 0))
            fx = fixed.setdefault(g0, [])
            if n in o.bs:
                pre.setdefault(g0, []).append(self.ts)
            if n == 7:
                fx.append(lambda: (b.wait_tags(("st9", "st10"), lg_all=True), I("s_barrier")))
            if n == o.fl0 and n != 15:
                fx.append(lambda: (b.wait_tags(("qk",)), I("s_barrier"), self.flag_store(0)))
            if n == 15:
                def bar():
                    b.wait_tags(("st11", "st12", "st13", "qk"), lg_all=True)
                    I("s_barrier")
                    if o.fl0 == 15:
                        self.flag_store(0)
                fx.append(bar)
            if n < 27:
                nx = self.readsB(n + 1)
                fx += nx[0]
                fixed.setdefault(g0 + o.rB, []).extend(nx[1])
            if n == 3:
                fixed.setdefault(g0 + 3, []).append(self.get_tag)
        self.ablate("B")
        self.sched(mf, fixed, [Stream(vm, 0, 110, ahead=100, maxlag=100, early=early, prio=1, starve=2),
                               Stream(rds, 4 * (o.w0 + o.wlat), 110, ahead=4, maxlag=4, early=rearly),
                               Stream(epi, 3, 4 * o.epi_end - 1, ahead=o.epi_ahead, maxlag=4)], pre=pre)
        b.drop = ()
        self.ts()
        T = []
        for t in (0, 1):
            for M, so in ((0, self.sH0), (1, self.sH1)):
                T.append(self.sigmoid_tile(self.acc(self.ACC_B, t, M), so, 1024 * t, "h", o.pk))
        bump = lambda: I(f"s_add_u32 s{self.sH0}, s{self.sH0}, 0x1000\ns_add_u32 s{self.sH1}, s{self.sH1}, 0x1000")
        self.postB([T[0][:-1], T[1][:-1], T[2], T[3]], hst[:3] + [lambda: (hst[3](), bump())] + [T[0][-1], T[1][-1]])

    NRD = 8

    def postB(self, T, hst):
        I, b, o = self.I, self.b, self.o
        KF = self.KF
        rd = lambda a, e: [f for s_ in range(a, e) for f in self.fin_rdw(s_)]
        dm = lambda a, e: [f for s_ in range(a, e) for f in self.fin_dma(s_)]
        d0 = 8 + o.nB2
        for f in self.weave(T[0] + T[1], dm(d0, d0 + o.nb0), 0.05, 0.9):
            f()
        self.poll_check(self.vAP, self.vPOLL, self.sMSK2)
        self.att_loads_V()
        self.ts()
        b.wait_tags(("K",))
        I(f"ds_write_b64 v{self.vP+6}, v[{self.vP}:{self.vP+1}]")
        I(f"ds_write_b64 v{self.vP+7}, v[{self.vP+2}:{self.vP+3}] offset:4096")
        q = self.vQ
        I(f"v_bfi_b32 v{q}, v{self.vMA}, v{q}, v{self.vP+4}\nv_and_b32 v{q+1}, v{self.vMA}, v{q+1}")
        I(f"v_bfi_b32 v{q+6}, v{self.vMB}, v{q+6}, v{self.vP+4}\nv_and_b32 v{q+7}, v{self.vMB}, v{q+7}")
        b.waitcnt(lg=0)
        I("s_barrier")
        self.ts()
        order = [8, 0, 7, 6, 5, 4, 3, 2, 1]

        def rdk(n):
            for s_ in range(2):
                r = KF + (n % 3) * 8 + 4 * s_
                I(f"ds_read_b128 v[{r}:{r+3}], v{self.vKA} offset:{2048*order[n] + 1024*s_}")
        rdk(0)
        rdk(1)
        m = self.vM
        mx = []

        def maxops(n):
            s0 = self.S(order[n])
            return [(lambda k=k: I(f"v_max_f32 v{m}, v{s0}, v{s0+1}" if (n == 0 and k == 0) else f"v_max3_f32 v{m}, v{m}, v{s0+k}, v{s0+k+1}")) for k in range(0, 16, 2)]
        vs = list(T[2][:-1]) + list(T[3][:-1])
        KH = 13
        bg = dm(d0 + o.nb0, d0 + o.nb0 + o.nbq)
        self.bg_rest = d0 + o.nb0 + o.nbq
        self.nold = d0 + o.nb0
        for k in range(18):
            n, half = divmod(k, 2)
            d = self.S(order[n])
            r = KF + (n % 3) * 8 + 4 * half
            c = f"v[{d}:{d+15}]" if (half or order[n] in (0, 8)) else "0"
            if order[n] == 1:
                assert not vs
            if half == 0 and 1 <= n <= 6 and hst:
                hst[n - 1]()
            I(f"v_mfma_f32_32x32x16_bf16 v[{d}:{d+15}], v[{r}:{r+3}], v[{q+4*half}:{q+4*half+3}], {c}")
            if half == 0 and n + 2 < 9:
                rdk(n + 2)
            if half == 1 and n >= 1:
                mx += maxops(n - 1)
            nv = math.ceil(len(vs) / (KH - k + 1)) if k <= KH else 0
            for _ in range(nv):
                vs.pop(0)()
            if k == KH and T[2]:
                T[2][-1]()
            if k == KH + 2:
                T[3][-1]()
            for _ in range(math.ceil(len(bg) / (18 - k))):
                bg.pop(0)()
            for _ in range(max(0, 5 - nv) if k < 17 else len(mx)):
                if mx:
                    mx.pop(0)()
        self.mx_rest = maxops(8)

    def passB_V(self):
        I, b, o = self.I, self.b, self.o
        b.drop = (lambda i: i.kind == "vmem" and f"s[{self.S_B}:{self.S_B+3}]" in i.text,)
        for f in list(self.pend):
            f()
        b.drop = ()
        self.srd(self.S_C, f"s{self.pGW}", f"s{self.pGW+1}", 896)
        I(f"s_add_u32 m0, s{self.sM0B}, {GW_LDS}")
        I(f"buffer_load_dwordx4 v{self.vL16}, s[{self.S_C}:{self.S_C+3}], 0 offen lds", "gw")
        I(f"s_sub_u32 s{self.sT1}, s{self.sQ0}, 0x2000\ns_sub_u32 s{self.sT2}, s{self.sQ1}, 0x2000")
        I(f"v_add_u32 v{self.vT+2}, 0x1000, v{self.vL16}")
        self.get_tag()
        epi = []
        for M, so in ((0, self.sQ0), (1, self.sQ1)):
            r = self.acc(self.ACC_A, 0, M)
            epi += self.cvt_store(r, so, 0, "qk") + self.cvt_store(r + 8, so, 1024, "qk")
        for t in (1, 2):
            for M, so in ((0, self.sT1), (1, self.sT2)):
                r = self.acc(self.ACC_A, t, M)
                epi += self.cvt_store(r, so, 1024 * (t - 1), "qk") + self.cvt_store(r + 8, so, 1024 * (t - 1), "qk", voff=self.vT + 2)
        I(f"s_and_b32 s88, s{self.sWV}, 1\ns_sub_u32 s89, s{self.sJ}, 14\ns_xor_b32 s88, s88, s89\ns_lshl_b32 s88, s88, 6")
        for st in range(3):
            I(f"v_xor_b32 v{self.vWR+3*st}, s88, v{self.vWR+3*st}\nv_subrev_u32 v{self.vWR+3*st}, 0x1000, v{self.vWR+3*st}")
        I(f"s_lshl_b32 s88, s{self.sRB}, 2\ns_add_u32 s88, s88, s{self.sWV}")
        I(f"s_mul_i32 s88, s88, {QKV_MT}\ns_lshl_b32 s89, s89, 11\ns_add_u32 s88, s88, s89")
        I(f"s_add_u32 s{self.sT3}, s88, {8*17*512}")
        I(f"v_lshrrev_b32 v{self.vT+3}, 5, v0\nv_lshlrev_b32 v{self.vT+3}, 4, v{self.vT+3}")
        I(f"s_add_u32 s88, s{self.sM0B}, {GW_LDS}\nv_add_u32 v{self.vT+3}, s88, v{self.vT+3}")
        I(f"v_and_b32 v{self.vT+4}, 31, v0\nv_lshlrev_b32 v{self.vT+4}, 2, v{self.vT+4}")
        D = self.ACC_B
        I(f"s_bitcmp1_b32 s{self.sWV}, 0\ns_cbranch_scc1 L_v_wc1")
        snap = b.snapshot()
        for wc in range(2):
            if wc == 1:
                b.label("L_v_wc1")
                b.restore(snap)
            e = list(epi)

            def rdv(n):
                t, ks = divmod(n, 4)
                r = self.WF + 4 * (n % 8)
                for e_ in range(2):
                    v, imm = self.lds(self.vWR, 3, 0, PB_BASE[t] + ks * 4096 + 512 * e_)
                    I(f"ds_read_b64_tr_b16 a[{r+2*e_}:{r+2*e_+1}], {v} offset:{imm}")
            PD = 5
            b.waitcnt(lg=0)
            for n in range(PD):
                rdv(n)
            for n in range(28):
                if n + PD == 8:
                    b.wait_tags(("st9", "st10"), lg_all=True)
                    I("s_barrier")
                if n + PD == 16:
                    b.wait_tags(("st11", "st12", "st13"))
                    I("s_barrier")
                if n + PD < 28:
                    rdv(n + PD)
                r = self.WF + 4 * (n % 8)
                self.mfma(D, f"a[{r}:{r+3}]", self.xf(wc, n), n == 0)
                for _ in range(3):
                    if e:
                        e.pop(0)()
            assert not e
            for f in self.cvt_store(D, self.sT3, 0, "qk") + self.cvt_store(D + 8, self.sT3, 1024, "qk"):
                f()
            if o.vs:
                nts_keep = self.nts
                self.ts()
                self.nts = nts_keep + (1 if wc == 1 else 0)
            b.wait_tags(("gw",))
            rdg = lambda n: I(f"ds_read_b128 a[{self.WF+4*(n%8)}:{self.WF+4*(n%8)+3}], v{self.vT+3} offset:{32*n}")
            for n in range(PD):
                rdg(n)
            mk = self.att_masks()
            for n in range(28):
                if n + PD < 28:
                    rdg(n + PD)
                r = self.WF + 4 * (n % 8)
                self.mfma(D + 16, f"a[{r}:{r+3}]", self.xf(wc, n), n == 0)
                for _ in range(3):
                    if mk:
                        mk.pop(0)()
            assert not mk
            I(f"v_mov_b32 v{self.vT+5}, v{D+16}")
            if wc == 0:
                I("s_branch L_v_done")
        b.label("L_v_done")
        b.wait_tags(("qk",), lg_all=True)
        I("s_barrier")
        self.flag_store(0)
        if o.vs:
            self.ts()
        for s_ in range(8):
            for f in self.fin_dma(s_):
                f()
        self.poll_issue(self.vAP, self.vPOLL)
        for s_ in range(8):
            for f in self.fin_rdw(s_):
                f()
        for s_ in range(8, 8 + o.nB2):
            for f in self.fin_dma(s_):
                f()
        self.poll_check(self.vAP, self.vPOLL, self.sMSK)
        self.att_loads_K()
        self.poll_issue(self.vAP, self.vPOLL)
        for _ in o.bs[(2 if o.vs else 0):]:
            self.ts()
        self.ts()
        self.postB([[], [], [], [lambda: I(f"buffer_store_dword v{self.vT+5}, v{self.vT+4}, s[{self.S_WS}:{self.S_WS+3}], s{self.sZO} offen sc1", "h")]], [])

    def poll_setup_att(self):
        I = self.I
        v, t = self.vAP, self.vT
        I(f"v_lshrrev_b32 v{v}, 4, v0\nv_add_u32 v{v}, s{self.sRB}, v{v}\nv_subrev_u32 v{v}, 2, v{v}\nv_max_i32 v{v}, 0, v{v}")
        I(f"v_min_u32 v{v}, 15, v{v}\nv_lshlrev_b32 v{v}, 8, v{v}\nv_and_b32 v{t}, 15, v0\nv_lshl_add_u32 v{v}, v{t}, 2, v{v}")
        I(f"v_add_u32 v{v}, {FL_OFF}, v{v}")
        I(f"s_mul_i32 s86, s{self.sJ}, 28\ns_add_u32 s87, s86, 27\ns_lshr_b32 s86, s86, 6\ns_lshr_b32 s87, s87, 6")
        I("s_lshl_b32 s88, 1, s86\ns_lshl_b32 s89, 1, s87\ns_or_b32 s88, s88, s89")
        I("s_lshl_b32 s89, s88, 7")
        I(f"s_mul_i32 s{self.sMSK}, s89, 0x10001\ns_or_b32 s{self.sMSK+1}, s88, s89")
        I("s_cmp_le_u32 s86, 3\ns_cselect_b32 s90, 0x4000, 0\ns_cmp_ge_u32 s87, 3\ns_cselect_b32 s91, 0x8000, 0\ns_or_b32 s90, s90, s91")
        I(f"s_mul_i32 s{self.sMSK2}, s90, 0x10001\ns_mov_b32 s{self.sMSK2+1}, s90")

    def poll_issue(self, vaddr, vdst, soff="0"):
        self.I(f"buffer_load_dword v{vdst}, v{vaddr}, s[{self.S_WS}:{self.S_WS+3}], {soff} offen sc1", "poll")

    def poll_check(self, vaddr, vdst, smask, soff="0"):
        I, b = self.I, self.b
        u = self.uid()
        self.nchk = getattr(self, "nchk", 0)
        kind = {self.sMSK2: "V"}.get(smask, "K" if vaddr == self.vAP else ("H" if soff == "0" else "O"))
        if "Gno" + kind in self.o.abl.split(","):
            return
        I(f"v_cmp_ne_u32 vcc, s{self.sTAG}, v{vdst}")
        I(f"s_and_b64 vcc, vcc, s[{smask}:{smask+1}]\ns_cbranch_scc0 L_pok{u}")
        keep_vm, keep_lg = list(b.vm), list(b.lg)
        I(f"s_mov_b32 s{self.sSPIN}, 0")
        b.label(f"L_psp{u}")
        if self.o.slp:
            I(f"s_sleep {self.o.slp}")
        I(f"buffer_load_dword v{vdst}, v{vaddr}, s[{self.S_WS}:{self.S_WS+3}], {soff} offen sc1")
        I(f"s_add_u32 s{self.sSPIN}, s{self.sSPIN}, 1\ns_cmp_gt_u32 s{self.sSPIN}, {SPIN_MAX}\ns_cbranch_scc1 L_exit")
        I(f"v_cmp_ne_u32 vcc, s{self.sTAG}, v{vdst}")
        I(f"s_and_b64 vcc, vcc, s[{smask}:{smask+1}]\ns_cbranch_scc1 L_psp{u}")
        b.vm, b.lg = keep_vm, keep_lg
        b.label(f"L_pok{u}")

    def S(self, i):
        return self.SREG[i]

    def att_setup(self):
        I = self.I
        h = self.sJ
        I(f"s_and_b32 s86, s{h}, 1\ns_sub_u32 s{self.sPAR}, 0, s86\ns_mov_b32 s{self.sPAR+1}, s{self.sPAR}")
        I(f"s_mul_i32 s87, s{h}, 7\ns_lshr_b32 s87, s87, 1\ns_lshl_b32 s87, s87, 9")
        I(f"s_lshl_b32 s88, s{self.sRB}, 2\ns_mul_i32 s89, s{self.sWV}, 3\ns_add_u32 s89, s89, s88\ns_sub_u32 s89, s89, 8")
        for i in range(3):
            I(f"s_add_u32 s90, s89, {i}\ns_max_i32 s90, s90, 0\ns_mul_i32 s90, s90, {QKV_MT}\ns_add_u32 s90, s90, s87")
            I(f"s_add_u32 s{self.sKT+i}, s90, {56*512}")
        v = self.vT
        I(f"v_lshrrev_b32 v{v}, 5, v0\nv_add_u32 v{v+1}, s89, v{v}\nv_mov_b32 v{v+2}, 0xf149")
        I(f"v_cmp_gt_i32 vcc, 0, v{v+1}\nv_cndmask_b32 v{self.vP}, 0, v{v+2}, vcc\nv_mov_b32 v{self.vP+1}, 0")
        I(f"s_add_u32 s90, s89, 2\ns_cmp_lt_i32 s90, 0\ns_cselect_b32 s90, 0xf149, 0\nv_mov_b32 v{self.vP+2}, s90\nv_mov_b32 v{self.vP+3}, 0")
        I(f"v_mov_b32 v{self.vP+4}, 0x3f80\nv_mov_b32 v{self.vP+5}, 0")
        I(f"s_cmp_eq_u32 s86, 0\ns_cselect_b32 s90, {1536+8}, 0\ns_mul_i32 s91, s{self.sWV}, {3*2048}\ns_add_u32 s90, s90, s91\ns_add_u32 s90, s90, {KV_K}")
        I(f"v_and_b32 v{v+1}, 31, v0\nv_lshlrev_b32 v{v+1}, 4, v{v+1}\nv_add_u32 v{self.vP+7}, s90, v{v+1}\nv_lshl_add_u32 v{self.vP+6}, v{v}, 11, v{self.vP+7}")
        I(f"v_and_b32 v{v+1}, 31, v0\nv_lshlrev_b32 v{v+2}, 2, v{v}\nv_xor_b32 v{v+1}, v{v+1}, v{v+2}\nv_lshlrev_b32 v{v+1}, 4, v{v+1}")
        I(f"v_lshl_add_u32 v{self.vP+8}, v{v}, 9, v{v+1}\nv_xor_b32 v{self.vP+9}, 0x80, v{self.vP+8}")
        I(f"s_lshl_b32 s90, s{self.sWV}, 11\ns_add_u32 s91, s90, {KV_K}\nv_add_u32 v{self.vKA}, s91, v{self.vL16}")
        I(f"v_bfe_u32 v{v+1}, v0, 4, 1\nv_bfe_u32 v{v+2}, v0, 1, 1\nv_lshl_add_u32 v{v+1}, v{v+1}, 1, v{v+2}")
        I(f"v_xor_b32 v{v+2}, v{v}, v{v+1}\nv_lshlrev_b32 v{v+2}, 2, v{v+2}\nv_bfe_u32 v{v+3}, v0, 2, 2\nv_add_u32 v{v+2}, v{v+2}, v{v+3}")
        I(f"v_lshlrev_b32 v{v+2}, 4, v{v+2}\nv_lshl_add_u32 v{v+2}, v{v+1}, 9, v{v+2}\nv_and_b32 v{v+3}, 1, v0\nv_lshl_add_u32 v{v+2}, v{v+3}, 3, v{v+2}")
        I(f"s_add_u32 s91, s90, {KV_V}\nv_add_u32 v{self.vVA}, s91, v{v+2}\nv_xor_b32 v{self.vVA+1}, 0x80, v{self.vVA}")
        I(f"v_subrev_u32 v{v+1}, 1, v{v}\nv_and_b32 v{v+1}, s{self.sPAR}, v{v+1}\nv_not_b32 v{self.vMA}, v{v+1}")
        I(f"v_sub_u32 v{v+1}, 0, v{v}\ns_not_b32 s91, s{self.sPAR}\nv_and_b32 v{v+1}, s91, v{v+1}\nv_not_b32 v{self.vMB}, v{v+1}")
        I(f"s_add_u32 s88, s88, s{self.sWV}\ns_mul_i32 s90, s88, {QKV_MT}\ns_add_u32 s{self.sQO}, s90, s87")
        I(f"s_mul_i32 s90, s88, {HO_MT}\ns_lshl_b32 s91, s{h}, 11\ns_add_u32 s90, s90, s91\ns_add_u32 s{self.sOO}, s90, {HO_OFF + 112*1024}")
        I(f"s_lshl_b32 s90, s88, 7\ns_add_u32 s{self.sZO}, s90, {Z_OFF}")
        m = self.vM
        I(f"v_lshlrev_b32 v{m}, 2, v{v}\nv_and_b32 v{m+1}, 31, v0\nv_sub_u32 v{m}, v{m+1}, v{m}\nv_mov_b32 v{m+1}, {NEG}")

    def att_masks(self):
        L = []
        v = self.vM
        pair = lambda r: f"s[{88+2*(r&1)}:{89+2*(r&1)}]"
        def cmp_(r):
            key = 8 * (r >> 2) + (r & 3)
            return lambda: self.I(f"v_cmp_gt_i32 {pair(r)}, {key}, v{v}")
        L.append(cmp_(0))
        for r in range(16):
            if r < 15:
                L.append(cmp_(r + 1))
            if r > 0:
                L.append(lambda r=r: self.I(f"v_sub_f32 v{self.S(0)+r-1}, v{v+1}, v{self.S(8)+r-1}"))
            L.append(lambda r=r: self.I(f"v_cndmask_b32 v{self.S(8)+r}, 0, v{v+1}, {pair(r)}"))
        L.append(lambda: self.I(f"v_sub_f32 v{self.S(0)+15}, v{v+1}, v{self.S(8)+15}"))
        return L

    def att_loads_K(self):
        I = self.I
        ws = f"s[{self.S_WS}:{self.S_WS+3}]"
        I(f"s_mul_i32 s86, s{self.sWV}, {3*2048}")
        for i in range(3):
            I(f"s_add_u32 m0, s86, {KV_K + 2048*i}")
            if i < 2:
                I(f"buffer_load_dwordx4 v[{self.vQ+4*i}:{self.vQ+4*i+3}], v{self.vL16}, {ws}, s{self.sQO} offen offset:{1024*i} sc1", "K")
            for e in range(2):
                I(f"buffer_load_dwordx4 v{self.vL16}, {ws}, s{self.sKT+i} offen offset:{1024*e} sc1 lds", "K")

    def att_loads_V(self):
        I = self.I
        ws = f"s[{self.S_WS}:{self.S_WS+3}]"
        I(f"s_mul_i32 s86, s{self.sWV}, {3*2048}")
        for i in range(3):
            I(f"s_add_u32 m0, s86, {KV_V + 2048*i}\ns_add_u32 s87, s{self.sKT+i}, {56*512}")
            for e in range(2):
                I(f"buffer_load_dwordx4 v{self.vP+8+e}, {ws}, s87 offen offset:{1024*e} sc1 lds", "V")

    def attention(self):
        I, b, o = self.I, self.b, self.o
        KF = self.KF
        m = self.vM
        order = [8, 7, 6, 5, 4, 3, 2, 1, 0]
        b.wait_tags(("V",))
        I(f"ds_write_b64 v{self.vP+6}, v[{self.vP+4}:{self.vP+5}] offset:{KV_V - KV_K}")
        I(f"ds_write_b64 v{self.vP+7}, v[{self.vP+4}:{self.vP+5}] offset:{KV_V - KV_K + 4096}")
        for f in self.mx_rest:
            f()
        b.waitcnt(lg=0)
        I("s_barrier")

        def rdv(i, bs):
            L = []
            for s in range(2):
                for e in range(2):
                    r = KF + bs * 8 + 4 * s + 2 * e
                    L.append(f"ds_read_b64_tr_b16 v[{r}:{r+1}], v{self.vVA+e} offset:{2048*i + 256*s}")
            return L
        for t in rdv(order[0], 0):
            I(t)
        I(f"v_mov_b32 v{m+1}, v{m}")
        I(f"v_permlane32_swap_b32 v{m}, v{m+1}")
        I(f"v_max_f32 v{m}, v{m}, v{m+1}")
        I(f"v_mul_f32 v{m}, s{self.sCS}, v{m}")
        I(f"s_mov_b32 s{self.sMSK}, 0x1ffff\ns_mov_b32 s{self.sMSK+1}, 0")
        self.ts()
        sched = {n: [] for n in range(9)}
        rd = lambda a, e: [f for s in range(a, e) for f in self.fin_rdw(s)]
        dm = lambda a, e: [f for s in range(a, e) for f in self.fin_dma(s)]
        pub = lambda: (b.wait_tags(("h",)), I("s_barrier"), self.flag_store(1))
        nd = self.bg_rest
        nr = 8
        per = math.ceil((28 - nd) / o.dtiles)
        issued = {s_: (-3 if s_ < self.nold else o.rd0 - 2) for s_ in range(nd)}
        for n in range(9):
            k = 0
            while nr < 28 and issued.get(nr, 99) + 2 <= n and (k < o.rdper or n >= 7):
                sched[n] += rd(nr, nr + 1)
                nr += 1
                k += 1
            k = 0
            while nd < 28 and k < per and (self.ring_prev(nd) is None or self.ring_prev(nd) < nr):
                sched[n] += dm(nd, nd + 1)
                issued[nd] = max(n, o.rd0 - 2)
                nd += 1
                k += 1
        assert nd == 28 and nr == 28, (nd, nr)
        self.wo_next = 28 + o.nwo
        for k in range(o.nwo):
            sched[o.wot + k * (7 - o.wot) // max(1, o.nwo)] += dm(28 + k, 29 + k)
        hl = [f for s in range(o.nh0) for f in self.fin_hload(s)]
        sched[7] += hl[:len(hl) // 2]
        sched[8] += hl[len(hl) // 2:]
        sched[o.hpub] = sched[o.hpub] + [pub]
        sched[o.hpoll] = sched[o.hpoll] + [lambda: self.poll_issue(self.vFA, self.vPOLL)]
        sched[7] = [self.hook_poll_check] + sched[7]
        O = self.vO
        prev = None
        for n, i in enumerate(order):
            if n in o.ss:
                self.ts()
            d = self.S(i)
            p = self.vP + 8 * (n % 2)
            L = []
            if o.pk:
                for k in range(0, 16, 2):
                    L.append(f"v_pk_fma_f32 v[{d+k}:{d+k+1}], v[{d+k}:{d+k+1}], s[{self.sNL2E}:{self.sCS}], v[{m}:{m+1}] op_sel:[0,1,0] op_sel_hi:[1,1,0] neg_lo:[0,0,1] neg_hi:[0,0,1]")
            else:
                for k in range(16):
                    L.append(f"v_fma_f32 v{d+k}, v{d+k}, s{self.sCS}, -v{m}")
            ex = [f"v_exp_f32 v{d+k}, v{d+k}" for k in range(16)]
            cv = [f"v_cvt_pk_bf16_f32 v{p+k}, v{d+2*k}, v{d+2*k+1}" for k in range(8)]
            seq = L + ex + cv
            vr = rdv(order[n + 1], (n + 1) % 2) if n + 1 < 9 else []
            main = []
            for k, t in enumerate(seq):
                main.append(lambda t=t: I(t))
                if prev is not None and k == 1:
                    main.append(lambda t=prev[0]: I(t))
                if prev is not None and k == 7:
                    main.append(lambda t=prev[1]: I(t))
                if k >= 10 and vr:
                    main.append(lambda t=vr.pop(0): I(t))
            for f in self.weave(main, sched[n], 0.0, 1.0):
                f()
            r = KF + (n % 2) * 8
            prev = (f"v_mfma_f32_32x32x16_bf16 v[{O}:{O+15}], v[{r}:{r+3}], v[{p}:{p+3}], " + ("0" if n == 0 else f"v[{O}:{O+15}]"),
                    f"v_mfma_f32_32x32x16_bf16 v[{O}:{O+15}], v[{r+4}:{r+7}], v[{p+4}:{p+7}], v[{O}:{O+15}]")
        I(prev[0])
        I(prev[1])
        t = self.vQ
        I(f"v_mul_f32 v{t}, s{self.sNL2E}, v{self.vZZ}\nv_exp_f32 v{t}, v{t}")
        z = self.vZZ + 1
        for a in range(2):
            I(f"v_mul_f32 v{z+a}, s{self.sNL2E}, v{z+a}\nv_exp_f32 v{z+a}, -v{z+a}")
        I(f"v_add_f32 v{t}, 1.0, v{t}")
        for a in range(2):
            I(f"v_add_f32 v{z+a}, 1.0, v{z+a}\nv_rcp_f32 v{z+a}, v{z+a}")
        I(f"v_cndmask_b32 v{t+1}, v{O+12}, v{O}, s[{self.sPAR}:{self.sPAR+1}]\nv_mov_b32 v{t+2}, v{t+1}")
        I(f"v_permlane32_swap_b32 v{t+1}, v{t+2}")
        I(f"v_cndmask_b32 v{t+1}, v{t+2}, v{t+1}, s[{self.sPAR}:{self.sPAR+1}]")
        I(f"v_mul_f32 v{t}, v{t}, v{t+1}\nv_rcp_f32 v{t}, v{t}")
        I(f"v_and_b32 v{t+1}, v{self.vMA}, v{t}\nv_and_b32 v{t+2}, v{self.vMB}, v{t}")
        for k in range(16):
            sc = t + 1 if k == 0 else (t + 2 if k == 12 else t)
            I(f"v_mul_f32 v{O+k}, v{O+k}, v{sc}")
        for f in self.cvt_store(O, self.sOO, 0, "o") + self.cvt_store(O + 8, self.sOO, 1024, "o"):
            f()

    def hook_poll_check(self):
        I = self.I
        self.poll_check(self.vFA, self.vPOLL, self.sMSK)
        v = self.vT
        I(f"v_and_b32 v{v}, 31, v0\nv_lshlrev_b32 v{v}, 2, v{v}")
        ws = f"s[{self.S_WS}:{self.S_WS+3}]"
        I(f"buffer_load_dword v{self.vZZ}, v{v}, {ws}, s{self.sZO} offen sc1", "z")
        I(f"buffer_load_dword v{self.vZZ+1}, v{v}, {ws}, s{self.sZF} offen sc1", "z")
        I(f"s_xor_b32 s{self.sZF}, s{self.sZF}, 0x80")
        I(f"buffer_load_dword v{self.vZZ+2}, v{v}, {ws}, s{self.sZF} offen sc1", "z")

    ENTRY = [(1, i) for i in range(8)] * 2 + [(0, i) for i in range(6)] + [(1, i) for i in range(6)] + [(0, i) for i in range(6)] + [(1, 6), (1, 7)]

    def ring_addr(self, step):
        hi, i = self.ENTRY[step]
        return hi, 2048 * i

    def ring_prev(self, step):
        for p in range(step - 1, -1, -1):
            if self.ENTRY[p] == self.ENTRY[step]:
                return p
        return None

    def final_setup(self):
        I = self.I
        v = self.vT
        I("s_lshr_b32 s86, s2, 3\ns_and_b32 s87, s2, 7\ns_mul_i32 s88, s86, 37\ns_lshr_b32 s88, s88, 8")
        I(f"s_mul_i32 s89, s88, 7\ns_sub_u32 s89, s86, s89\ns_cmp_lt_u32 s86, 28\ns_cselect_b32 s{self.sFIN}, 1, 0")
        I("s_min_u32 s88, s88, 3\ns_lshl_b32 s87, s87, 2\ns_add_u32 s87, s87, s88")
        I(f"s_lshr_b32 s90, s{self.sWV}, 1\ns_and_b32 s91, s{self.sWV}, 1")
        I(f"s_lshl_b32 s92, s88, 1\ns_add_u32 s92, s92, s89\ns_cmp_ge_u32 s92, 7\ns_cselect_b32 s93, 7, 0\ns_sub_u32 s94, s92, s93")
        if self.o.rot != 1:
            I({0: "s_mov_b32 s94, 0", 2: "s_mov_b32 s94, s89", 3: "s_lshl_b32 s94, s88, 1"}[self.o.rot])
        I(f"s_sub_u32 s{self.sWRAP}, 7, s94\ns_and_b32 s86, s89, {1 if self.o.rot in (1, 2) else 0}")
        I(f"s_mul_i32 s92, s{self.sWV}, {448*896}\ns_lshl_b32 s89, s89, 7\ns_add_u32 s{self.sFW}, s92, s89")
        I(f"s_mul_i32 s92, s94, {64*896}\ns_add_u32 s{self.sFW}, s{self.sFW}, s92")
        I(f"s_mul_i32 s92, s{self.sWV}, {112*896}\ns_add_u32 s{self.sFWO}, s92, s89\ns_mul_i32 s92, s86, {56*896}\ns_add_u32 s{self.sFWO}, s{self.sFWO}, s92")
        I(f"s_cmp_lg_u32 s86, 0\ns_mov_b32 s{self.sDWO}, {16*896}\ns_cselect_b32 s{self.sDWO}, {(-96*896) & 0xFFFFFFFF}, s{self.sDWO}")
        I(f"s_cmp_lg_u32 s86, 0\ns_movk_i32 s{self.sDHO}, 0x1000\ns_cselect_b32 s{self.sDHO}, 0xfffff000, s{self.sDHO}")
        I(f"s_mul_i32 s{self.sFM0}, s{self.sWV}, {12*K}\ns_add_u32 s{self.sFM0}, s{self.sFM0}, {RING_LO}")
        I(f"s_lshl_b32 s{self.sFM1}, s{self.sWV}, 14\ns_add_u32 s{self.sFM1}, s{self.sFM1}, {RING_HI}")
        I(f"v_lshrrev_b32 v{v}, 3, v0\nv_and_b32 v{v+1}, 2, v{v}\nv_lshlrev_b32 v{v+1}, 1, v{v+1}\nv_and_b32 v{v+2}, 7, v0\nv_xor_b32 v{v+1}, v{v+1}, v{v+2}")
        I(f"v_mul_u32_u24 v{v}, 0x380, v{v}\nv_lshl_add_u32 v{self.vFD}, v{v+1}, 4, v{v}\nv_add_u32 v{self.vFD+1}, {8*896-1024}, v{self.vFD}")
        I(f"v_bfe_u32 v{v}, v0, 2, 2\nv_lshrrev_b32 v{v+1}, 5, v0")
        I(f"v_and_b32 v{v+2}, 1, v0\nv_lshlrev_b32 v{v+2}, 4, v{v+2}\nv_bfe_u32 v{v+3}, v0, 1, 1\nv_lshl_add_u32 v{v+2}, v{v+3}, 3, v{v+2}")
        I(f"v_bfe_u32 v{v+3}, v0, 4, 1\nv_and_b32 v{v+4}, 2, v{v}\nv_xor_b32 v{v+3}, v{v+3}, v{v+4}\ns_lshl_b32 s92, s90, 1\nv_xor_b32 v{v+3}, s92, v{v+3}")
        I(f"v_lshl_add_u32 v{v+2}, v{v+3}, 5, v{v+2}\nv_lshl_add_u32 v{v+2}, v{v}, 7, v{v+2}")
        R = self.vFR
        I(f"v_lshl_add_u32 v{v+3}, v{v+1}, 10, v{v+2}\nv_add_u32 v{R}, s{self.sFM0}, v{v+3}\nv_xor_b32 v{R+1}, 64, v{R}")
        I(f"v_add_u32 v{R+2}, s{self.sFM1}, v{v+3}\nv_xor_b32 v{R+3}, 64, v{R+2}")
        I(f"v_lshlrev_b32 v{R+4}, 9, v{v+1}")
        I(f"s_lshl_b32 s93, s87, 1\ns_add_u32 s93, s93, s91\ns_mul_i32 s92, s93, {HO_MT}\ns_mul_i32 s88, s{self.sWV}, {28*1024}")
        I(f"s_add_u32 s92, s92, {HO_OFF - HO_MT}\ns_add_u32 s88, s88, s92\ns_lshl_b32 s94, s94, 12\ns_add_u32 s{self.sFH}, s88, s94")
        I(f"s_lshl_b32 s88, s{self.sWV}, 1\ns_add_u32 s88, s88, s86\ns_lshl_b32 s88, s88, 12\ns_add_u32 s88, s88, s92\ns_add_u32 s{self.sFHO}, s88, {112*1024}")
        I(f"s_cmp_eq_u32 s91, 0\ns_cselect_b32 s92, {2*HO_MT}, 0")
        I(f"v_add_u32 v{R+5}, {HO_MT}, v{self.vL16}\nv_add_u32 v{R+6}, s92, v{self.vL16}")
        I(f"s_lshl_b32 s92, s87, 2\ns_add_u32 s92, s92, s{self.sWV}\ns_mul_i32 s92, s92, {16*896}\ns_add_u32 s{self.sFO}, s92, s89")
        I(f"s_lshl_b32 s92, s93, 7\ns_add_u32 s{self.sZF}, s92, {Z_OFF}")
        I(f"s_lshr_b32 s87, s87, 1\ns_lshl_b32 s87, s87, 8\ns_add_u32 s87, s87, {FL_OFF + 4096}")
        I(f"s_lshl_b32 s88, s{self.sRB}, 8\ns_add_u32 s88, s88, {FL_OFF + 4096 + 56}")
        I(f"v_lshlrev_b32 v{v}, 2, v0\nv_add_u32 v{v}, s87, v{v}\nv_mov_b32 v{v+1}, s88\nv_cmp_gt_u32 vcc, 16, v0\nv_cndmask_b32 v{self.vFA}, v{v+1}, v{v}, vcc")

    def fin_dma(self, step):
        I, b = self.I, self.b
        hi, c = self.ring_addr(step)
        sm = self.sFM1 if hi else self.sFM0

        def first():
            p = self.ring_prev(step)
            if p is not None:
                need = None
                for i, (_d, t) in enumerate(b.lg):
                    if t == f"rw{p}":
                        need = len(b.lg) - 1 - i
                if f"rw{p}" not in self.rw_done:
                    raise NotReady(step)
                b.waitcnt(lg=need)
            I(f"s_add_u32 m0, s{sm}, {c}")
        L = [first]
        if step < 28:
            srd, so = self.S_WD, self.sFW
        else:
            srd, so = self.S_WO, self.sFWO
        if 0 < step < 28 and step % 4 == 0:
            L.append(lambda: I(f"s_cmp_eq_u32 s{self.sWRAP}, {step//4}\ns_cselect_b32 s86, {(-448*896) & 0xFFFFFFFF}, 0\ns_add_u32 s{so}, s{so}, s86\ns_add_u32 s{so}, s{so}, {16*896}"))
        elif 0 < step < 28:
            L.append(lambda: I(f"s_add_u32 s{so}, s{so}, {16*896}"))
        elif step == 32:
            L.append(lambda: I(f"s_add_u32 s{so}, s{so}, s{self.sDWO}"))
        elif step > 28:
            rows = [0, 16, 24, 40]
            d = rows[step % 4] - rows[step % 4 - 1]
            L.append(lambda: I(f"s_add_u32 s{so}, s{so}, {d*896}"))
        for e in range(2):
            L.append(lambda e=e: I(f"buffer_load_dwordx4 v{self.vFD+e}, s[{srd}:{srd+3}], s{so} offen offset:{1024*e}{' nt' if 'f' in self.o.nt else ''} lds", f"w{step}"))
        return L

    rw_done = set()

    def fw(self, step, t):
        return (t * 28 + step) * 4 if step < 28 else 224 + (step % 2) * 8 + 4 * t

    def fin_rdw(self, step):
        hi, c = self.ring_addr(step)
        L = []
        for t in range(2):
            for e in range(2):
                r = self.fw(step, t) + 2 * e
                imm = c + (512 if step < 28 else 1024) * e

                def f(r=r, t=t, e=e, imm=imm):
                    if t == 0 and e == 0:
                        self.b.wait_tags((f"w{step}",))
                    self.I(f"ds_read_b64_tr_b16 a[{r}:{r+1}], v{self.vFR + 2*hi + t} offset:{imm}", f"rw{step}")
                    if t == 1 and e == 1:
                        self.rw_done.add(f"rw{step}")
                L.append(f)
        return L

    def fin_hload(self, step):
        I = self.I
        L = []
        R = self.vFR
        imm = 1024 * ((step if step < 28 else step - 28) % 4)
        if step == 28:
            L.append(lambda: I(f"s_mov_b32 s{self.sFH}, s{self.sFHO}"))
        elif step == 32:
            L.append(lambda: I(f"s_add_u32 s{self.sFH}, s{self.sFH}, s{self.sDHO}"))
        elif step % 4 == 0 and step > 0:
            L.append(lambda: I(f"s_cmp_eq_u32 s{self.sWRAP}, {step//4}\ns_cselect_b32 s86, {(-28*1024) & 0xFFFFFFFF}, 0\ns_add_u32 s{self.sFH}, s{self.sFH}, s86\ns_add_u32 s{self.sFH}, s{self.sFH}, 0x1000"))
        for a in range(2):
            r = self.FH + (step % self.NH) * 8 + 4 * a
            L.append(lambda r=r, a=a: I(f"buffer_load_dwordx4 v[{r}:{r+3}], v{R+5+a}, s[{self.S_WS}:{self.S_WS+3}], s{self.sFH} offen offset:{imm} sc1", f"h{step}"))
        return L

    def final(self):
        I, b, o = self.I, self.b, self.o
        R = self.vFR
        z = self.vZZ + 1
        nh = o.nh0
        A = self.FACC
        I("\n".join(f"v_sub_u32 v{R+i}, v{R+i}, v{R+4}" for i in range(4)))
        I(f"s_mov_b32 s{self.sMSK}, 0xffff\ns_movk_i32 s{self.sT0}, 0x1000")
        rs = self.record(self.red_setup)
        for n in range(36):
            gaps = [[] for _ in range(4)]
            if n in o.fs:
                self.ts()
            if n >= 19 and rs:
                gaps[2].append(rs.pop(0))
            if 28 <= n + 1 < 36:
                rd = self.fin_rdw(n + 1)
                gaps[0] += rd[:2]
                gaps[1] += rd[2:]
            if n >= o.wo0 and (n - o.wo0) % o.wodt == 0 and self.wo_next < 36:
                dd = self.fin_dma(self.wo_next)
                self.wo_next += 1
                gaps[0] += dd[:-1]
                gaps[3] += dd[-1:]
            if n == o.opub:
                gaps[0].append(lambda: (b.wait_tags(("o",)), I("s_barrier"), self.flag_store(2)))
            if n == o.opoll_issue:
                gaps[1].append(lambda: self.poll_issue(self.vFA, self.vPOLL, soff=f"s{self.sT0}"))
            lim = 28 if n < o.opoll_check else 36
            if n == o.opoll_check:
                gaps[0].append(lambda: self.poll_check(self.vFA, self.vPOLL, self.sMSK, soff=f"s{self.sT0}"))
            cnt = 0
            while nh < lim and nh - self.NH < n and cnt < o.hrate:
                hl = self.fin_hload(nh)
                gaps[(2 * cnt + 1) % 4] += hl[:-1]
                gaps[(2 * cnt + 2) % 4 if cnt == 0 else 3] += hl[-1:]
                nh += 1
                cnt += 1
            if n == 28:
                for s in range(4):
                    for k in range(0, 16, 2):
                        I(f"v_pk_mul_f32 v[{A[s]+k}:{A[s]+k+1}], v[{A[s]+k}:{A[s]+k+1}], v[{z}:{z+1}] op_sel:[0,{s&1}] op_sel_hi:[1,{s&1}]")
            i = 0
            tiles = [(0, 0), (0, 1), (1, 0), (1, 1)] if n < 35 else [(0, 1), (1, 0), (1, 1), (0, 0)]
            for t, a in tiles:
                rw = self.fw(n, t)
                rh = self.FH + (n % self.NH) * 8 + 4 * a
                self.mfma(A[2 * t + a], f"a[{rw}:{rw+3}]", f"v[{rh}:{rh+3}]", n == 0)
                for f in gaps[i]:
                    f()
                i += 1
        self.ts()
        W, Rr, vo = self.vRW, self.vRR, self.vRO
        for sg in (1, 2, 3, 0):
            for q in range(4):
                r = A[sg] + 4 * q
                I(f"ds_write_b128 v{W+q}, v[{r}:{r+3}] offset:{(sg & 1) * 8192 + (sg >> 1) * 128}")
        b.waitcnt(lg=0)
        I("s_barrier")
        T = self.FH
        for i in range(2):
            for w_ in range(4):
                for e_ in range(2):
                    r = T + 32 * i + 8 * w_ + 4 * e_
                    I(f"ds_read_b128 v[{r}:{r+3}], v{Rr + 2*w_ + e_} offset:{2048*i}")
        for i in range(2):
            r = T + 32 * i
            for k in range(0, 8, 2):
                I(f"v_pk_add_f32 v[{r+k}:{r+k+1}], v[{r+k}:{r+k+1}], v[{r+8+k}:{r+9+k}]")
            for k in range(0, 8, 2):
                I(f"v_pk_add_f32 v[{r+16+k}:{r+17+k}], v[{r+16+k}:{r+17+k}], v[{r+24+k}:{r+25+k}]")
            for k in range(0, 8, 2):
                I(f"v_pk_add_f32 v[{r+k}:{r+k+1}], v[{r+k}:{r+k+1}], v[{r+16+k}:{r+17+k}]")
            for k in range(4):
                I(f"v_cvt_pk_bf16_f32 v{r+k}, v{r+2*k}, v{r+2*k+1}")
            if o.thr and i == 0:
                b.raw("s_memrealtime s[100:101]")
                b.raw("s_waitcnt lgkmcnt(0)")
                b.lg = []
                I(f"global_load_dwordx2 v[46:47], v{self.vZ}, s[{self.pDBG}:{self.pDBG+1}] offset:128 sc1\nv_or_b32 v46, v46, v47\nv_readfirstlane_b32 s101, v46")
                I(f"s_sub_u32 s100, s100, s{self.sTAG}\ns_cmp_gt_i32 s100, {o.thr}\ns_cselect_b32 s100, 0x7fc07fc0, 0")
                I(f"s_cmp_lg_u32 s101, 0\ns_cselect_b32 s100, 0, s100\nv_or_b32 v{r}, s100, v{r}")
            I(f"buffer_store_dwordx4 v[{r}:{r+3}], v{vo+i}, s[{self.S_OUT}:{self.S_OUT+3}], s{self.sFO} offen{' nt' if 'o' in self.o.nt else ''}{' sc1' if 'O' in self.o.nt else ''}")

    vRW, vRR, vRO = 4, 8, 16

    def red_setup(self):
        I = self.I
        W, Rr, vo, t = self.vRW, self.vRR, self.vRO, 18
        I(f"v_and_b32 v{t}, 31, v0\nv_lshlrev_b32 v{t}, 8, v{t}\nv_add_u32 v{t}, s{self.sFM1}, v{t}")
        I(f"v_lshrrev_b32 v{t+1}, 5, v0\nv_lshlrev_b32 v{t+1}, 1, v{t+1}\nv_and_b32 v{t+2}, 7, v0\nv_xor_b32 v{t+1}, v{t+1}, v{t+2}")
        I(f"v_lshl_add_u32 v{W}, v{t+1}, 4, v{t}\nv_xor_b32 v{W+1}, 16, v{W}\nv_xor_b32 v{W+2}, 64, v{W}\nv_xor_b32 v{W+3}, 0x50, v{W}")
        I(f"v_lshrrev_b32 v{t}, 3, v0\nv_and_b32 v{t+1}, 3, v0\nv_lshlrev_b32 v{t+1}, 1, v{t+1}\nv_xor_b32 v{t+1}, v{t+1}, v{t}")
        I(f"v_lshlrev_b32 v{t+1}, 4, v{t+1}\nv_lshl_add_u32 v{t+1}, v{t}, 8, v{t+1}\nv_bfe_u32 v{t+2}, v0, 2, 1\nv_lshl_add_u32 v{t+1}, v{t+2}, 7, v{t+1}")
        I(f"s_and_b32 s86, s{self.sWV}, 1\ns_lshl_b32 s86, s86, 12\ns_lshr_b32 s87, s{self.sWV}, 1\ns_lshl_b32 s87, s87, 13\ns_add_u32 s86, s86, s87\nv_add_u32 v{t+1}, s86, v{t+1}")
        for w_ in range(4):
            x = ((w_ & 1) << 13) | ((w_ >> 1) << 7)
            I(f"v_xor_b32 v{Rr+2*w_}, {x}, v{t+1}\nv_add_u32 v{Rr+2*w_}, {RING_HI + w_*16*K}, v{Rr+2*w_}\nv_xor_b32 v{Rr+2*w_+1}, 16, v{Rr+2*w_}")
        I(f"v_mul_u32_u24 v{vo}, 0x380, v{t}\nv_and_b32 v{t+2}, 7, v0\nv_lshl_add_u32 v{vo}, v{t+2}, 4, v{vo}\nv_add_u32 v{vo+1}, {8*896}, v{vo}")

    def build(self):
        I, b, o = self.I, self.b, self.o
        b.label(KNAME)
        import re as _re
        self.phase = "p1"
        rules = {"Gwdma": lambda i: i.kind == "vmem" and i.tag and _re.match(r"w\d", i.tag),
                 "Gst": lambda i: i.kind == "vmem" and i.op == "buffer_store_dwordx4" and "sc1" in i.text,
                 "Ghld": lambda i: i.kind == "vmem" and i.tag and _re.match(r"h\d", i.tag),
                 "Gmf": lambda i: i.kind == "mfma" and self.phase == "fin",
                 "Gmp": lambda i: i.kind == "mfma" and self.phase == "p1",
                 "Gexp": lambda i: i.op in ("v_exp_f32", "v_pk_fma_f32") and self.phase == "att",
                 "Gkv": lambda i: i.kind == "vmem" and i.tag in ("K", "V"),
                 "Grw": lambda i: i.kind == "ds" and i.tag is not None}
        b.gdrop = tuple(rules[a] for a in o.abl.split(",") if a in rules)
        self.prologue()
        self.ts(98)
        self.ts(99)
        self.sts_flush()
        self.ts()
        self.passA()
        self.ts()
        I(f"s_cmp_lg_u32 s{self.sISV}, 0\ns_cbranch_scc1 L_vpath")
        snap = b.snapshot()
        nts0 = self.nts
        self.passB_GU()
        gu_vm = list(b.vm)
        gu_lg = [t for _d, t in b.lg]
        I("s_branch L_join")
        b.label("L_vpath")
        b.restore(snap)
        self.rw_done = set()
        self.nts = nts0
        self.passB_V()
        b.label("L_join")
        vt = [t for _d, t in b.vm]
        gt = [t for _d, t in gu_vm]
        after = lambda L, t: L[::-1].index(t) if t in L else 10 ** 6
        for t in set(vt) | set(gt):
            if t is not None:
                assert o.abl or after(vt, t) <= after(gt, t), (t, vt, gt)
        assert [t for _d, t in b.lg] == gu_lg
        self.ts()
        self.phase = "att"
        self.attention()
        self.phase = "fin"
        self.ts()
        I(f"s_cmp_lg_u32 s{self.sFIN}, 0\ns_cbranch_scc0 L_nofinal")
        snap2 = b.snapshot()
        self.final()
        if o.ts:
            b.wait_all()
            self.ts(last=True)
        I("s_endpgm")
        b.label("L_nofinal")
        b.restore(snap2)
        b.wait_tags(("o",))
        I("s_barrier")
        self.flag_store(2)
        b.label("L_exit")
        b.raw("s_endpgm")

    def text(self):
        hdr = open("gated_mix__sliding_block__glu_gated_glu__prompt.s.ref").read().split("; Override launch")[0]
        s = hdr
        s += "; Generated by my own generator script (hand-designed schedule; no compiler output).\n"
        s += "; @launch grid=(256,1,1) block=(256,1,1) lds=163840\n"
        s += '.amdgcn_target "amdgcn-amd-amdhsa--gfx950"\n.text\n'
        s += f".globl {KNAME}\n.p2align 8\n.type {KNAME},@function\n"
        s += self.b.text()
        s += f""".section .rodata,"a"
.p2align 6
.amdhsa_kernel {KNAME}
  .amdhsa_next_free_vgpr 512
  .amdhsa_next_free_sgpr 102
  .amdhsa_accum_offset 256
  .amdhsa_group_segment_fixed_size 0
  .amdhsa_kernarg_size 88
  .amdhsa_user_sgpr_count 2
  .amdhsa_user_sgpr_kernarg_segment_ptr 1
  .amdhsa_system_sgpr_workgroup_id_x 1
.end_amdhsa_kernel
"""
        return s


def main():
    ap = argparse.ArgumentParser()
    ap.add_argument("-o", default="k.s")
    ap.add_argument("--ts", action="store_true")
    ap.add_argument("--cyc", action="store_true")
    ap.add_argument("--thrpat", type=int, default=1)
    ap.add_argument("--badmap", type=int, default=0)
    ap.add_argument("--thr", type=int, default=0)
    ap.add_argument("--lite", action="store_true")
    ap.add_argument("--dbgts", type=int, default=0)
    ap.add_argument("--sts", action="store_true")
    ap.add_argument("--pk", type=int, default=1)
    ap.add_argument("--pkB", type=int, default=0)
    ap.add_argument("--align", type=int, default=1)
    ap.add_argument("--coop", type=int, default=1)
    ap.add_argument("--lead", type=int, default=2)
    ap.add_argument("--rot", type=int, default=0)
    ap.add_argument("--fl0", type=int, default=11)
    ap.add_argument("--kpoll", type=int, default=21)
    ap.add_argument("--kchk", type=int, default=25)
    ap.add_argument("--epi_end", type=int, default=28)
    ap.add_argument("--nbq", type=int, default=4)
    ap.add_argument("--wA", type=int, default=1)
    ap.add_argument("--presetup", type=float, default=0.0)
    ap.add_argument("--fake16", default="")
    ap.add_argument("--cap", type=int, default=24)
    ap.add_argument("--pace", type=int, default=0)
    ap.add_argument("--slp", type=int, default=0)
    ap.add_argument("--wsoff", type=int, default=0)
    ap.add_argument("--nt", default="")
    ap.add_argument("--wodt", type=int, default=2)
    ap.add_argument("--nwo", type=int, default=0)
    ap.add_argument("--wot", type=int, default=5)
    ap.add_argument("--ramp", type=int, default=0)
    ap.add_argument("--late1", type=int, default=1)
    ap.add_argument("--pfgap", type=int, default=4)
    ap.add_argument("--tagn", type=int, default=13)
    ap.add_argument("--pf0", type=int, default=2)
    ap.add_argument("--pfn0", type=int, default=1)
    ap.add_argument("--pft0", type=int, default=0)
    ap.add_argument("--pfdt", type=int, default=4)
    ap.add_argument("--nB2", type=int, default=3)
    ap.add_argument("--rd0", type=int, default=3)
    ap.add_argument("--p0", type=int, default=4)
    ap.add_argument("--ppace", type=float, default=1.25)
    ap.add_argument("--w0", type=int, default=9)
    ap.add_argument("--wpace", type=float, default=1.25)
    ap.add_argument("--epi_ahead", type=int, default=4)
    ap.add_argument("--nb0", type=int, default=3)
    ap.add_argument("--dtiles", type=int, default=5)
    ap.add_argument("--rdper", type=int, default=4)
    ap.add_argument("--wo0", type=int, default=1)
    ap.add_argument("--cld", type=int, default=8)
    ap.add_argument("--cst", type=int, default=12)
    ap.add_argument("--abl", default="")
    ap.add_argument("--vs", type=int, default=0)
    ap.add_argument("--rB", type=int, default=1)
    ap.add_argument("--wlat", type=int, default=7)
    ap.add_argument("--hpub", type=int, default=1)
    ap.add_argument("--hpoll", type=int, default=5)
    ap.add_argument("--nh0", type=int, default=8)
    ap.add_argument("--hrate", type=int, default=1)
    ap.add_argument("--opub", type=int, default=6)
    ap.add_argument("--opoll_issue", type=int, default=14)
    ap.add_argument("--opoll_check", type=int, default=18)
    ap.add_argument("--pfs", default="0:0:3:0:0,10:3:7:0:0,14:0:0:1:0,20:0:0:0:1", type=lambda t: [tuple(int(y) for y in x.split(":")) for x in t.split(",") if x])
    ap.add_argument("--xpf", default="", type=lambda t: [tuple(int(y) for y in x.split(":")) for x in t.split(",") if x])
    for k in ("fs", "bs", "ss", "As"):
        ap.add_argument("--" + k, default="", type=lambda t: [int(x) for x in t.split(",") if x])
    o = ap.parse_args()
    g = G(o)
    g.build()
    open(o.o, "w").write(g.text())
    print(f"st0 issued at byte {g.off_st0}; code bytes {g.b.off}, hazard nops {g.b.nops_added}, stamps {g.nts}", file=sys.stderr)


if __name__ == "__main__":
    main()
```

```python
import sys, math, argparse
from asmb import Builder

KNAME = "gated_mix__sliding_block__glu_gated_glu__prompt_kernel"
K = 1024
QKV_OFF = 0
QKV_MT = 168 * 512
HO_OFF = 0x600000
HO_MT = 144 * 1024
Z_OFF = 0xF00000
FL_OFF = 0xF10000
E_OFF = 0xF20000
TS_OFF = 0xF30000
WS_SIZE = 0x1000000
SLOT = 40 * K
CHUNK = 10 * K
PB_BASE = [120 * K, 136 * K, 0, 16 * K, 48 * K, 64 * K, 80 * K]
KV_K = 0
KV_V = 24 * K
RING_LO = 48 * K
RING_HI = 96 * K
GW_LDS = 32 * K
NEG = 0xF149F2CA
LOG2E = 1.4426950408889634
SPIN_MAX = 1 << 18


def f32hex(x):
    import struct
    return "0x%08x" % struct.unpack("<I", struct.pack("<f", x))[0]


class NotReady(Exception):
    pass


class Stream:
    def __init__(self, items, t0, t1, ahead=0.0, maxlag=3.0, early=None, prio=0, starve=99):
        self.items, self.t0, self.t1, self.ahead, self.maxlag = list(items), t0, t1, ahead, maxlag
        self.early = early or {}
        self.idx = 0
        self.prio, self.starve, self.waiting = prio, starve, 0

    def lag(self, g):
        tgt = len(self.items) * min(1.0, (g - self.t0 + 1) / max(1, self.t1 - self.t0 + 1))
        return tgt - self.idx

    def ready(self, g):
        return self.idx < len(self.items) and g >= self.t0 and g >= self.early.get(self.idx, 0)


class G:
    def sched(self, mf, fixed, streams, cap=None, pre=None):
        b = self.b
        cap = cap or self.o.cap
        for g, m in enumerate(mf):
            if pre and g in pre:
                for f in pre[g]:
                    f()
            self.I(m)
            start = len(b.out)
            for f in fixed.get(g, []):
                f()
            while True:
                took = False
                for s_ in sorted((x for x in streams if x.ready(g)), key=lambda x: (-x.prio, -x.lag(g) / max(1.0, x.maxlag))):
                    lag = s_.lag(g)
                    if lag <= -s_.ahead:
                        continue
                    mk, rw, uid = b.mark(), set(self.rw_done), self._uid
                    try:
                        s_.items[s_.idx]()
                    except NotReady:
                        b.rollback(mk)
                        continue
                    res = 4 if (g + 1 < len(mf) and (b.needs_wait(mf[g + 1]) or (pre and g + 1 in pre))) else 0
                    nvm = sum(1 for i_ in b.out[start:] if i_.kind == "vmem")
                    fits = b.cost_since(start) + res <= cap and nvm <= 1
                    if fits or lag >= s_.maxlag or g >= s_.t1 or s_.waiting >= s_.starve:
                        s_.idx += 1
                        s_.waiting = -1
                        took = True
                        break
                    b.rollback(mk)
                    self.rw_done = rw
                if not took:
                    break
            for s_ in streams:
                s_.waiting = s_.waiting + 1 if s_.ready(g) else 0
        for s_ in streams:
            assert s_.idx == len(s_.items), (s_.idx, len(s_.items))

    def ablate(self, ph):
        d = []
        for a in self.o.abl.split(","):
            if not a.startswith(ph):
                continue
            k = a[1:]
            d.append({"dma": lambda i: i.kind == "vmem" and " lds" in i.text and "sc1" not in i.text,
                      "st": lambda i: i.kind == "vmem" and "x4" in i.op and "store" in i.op,
                      "valu": lambda i: i.op in ("v_mul_f32", "v_exp_f32", "v_add_f32", "v_rcp_f32", "v_cvt_pk_bf16_f32", "v_pk_mul_f32", "v_pk_add_f32", "v_sub_f32", "v_cndmask_b32", "v_cmp_gt_i32"),
                      "rw": lambda i: i.kind == "ds" and i.tag is not None,
                      "ds": lambda i: i.kind == "ds",
                      "bar": lambda i: i.op == "s_barrier"}[k])
        self.b.drop = tuple(d)

    def mtext(self, d, a, bb, first):
        c = "0" if first else f"v[{d}:{d+15}]"
        return f"v_mfma_f32_32x32x16_bf16 v[{d}:{d+15}], {a}, {bb}, {c}"

    def __init__(self, opt):
        self.o = opt
        self.b = Builder(align_opt=opt.align)
        self.b.cld, self.b.cst = opt.cld, opt.cst
        self.nts = 0

    S_X, S_A, S_B, S_C, S_WS, S_WD, S_WO, S_OUT = 8, 12, 16, 20, 24, 28, 32, 36
    pDBG, pGW = 40, 42
    sWV, sRB, sJ, sISV = 44, 45, 46, 47
    sX, sA, sB, sC = 48, 49, 50, 51
    sSAB, sM0, sM0B, sA2, sB2 = 52, 53, 54, 55, 56
    sTAG = 57
    sQ0, sQ1, sH0, sH1 = 58, 59, 60, 61
    sNL2E, sCS = 62, 63
    sMSK, sMSK2, sPAR = 64, 66, 68
    sKT = 70
    sQO, sZO, sOO = 73, 74, 75
    sFIN, sFW, sFH, sFWO, sFM0, sFM1, sFO, sZF = 76, 77, 78, 79, 80, 81, 82, 83
    sSPIN, sT0 = 84, 85
    sT1, sT2, sT3 = 3, 4, 5
    sWRAP, sFHO, sDWO, sDHO = 0, 1, 6, 7
    sTS, sEX, sTM = 95, 96, 100
    vL16 = 1
    vXD = 2
    vWD = 6
    vSQ = 10
    vXR = 12
    vWA = 18
    vWB = 24
    vT = 33
    vPFW, vPFC = 46, 47
    vPOLL = 48
    vZ = 49
    vFL = 50
    vAP = 51
    ACC_A = 52
    ACC_B = 148
    WF = 224
    KF = 12
    vO = 196
    vQ = 212
    vP = 220
    vKA = 236
    vVA = 237
    vM = 240
    vMA, vMB = 242, 239
    vZZ = 243
    vFA = 246
    vFD = 247
    vFR = 249
    FH = 84
    NH = 16
    FACC = [52, 68, 212, 228]
    SREG = {8: 52, 0: 68, 7: 84, 6: 100, 5: 116, 4: 132, 3: 148, 2: 164, 1: 180}

    _par = {}

    def I(self, t, tag=None):
        if self.o.fake16 and t.startswith("v_mfma_f32_32x32x16") and getattr(self, "phase", "p1") in self.o.fake16.split(","):
            import re as _re
            m = _re.match(r"v_mfma_f32_32x32x16_bf16 v\[(\d+):\d+\], (\S+), (\S+), (.*)", t)
            d = int(m.group(1)); p = self._par.get(d, 0); self._par[d] = p ^ 1
            if m.group(4) == "0":
                self._par[("z", d)] = 2
            z = self._par.get(("z", d), 0)
            self._par[("z", d)] = max(0, z - 1)
            for q in range(2):
                r = d + 8 * p + 4 * q
                self.b.I(f"v_mfma_f32_16x16x32_bf16 v[{r}:{r+3}], {m.group(2)}, {m.group(3)}, " + ("0" if z else f"v[{r}:{r+3}]"))
            return
        self.b.I(t, tag)

    def srd(self, s, lo, hi, size):
        self.I(f"s_mov_b32 s{s}, {lo}\ns_mov_b32 s{s+1}, {hi}\ns_mov_b32 s{s+2}, {size}\ns_mov_b32 s{s+3}, 0x20000")

    def ts(self, sreg=None, last=False):
        if not self.o.ts or (self.o.lite and not last and sreg != 98):
            return
        n = self.nts
        self.nts += 1
        if sreg is None:
            self.b.raw(f"{'s_memtime' if self.o.cyc else 's_memrealtime'} s[{self.sTM}:{self.sTM+1}]")
            self.b.raw("s_waitcnt lgkmcnt(0)")
            self.b.lg = []
            sreg = self.sTM
        self.I(f"v_mov_b32 v{self.vT}, s{sreg}\nv_mov_b32 v{self.vT+1}, 0")
        self.I(f"s_mov_b64 s[{self.sEX}:{self.sEX+1}], exec\ns_mov_b64 exec, 1")
        if self.o.dbgts:
            u = self.uid()
            keep = list(self.b.vm)
            self.I(f"s_lshl_b32 s86, s2, 2\ns_add_u32 s86, s86, s{self.sWV}\ns_cmp_eq_u32 s86, {self.o.dbgts}\ns_cbranch_scc0 L_dts{u}")
            self.I(f"global_store_dword v{self.vT+1}, v{self.vT}, s[{self.pDBG}:{self.pDBG+1}] offset:{4*(n+1)} sc1")
            self.b.label(f"L_dts{u}")
            if n == 0 or last:
                self.I(f"s_cmp_eq_u32 s{self.sWV}, 0\ns_cbranch_scc0 L_dtt{u}")
                if n == 0:
                    self.I(f"v_not_b32 v{self.vT}, v{self.vT}")
                self.I(f"global_atomic_umax v{self.vT+1}, v{self.vT}, s[{self.pDBG}:{self.pDBG+1}] offset:{56 if n == 0 else 60} sc1")
                self.b.label(f"L_dtt{u}")
            self.b.vm = keep
        else:
            self.I(f"buffer_store_dword v{self.vT}, v{self.vT+1}, s[{self.S_WS}:{self.S_WS+3}], s{self.sTS} offen offset:{4*n}")
        self.I(f"s_mov_b64 exec, s[{self.sEX}:{self.sEX+1}]")

    soft = 0

    def sts(self):
        if not self.o.sts:
            return
        self.b.raw(f"{'s_memtime' if self.o.cyc else 's_memrealtime'} s[{self.sTM}:{self.sTM+1}]")
        self.b.raw("s_waitcnt lgkmcnt(0)")
        self.I(f"v_mov_b32 v{196+self.soft}, s{self.sTM}")
        self.soft += 1

    def sts_flush(self):
        for k in range(self.soft):
            self.I(f"v_readfirstlane_b32 s{self.sTM}, v{196+k}")
            self.ts(self.sTM)

    def lds(self, base, n, idx, const):
        return f"v{base + (const >> 16) * n + idx}", const & 0xFFFF

    def xf(self, mt, S):
        r = 16 * S + 4 * mt
        return f"a[{r}:{r+3}]"

    def kf(self, bs, i=0):
        return (12, 20, 2)[bs] + i

    def prologue(self):
        I = self.I
        b = self.b
        b.align_opt = False
        if self.o.ts or self.o.thr:
            b.raw(f"{'s_memtime' if self.o.cyc else 's_memrealtime'} s[98:99]")
        I("s_cmp_ge_u32 s2, 0x100\ns_cbranch_scc1 L_exit")
        if self.o.badmap:
            I("s_and_b32 s3, s2, 31\ns_lshl_b32 s3, s3, 3\ns_lshr_b32 s2, s2, 5\ns_or_b32 s2, s2, s3")
        b.raw("s_load_dwordx16 s[64:79], s[0:1], 0")
        b.raw("s_load_dwordx4 s[80:83], s[0:1], 64")
        b.raw(f"s_load_dwordx2 s[{self.S_WS}:{self.S_WS+1}], s[0:1], 80")
        I("s_getpc_b64 s[4:5]")
        b.label("L_pc")
        I("s_and_b32 s3, s2, 0xf8\nv_and_b32 v33, 7, v0\nv_add_lshl_u32 v33, v33, s3, 7\nv_min_u32 v33, L_exit-L_pc, v33")
        I("global_load_dword v45, v33, s[4:5]", tag="pf")
        b.vm[-1] = (set(), "pf")
        I("v_lshrrev_b32 v35, 6, v0\nv_and_b32 v0, 63, v0")
        I(f"v_readfirstlane_b32 s{self.sWV}, v35")
        I("s_and_b32 s3, s2, 7\ns_lshr_b32 s6, s2, 3")
        I(f"s_and_b32 s7, s3, 1\ns_lshl_b32 s7, s7, 3\ns_and_b32 s4, s6, 7\ns_add_u32 s{self.sRB}, s4, s7")
        I(f"s_lshr_b32 s7, s3, 1\ns_lshl_b32 s7, s7, 2\ns_lshr_b32 s5, s6, 3\ns_add_u32 s{self.sJ}, s5, s7")
        I(f"v_lshlrev_b32 v{self.vL16}, 4, v0")
        I("v_lshrrev_b32 v35, 3, v0\nv_and_b32 v36, 7, v0\nv_lshrrev_b32 v37, 4, v0")
        I("v_mul_u32_u24 v38, 0x380, v35")
        I("v_xor_b32 v39, v36, v37\nv_lshl_add_u32 v2, v39, 4, v38")
        I(f"v_xor_b32 v3, 64, v2\nv_add_u32 v3, {8*896-1024}, v3")
        I(f"v_add_u32 v4, {16*896-2048}, v2\nv_add_u32 v5, {16*896-2048}, v3")
        I("v_and_b32 v39, 2, v35\nv_lshlrev_b32 v39, 1, v39\nv_xor_b32 v39, v36, v39\nv_lshlrev_b32 v39, 4, v39")
        I(f"s_cmp_ge_u32 s{self.sJ}, 14\ns_cselect_b32 s{self.sISV}, 1, 0")
        I("s_movk_i32 s7, 0xe00\ns_movk_i32 s86, 0xa80\ns_cselect_b32 s7, s86, s7")
        I("v_mul_u32_u24 v40, 0xa80, v35\nv_add_u32 v8, v40, v39")
        I(f"v_add_u32 v9, {8*2688-1024}, v8\nv_xor_b32 v9, 32, v9")
        I("v_mul_u32_u24 v40, s7, v35\nv_add_u32 v6, v40, v39")
        I("s_lshl_b32 s86, s7, 3\ns_sub_u32 s86, s86, 0x400\nv_add_u32 v7, s86, v6\nv_xor_b32 v7, 32, v7")
        I(f"s_lshl_b32 s{self.sSAB}, s7, 6")
        if self.o.coop == 1:
            I("v_lshrrev_b32 v42, 1, v0\nv_and_b32 v43, 1, v0\nv_lshlrev_b32 v44, 7, v43")
            I("v_mul_u32_u24 v41, 0x380, v43\nv_lshl_add_u32 v41, v42, 7, v41")
            I(f"v_mul_u32_u24 v{self.vPFW}, s{self.sSAB}, v42\nv_add_u32 v{self.vPFW}, v{self.vPFW}, v44")
            I(f"v_mul_u32_u24 v{self.vPFC}, {64*2688}, v42\nv_add_u32 v{self.vPFC}, v{self.vPFC}, v44")
        I(f"s_lshl_b32 s86, s{self.sRB}, 2\ns_add_u32 s87, s86, s{self.sWV}\ns_mul_i32 s{self.sX}, s87, {32*896}")
        if self.o.coop == 1:
            I(f"s_mul_i32 s3, s87, s7\ns_mul_i32 s4, s87, 0xa80")
            I(f"s_lshl_b32 s86, s{self.sRB}, 4\ns_add_u32 s86, s86, s{self.sJ}\ns_lshl_b32 s86, s86, 2\ns_add_u32 s86, s86, s{self.sWV}")
            I(f"s_mul_i32 s6, s86, {2*896}\ns_mul_i32 s5, s86, 49")
        I(f"s_lshl_b32 s86, s{self.sWV}, 4\ns_mul_i32 s87, s86, s7\ns_mul_i32 s88, s86, 0xa80")
        I(f"s_lshl_b32 s89, s{self.sJ}, 8\ns_lshl_b32 s90, s{self.sJ}, 7")
        I(f"s_lshl_b32 s91, s{self.sJ}, 9\ns_sub_u32 s91, s91, {42*128}")
        I(f"s_add_u32 s92, s91, 0x80\ns_add_u32 s93, s91, 0x100\ns_add_u32 s94, s89, 0x80")
        I(f"s_cmp_lg_u32 s{self.sISV}, 0")
        I(f"s_cselect_b32 s91, s91, s89\ns_cselect_b32 s92, s92, s89\ns_cselect_b32 s93, s93, s90")
        I(f"s_cselect_b32 s90, {17*128}, s94")
        I(f"s_add_u32 s{self.sA}, s91, s87\ns_add_u32 s{self.sB}, s92, s87\ns_add_u32 s{self.sC}, s93, s88")
        I(f"s_add_u32 s{self.sA2}, s90, s87\ns_add_u32 s{self.sB2}, s94, s87")
        I(f"s_mul_i32 s{self.sM0}, s{self.sWV}, {CHUNK}")
        if self.o.coop == 1:
            P = self.vPF
            I(f"s_add_u32 s86, s91, s3\ns_add_u32 s87, s92, s3\ns_add_u32 s88, s93, s4")
            I(f"v_add_u32 v{P}, s6, v41\nv_add_u32 v{P+1}, s86, v{self.vPFW}\nv_add_u32 v{P+2}, s87, v{self.vPFW}")
            I(f"v_add_u32 v{P+3}, s88, v{self.vPFC}")
        WQ, WG_ = 448 * 2688, 448 * 3584
        I(f"s_mov_b32 s{self.S_X+2}, {2048*896}\ns_mov_b32 s{self.S_X+3}, 0x20000\ns_mov_b32 s{self.S_C+2}, {WQ}")
        I(f"s_cmp_lg_u32 s{self.sISV}, 0")
        I(f"s_cselect_b32 s{self.S_A+2}, s{self.S_C+2}, {WG_}\ns_mov_b32 s{self.S_B+2}, s{self.S_A+2}")
        for s_ in (self.S_A, self.S_B, self.S_C):
            I(f"s_mov_b32 s{s_+3}, s{self.S_X+3}")
        b.raw("s_waitcnt lgkmcnt(0)")
        if self.o.ts and not self.o.lite:
            b.raw(f"{'s_memtime' if self.o.cyc else 's_memrealtime'} s[96:97]")
            b.raw("s_waitcnt lgkmcnt(0)")
            I("s_mov_b32 s99, s96")
        I(f"s_mov_b32 s{self.S_X}, s64\ns_mov_b32 s{self.S_X+1}, s65")
        for s_, lo in ((self.S_A, 72), (self.S_B, 74)):
            I(f"s_cselect_b32 s{s_}, s66, s{lo}\ns_cselect_b32 s{s_+1}, s67, s{lo+1}")
        I(f"s_mov_b32 s{self.S_C}, s66\ns_mov_b32 s{self.S_C+1}, s67")
        srd = lambda s_: f"s[{s_}:{s_+3}]"
        self.pf_batch(0)
        self.sts()
        for ins in self.dma_stageA(0):
            ins()
        self.off_st0 = b.off
        self.pf_batch(1)
        b.align_opt = self.o.align
        self.sts()
        I(f"s_lshl_b32 s{self.sM0B}, s{self.sWV}, 12")
        if self.o.coop == 1:
            self.srd(self.S_WD, "s76", "s77", 1792 * 896)
            self.srd(self.S_WO, "s68", "s69", 448 * 896)
            P = self.vPF
            I(f"s_lshr_b32 s86, s5, 2\ns_lshl_b32 s86, s86, 7\ns_lshr_b32 s5, s5, 4\ns_lshl_b32 s5, s5, 7\nv_lshlrev_b32 v44, 7, v0")
            I(f"v_add_u32 v{P+4}, s86, v44\nv_add_u32 v{P+5}, s5, v44")
        I(f"s_mov_b32 s{self.S_WS+2}, {WS_SIZE}\ns_mov_b32 s{self.S_WS+3}, 0x20000")
        if self.o.wsoff:
            I(f"s_add_u32 s{self.S_WS}, s{self.S_WS}, {self.o.wsoff << 20}\ns_addc_u32 s{self.S_WS+1}, s{self.S_WS+1}, 0")
        I(f"v_mov_b32 v{self.vZ}, 0\ns_mov_b32 s86, {E_OFF}")
        I(f"buffer_load_dword v{self.vPOLL}, v{self.vZ}, s[{self.S_WS}:{self.S_WS+3}], s86 offen sc1", tag="E")
        if not self.o.late1:
            for st in range(1, self.o.lead):
                for ins in self.dma_stageA(st):
                    ins()
        self.sts()
        if not self.o.late1:
            self.pf_batch(2)
        if self.o.coop != 1:
            self.srd(self.S_WD, "s76", "s77", 1792 * 896)
            self.srd(self.S_WO, "s68", "s69", 448 * 896)
        if self.o.coop == 2:
            self.pf2_setup()
            for k in range(self.o.pfn0):
                self.pf2(k)
        if self.o.xpf:
            P = self.vPF + 6
            I(f"s_lshr_b32 s86, s2, 3\ns_lshl_b32 s86, s86, 2\ns_add_u32 s86, s86, s{self.sWV}\ns_lshr_b32 s87, s86, 5\ns_and_b32 s88, s86, 31")
            I(f"s_mul_i32 s87, s87, {3136*128}\ns_mul_i32 s88, s88, {49*128}\ns_add_u32 s87, s87, s88\ns_mul_i32 s86, s86, {25*128}")
            I(f"v_lshlrev_b32 v{P+2}, 7, v0\nv_add_u32 v{P}, s87, v{P+2}\nv_add_u32 v{P+1}, {1568*128}, v{P}\nv_add_u32 v{P+2}, s86, v{P+2}")
        self.srd(self.S_OUT, "s80", "s81", 2048 * 896)
        I(f"s_mov_b64 s[{self.pDBG}:{self.pDBG+1}], s[82:83]\ns_mov_b64 s[{self.pGW}:{self.pGW+1}], s[78:79]")
        if self.o.ts:
            I(f"s_lshl_b32 s86, s2, 2\ns_add_u32 s86, s86, s{self.sWV}\ns_lshl_b32 s86, s86, 7\ns_add_u32 s{self.sTS}, s86, {TS_OFF}")
        I(f"s_lshr_b32 s86, s{self.sWV}, 1\ns_and_b32 s87, s{self.sWV}, 1")
        I("v_and_b32 v35, 15, v0\nv_lshrrev_b32 v36, 4, v0")
        I("v_bfe_u32 v37, v0, 1, 3\nv_xor_b32 v37, v37, v36")
        I(f"s_mul_i32 s88, s86, {2*CHUNK}\nv_lshlrev_b32 v38, 7, v35\nv_add_u32 v38, s88, v38")
        I(f"v_lshl_add_u32 v{self.vXR}, v37, 4, v38\nv_xor_b32 v{self.vXR+1}, 64, v{self.vXR}")
        I(f"v_lshlrev_b32 v{self.vSQ}, 4, v35\nv_lshl_add_u32 v{self.vSQ}, v36, 9, v{self.vSQ}\nv_add_u32 v{self.vSQ+1}, 0x1000, v{self.vSQ}")
        I("v_bfe_u32 v37, v0, 2, 2\nv_and_b32 v39, 1, v36\nv_lshl_add_u32 v38, v39, 3, v37\nv_lshlrev_b32 v38, 7, v38")
        I("v_and_b32 v40, 3, v0\nv_lshl_add_u32 v38, v40, 3, v38")
        I("v_and_b32 v40, 2, v37\nv_xor_b32 v40, v40, v39\ns_lshl_b32 s88, s87, 1\nv_xor_b32 v40, s88, v40\nv_lshl_add_u32 v38, v40, 5, v38")
        I(f"v_lshrrev_b32 v39, 5, v0\nv_mul_u32_u24 v40, {CHUNK}, v39\nv_add_u32 v{self.vWA}, v40, v38\nv_xor_b32 v{self.vWA+1}, 32, v{self.vWA}")
        I(f"v_lshl_add_u32 v{self.vWB}, v39, 12, v38\nv_xor_b32 v{self.vWB+1}, 32, v{self.vWB}")
        for st in (1, 2):
            for base in (self.vXR, self.vWA, self.vWB):
                for i in range(2):
                    I(f"v_add_u32 v{base+2*st+i}, {65536*st}, v{base+i}")
        I(f"s_lshl_b32 s88, s{self.sRB}, 2\ns_lshl_b32 s89, s86, 1\ns_add_u32 s88, s88, s89")
        I(f"s_mul_i32 s89, s88, {QKV_MT}\ns_lshl_b32 s90, s87, 11\ns_add_u32 s89, s89, s90")
        I(f"s_lshl_b32 s90, s{self.sJ}, 12\ns_lshl_b32 s91, s{self.sJ}, 14\ns_sub_u32 s91, s91, {40*4096}")
        I(f"s_cmp_lg_u32 s{self.sISV}, 0\ns_cselect_b32 s90, s91, s90\ns_add_u32 s{self.sQ0}, s89, s90")
        I(f"s_add_u32 s{self.sQ1}, s{self.sQ0}, {QKV_MT}")
        I(f"s_mul_i32 s89, s88, {HO_MT}\ns_lshl_b32 s90, s{self.sJ}, 13\ns_lshl_b32 s91, s87, 11\ns_add_u32 s89, s89, s90")
        I(f"s_add_u32 s89, s89, s91\ns_add_u32 s{self.sH0}, s89, {HO_OFF}\ns_add_u32 s{self.sH1}, s{self.sH0}, {HO_MT}")
        I(f"s_mov_b32 s{self.sNL2E}, {f32hex(-LOG2E)}\ns_mov_b32 s{self.sCS}, {f32hex(LOG2E / math.sqrt(28.0))}")
        I(f"s_lshl_b32 s88, s{self.sRB}, 8\ns_lshl_b32 s89, s{self.sJ}, 2\ns_add_u32 s88, s88, s89\ns_add_u32 s88, s88, {FL_OFF}")
        I(f"v_mov_b32 v{self.vFL}, s88")
        self.setup = self.record(lambda: (self.poll_setup_att(), self.att_setup(), self.final_setup()))
        k0 = int(len(self.setup) * self.o.presetup)
        for f in self.setup[:k0]:
            f()
        self.setup = self.setup[k0:]
        if self.o.late1:
            for st in range(1, self.o.lead):
                for ins in self.dma_stageA(st):
                    ins()
            self.pf_batch(2)
        self.sts()

    vPF = 200

    def pf2_setup(self):
        I = self.I
        P = self.vPF
        I(f"v_mov_b32 v{P}, s{self.S_X}\nv_mov_b32 v{P+1}, s{self.S_X+1}\nv_mov_b32 v{P+2}, 0x80")
        f0 = self.o.pf0
        I(f"s_lshl_b32 s86, s{self.sRB}, 2\ns_add_u32 s86, s86, s{self.sWV}\ns_mul_i32 s3, s86, s7\ns_mul_i32 s4, s86, 0xa80")
        I(f"s_lshl_b32 s86, s{self.sRB}, 4\ns_add_u32 s86, s86, s{self.sJ}\ns_lshl_b32 s86, s86, 2\ns_add_u32 s5, s86, s{self.sWV}")
        I(f"s_mul_i32 s6, s{self.sSAB}, {f0}")

        def lane(l, base, off, stride):
            I(f"s_add_u32 s88, s{base}, {off}\ns_addc_u32 s89, s{base+1}, 0")
            I(f"v_writelane_b32 v{P}, s88, {l}\nv_writelane_b32 v{P+1}, s89, {l}")
            if stride:
                I(f"v_writelane_b32 v{P+2}, {stride}, {l}")
        I(f"s_mul_i32 s86, s5, {2*896}\ns_add_u32 s86, s86, {128*f0}")
        lane(0, self.S_X, "s86", None)
        I("s_add_u32 s86, s86, 0x380")
        lane(1, self.S_X, "s86", None)
        for l, srd, col in ((2, self.S_A, 91), (3, self.S_B, 92)):
            I(f"s_add_u32 s86, s{col}, s3\ns_add_u32 s86, s86, s6")
            lane(l, srd, "s86", f"s{self.sSAB}")
        I(f"s_add_u32 s86, s93, s4\ns_add_u32 s86, s86, {64*2688*f0}\ns_mov_b32 s87, {64*2688}")
        lane(4, self.S_C, "s86", "s87")
        I("s_add_u32 s86, s90, s3")
        lane(5, self.S_A, "s86", f"s{self.sSAB}")
        I(f"s_cmp_lg_u32 s{self.sISV}, 0\ns_cselect_b32 s86, s90, s94\ns_add_u32 s86, s86, s3")
        lane(6, self.S_B, "s86", f"s{self.sSAB}")
        I(f"s_mul_i32 s86, s5, 49\ns_lshr_b32 s6, s86, 4\ns_lshr_b32 s86, s86, 2\ns_min_u32 s86, s86, {12544-14}\ns_lshl_b32 s86, s86, 7\ns_movk_i32 s87, 0x100")
        lane(7, self.S_WD, "s86", "s87")
        I("s_add_u32 s86, s86, 0x80")
        lane(8, self.S_WD, "s86", "s87")
        I(f"s_min_u32 s86, s6, {3136-7}\ns_lshl_b32 s86, s86, 7")
        lane(9, self.S_WO, "s86", None)

    def pf2(self, k):
        I = self.I
        P = self.vPF
        mask = (0x1f if self.o.pf0 + k <= 6 else 0) | (0x3e0 if k <= 6 else 0)
        I(f"s_mov_b64 exec, {hex(mask)}")
        I(f"global_load_dword v{self.vT+12}, v[{P}:{P+1}], off", "pf")
        self.b.vm[-1] = (set(), "pf")
        I(f"s_mov_b64 exec, -1")
        if k < 6:
            I(f"v_add_co_u32 v{P}, vcc, v{P+2}, v{P}\nv_addc_co_u32 v{P+1}, vcc, 0, v{P+1}, vcc")

    def pf_batch(self, when):
        for spec in self.o.pfs:
            if len(spec) == 5:
                w, s0, s1, pb, fin = spec
                p0, p1, d0, d1 = 0, (7 if pb == 1 else pb), 0, (13 if fin else 0)
            else:
                w, s0, s1, p0, p1, d0, d1 = spec
            if w != when or self.o.coop != 1:
                continue
            mx = sum(3 << (2 * s_) for s_ in range(s0, s1))
            mc = sum(1 << (2 * s_) for s_ in range(s0, s1))
            mw = mc | sum(2 << (2 * s_) for s_ in range(p0, p1))
            P = self.vPF
            if mx:
                self.I(f"s_mov_b64 exec, {hex(mx)}")
                self.pf(P, self.S_X, "0")
            if mw:
                self.I(f"s_mov_b64 exec, {hex(mw)}")
                self.pf(P + 1, self.S_A, "0")
                self.pf(P + 2, self.S_B, "0")
                if mc:
                    self.pf(P + 3, self.S_C, "0")
            if d1 > d0:
                self.I(f"s_mov_b64 exec, {hex(sum(1 << l for l in range(d0, d1)))}")
                self.pf(P + 4, self.S_WD, "0")
                if d1 == 13:
                    self.I("s_mov_b64 exec, 0xf")
                    self.pf(P + 5, self.S_WO, "0")
            self.I("s_mov_b64 exec, -1")

    def xpf(self, h, l0=0, l1=None):
        nl = 25 if h == 2 else 49
        l1 = nl if l1 is None else min(l1, nl)
        m = sum(1 << l for l in range(l0, l1))
        self.I(f"s_mov_b32 exec_lo, {hex(m & 0xffffffff)}\ns_mov_b32 exec_hi, {hex(m >> 32)}")
        self.pf(self.vPF + 6 + h, self.S_WO if h == 2 else self.S_WD, "0")
        self.I("s_mov_b64 exec, -1")

    def record(self, fn):
        L = []
        real = self.I
        self.I = lambda t, tag=None: L.append(lambda: real(t, tag))
        fn()
        del self.I
        return L

    def dma_stageA(self, st):
        I = self.I
        base = (st % 4) * SLOT
        tag = f"st{st}"
        L = []
        L.append(lambda: I(f"s_add_u32 m0, s{self.sM0}, {base}"))
        for bq in range(4):
            L.append(lambda bq=bq: I(f"buffer_load_dwordx4 v{self.vXD+bq}, s[{self.S_X}:{self.S_X+3}], s{self.sX} offen offset:{1024*bq}{' nt' if 'x' in self.o.nt else ''} lds", tag))
        prev = lambda: I(f"s_add_u32 s{self.sX}, s{self.sX}, 0x80")
        for seg, (srd, so, stp) in enumerate(((self.S_A, self.sA, self.sSAB), (self.S_B, self.sB, self.sSAB), (self.S_C, self.sC, None))):
            L.append(lambda seg=seg: I(f"s_add_u32 m0, s{self.sM0}, {base + 4096 + 2048*seg}"))
            L.append(prev)
            for e in range(2):
                L.append(lambda seg=seg, e=e, srd=srd, so=so: I(f"buffer_load_dwordx4 v{self.vWD+2*(seg//2)+e}, s[{srd}:{srd+3}], s{so} offen offset:{1024*e}{' nt' if 'w' in self.o.nt else ''} lds", tag))
            prev = lambda so=so, stp=stp: I(f"s_add_u32 s{so}, s{so}, " + (f"s{stp}" if stp else str(64*2688)))
        L.append(prev)
        return L

    def dma_stageB(self, t):
        I = self.I
        base = PB_BASE[t]
        tag = f"st{7+t}"
        L = []
        prev = None
        if t == 0:
            prev = lambda: I(f"s_cmp_lg_u32 s{self.sISV}, 0\ns_cselect_b32 s{self.S_B+2}, 0, s{self.S_B+2}")
        for seg, (srd, so) in enumerate(((self.S_A, self.sA2), (self.S_B, self.sB2))):
            L.append(lambda seg=seg: I(f"s_add_u32 m0, s{self.sM0B}, {base + 2048*seg}"))
            if prev:
                L.append(prev)
            for e in range(2):
                L.append(lambda seg=seg, e=e, srd=srd, so=so: I(f"buffer_load_dwordx4 v{self.vWD+2*(seg//2)+e}, s[{srd}:{srd+3}], s{so} offen offset:{1024*e}{' nt' if 'w' in self.o.nt else ''} lds", tag))
            prev = lambda so=so: I(f"s_add_u32 s{so}, s{so}, s{self.sSAB}")
        L.append(prev)
        return L

    TA = [(2, 0), (2, 1), (0, 0), (0, 1), (1, 0), (1, 1)]
    PD = 5

    def wslot(self, f):
        return self.WF + 4 * (f % 8)

    def rd_frag(self, f):
        if f < 84:
            S, t = divmod(f, 6)
            seg, u = self.TA[t]
            base, c = self.vWA, ((S // 2) % 4) * SLOT + 2 * (S % 2) * CHUNK + 4096 + 2048 * seg
        else:
            S, t = divmod(f - 84, 4)
            seg, u = divmod(t, 2)
            base, c = self.vWB, PB_BASE[S // 2] + 2 * (S % 2) * 4096 + 2048 * seg
        r = self.wslot(f)
        out = []
        for e in range(2):
            v, imm = self.lds(base, 2, u, c + 512 * e)
            out.append(lambda r=r, e=e, v=v, imm=imm: self.I(f"ds_read_b64_tr_b16 a[{r+2*e}:{r+2*e+1}], {v} offset:{imm}"))
        return out

    def rd_x(self, S):
        out = []
        for mt in range(4):
            v, imm = self.lds(self.vXR, 2, S % 2, ((S // 2) % 4) * SLOT + (mt >> 1) * CHUNK + (mt & 1) * 2048)
            out.append(lambda mt=mt, v=v, imm=imm: self.I(f"ds_read_b128 {self.xf(mt, S)}, {v} offset:{imm}"))
        return out

    def m16(self, d, a, bb, first):
        return f"v_mfma_f32_16x16x32_bf16 v[{d}:{d+3}], {a}, {bb}, " + ("0" if first else f"v[{d}:{d+3}]")

    def accA(self, t, mt):
        seg, u = self.TA[t]
        return self.ACC_A + 8 * mt + 4 * u if seg == 2 else self.ACC_A + 32 + 16 * mt + 8 * seg + 4 * u

    def wait_regs(self, regs):
        b = self.b
        need = None
        for i, (d, _t) in enumerate(b.lg):
            if d & regs:
                need = len(b.lg) - 1 - i
        if need is not None:
            b.waitcnt(lg=need)

    def place_reads(self, fixed, pre, f0, f1, g_of, last_of_group):
        for f in range(f0, f1):
            g = g_of(f - self.PD)
            if last_of_group(f):
                g -= 2
            for e, rd in enumerate(self.rd_frag(f)):
                fixed.setdefault(g + e, []).append(rd)

    def mfma(self, d, a, bb, first):
        c = "0" if first else f"v[{d}:{d+15}]"
        self.I(f"v_mfma_f32_32x32x16_bf16 v[{d}:{d+15}], {a}, {bb}, {c}")

    def dbg_load(self, tag=None):
        self.I(f"global_load_dword v{self.vPOLL}, v{self.vZ}, s[{self.pDBG}:{self.pDBG+1}] sc1", tag)

    def pf(self, v, srd, so):
        self.I(f"buffer_load_dword v{self.vT+12}, v{v}, s[{srd}:{srd+3}], {so} offen{' nt' if 'p' in self.o.nt else ''}", "pf")
        self.b.vm[-1] = (set(), "pf")

    def passA(self):
        I, b, o = self.I, self.b, self.o
        b.wait_tags(("st0",))
        self.ts()
        if o.thr:
            I(f"s_getreg_b32 s86, hwreg(HW_REG_XCC_ID, 0, 4)\ns_and_b32 s87, s2, 7\ns_cmp_lg_u32 s86, s87\ns_cbranch_scc0 L_xok")
            kv = list(b.vm)
            I(f"v_mov_b32 v34, 1\nglobal_store_dword v{self.vZ}, v34, s[{self.pDBG}:{self.pDBG+1}] offset:128 sc1")
            b.vm = kv
            b.label("L_xok")
        I(f"s_or_b32 s86, s2, s{self.sWV}\ns_cmp_eq_u32 s86, 0\ns_cbranch_scc0 L_notag")
        snap_vm = list(b.vm)
        I(f"v_add_u32 v34, 2, v{self.vPOLL}\nv_or_b32 v34, 1, v34\ns_mov_b32 s86, {E_OFF}")
        if o.thr:
            I(f"v_readfirstlane_b32 s87, v{self.vPOLL}\ns_sub_u32 s88, s98, s87\ns_cmp_lt_u32 s88, 0x8000000\ns_cselect_b32 s88, 1, 0")
            I(f"s_cmp_eq_u32 s87, 0xfbfbfbfb\ns_cselect_b32 s89, {o.thrpat}, {1 - o.thrpat} ^ 1 ^ 1\ns_or_b32 s88, s88, s89\nv_mov_b32 v35, s88".replace(f"{1 - o.thrpat} ^ 1 ^ 1", str(1 - o.thrpat)))
            I(f"global_store_dword v{self.vZ}, v35, s[{self.pDBG}:{self.pDBG+1}] offset:132 sc1")
            I("v_mov_b32 v34, s98\nv_or_b32 v34, 1, v34")
        I(f"s_mov_b64 exec, 1")
        I(f"buffer_store_dword v34, v{self.vZ}, s[{self.S_WS}:{self.S_WS+3}], s86 offen sc1")
        I(f"global_store_dword v{self.vZ}, v34, s[{self.pDBG}:{self.pDBG+1}] sc1")
        I(f"s_mov_b64 exec, -1")
        b.vm = [(set(), t) if t == "E" else (d, t) for d, t in snap_vm]
        b.label("L_notag")
        I("s_barrier")
        first = self.rd_frag(0) + self.rd_x(0)
        for f in range(1, self.PD):
            first += self.rd_frag(f)
        for f in first:
            f()
        def stream(v):
            if v <= 6:
                return self.dma_stageA(v)
            if v == 7:
                return self.dma_stageB(0) + self.dma_stageB(1)
            if v == 8:
                return self.dma_stageB(2) + self.dma_stageB(3)
            return []
        mf, fixed, pre = [], {}, {}
        vm_items, early = [], {}
        PD = self.PD
        for f in range(84):
            S, t = divmod(f, 6)
            r = self.wslot(f)
            for mt in range(4):
                mf.append(self.m16(self.accA(t, mt), f"a[{r}:{r+3}]", self.xf(mt, S), S == 0))
            if o.wA and f % 2 == 0 and f > 0:
                nx = set(f"a{self.wslot(f+1)+i}" for i in range(4))
                if t == 0:
                    nx |= set(f"a{16*S+i}" for i in range(16))
                pre.setdefault(4 * f, []).append(lambda nx=nx: self.wait_regs(nx))
        for st in range(7):
            def bar(st=st):
                tags = (f"st{st+1}",) if st < 6 else ("st7", "st8")
                b.wait_tags(tags, lg_all=True)
                I("s_barrier")
            fixed.setdefault(4 * (12 * (st + 1) - PD), []).append(bar)
            v = st + o.lead
            early[len(vm_items)] = 48 * st
            vm_items += stream(v)
        self.place_reads(fixed, pre, PD, 84 + PD, lambda f: 4 * f, lambda f: f % 12 == 11 and f < 84)
        for S in range(1, 14):
            for k, rd in enumerate(self.rd_x(S)):
                fixed.setdefault(4 * (6 * S - PD + k // 2) + 2 + k % 2, []).append(rd)
        for n in range(28):
            g0 = 12 * n
            if n in o.As:
                pre.setdefault(g0, []).insert(0, self.ts)
            if any(p[0] == 10 + n for p in o.pfs):
                fixed.setdefault(g0 + o.pfgap, []).append(lambda n=n: self.pf_batch(10 + n))
            if n == o.tagn:
                fixed.setdefault(g0 + 6, []).append(lambda: self.dbg_load("tagrd"))
        self.ablate("A")
        self.sched(mf, fixed, [Stream(vm_items, 0, 328, ahead=2, maxlag=3, early=early, prio=1),
                               Stream(self.setup, 0, 320, ahead=3, maxlag=4)], pre=pre, cap=o.capA)
        b.drop = ()
        I(f"s_cmp_lg_u32 s{self.sFIN}, 0\ns_cselect_b32 s{self.S_WD+2}, s{self.S_WD+2}, 0\ns_cselect_b32 s{self.S_WO+2}, s{self.S_WO+2}, 0")
        rest = []
        for v in range(7 + o.lead, 9):
            rest += stream(v)
        self.pend = rest + self.dma_stageB(4) + self.dma_stageB(5) + self.dma_stageB(6)

    def get_tag(self):
        I, b = self.I, self.b
        u = self.uid()
        I(f"v_readfirstlane_b32 s{self.sTAG}, v{self.vPOLL}")
        I(f"s_cmp_lg_u32 s{self.sTAG}, 0\ns_cbranch_scc1 L_gottag{u}")
        keep_vm, keep_lg = list(b.vm), list(b.lg)
        I(f"s_mov_b32 s{self.sSPIN}, 0")
        b.label(f"L_tagspin{u}")
        self.dbg_load()
        I(f"s_add_u32 s{self.sSPIN}, s{self.sSPIN}, 1\ns_cmp_gt_u32 s{self.sSPIN}, {SPIN_MAX}\ns_cbranch_scc1 L_exit")
        I(f"v_readfirstlane_b32 s{self.sTAG}, v{self.vPOLL}")
        I(f"s_cmp_lg_u32 s{self.sTAG}, 0\ns_cbranch_scc0 L_tagspin{u}")
        b.vm, b.lg = keep_vm, keep_lg
        b.label(f"L_gottag{u}")

    def cvt_store(self, r, so, imm, tag, voff=None, swap=False):
        L = []
        for i in range(4):
            L.append(lambda i=i: self.I(f"v_cvt_pk_bf16_f32 v{r+i}, v{r+2*i}, v{r+2*i+1}"))
        if swap:
            for op in ("v_permlane32_swap_b32", "v_permlane16_swap_b32"):
                for i in range(2):
                    L.append(lambda i=i, op=op: self.I(f"{op} v{r+i}, v{r+2+i}"))
        v = (self.vSQ if swap else self.vL16) if voff is None else voff
        L.append(lambda: self.I(f"buffer_store_dwordx4 v[{r}:{r+3}], v{v}, s[{self.S_WS}:{self.S_WS+3}], s{so} offen offset:{imm} sc1", tag))
        return L

    def sigmoid_tile(self, r, so, imm, tag, pk):
        I = self.I
        L = []
        if pk:
            for i in range(0, 8, 2):
                L.append(lambda i=i: I(f"v_pk_mul_f32 v[{r+i}:{r+i+1}], v[{r+i}:{r+i+1}], s[{self.sNL2E}:{self.sNL2E+1}] op_sel_hi:[1,0]"))
        else:
            for i in range(8):
                L.append(lambda i=i: I(f"v_mul_f32 v{r+i}, s{self.sNL2E}, v{r+i}"))
        for i in range(8):
            L.append(lambda i=i: I(f"v_exp_f32 v{r+i}, v{r+i}"))
        if pk:
            for i in range(0, 8, 2):
                L.append(lambda i=i: I(f"v_pk_add_f32 v[{r+i}:{r+i+1}], v[{r+i}:{r+i+1}], 1.0 op_sel_hi:[1,0]"))
        else:
            for i in range(8):
                L.append(lambda i=i: I(f"v_add_f32 v{r+i}, 1.0, v{r+i}"))
        for i in range(8):
            L.append(lambda i=i: I(f"v_rcp_f32 v{r+i}, v{r+i}"))
        if pk:
            for i in range(0, 8, 2):
                L.append(lambda i=i: I(f"v_pk_mul_f32 v[{r+i}:{r+i+1}], v[{r+i}:{r+i+1}], v[{r+8+i}:{r+9+i}]"))
        else:
            for i in range(8):
                L.append(lambda i=i: I(f"v_mul_f32 v{r+i}, v{r+i}, v{r+8+i}"))
        return L + self.cvt_store(r, so, imm, tag, swap=True)

    def flag_store(self, phase):
        I = self.I
        lab = f"L_nofl{self.uid()}"
        I(f"s_cmp_eq_u32 s{self.sWV}, 0\ns_cbranch_scc0 {lab}")
        keep = list(self.b.vm)
        I(f"v_mov_b32 v{self.vT}, s{self.sTAG}\ns_mov_b64 exec, 1")
        I(f"s_movk_i32 s86, {4096*phase}")
        I(f"buffer_store_dword v{self.vT}, v{self.vFL}, s[{self.S_WS}:{self.S_WS+3}], s86 offen sc1")
        I("s_mov_b64 exec, -1")
        self.b.vm = keep
        self.b.label(lab)

    _uid = 0

    def uid(self):
        self._uid += 1
        return self._uid

    @staticmethod
    def weave(main, side, start=0.0, end=1.0):
        out = []
        n = len(main)
        a, e = int(start * n), max(int(end * n), int(start * n) + 1)
        k = 0
        for i, f in enumerate(main):
            out.append(f)
            if i >= a:
                want = min(len(side), math.ceil(len(side) * (i - a + 1) / (e - a)))
                while k < want:
                    out.append(side[k]); k += 1
        out += side[k:]
        return out

    def passB_GU(self):
        I, b, o = self.I, self.b, self.o
        qk, epi = [], []
        for mt in range(4):
            qk += self.cvt_store(self.ACC_A + 8 * mt, (self.sQ0, self.sQ1)[mt >> 1], 256 * (mt & 1), "qk", swap=True)
        hst = []
        for mt in range(4):
            tl = self.sigmoid_tile(self.ACC_A + 32 + 16 * mt, (self.sH0, self.sH1)[mt >> 1], 256 * (mt & 1), "h", o.pkB)
            epi += tl[:-1]
            hst.append(tl[-1])
        epi = qk + epi + self.att_masks()
        mf, fixed, pre = [], {}, {}
        vm, early = list(self.pend), {}
        for k in range(len(vm)):
            early[k] = int(2 * (o.p0 + k * o.ppace))

        def add(items, gap):
            early[len(vm)] = gap
            vm.extend(items)
        for s_ in range(8):
            add(self.fin_dma(s_), int(8 * (o.w0 + s_ * o.wpace) + 2))
        late = []
        for s_ in range(8, 8 + o.nB2):
            late.append((int(8 * (o.w0 + (s_ - 8) * o.wpace + o.wlat + 1.5)), self.fin_dma(s_)))
        rds, rearly = [], {}
        for s_ in range(8):
            rearly[len(rds)] = int(8 * (o.w0 + s_ * o.wpace + o.wlat))
            rds += self.fin_rdw(s_)
        late.append((8 * o.kpoll + 4, [lambda: self.poll_issue(self.vAP, self.vPOLL)]))
        late.append((8 * o.kchk, [lambda: self.poll_check(self.vAP, self.vPOLL, self.sMSK)] + self.record(self.att_loads_K)
                     + [lambda: self.poll_issue(self.vAP, self.vPOLL)]))
        for gap, items in sorted(late, key=lambda x: x[0]):
            add(items, gap)
        PD = self.PD
        for k in range(56):
            S, t = divmod(k, 4)
            r = self.wslot(84 + k)
            for mt in range(4):
                mf.append(self.m16(self.ACC_B + 16 * mt + 4 * t, f"a[{r}:{r+3}]", self.xf(mt, S), S == 0))
            if o.wA and k % 2 == 0:
                nx = set(f"a{self.wslot(84+k+1)+i}" for i in range(4))
                pre.setdefault(4 * k, []).append(lambda nx=nx: self.wait_regs(nx))
        fixed.setdefault(4 * (16 - PD), []).append(lambda: (b.wait_tags(("st9", "st10"), lg_all=True), I("s_barrier")))
        fixed.setdefault(4 * (32 - PD), []).append(lambda: (b.wait_tags(("st11", "st12", "st13", "qk"), lg_all=True), I("s_barrier")))
        fixed.setdefault(8 * o.fl0, []).append(lambda: (b.wait_tags(("qk",)), I("s_barrier"), self.flag_store(0)))
        self.place_reads(fixed, pre, 84 + PD, 140, lambda f: 4 * (f - 84), lambda f: f - 84 in (15, 31))
        for n in o.bs:
            pre.setdefault(8 * n, []).insert(0, self.ts)
        fixed.setdefault(30, []).append(self.get_tag)
        self.ablate("B")
        self.sched(mf, fixed, [Stream(vm, 0, 220, ahead=100, maxlag=100, early=early, prio=1, starve=4),
                               Stream(rds, 8 * (o.w0 + o.wlat), 220, ahead=4, maxlag=4, early=rearly),
                               Stream(epi, 3, 8 * o.epi_end - 1, ahead=o.epi_ahead, maxlag=o.epi_lag)], pre=pre, cap=o.capB)
        b.drop = ()
        self.ts()
        T = [self.sigmoid_tile(self.ACC_B + 16 * mt, (self.sH0, self.sH1)[mt >> 1], 256 * (mt & 1), "h", o.pk) for mt in range(4)]
        bump = lambda: I(f"s_add_u32 s{self.sH0}, s{self.sH0}, 0x1000\ns_add_u32 s{self.sH1}, s{self.sH1}, 0x1000")
        self.postB([T[0][:-1], T[1][:-1], T[2], T[3]], hst[:3] + [lambda: (hst[3](), bump())] + [T[0][-1], T[1][-1]])

    NRD = 8

    def postB(self, T, hst):
        I, b, o = self.I, self.b, self.o
        KF = self.KF
        rd = lambda a, e: [f for s_ in range(a, e) for f in self.fin_rdw(s_)]
        dm = lambda a, e: [f for s_ in range(a, e) for f in self.fin_dma(s_)]
        d0 = 8 + o.nB2
        for f in self.weave(T[0] + T[1], dm(d0, d0 + o.nb0), 0.05, 0.9):
            f()
        self.poll_check(self.vAP, self.vPOLL, self.sMSK2)
        self.att_loads_V()
        self.ts()
        b.wait_tags(("K",))
        I(f"ds_write_b64 v{self.vP+6}, v[{self.vP}:{self.vP+1}]")
        I(f"ds_write_b64 v{self.vP+7}, v[{self.vP+2}:{self.vP+3}] offset:4096")
        q = self.vQ
        I(f"v_bfi_b32 v{q}, v{self.vMA}, v{q}, v{self.vP+4}\nv_and_b32 v{q+1}, v{self.vMA}, v{q+1}")
        I(f"v_bfi_b32 v{q+6}, v{self.vMB}, v{q+6}, v{self.vP+4}\nv_and_b32 v{q+7}, v{self.vMB}, v{q+7}")
        b.waitcnt(lg=0)
        I("s_barrier")
        self.ts()
        order = [8, 0, 7, 6, 5, 4, 3, 2, 1]

        def rdk(n):
            for s_ in range(2):
                r = self.kf(n % 3, 4 * s_)
                I(f"ds_read_b128 v[{r}:{r+3}], v{self.vKA} offset:{2048*order[n] + 1024*s_}")
        rdk(0)
        rdk(1)
        m = self.vM
        mx = []

        def maxops(n):
            s0 = self.S(order[n])
            return [(lambda k=k: I(f"v_max_f32 v{m}, v{s0}, v{s0+1}" if (n == 0 and k == 0) else f"v_max3_f32 v{m}, v{m}, v{s0+k}, v{s0+k+1}")) for k in range(0, 16, 2)]
        vs = list(T[2][:-1]) + list(T[3][:-1])
        KH = 13
        bg = dm(d0 + o.nb0, d0 + o.nb0 + o.nbq)
        self.bg_rest = d0 + o.nb0 + o.nbq
        self.nold = d0 + o.nb0
        for k in range(18):
            n, half = divmod(k, 2)
            d = self.S(order[n])
            r = self.kf(n % 3, 4 * half)
            c = f"v[{d}:{d+15}]" if (half or order[n] in (0, 8)) else "0"
            if order[n] == 1:
                assert not vs
            if half == 0 and 1 <= n <= 6 and hst:
                hst[n - 1]()
            I(f"v_mfma_f32_32x32x16_bf16 v[{d}:{d+15}], v[{r}:{r+3}], v[{q+4*half}:{q+4*half+3}], {c}")
            if half == 0 and n + 2 < 9:
                rdk(n + 2)
            if half == 1 and n >= 1:
                mx += maxops(n - 1)
            nv = math.ceil(len(vs) / (KH - k + 1)) if k <= KH else 0
            for _ in range(nv):
                vs.pop(0)()
            if k == KH and T[2]:
                T[2][-1]()
            if k == KH + 2:
                T[3][-1]()
            for _ in range(math.ceil(len(bg) / (18 - k))):
                bg.pop(0)()
            for _ in range(max(0, 5 - nv) if k < 17 else len(mx)):
                if mx:
                    mx.pop(0)()
        self.mx_rest = maxops(8)

    def passB_V(self):
        I, b, o = self.I, self.b, self.o
        b.drop = (lambda i: i.kind == "vmem" and f"s[{self.S_B}:{self.S_B+3}]" in i.text,)
        for f in list(self.pend):
            f()
        b.drop = ()
        self.srd(self.S_C, f"s{self.pGW}", f"s{self.pGW+1}", 896)
        I(f"s_add_u32 m0, s{self.sM0B}, {GW_LDS}")
        I(f"buffer_load_dwordx4 v{self.vL16}, s[{self.S_C}:{self.S_C+3}], 0 offen lds", "gw")
        I(f"s_sub_u32 s{self.sT1}, s{self.sQ0}, 0x2000\ns_sub_u32 s{self.sT2}, s{self.sQ1}, 0x2000")
        self.get_tag()
        epi = []
        for mt in range(4):
            epi += self.cvt_store(self.ACC_A + 8 * mt, (self.sQ0, self.sQ1)[mt >> 1], 256 * (mt & 1), "qk", swap=True)
        for mt in range(4):
            r, so = self.ACC_A + 32 + 16 * mt, (self.sT1, self.sT2)[mt >> 1]
            epi += self.cvt_store(r, so, 256 * (mt & 1), "qk", swap=True) + self.cvt_store(r + 8, so, 256 * (mt & 1), "qk", voff=self.vSQ + 1, swap=True)
        I(f"s_and_b32 s88, s{self.sWV}, 1\ns_sub_u32 s89, s{self.sJ}, 14\ns_xor_b32 s88, s88, s89\ns_lshl_b32 s88, s88, 6")
        for i in range(6):
            I(f"v_xor_b32 v{self.vWB+i}, s88, v{self.vWB+i}")
        I(f"s_lshl_b32 s88, s{self.sRB}, 2\ns_add_u32 s88, s88, s{self.sWV}")
        I(f"s_mul_i32 s88, s88, {QKV_MT}\ns_lshl_b32 s89, s89, 11\ns_add_u32 s88, s88, s89")
        I(f"s_add_u32 s{self.sT3}, s88, {8*17*512}")
        I(f"v_and_b32 v{self.vT+3}, 0x30, v0")
        I(f"s_add_u32 s88, s{self.sM0B}, {GW_LDS}\nv_add_u32 v{self.vT+3}, s88, v{self.vT+3}")
        I(f"v_and_b32 v{self.vT+4}, 31, v0\nv_lshlrev_b32 v{self.vT+4}, 2, v{self.vT+4}")
        D = self.ACC_B
        I(f"s_bitcmp1_b32 s{self.sWV}, 0\ns_cbranch_scc1 L_v_wc1")
        snap = b.snapshot()
        for wc in range(2):
            if wc == 1:
                b.label("L_v_wc1")
                b.restore(snap)
            e = list(epi)

            def rdv(k):
                S, u = divmod(k, 2)
                r = self.WF + 4 * (k % 8)
                for e_ in range(2):
                    v, imm = self.lds(self.vWB, 2, u, PB_BASE[S // 2] + 2 * (S % 2) * 4096 + 512 * e_)
                    I(f"ds_read_b64_tr_b16 a[{r+2*e_}:{r+2*e_+1}], {v} offset:{imm}")
            PD = 5
            b.waitcnt(lg=0)
            for k in range(PD):
                rdv(k)
            for k in range(28):
                if k + PD == 8:
                    b.wait_tags(("st9", "st10"), lg_all=True)
                    I("s_barrier")
                if k + PD == 16:
                    b.wait_tags(("st11", "st12", "st13"))
                    I("s_barrier")
                if k + PD < 28:
                    rdv(k + PD)
                r = self.WF + 4 * (k % 8)
                S, u = divmod(k, 2)
                for m2 in range(2):
                    I(self.m16(D + 8 * m2 + 4 * u, f"a[{r}:{r+3}]", self.xf(2 * wc + m2, S), S == 0))
                    for _ in range(2):
                        if e:
                            e.pop(0)()
            assert not e
            for f in self.cvt_store(D, self.sT3, 0, "qk", swap=True) + self.cvt_store(D + 8, self.sT3, 256, "qk", swap=True):
                f()
            if o.vs:
                nts_keep = self.nts
                self.ts()
                self.nts = nts_keep + (1 if wc == 1 else 0)
            b.wait_tags(("gw",))
            rdg = lambda n: I(f"ds_read_b128 a[{self.WF+4*(n%8)}:{self.WF+4*(n%8)+3}], v{self.vT+3} offset:{64*n}")
            for n in range(PD):
                rdg(n)
            mk = self.att_masks()
            for n in range(14):
                if n + PD < 14:
                    rdg(n + PD)
                r = self.WF + 4 * (n % 8)
                for m2 in range(2):
                    I(self.m16(D + 16 + 4 * m2, f"a[{r}:{r+3}]", self.xf(2 * wc + m2, n), n == 0))
                    for _ in range(2):
                        if mk:
                            mk.pop(0)()
            assert not mk
            I(f"v_and_b32 v{self.vT+5}, 16, v0\nv_cmp_eq_u32 vcc, 0, v{self.vT+5}\nv_cndmask_b32 v{self.vT+5}, v{D+20}, v{D+16}, vcc")
            if wc == 0:
                I("s_branch L_v_done")
        b.label("L_v_done")
        b.wait_tags(("qk",), lg_all=True)
        I("s_barrier")
        self.flag_store(0)
        if o.vs:
            self.ts()
        for s_ in range(8):
            for f in self.fin_dma(s_):
                f()
        self.poll_issue(self.vAP, self.vPOLL)
        for s_ in range(8):
            for f in self.fin_rdw(s_):
                f()
        for s_ in range(8, 8 + o.nB2):
            for f in self.fin_dma(s_):
                f()
        self.poll_check(self.vAP, self.vPOLL, self.sMSK)
        self.att_loads_K()
        self.poll_issue(self.vAP, self.vPOLL)
        for _ in o.bs[(2 if o.vs else 0):]:
            self.ts()
        self.ts()
        self.postB([[], [], [], [lambda: I(f"buffer_store_dword v{self.vT+5}, v{self.vT+4}, s[{self.S_WS}:{self.S_WS+3}], s{self.sZO} offen sc1", "h")]], [])

    def poll_setup_att(self):
        I = self.I
        v, t = self.vAP, self.vT
        I(f"v_lshrrev_b32 v{v}, 4, v0\nv_add_u32 v{v}, s{self.sRB}, v{v}\nv_subrev_u32 v{v}, 2, v{v}\nv_max_i32 v{v}, 0, v{v}")
        I(f"v_min_u32 v{v}, 15, v{v}\nv_lshlrev_b32 v{v}, 8, v{v}\nv_and_b32 v{t}, 15, v0\nv_lshl_add_u32 v{v}, v{t}, 2, v{v}")
        I(f"v_add_u32 v{v}, {FL_OFF}, v{v}")
        I(f"s_mul_i32 s86, s{self.sJ}, 28\ns_add_u32 s87, s86, 27\ns_lshr_b32 s86, s86, 6\ns_lshr_b32 s87, s87, 6")
        I("s_lshl_b32 s88, 1, s86\ns_lshl_b32 s89, 1, s87\ns_or_b32 s88, s88, s89")
        I("s_lshl_b32 s89, s88, 7")
        I(f"s_mul_i32 s{self.sMSK}, s89, 0x10001\ns_or_b32 s{self.sMSK+1}, s88, s89")
        I("s_cmp_le_u32 s86, 3\ns_cselect_b32 s90, 0x4000, 0\ns_cmp_ge_u32 s87, 3\ns_cselect_b32 s91, 0x8000, 0\ns_or_b32 s90, s90, s91")
        I(f"s_mul_i32 s{self.sMSK2}, s90, 0x10001\ns_mov_b32 s{self.sMSK2+1}, s90")

    def poll_issue(self, vaddr, vdst, soff="0"):
        self.I(f"buffer_load_dword v{vdst}, v{vaddr}, s[{self.S_WS}:{self.S_WS+3}], {soff} offen sc1", "poll")

    def poll_check(self, vaddr, vdst, smask, soff="0"):
        I, b = self.I, self.b
        u = self.uid()
        self.nchk = getattr(self, "nchk", 0)
        kind = {self.sMSK2: "V"}.get(smask, "K" if vaddr == self.vAP else ("H" if soff == "0" else "O"))
        if "Gno" + kind in self.o.abl.split(","):
            return
        I(f"v_cmp_ne_u32 vcc, s{self.sTAG}, v{vdst}")
        I(f"s_and_b64 vcc, vcc, s[{smask}:{smask+1}]\ns_cbranch_scc0 L_pok{u}")
        keep_vm, keep_lg = list(b.vm), list(b.lg)
        I(f"s_mov_b32 s{self.sSPIN}, 0")
        b.label(f"L_psp{u}")
        if self.o.slp:
            I(f"s_sleep {self.o.slp}")
        I(f"buffer_load_dword v{vdst}, v{vaddr}, s[{self.S_WS}:{self.S_WS+3}], {soff} offen sc1")
        I(f"s_add_u32 s{self.sSPIN}, s{self.sSPIN}, 1\ns_cmp_gt_u32 s{self.sSPIN}, {SPIN_MAX}\ns_cbranch_scc1 L_exit")
        I(f"v_cmp_ne_u32 vcc, s{self.sTAG}, v{vdst}")
        I(f"s_and_b64 vcc, vcc, s[{smask}:{smask+1}]\ns_cbranch_scc1 L_psp{u}")
        b.vm, b.lg = keep_vm, keep_lg
        b.label(f"L_pok{u}")

    def S(self, i):
        return self.SREG[i]

    def att_setup(self):
        I = self.I
        h = self.sJ
        I(f"s_and_b32 s86, s{h}, 1\ns_sub_u32 s{self.sPAR}, 0, s86\ns_mov_b32 s{self.sPAR+1}, s{self.sPAR}")
        I(f"s_mul_i32 s87, s{h}, 7\ns_lshr_b32 s87, s87, 1\ns_lshl_b32 s87, s87, 9")
        I(f"s_lshl_b32 s88, s{self.sRB}, 2\ns_mul_i32 s89, s{self.sWV}, 3\ns_add_u32 s89, s89, s88\ns_sub_u32 s89, s89, 8")
        for i in range(3):
            I(f"s_add_u32 s90, s89, {i}\ns_max_i32 s90, s90, 0\ns_mul_i32 s90, s90, {QKV_MT}\ns_add_u32 s90, s90, s87")
            I(f"s_add_u32 s{self.sKT+i}, s90, {56*512}")
        v = self.vT
        I(f"v_lshrrev_b32 v{v}, 5, v0\nv_add_u32 v{v+1}, s89, v{v}\nv_mov_b32 v{v+2}, 0xf149")
        I(f"v_cmp_gt_i32 vcc, 0, v{v+1}\nv_cndmask_b32 v{self.vP}, 0, v{v+2}, vcc\nv_mov_b32 v{self.vP+1}, 0")
        I(f"s_add_u32 s90, s89, 2\ns_cmp_lt_i32 s90, 0\ns_cselect_b32 s90, 0xf149, 0\nv_mov_b32 v{self.vP+2}, s90\nv_mov_b32 v{self.vP+3}, 0")
        I(f"v_mov_b32 v{self.vP+4}, 0x3f80\nv_mov_b32 v{self.vP+5}, 0")
        I(f"s_cmp_eq_u32 s86, 0\ns_cselect_b32 s90, {1536+8}, 0\ns_mul_i32 s91, s{self.sWV}, {3*2048}\ns_add_u32 s90, s90, s91\ns_add_u32 s90, s90, {KV_K}")
        I(f"v_and_b32 v{v+1}, 31, v0\nv_lshlrev_b32 v{v+1}, 4, v{v+1}\nv_add_u32 v{self.vP+7}, s90, v{v+1}\nv_lshl_add_u32 v{self.vP+6}, v{v}, 11, v{self.vP+7}")
        I(f"v_and_b32 v{v+1}, 31, v0\nv_lshlrev_b32 v{v+2}, 2, v{v}\nv_xor_b32 v{v+1}, v{v+1}, v{v+2}\nv_lshlrev_b32 v{v+1}, 4, v{v+1}")
        I(f"v_lshl_add_u32 v{self.vP+8}, v{v}, 9, v{v+1}\nv_xor_b32 v{self.vP+9}, 0x80, v{self.vP+8}")
        I(f"s_lshl_b32 s90, s{self.sWV}, 11\ns_add_u32 s91, s90, {KV_K}\nv_add_u32 v{self.vKA}, s91, v{self.vL16}")
        I(f"v_bfe_u32 v{v+1}, v0, 4, 1\nv_bfe_u32 v{v+2}, v0, 1, 1\nv_lshl_add_u32 v{v+1}, v{v+1}, 1, v{v+2}")
        I(f"v_xor_b32 v{v+2}, v{v}, v{v+1}\nv_lshlrev_b32 v{v+2}, 2, v{v+2}\nv_bfe_u32 v{v+3}, v0, 2, 2\nv_add_u32 v{v+2}, v{v+2}, v{v+3}")
        I(f"v_lshlrev_b32 v{v+2}, 4, v{v+2}\nv_lshl_add_u32 v{v+2}, v{v+1}, 9, v{v+2}\nv_and_b32 v{v+3}, 1, v0\nv_lshl_add_u32 v{v+2}, v{v+3}, 3, v{v+2}")
        I(f"s_add_u32 s91, s90, {KV_V}\nv_add_u32 v{self.vVA}, s91, v{v+2}\nv_xor_b32 v{self.vVA+1}, 0x80, v{self.vVA}")
        I(f"v_subrev_u32 v{v+1}, 1, v{v}\nv_and_b32 v{v+1}, s{self.sPAR}, v{v+1}\nv_not_b32 v{self.vMA}, v{v+1}")
        I(f"v_sub_u32 v{v+1}, 0, v{v}\ns_not_b32 s91, s{self.sPAR}\nv_and_b32 v{v+1}, s91, v{v+1}\nv_not_b32 v{self.vMB}, v{v+1}")
        I(f"s_add_u32 s88, s88, s{self.sWV}\ns_mul_i32 s90, s88, {QKV_MT}\ns_add_u32 s{self.sQO}, s90, s87")
        I(f"s_mul_i32 s90, s88, {HO_MT}\ns_lshl_b32 s91, s{h}, 11\ns_add_u32 s90, s90, s91\ns_add_u32 s{self.sOO}, s90, {HO_OFF + 112*1024}")
        I(f"s_lshl_b32 s90, s88, 7\ns_add_u32 s{self.sZO}, s90, {Z_OFF}")
        m = self.vM
        I(f"v_lshlrev_b32 v{m}, 2, v{v}\nv_and_b32 v{m+1}, 31, v0\nv_sub_u32 v{m}, v{m+1}, v{m}\nv_mov_b32 v{m+1}, {NEG}")

    def att_masks(self):
        L = []
        v = self.vM
        pair = lambda r: f"s[{88+2*(r&1)}:{89+2*(r&1)}]"
        def cmp_(r):
            key = 8 * (r >> 2) + (r & 3)
            return lambda: self.I(f"v_cmp_gt_i32 {pair(r)}, {key}, v{v}")
        L.append(cmp_(0))
        for r in range(16):
            if r < 15:
                L.append(cmp_(r + 1))
            if r > 0:
                L.append(lambda r=r: self.I(f"v_sub_f32 v{self.S(0)+r-1}, v{v+1}, v{self.S(8)+r-1}"))
            L.append(lambda r=r: self.I(f"v_cndmask_b32 v{self.S(8)+r}, 0, v{v+1}, {pair(r)}"))
        L.append(lambda: self.I(f"v_sub_f32 v{self.S(0)+15}, v{v+1}, v{self.S(8)+15}"))
        return L

    def att_loads_K(self):
        I = self.I
        ws = f"s[{self.S_WS}:{self.S_WS+3}]"
        I(f"s_mul_i32 s86, s{self.sWV}, {3*2048}")
        for i in range(3):
            I(f"s_add_u32 m0, s86, {KV_K + 2048*i}")
            if i < 2:
                I(f"buffer_load_dwordx4 v[{self.vQ+4*i}:{self.vQ+4*i+3}], v{self.vL16}, {ws}, s{self.sQO} offen offset:{1024*i} sc1", "K")
            for e in range(2):
                I(f"buffer_load_dwordx4 v{self.vL16}, {ws}, s{self.sKT+i} offen offset:{1024*e} sc1 lds", "K")

    def att_loads_V(self):
        I = self.I
        ws = f"s[{self.S_WS}:{self.S_WS+3}]"
        I(f"s_mul_i32 s86, s{self.sWV}, {3*2048}")
        for i in range(3):
            I(f"s_add_u32 m0, s86, {KV_V + 2048*i}\ns_add_u32 s87, s{self.sKT+i}, {56*512}")
            for e in range(2):
                I(f"buffer_load_dwordx4 v{self.vP+8+e}, {ws}, s87 offen offset:{1024*e} sc1 lds", "V")

    def attention(self):
        I, b, o = self.I, self.b, self.o
        KF = self.KF
        m = self.vM
        order = [8, 7, 6, 5, 4, 3, 2, 1, 0]
        b.wait_tags(("V",))
        I(f"ds_write_b64 v{self.vP+6}, v[{self.vP+4}:{self.vP+5}] offset:{KV_V - KV_K}")
        I(f"ds_write_b64 v{self.vP+7}, v[{self.vP+4}:{self.vP+5}] offset:{KV_V - KV_K + 4096}")
        for f in self.mx_rest:
            f()
        b.waitcnt(lg=0)
        I("s_barrier")

        def rdv(i, bs):
            L = []
            for s in range(2):
                for e in range(2):
                    r = self.kf(bs, 4 * s + 2 * e)
                    L.append(f"ds_read_b64_tr_b16 v[{r}:{r+1}], v{self.vVA+e} offset:{2048*i + 256*s}")
            return L
        for t in rdv(order[0], 0):
            I(t)
        I(f"v_mov_b32 v{m+1}, v{m}")
        I(f"v_permlane32_swap_b32 v{m}, v{m+1}")
        I(f"v_max_f32 v{m}, v{m}, v{m+1}")
        I(f"v_mul_f32 v{m}, s{self.sCS}, v{m}")
        I(f"s_mov_b32 s{self.sMSK}, 0x1ffff\ns_mov_b32 s{self.sMSK+1}, 0")
        self.ts()
        sched = {n: [] for n in range(9)}
        rd = lambda a, e: [f for s in range(a, e) for f in self.fin_rdw(s)]
        dm = lambda a, e: [f for s in range(a, e) for f in self.fin_dma(s)]
        pub = lambda: (b.wait_tags(("h",)), I("s_barrier"), self.flag_store(1))
        nd = self.bg_rest
        nr = 8
        per = math.ceil((28 - nd) / o.dtiles)
        issued = {s_: (-3 if s_ < self.nold else o.rd0 - 2) for s_ in range(nd)}
        for n in range(9):
            k = 0
            while nr < 28 and issued.get(nr, 99) + 2 <= n and (k < o.rdper or n >= 7):
                sched[n] += rd(nr, nr + 1)
                nr += 1
                k += 1
            k = 0
            while nd < 28 and k < per and (self.ring_prev(nd) is None or self.ring_prev(nd) < nr):
                sched[n] += dm(nd, nd + 1)
                issued[nd] = max(n, o.rd0 - 2)
                nd += 1
                k += 1
        assert nd == 28 and nr == 28, (nd, nr)
        self.wo_next = 28 + o.nwo
        for k in range(o.nwo):
            sched[o.wot + k * (7 - o.wot) // max(1, o.nwo)] += dm(28 + k, 29 + k)
        hl = [f for s in range(o.nh0) for f in self.fin_hload(s)]
        sched[7] += hl[:len(hl) // 2]
        sched[8] += hl[len(hl) // 2:]
        sched[o.hpub] = sched[o.hpub] + [pub]
        sched[o.hpoll] = sched[o.hpoll] + [lambda: self.poll_issue(self.vFA, self.vPOLL)]
        sched[7] = [self.hook_poll_check] + sched[7]
        O = self.vO
        prev = None
        for n, i in enumerate(order):
            if n in o.ss:
                self.ts()
            d = self.S(i)
            p = self.vP + 8 * (n % 2)
            L = []
            if o.pk:
                for k in range(0, 16, 2):
                    L.append(f"v_pk_fma_f32 v[{d+k}:{d+k+1}], v[{d+k}:{d+k+1}], s[{self.sNL2E}:{self.sCS}], v[{m}:{m+1}] op_sel:[0,1,0] op_sel_hi:[1,1,0] neg_lo:[0,0,1] neg_hi:[0,0,1]")
            else:
                for k in range(16):
                    L.append(f"v_fma_f32 v{d+k}, v{d+k}, s{self.sCS}, -v{m}")
            ex = [f"v_exp_f32 v{d+k}, v{d+k}" for k in range(16)]
            cv = [f"v_cvt_pk_bf16_f32 v{p+k}, v{d+2*k}, v{d+2*k+1}" for k in range(8)]
            seq = L + ex + cv
            vr = rdv(order[n + 1], (n + 1) % 2) if n + 1 < 9 else []
            main = []
            for k, t in enumerate(seq):
                main.append(lambda t=t: I(t))
                if prev is not None and k == 1:
                    main.append(lambda t=prev[0]: I(t))
                if prev is not None and k == 7:
                    main.append(lambda t=prev[1]: I(t))
                if k >= 10 and vr:
                    main.append(lambda t=vr.pop(0): I(t))
            for f in self.weave(main, sched[n], 0.0, 1.0):
                f()
            r = self.kf(n % 2)
            prev = (f"v_mfma_f32_32x32x16_bf16 v[{O}:{O+15}], v[{r}:{r+3}], v[{p}:{p+3}], " + ("0" if n == 0 else f"v[{O}:{O+15}]"),
                    f"v_mfma_f32_32x32x16_bf16 v[{O}:{O+15}], v[{r+4}:{r+7}], v[{p+4}:{p+7}], v[{O}:{O+15}]")
        I(prev[0])
        I(prev[1])
        t = self.vQ
        I(f"v_mul_f32 v{t}, s{self.sNL2E}, v{self.vZZ}\nv_exp_f32 v{t}, v{t}")
        z = self.vZZ + 1
        for a in range(2):
            I(f"v_mul_f32 v{z+a}, s{self.sNL2E}, v{z+a}\nv_exp_f32 v{z+a}, -v{z+a}")
        I(f"v_add_f32 v{t}, 1.0, v{t}")
        for a in range(2):
            I(f"v_add_f32 v{z+a}, 1.0, v{z+a}\nv_rcp_f32 v{z+a}, v{z+a}")
        I(f"v_cndmask_b32 v{t+1}, v{O+12}, v{O}, s[{self.sPAR}:{self.sPAR+1}]\nv_mov_b32 v{t+2}, v{t+1}")
        I(f"v_permlane32_swap_b32 v{t+1}, v{t+2}")
        I(f"v_cndmask_b32 v{t+1}, v{t+2}, v{t+1}, s[{self.sPAR}:{self.sPAR+1}]")
        I(f"v_mul_f32 v{t}, v{t}, v{t+1}\nv_rcp_f32 v{t}, v{t}")
        I(f"v_and_b32 v{t+1}, v{self.vMA}, v{t}\nv_and_b32 v{t+2}, v{self.vMB}, v{t}")
        for k in range(16):
            sc = t + 1 if k == 0 else (t + 2 if k == 12 else t)
            I(f"v_mul_f32 v{O+k}, v{O+k}, v{sc}")
        for f in self.cvt_store(O, self.sOO, 0, "o") + self.cvt_store(O + 8, self.sOO, 1024, "o"):
            f()

    def hook_poll_check(self):
        I = self.I
        self.poll_check(self.vFA, self.vPOLL, self.sMSK)
        v = self.vT
        I(f"v_and_b32 v{v}, 31, v0\nv_lshlrev_b32 v{v}, 2, v{v}")
        ws = f"s[{self.S_WS}:{self.S_WS+3}]"
        I(f"buffer_load_dword v{self.vZZ}, v{v}, {ws}, s{self.sZO} offen sc1", "z")
        I(f"buffer_load_dword v{self.vZZ+1}, v{v}, {ws}, s{self.sZF} offen sc1", "z")
        I(f"s_xor_b32 s{self.sZF}, s{self.sZF}, 0x80")
        I(f"buffer_load_dword v{self.vZZ+2}, v{v}, {ws}, s{self.sZF} offen sc1", "z")

    ENTRY = [(1, i) for i in range(8)] * 2 + [(0, i) for i in range(6)] + [(1, i) for i in range(6)] + [(0, i) for i in range(6)] + [(1, 6), (1, 7)]

    def ring_addr(self, step):
        hi, i = self.ENTRY[step]
        return hi, 2048 * i

    def ring_prev(self, step):
        for p in range(step - 1, -1, -1):
            if self.ENTRY[p] == self.ENTRY[step]:
                return p
        return None

    def final_setup(self):
        I = self.I
        v = self.vT
        I("s_lshr_b32 s86, s2, 3\ns_and_b32 s87, s2, 7\ns_mul_i32 s88, s86, 37\ns_lshr_b32 s88, s88, 8")
        I(f"s_mul_i32 s89, s88, 7\ns_sub_u32 s89, s86, s89\ns_cmp_lt_u32 s86, 28\ns_cselect_b32 s{self.sFIN}, 1, 0")
        I("s_min_u32 s88, s88, 3\ns_lshl_b32 s87, s87, 2\ns_add_u32 s87, s87, s88")
        I(f"s_lshr_b32 s90, s{self.sWV}, 1\ns_and_b32 s91, s{self.sWV}, 1")
        I(f"s_lshl_b32 s92, s88, 1\ns_add_u32 s92, s92, s89\ns_cmp_ge_u32 s92, 7\ns_cselect_b32 s93, 7, 0\ns_sub_u32 s94, s92, s93")
        if self.o.rot != 1:
            I({0: "s_mov_b32 s94, 0", 2: "s_mov_b32 s94, s89", 3: "s_lshl_b32 s94, s88, 1"}[self.o.rot])
        I(f"s_sub_u32 s{self.sWRAP}, 7, s94\ns_and_b32 s86, s89, {1 if self.o.rot in (1, 2) else 0}")
        I(f"s_mul_i32 s92, s{self.sWV}, {448*896}\ns_lshl_b32 s89, s89, 7\ns_add_u32 s{self.sFW}, s92, s89")
        I(f"s_mul_i32 s92, s94, {64*896}\ns_add_u32 s{self.sFW}, s{self.sFW}, s92")
        I(f"s_mul_i32 s92, s{self.sWV}, {112*896}\ns_add_u32 s{self.sFWO}, s92, s89\ns_mul_i32 s92, s86, {56*896}\ns_add_u32 s{self.sFWO}, s{self.sFWO}, s92")
        I(f"s_cmp_lg_u32 s86, 0\ns_mov_b32 s{self.sDWO}, {16*896}\ns_cselect_b32 s{self.sDWO}, {(-96*896) & 0xFFFFFFFF}, s{self.sDWO}")
        I(f"s_cmp_lg_u32 s86, 0\ns_movk_i32 s{self.sDHO}, 0x1000\ns_cselect_b32 s{self.sDHO}, 0xfffff000, s{self.sDHO}")
        I(f"s_mul_i32 s{self.sFM0}, s{self.sWV}, {12*K}\ns_add_u32 s{self.sFM0}, s{self.sFM0}, {RING_LO}")
        I(f"s_lshl_b32 s{self.sFM1}, s{self.sWV}, 14\ns_add_u32 s{self.sFM1}, s{self.sFM1}, {RING_HI}")
        I(f"v_lshrrev_b32 v{v}, 3, v0\nv_and_b32 v{v+1}, 2, v{v}\nv_lshlrev_b32 v{v+1}, 1, v{v+1}\nv_and_b32 v{v+2}, 7, v0\nv_xor_b32 v{v+1}, v{v+1}, v{v+2}")
        I(f"v_mul_u32_u24 v{v}, 0x380, v{v}\nv_lshl_add_u32 v{self.vFD}, v{v+1}, 4, v{v}\nv_add_u32 v{self.vFD+1}, {8*896-1024}, v{self.vFD}")
        I(f"v_bfe_u32 v{v}, v0, 2, 2\nv_lshrrev_b32 v{v+1}, 5, v0")
        I(f"v_and_b32 v{v+2}, 1, v0\nv_lshlrev_b32 v{v+2}, 4, v{v+2}\nv_bfe_u32 v{v+3}, v0, 1, 1\nv_lshl_add_u32 v{v+2}, v{v+3}, 3, v{v+2}")
        I(f"v_bfe_u32 v{v+3}, v0, 4, 1\nv_and_b32 v{v+4}, 2, v{v}\nv_xor_b32 v{v+3}, v{v+3}, v{v+4}\ns_lshl_b32 s92, s90, 1\nv_xor_b32 v{v+3}, s92, v{v+3}")
        I(f"v_lshl_add_u32 v{v+2}, v{v+3}, 5, v{v+2}\nv_lshl_add_u32 v{v+2}, v{v}, 7, v{v+2}")
        R = self.vFR
        I(f"v_lshl_add_u32 v{v+3}, v{v+1}, 10, v{v+2}\nv_add_u32 v{R}, s{self.sFM0}, v{v+3}\nv_xor_b32 v{R+1}, 64, v{R}")
        I(f"v_add_u32 v{R+2}, s{self.sFM1}, v{v+3}\nv_xor_b32 v{R+3}, 64, v{R+2}")
        I(f"v_lshlrev_b32 v{R+4}, 9, v{v+1}")
        I(f"s_lshl_b32 s93, s87, 1\ns_add_u32 s93, s93, s91\ns_mul_i32 s92, s93, {HO_MT}\ns_mul_i32 s88, s{self.sWV}, {28*1024}")
        I(f"s_add_u32 s92, s92, {HO_OFF - HO_MT}\ns_add_u32 s88, s88, s92\ns_lshl_b32 s94, s94, 12\ns_add_u32 s{self.sFH}, s88, s94")
        I(f"s_lshl_b32 s88, s{self.sWV}, 1\ns_add_u32 s88, s88, s86\ns_lshl_b32 s88, s88, 12\ns_add_u32 s88, s88, s92\ns_add_u32 s{self.sFHO}, s88, {112*1024}")
        I(f"s_cmp_eq_u32 s91, 0\ns_cselect_b32 s92, {2*HO_MT}, 0")
        I(f"v_add_u32 v{R+5}, {HO_MT}, v{self.vL16}\nv_add_u32 v{R+6}, s92, v{self.vL16}")
        I(f"s_lshl_b32 s92, s87, 2\ns_add_u32 s92, s92, s{self.sWV}\ns_mul_i32 s92, s92, {16*896}\ns_add_u32 s{self.sFO}, s92, s89")
        I(f"s_lshl_b32 s92, s93, 7\ns_add_u32 s{self.sZF}, s92, {Z_OFF}")
        I(f"s_lshr_b32 s87, s87, 1\ns_lshl_b32 s87, s87, 8\ns_add_u32 s87, s87, {FL_OFF + 4096}")
        I(f"s_lshl_b32 s88, s{self.sRB}, 8\ns_add_u32 s88, s88, {FL_OFF + 4096 + 56}")
        I(f"v_lshlrev_b32 v{v}, 2, v0\nv_add_u32 v{v}, s87, v{v}\nv_mov_b32 v{v+1}, s88\nv_cmp_gt_u32 vcc, 16, v0\nv_cndmask_b32 v{self.vFA}, v{v+1}, v{v}, vcc")

    def fin_dma(self, step):
        I, b = self.I, self.b
        hi, c = self.ring_addr(step)
        sm = self.sFM1 if hi else self.sFM0

        def first():
            p = self.ring_prev(step)
            if p is not None:
                need = None
                for i, (_d, t) in enumerate(b.lg):
                    if t == f"rw{p}":
                        need = len(b.lg) - 1 - i
                if f"rw{p}" not in self.rw_done:
                    raise NotReady(step)
                b.waitcnt(lg=need)
            I(f"s_add_u32 m0, s{sm}, {c}")
        L = [first]
        if step < 28:
            srd, so = self.S_WD, self.sFW
        else:
            srd, so = self.S_WO, self.sFWO
        if 0 < step < 28 and step % 4 == 0:
            L.append(lambda: I(f"s_cmp_eq_u32 s{self.sWRAP}, {step//4}\ns_cselect_b32 s86, {(-448*896) & 0xFFFFFFFF}, 0\ns_add_u32 s{so}, s{so}, s86\ns_add_u32 s{so}, s{so}, {16*896}"))
        elif 0 < step < 28:
            L.append(lambda: I(f"s_add_u32 s{so}, s{so}, {16*896}"))
        elif step == 32:
            L.append(lambda: I(f"s_add_u32 s{so}, s{so}, s{self.sDWO}"))
        elif step > 28:
            rows = [0, 16, 24, 40]
            d = rows[step % 4] - rows[step % 4 - 1]
            L.append(lambda: I(f"s_add_u32 s{so}, s{so}, {d*896}"))
        for e in range(2):
            L.append(lambda e=e: I(f"buffer_load_dwordx4 v{self.vFD+e}, s[{srd}:{srd+3}], s{so} offen offset:{1024*e}{' nt' if 'f' in self.o.nt else ''} lds", f"w{step}"))
        return L

    rw_done = set()

    def fw(self, step, t):
        return step * 8 + 4 * t if step < 28 else 224 + (step % 2) * 8 + 4 * t

    def fin_rdw(self, step):
        hi, c = self.ring_addr(step)
        L = []
        for t in range(2):
            for e in range(2):
                r = self.fw(step, t) + 2 * e
                imm = c + (512 if step < 28 else 1024) * e

                def f(r=r, t=t, e=e, imm=imm):
                    if t == 0 and e == 0:
                        self.b.wait_tags((f"w{step}",))
                    self.I(f"ds_read_b64_tr_b16 a[{r}:{r+1}], v{self.vFR + 2*hi + t} offset:{imm}", f"rw{step}")
                    if t == 1 and e == 1:
                        self.rw_done.add(f"rw{step}")
                L.append(f)
        return L

    def fin_hload(self, step):
        I = self.I
        L = []
        R = self.vFR
        imm = 1024 * ((step if step < 28 else step - 28) % 4)
        if step == 28:
            L.append(lambda: I(f"s_mov_b32 s{self.sFH}, s{self.sFHO}"))
        elif step == 32:
            L.append(lambda: I(f"s_add_u32 s{self.sFH}, s{self.sFH}, s{self.sDHO}"))
        elif step % 4 == 0 and step > 0:
            L.append(lambda: I(f"s_cmp_eq_u32 s{self.sWRAP}, {step//4}\ns_cselect_b32 s86, {(-28*1024) & 0xFFFFFFFF}, 0\ns_add_u32 s{self.sFH}, s{self.sFH}, s86\ns_add_u32 s{self.sFH}, s{self.sFH}, 0x1000"))
        for a in range(2):
            r = self.FH + (step % self.NH) * 8 + 4 * a
            L.append(lambda r=r, a=a: I(f"buffer_load_dwordx4 v[{r}:{r+3}], v{R+5+a}, s[{self.S_WS}:{self.S_WS+3}], s{self.sFH} offen offset:{imm} sc1", f"h{step}"))
        return L

    def final(self):
        I, b, o = self.I, self.b, self.o
        R = self.vFR
        z = self.vZZ + 1
        nh = o.nh0
        A = self.FACC
        I("\n".join(f"v_sub_u32 v{R+i}, v{R+i}, v{R+4}" for i in range(4)))
        I(f"s_mov_b32 s{self.sMSK}, 0xffff\ns_movk_i32 s{self.sT0}, 0x1000")
        rs = self.record(self.red_setup)
        for n in range(36):
            gaps = [[] for _ in range(4)]
            if n in o.fs:
                self.ts()
            if n >= 19 and rs:
                gaps[2].append(rs.pop(0))
            if 28 <= n + 1 < 36:
                rd = self.fin_rdw(n + 1)
                gaps[0] += rd[:2]
                gaps[1] += rd[2:]
            if n >= o.wo0 and (n - o.wo0) % o.wodt == 0 and self.wo_next < 36:
                dd = self.fin_dma(self.wo_next)
                self.wo_next += 1
                gaps[0] += dd[:-1]
                gaps[3] += dd[-1:]
            if n == o.opub:
                gaps[0].append(lambda: (b.wait_tags(("o",)), I("s_barrier"), self.flag_store(2)))
            if n == o.opoll_issue:
                gaps[1].append(lambda: self.poll_issue(self.vFA, self.vPOLL, soff=f"s{self.sT0}"))
            lim = 28 if n < o.opoll_check else 36
            if n == o.opoll_check:
                gaps[0].append(lambda: self.poll_check(self.vFA, self.vPOLL, self.sMSK, soff=f"s{self.sT0}"))
            cnt = 0
            while nh < lim and nh - self.NH < n and cnt < o.hrate:
                hl = self.fin_hload(nh)
                gaps[(2 * cnt + 1) % 4] += hl[:-1]
                gaps[(2 * cnt + 2) % 4 if cnt == 0 else 3] += hl[-1:]
                nh += 1
                cnt += 1
            if n == 28:
                for s in range(4):
                    for k in range(0, 16, 2):
                        I(f"v_pk_mul_f32 v[{A[s]+k}:{A[s]+k+1}], v[{A[s]+k}:{A[s]+k+1}], v[{z}:{z+1}] op_sel:[0,{s&1}] op_sel_hi:[1,{s&1}]")
            i = 0
            tiles = [(0, 0), (0, 1), (1, 0), (1, 1)] if n < 35 else [(0, 1), (1, 0), (1, 1), (0, 0)]
            for t, a in tiles:
                rw = self.fw(n, t)
                rh = self.FH + (n % self.NH) * 8 + 4 * a
                self.mfma(A[2 * t + a], f"a[{rw}:{rw+3}]", f"v[{rh}:{rh+3}]", n == 0)
                for f in gaps[i]:
                    f()
                i += 1
        self.ts()
        W, Rr, vo = self.vRW, self.vRR, self.vRO
        for sg in (1, 2, 3, 0):
            for q in range(4):
                r = A[sg] + 4 * q
                I(f"ds_write_b128 v{W+q}, v[{r}:{r+3}] offset:{(sg & 1) * 8192 + (sg >> 1) * 128}")
        b.waitcnt(lg=0)
        I("s_barrier")
        T = self.FH
        for i in range(2):
            for w_ in range(4):
                for e_ in range(2):
                    r = T + 32 * i + 8 * w_ + 4 * e_
                    I(f"ds_read_b128 v[{r}:{r+3}], v{Rr + 2*w_ + e_} offset:{2048*i}")
        for i in range(2):
            r = T + 32 * i
            for k in range(0, 8, 2):
                I(f"v_pk_add_f32 v[{r+k}:{r+k+1}], v[{r+k}:{r+k+1}], v[{r+8+k}:{r+9+k}]")
            for k in range(0, 8, 2):
                I(f"v_pk_add_f32 v[{r+16+k}:{r+17+k}], v[{r+16+k}:{r+17+k}], v[{r+24+k}:{r+25+k}]")
            for k in range(0, 8, 2):
                I(f"v_pk_add_f32 v[{r+k}:{r+k+1}], v[{r+k}:{r+k+1}], v[{r+16+k}:{r+17+k}]")
            for k in range(4):
                I(f"v_cvt_pk_bf16_f32 v{r+k}, v{r+2*k}, v{r+2*k+1}")
            if o.thr and i == 0:
                b.raw("s_memrealtime s[100:101]")
                b.raw("s_waitcnt lgkmcnt(0)")
                b.lg = []
                I(f"global_load_dwordx2 v[46:47], v{self.vZ}, s[{self.pDBG}:{self.pDBG+1}] offset:128 sc1\nv_or_b32 v46, v46, v47\nv_readfirstlane_b32 s101, v46")
                I(f"s_sub_u32 s100, s100, s{self.sTAG}\ns_cmp_gt_i32 s100, {o.thr}\ns_cselect_b32 s100, 0x7fc07fc0, 0")
                I(f"s_cmp_lg_u32 s101, 0\ns_cselect_b32 s100, 0, s100\nv_or_b32 v{r}, s100, v{r}")
            I(f"buffer_store_dwordx4 v[{r}:{r+3}], v{vo+i}, s[{self.S_OUT}:{self.S_OUT+3}], s{self.sFO} offen{' nt' if 'o' in self.o.nt else ''}{' sc1' if 'O' in self.o.nt else ''}")

    vRW, vRR, vRO = 4, 8, 16

    def red_setup(self):
        I = self.I
        W, Rr, vo, t = self.vRW, self.vRR, self.vRO, 18
        I(f"v_and_b32 v{t}, 31, v0\nv_lshlrev_b32 v{t}, 8, v{t}\nv_add_u32 v{t}, s{self.sFM1}, v{t}")
        I(f"v_lshrrev_b32 v{t+1}, 5, v0\nv_lshlrev_b32 v{t+1}, 1, v{t+1}\nv_and_b32 v{t+2}, 7, v0\nv_xor_b32 v{t+1}, v{t+1}, v{t+2}")
        I(f"v_lshl_add_u32 v{W}, v{t+1}, 4, v{t}\nv_xor_b32 v{W+1}, 16, v{W}\nv_xor_b32 v{W+2}, 64, v{W}\nv_xor_b32 v{W+3}, 0x50, v{W}")
        I(f"v_lshrrev_b32 v{t}, 3, v0\nv_and_b32 v{t+1}, 3, v0\nv_lshlrev_b32 v{t+1}, 1, v{t+1}\nv_xor_b32 v{t+1}, v{t+1}, v{t}")
        I(f"v_lshlrev_b32 v{t+1}, 4, v{t+1}\nv_lshl_add_u32 v{t+1}, v{t}, 8, v{t+1}\nv_bfe_u32 v{t+2}, v0, 2, 1\nv_lshl_add_u32 v{t+1}, v{t+2}, 7, v{t+1}")
        I(f"s_and_b32 s86, s{self.sWV}, 1\ns_lshl_b32 s86, s86, 12\ns_lshr_b32 s87, s{self.sWV}, 1\ns_lshl_b32 s87, s87, 13\ns_add_u32 s86, s86, s87\nv_add_u32 v{t+1}, s86, v{t+1}")
        for w_ in range(4):
            x = ((w_ & 1) << 13) | ((w_ >> 1) << 7)
            I(f"v_xor_b32 v{Rr+2*w_}, {x}, v{t+1}\nv_add_u32 v{Rr+2*w_}, {RING_HI + w_*16*K}, v{Rr+2*w_}\nv_xor_b32 v{Rr+2*w_+1}, 16, v{Rr+2*w_}")
        I(f"v_mul_u32_u24 v{vo}, 0x380, v{t}\nv_and_b32 v{t+2}, 7, v0\nv_lshl_add_u32 v{vo}, v{t+2}, 4, v{vo}\nv_add_u32 v{vo+1}, {8*896}, v{vo}")

    def build(self):
        I, b, o = self.I, self.b, self.o
        b.label(KNAME)
        import re as _re
        self.phase = "p1"
        rules = {"Gwdma": lambda i: i.kind == "vmem" and i.tag and _re.match(r"w\d", i.tag),
                 "Gst": lambda i: i.kind == "vmem" and i.op == "buffer_store_dwordx4" and "sc1" in i.text,
                 "Ghld": lambda i: i.kind == "vmem" and i.tag and _re.match(r"h\d", i.tag),
                 "Gmf": lambda i: i.kind == "mfma" and self.phase == "fin",
                 "Gmp": lambda i: i.kind == "mfma" and self.phase == "p1",
                 "Gexp": lambda i: i.op in ("v_exp_f32", "v_pk_fma_f32") and self.phase == "att",
                 "Gkv": lambda i: i.kind == "vmem" and i.tag in ("K", "V"),
                 "Grw": lambda i: i.kind == "ds" and i.tag is not None}
        b.gdrop = tuple(rules[a] for a in o.abl.split(",") if a in rules)
        self.prologue()
        self.ts(98)
        self.ts(99)
        self.sts_flush()
        self.ts()
        self.passA()
        self.ts()
        I(f"s_cmp_lg_u32 s{self.sISV}, 0\ns_cbranch_scc1 L_vpath")
        snap = b.snapshot()
        nts0 = self.nts
        self.passB_GU()
        gu_vm = list(b.vm)
        gu_lg = [t for _d, t in b.lg]
        I("s_branch L_join")
        b.label("L_vpath")
        b.restore(snap)
        self.rw_done = set()
        self.nts = nts0
        self.passB_V()
        b.label("L_join")
        vt = [t for _d, t in b.vm]
        gt = [t for _d, t in gu_vm]
        after = lambda L, t: L[::-1].index(t) if t in L else 10 ** 6
        for t in set(vt) | set(gt):
            if t is not None:
                assert o.abl or after(vt, t) <= after(gt, t), (t, vt, gt)
        assert [t for _d, t in b.lg] == gu_lg
        self.ts()
        self.phase = "att"
        self.attention()
        self.phase = "fin"
        self.ts()
        I(f"s_cmp_lg_u32 s{self.sFIN}, 0\ns_cbranch_scc0 L_nofinal")
        snap2 = b.snapshot()
        self.final()
        if o.ts:
            b.wait_all()
            self.ts(last=True)
        I("s_endpgm")
        b.label("L_nofinal")
        b.restore(snap2)
        b.wait_tags(("o",))
        I("s_barrier")
        self.flag_store(2)
        b.label("L_exit")
        b.raw("s_endpgm")

    def text(self):
        hdr = open("gated_mix__sliding_block__glu_gated_glu__prompt.s.ref").read().split("; Override launch")[0]
        s = hdr
        s += "; Generated by my own generator script (hand-designed schedule; no compiler output).\n"
        s += "; @launch grid=(256,1,1) block=(256,1,1) lds=163840\n"
        s += '.amdgcn_target "amdgcn-amd-amdhsa--gfx950"\n.text\n'
        s += f".globl {KNAME}\n.p2align 8\n.type {KNAME},@function\n"
        s += self.b.text()
        s += f""".section .rodata,"a"
.p2align 6
.amdhsa_kernel {KNAME}
  .amdhsa_next_free_vgpr 512
  .amdhsa_next_free_sgpr 102
  .amdhsa_accum_offset 256
  .amdhsa_group_segment_fixed_size 0
  .amdhsa_kernarg_size 88
  .amdhsa_user_sgpr_count 2
  .amdhsa_user_sgpr_kernarg_segment_ptr 1
  .amdhsa_system_sgpr_workgroup_id_x 1
.end_amdhsa_kernel
"""
        return s


def main():
    ap = argparse.ArgumentParser()
    ap.add_argument("-o", default="k.s")
    ap.add_argument("--ts", action="store_true")
    ap.add_argument("--cyc", action="store_true")
    ap.add_argument("--thrpat", type=int, default=1)
    ap.add_argument("--badmap", type=int, default=0)
    ap.add_argument("--thr", type=int, default=0)
    ap.add_argument("--lite", action="store_true")
    ap.add_argument("--dbgts", type=int, default=0)
    ap.add_argument("--sts", action="store_true")
    ap.add_argument("--pk", type=int, default=1)
    ap.add_argument("--pkB", type=int, default=1)
    ap.add_argument("--align", type=int, default=1)
    ap.add_argument("--coop", type=int, default=1)
    ap.add_argument("--lead", type=int, default=2)
    ap.add_argument("--rot", type=int, default=0)
    ap.add_argument("--fl0", type=int, default=11)
    ap.add_argument("--kpoll", type=int, default=21)
    ap.add_argument("--kchk", type=int, default=25)
    ap.add_argument("--epi_end", type=int, default=28)
    ap.add_argument("--nbq", type=int, default=4)
    ap.add_argument("--wA", type=int, default=1)
    ap.add_argument("--presetup", type=float, default=1.0)
    ap.add_argument("--fake16", default="")
    ap.add_argument("--cap", type=int, default=24)
    ap.add_argument("--capA", type=int, default=8)
    ap.add_argument("--capB", type=int, default=12)
    ap.add_argument("--epi_lag", type=int, default=4)
    ap.add_argument("--pace", type=int, default=0)
    ap.add_argument("--slp", type=int, default=0)
    ap.add_argument("--wsoff", type=int, default=0)
    ap.add_argument("--nt", default="")
    ap.add_argument("--wodt", type=int, default=2)
    ap.add_argument("--nwo", type=int, default=0)
    ap.add_argument("--wot", type=int, default=5)
    ap.add_argument("--ramp", type=int, default=0)
    ap.add_argument("--late1", type=int, default=1)
    ap.add_argument("--pfgap", type=int, default=2)
    ap.add_argument("--tagn", type=int, default=13)
    ap.add_argument("--pf0", type=int, default=2)
    ap.add_argument("--pfn0", type=int, default=1)
    ap.add_argument("--pft0", type=int, default=0)
    ap.add_argument("--pfdt", type=int, default=4)
    ap.add_argument("--nB2", type=int, default=3)
    ap.add_argument("--rd0", type=int, default=3)
    ap.add_argument("--p0", type=int, default=4)
    ap.add_argument("--ppace", type=float, default=1.25)
    ap.add_argument("--w0", type=int, default=9)
    ap.add_argument("--wpace", type=float, default=1.25)
    ap.add_argument("--epi_ahead", type=int, default=4)
    ap.add_argument("--nb0", type=int, default=3)
    ap.add_argument("--dtiles", type=int, default=5)
    ap.add_argument("--rdper", type=int, default=4)
    ap.add_argument("--wo0", type=int, default=1)
    ap.add_argument("--cld", type=int, default=8)
    ap.add_argument("--cst", type=int, default=12)
    ap.add_argument("--abl", default="")
    ap.add_argument("--vs", type=int, default=0)
    ap.add_argument("--rB", type=int, default=1)
    ap.add_argument("--wlat", type=int, default=7)
    ap.add_argument("--hpub", type=int, default=1)
    ap.add_argument("--hpoll", type=int, default=5)
    ap.add_argument("--nh0", type=int, default=8)
    ap.add_argument("--hrate", type=int, default=1)
    ap.add_argument("--opub", type=int, default=6)
    ap.add_argument("--opoll_issue", type=int, default=14)
    ap.add_argument("--opoll_check", type=int, default=18)
    ap.add_argument("--pfs", default="0:0:3:0:0,10:3:7:0:0,14:0:0:1:0,20:0:0:0:1", type=lambda t: [tuple(int(y) for y in x.split(":")) for x in t.split(",") if x])
    ap.add_argument("--xpf", default="", type=lambda t: [tuple(int(y) for y in x.split(":")) for x in t.split(",") if x])
    for k in ("fs", "bs", "ss", "As"):
        ap.add_argument("--" + k, default="", type=lambda t: [int(x) for x in t.split(",") if x])
    o = ap.parse_args()
    g = G(o)
    g.build()
    open(o.o, "w").write(g.text())
    print(f"st0 issued at byte {g.off_st0}; code bytes {g.b.off}, hazard nops {g.b.nops_added}, stamps {g.nts}", file=sys.stderr)


if __name__ == "__main__":
    main()
```
